```python
import torch

def _softmax(x, axis=-1):
    return torch.softmax(x, dim=axis)
def _gelu(x):
    return torch.nn.functional.gelu(x, approximate="tanh")
def _silu(x):
    return torch.nn.functional.silu(x)
def _sigmoid(x):
    return torch.sigmoid(x)
def _layernorm(x, axis=-1, eps=1e-5):
    m = x.mean(dim=axis, keepdim=True)
    v = x.var(dim=axis, keepdim=True, unbiased=False)
    return (x - m) / torch.sqrt(v + eps)
def _scatter_add(tgt, idx, src, axis=0):
    return tgt.clone().index_add_(axis, idx, src)
def _segment_sum(src, seg, n):
    out = torch.zeros((n,) + src.shape[1:], dtype=src.dtype)
    return out.index_add_(0, seg, src)
def _pad(x, pw):
    flat = tuple(v for pair in reversed(pw) for v in pair)
    return torch.nn.functional.pad(x, flat)

kernel_name = 'interleave_layers__mha_block_cached__glu_gated_reglu__decode'

def setup_inputs():

    _w = (lambda a: (lambda t: t.to(torch.bfloat16) if t.is_floating_point() else t)(torch.as_tensor(a)))
    def _A_setup():
        B, Sq, D = 2, 1, 448
        H, Sk, Dh = 16, 4096, 256
        return {
            "x": _w((lambda *s: torch.randn(*s, dtype=torch.bfloat16) * 0.05)(B, Sq, D)),
            "k_cache": _w((lambda *s: torch.randn(*s, dtype=torch.bfloat16) * 1.6)(B, H, Sk, Dh)),
            "v_cache": _w((lambda *s: torch.randn(*s, dtype=torch.bfloat16) * 0.8)(B, H, Sk, Dh)),
            "wq": _w((lambda *s: torch.randn(*s, dtype=torch.bfloat16) * 1.6)(D, H * Dh) * (D ** -0.5)),
            "wo": _w((lambda *s: torch.randn(*s, dtype=torch.bfloat16) * 0.8)(H * Dh, D) * ((H * Dh) ** -0.5)),
        }
    _A_in = _A_setup()

    def _B_setup():
        B, S, D, F = 2, 1, 448, 1792
        return {
            "x": _w((lambda *s: torch.randn(*s, dtype=torch.bfloat16) * 0.05)(B, S, D)),
            "W_gate": _w((lambda *s: torch.randn(*s, dtype=torch.bfloat16) * 0.4)(D, F) * (2.0 / D) ** 0.5),
            "W_up": _w((lambda *s: torch.randn(*s, dtype=torch.bfloat16) * 0.4)(D, F) * (2.0 / D) ** 0.5),
            "W_down": _w((lambda *s: torch.randn(*s, dtype=torch.bfloat16) * 0.4)(F, D) * (1.0 / F) ** 0.5),
        }
    _B_in = _B_setup()

    return {
        "A_x": _A_in["x"],
        "A_k_cache": _A_in["k_cache"],
        "A_v_cache": _A_in["v_cache"],
        "A_wq": _A_in["wq"],
        "A_wo": _A_in["wo"],
        "B_x": _B_in["x"],
        "B_W_gate": _B_in["W_gate"],
        "B_W_up": _B_in["W_up"],
        "B_W_down": _B_in["W_down"],
    }

def reference(A_x, A_k_cache, A_v_cache, A_wq, A_wo, B_x, B_W_gate, B_W_up, B_W_down):
    def _A_ref(x, k_cache, v_cache, wq, wo):
        B, Sq, D = x.shape
        H, Dh = 16, 256
        q = (lambda x, *d: x.permute(*d))((x @ wq).reshape(B, Sq, H, Dh), 0, 2, 1, 3)
        scores = torch.einsum("bhqd,bhkd->bhqk", q, k_cache) * (Dh ** -0.5)
        p = _softmax(scores, axis=-1)
        o = torch.einsum("bhqk,bhkd->bhqd", p, v_cache)
        return (lambda x, *d: x.permute(*d))(o, 0, 2, 1, 3).reshape(B, Sq, H * Dh) @ wo

    def _B_ref(x, W_gate, W_up, W_down):
        gate = torch.einsum("bsd,df->bsf", x, W_gate)
        up = torch.einsum("bsd,df->bsf", x, W_up)
        gate = gate * (lambda x, dt: x.to(dt))(gate > 0, gate.dtype)
        h = gate * up
        return torch.einsum("bsf,fd->bsd", h, W_down)

    x = A_x
    x = x + _A_ref(_layernorm(x, axis=-1), A_k_cache, A_v_cache, A_wq, A_wo)
    x = x + _B_ref(_layernorm(x, axis=-1), B_W_gate, B_W_up, B_W_down)
    x = x + _A_ref(_layernorm(x, axis=-1), A_k_cache, A_v_cache, A_wq, A_wo)
    x = x + _B_ref(_layernorm(x, axis=-1), B_W_gate, B_W_up, B_W_down)
    return x
```

```python
NAME = "interleave_layers__mha_block_cached__glu_gated_reglu__decode"
class Asm:
    def __init__(self, grid=256, block=256, lds=163840):
        self.L = []
        self.grid = grid; self.block = block; self.lds = lds
        self.uid = 0
    def __call__(self, s):
        for line in s.split("\n"):
            line = line.strip()
            if line: self.L.append(line)
    def label(self, base="L"):
        self.uid += 1
        return f"{base}_{self.uid}"
    def text(self, nvgpr=512, accum=256, extra_header=""):
        H = [f"; @launch grid=({self.grid},1,1) block=({self.block},1,1) lds={self.lds}"]
        if extra_header: H += extra_header.split("\n")
        H += ['.amdgcn_target "amdgcn-amd-amdhsa--gfx950"', ".text", f".globl {NAME}_kernel", ".p2align 8",
              f".type {NAME}_kernel,@function", f"{NAME}_kernel:"]
        T = ['.section .rodata,"a"', ".p2align 6", f".amdhsa_kernel {NAME}_kernel",
             f"  .amdhsa_next_free_vgpr {nvgpr}", "  .amdhsa_next_free_sgpr 102", f"  .amdhsa_accum_offset {accum}",
             "  .amdhsa_group_segment_fixed_size 0", "  .amdhsa_kernarg_size 96", "  .amdhsa_user_sgpr_count 2",
             "  .amdhsa_user_sgpr_kernarg_segment_ptr 1", "  .amdhsa_system_sgpr_workgroup_id_x 1", ".end_amdhsa_kernel"]
        return "\n".join(H + self.L + T) + "\n"
    def write(self, fn, **kw):
        open(fn, "w").write(self.text(**kw))
```

```python
import re
TRANS = ("v_exp_f32", "v_log_f32", "v_rcp_f32", "v_rsq_f32", "v_sqrt_f32", "v_sin_f32", "v_cos_f32", "v_rcp_iflag_f32")
def regs_of(tok):
    tok = tok.strip()
    neg = False
    if tok.startswith("-"): tok = tok[1:]
    if tok.startswith("abs(") and tok.endswith(")"): tok = tok[4:-1]
    if tok.startswith("|") and tok.endswith("|"): tok = tok[1:-1]
    m = re.fullmatch(r"([vas])(\d+)", tok)
    if m: return {(m.group(1), int(m.group(2)))}
    m = re.fullmatch(r"([vas])\[(\d+):(\d+)\]", tok)
    if m: return {(m.group(1), k) for k in range(int(m.group(2)), int(m.group(3)) + 1)}
    if tok == "vcc": return {("s", "vcc")}
    if tok in ("vcc_lo", "vcc_hi"): return {("s", "vcc")}
    if tok == "exec" or tok in ("exec_lo", "exec_hi"): return {("s", "exec")}
    if tok == "m0": return {("s", "m0")}
    return set()
class I:
    def __init__(self, text):
        self.text = text
        t = text.split(";")[0].strip()
        self.label = None; self.op = None
        self.dst = set(); self.src = set(); self.cls = "none"; self.states = 0
        self.target = None; self.uncond = False
        if not t: return
        if t.endswith(":"):
            self.label = t[:-1]; return
        if t.startswith("."): return
        parts = t.split(None, 1)
        op = parts[0]; self.op = op
        rest = parts[1] if len(parts) > 1 else ""
        ops = []; cur = ""; depth = 0
        for ch in rest:
            if ch in "[(": depth += 1
            if ch in "])": depth -= 1
            if ch == "," and depth == 0: ops.append(cur.strip()); cur = ""
            else: cur += ch
        if cur.strip(): ops.append(cur.strip())
        mods = ""
        if ops:
            sp = ops[-1].split()
            if len(sp) > 1 and not ops[-1].startswith("hwreg"):
                ops[-1] = sp[0]; mods = " ".join(sp[1:])
        self.ops = ops; self.mods = mods
        self.states = 1
        R = [regs_of(o) for o in ops]
        if op == "s_nop":
            self.cls = "nop"; self.states = int(ops[0], 0) + 1
        elif op.startswith("v_mfma") or op.startswith("v_smfmac"):
            self.cls = "mfma"; self.dst = R[0]; self.srcA = R[1]; self.srcB = R[2]; self.srcC = R[3] if len(R) > 3 else set()
            self.src = R[1] | R[2] | self.srcC
            self.passes = 8 if "32x32" in op else 4
        elif op.startswith("v_"):
            self.cls = "valu"
            self.dpp = ("dpp" in op) or any(k in mods for k in ("row_", "quad_perm", "wave_"))
            self.trans = any(op.startswith(x) for x in TRANS)
            self.permlane = op.startswith("v_permlane")
            self.readlane = op.startswith("v_readlane") or op.startswith("v_readfirstlane")
            self.writelane = op.startswith("v_writelane")
            if self.permlane:
                self.dst = R[0] | R[1]; self.src = R[0] | R[1]
            elif op.startswith("v_cmp"):
                self.dst = R[0]; self.src = set().union(*R[1:])
            elif op.startswith(("v_add_co", "v_sub_co", "v_addc_co", "v_subb_co", "v_subrev_co")):
                self.dst = R[0] | R[1]; self.src = set().union(*R[2:])
            else:
                self.dst = R[0]; self.src = set().union(*R[1:]) if len(R) > 1 else set()
                if op.startswith(("v_fmac", "v_mac", "v_dot2c", "v_writelane")) or self.dpp: self.src |= R[0]
                if op.startswith("v_cndmask") and len(ops) == 3: self.src |= {("s", "vcc")}
            self.lanesel = R[2] if (op.startswith("v_readlane") or op.startswith("v_writelane")) and len(R) > 2 else set()
        elif op.startswith(("global_", "buffer_", "flat_", "scratch_")):
            self.cls = "vmem"
            self.lds = (" lds" in " " + mods) or ("load_lds" in op)
            self.wide_store = False
            if op in ("buffer_inv", "buffer_wbl2"):
                pass
            elif "load" in op and not self.lds:
                self.dst = R[0]; self.src = set().union(*R[1:])
            elif self.lds:
                self.src = set().union(*R) | {("s", "m0")}
            elif op.startswith("global_store") or op.startswith("flat_store"):
                self.src = set().union(*R); self.data = R[1]
                self.wide_store = "x3" in op or "x4" in op
            elif op.startswith("buffer_store"):
                self.src = set().union(*R); self.data = R[0]
                self.wide_store = "x3" in op or "x4" in op
            elif "atomic" in op:
                ret = "sc0" in mods
                if ret: self.dst = R[0]; self.src = set().union(*R[1:])
                else: self.src = set().union(*R)
        elif op.startswith("ds_"):
            self.cls = "ds"
            if op.startswith(("ds_read", "ds_bpermute", "ds_permute", "ds_swizzle")):
                self.dst = R[0]; self.src = set().union(*R[1:])
            else:
                self.src = set().union(*R)
        elif op.startswith("s_"):
            if op.startswith(("s_cbranch", "s_branch")):
                self.cls = "branch"; self.target = ops[0]; self.uncond = op == "s_branch"
            elif op in ("s_endpgm",):
                self.cls = "end"; self.uncond = True
            elif op.startswith(("s_setpc",)):
                self.cls = "end"; self.uncond = True
            elif op.startswith(("s_waitcnt", "s_barrier", "s_sleep", "s_setprio")):
                self.cls = "misc"
            elif op.startswith(("s_load", "s_memtime", "s_memrealtime", "s_buffer_load")):
                self.cls = "smem"; self.dst = R[0]; self.src = set().union(*R[1:]) if len(R) > 1 else set()
            elif op.startswith("s_cmp") or op.startswith("s_bitcmp"):
                self.cls = "salu"; self.src = set().union(*R)
            else:
                self.cls = "salu"; self.dst = R[0] if R else set(); self.src = set().union(*R[1:]) if len(R) > 1 else set()
                if "saveexec" in op: self.dst = self.dst | {("s", "exec")}
        else:
            raise ValueError("unknown instruction: " + text)
def vg(s): return {r for r in s if r[0] in "va"}
def sg(s): return {r for r in s if r[0] == "s"}
def need(p, c):
    n = 0
    if p.cls == "valu":
        pv = vg(p.dst); ps = sg(p.dst)
        if c.cls == "mfma" and pv & c.src: n = max(n, 2)
        if c.cls == "valu":
            if c.dpp and pv & vg(c.src): n = max(n, 2)
            if c.permlane and pv & c.src: n = max(n, 2)
            if c.readlane and pv & vg(c.src): n = max(n, 1)
            if ps & sg(c.src): n = max(n, 2)
            if ps & c.lanesel: n = max(n, 4)
            if p.trans and not c.trans and pv & (vg(c.src)): n = max(n, 1)
            if ("s", "exec") in ps and c.dpp: n = max(n, 5)
        if c.cls == "vmem" and ps & sg(c.src): n = max(n, 5)
        if c.cls == "salu" and ps & sg(c.src): n = max(n, 1)
        if p.trans and c.cls in ("vmem", "ds") and pv & vg(c.src): n = max(n, 1)
    if p.cls == "mfma":
        d = p.dst
        raw = {4: 8, 8: 12}[p.passes]
        if c.cls in ("valu",) and d & (c.src | c.dst): n = max(n, raw)
        if c.cls in ("vmem", "ds") and d & (c.src | c.dst): n = max(n, raw)
        if c.cls == "mfma":
            if d & (c.srcA | c.srcB): n = max(n, raw)
            if d & c.srcC:
                if not (d == c.srcC and p.passes == c.passes): n = max(n, {4: 6, 8: 10}[p.passes])
            elif d & c.dst and d != c.dst: n = max(n, raw)
        if c.cls == "valu" and p.srcC & c.dst: n = max(n, {4: 3, 8: 7}[p.passes])
    if p.cls == "salu" and ("s", "m0") in p.dst and c.cls == "vmem" and c.lds: n = max(n, 1)
    if p.cls == "vmem" and getattr(p, "wide_store", False):
        if c.cls == "valu" and p.data & c.dst: n = max(n, 2)
        elif c.cls in ("vmem", "ds", "mfma") and p.data & c.dst: n = max(n, 1)
    return n
MAXD = 20
def fix(lines, verbose=False):
    ins = [I(l) for l in lines]
    labels = {x.label: k for k, x in enumerate(ins) if x.label}
    preds_br = {}
    for k, x in enumerate(ins):
        if x.cls == "branch":
            if x.target not in labels: raise ValueError("unknown label " + x.target)
            preds_br.setdefault(labels[x.target], []).append(k)
    extra = [0] * len(ins)
    total = 0
    for c_idx, c in enumerate(ins):
        if c.states == 0 or c.cls in ("nop", "misc", "branch", "end", "smem"): continue
        req = 0
        stack = []; seen = set()
        def push_preds(k, dist):
            if k - 1 >= 0 and not ins[k - 1].uncond: stack.append((k - 1, dist))
            for b in preds_br.get(k, []): stack.append((b, dist))
        push_preds(c_idx, 0)
        while stack:
            k, dist = stack.pop()
            if (k, dist) in seen or dist >= MAXD: continue
            seen.add((k, dist))
            p = ins[k]
            if p.states:
                n = need(p, c)
                if n > dist: req = max(req, n - dist)
            nd = dist + p.states + extra[k]
            nd = dist + p.states
            push_preds(k, nd + extra[k])
        if req:
            extra[c_idx] = req; total += req
            if verbose: print("insert", req, "before:", c.text)
    out = []
    for k, x in enumerate(ins):
        e = extra[k]
        while e > 0:
            m = min(e, 16); out.append(f"s_nop {m-1}"); e -= m
        out.append(x.text)
    return out, total
```

```python
import sys, argparse, struct
from asmlib import Asm, NAME
import hazard

GOFF = 0x100000; LSTRIDE = 0x8000
R_Q = 0x0000; R_ML = 0x0800; R_X1 = 0x0A00; R_ST1 = 0x1100; R_H = 0x1300; R_X2 = 0x1800; R_ST2 = 0x1F00; R_O = 0x4000
COFF = GOFF + 0x80000
EOFF = 0x0F0000
QTOFF = 0x0F8000
TAGC = 0x9E3779B9
NLDS = 19
VW = NLDS * 2048
LDS_OP = 4 * VW; LDS_MLP = LDS_OP + 4096; LDS_QL = LDS_MLP + 64; LDS_FLAG = LDS_QL + 512; LDS_RED = LDS_FLAG + 64
assert LDS_RED + 2048 <= 163840
LOG2E = 1.4426950408889634
QSCALE = LOG2E / 16.0
ROLE_WQ, ROLE_WO, ROLE_GU, ROLE_DN, ROLE_NONE = 0, 1, 2, 3, 4

def f32(x): return "0x%08x" % struct.unpack("<I", struct.pack("<f", x))[0]
def X(n): assert 0 <= n < 20; return f"v{4+n}"
def T(n): assert 0 <= n < 64; return f"v{24+n}"
def W(n): assert 0 <= n < 64; return f"v{88+n}"
def VR(n): assert 0 <= n < 104; return f"v{152+n}"
def rng(f, a, n):
    s = f(a); k = int(s[1:]); assert n == 1 or k % 2 == 0, (s, n); return f"{s[0]}[{k}:{k+n-1}]"
def XR(a, n): return rng(X, a, n)
def TR(a, n): return rng(T, a, n)
def WR(a, n): return rng(W, a, n)
def VRR(a, n): return rng(VR, a, n)
LANE = "v0"; CS = "v1"; L16 = "v2"; TMP = "v3"
sM0B = "s3"
sXIN = "s[4:5]"
sOUT = "s[16:17]"; sDBG = "s[18:19]"; sWS = "s[20:21]"; sG = "s[22:23]"; sC = "s[24:25]"
sWAVE = "s26"; sGI = "s27"; sJ = "s28"; sHL = "s29"; sB = "s30"; sSP = "s31"
sMODE = "s32"; sBUD = "s33"; sLAYER = "s34"; sTILE = "s35"
sTAG = "s46"; sROLE = "s6"; sSIG = "s7"
sSEL = "s[60:61]"
SA = "s[70:71]"; SB = "s[72:73]"; SC_ = "s[74:75]"; SD = "s[64:65]"
WBAR = "v[14:15]"; WBAR0 = "v14"; WBAR1 = "v15"
DPP = "row_mask:0xf bank_mask:0xf"

class Gen:
    def __init__(self, opt):
        self.o = opt; self.A = Asm(); self.ob = 0
    def stamp(self, k):
        if not self.o.prof: return
        if self.o.stamps is not None and k not in [int(x) for x in self.o.stamps.split(",")]: return
        A = self.A
        A("s_memrealtime s[76:77]"); A("s_waitcnt lgkmcnt(0)")
        if 6 <= k <= 14:
            A(f"s_cmp_eq_u32 {sLAYER}, 0"); A(f"s_cselect_b32 s{80+k}, s76, s{80+k}"); A(f"s_cselect_b32 s{30+k}, s{30+k}, s76")
        else:
            A(f"s_mov_b32 s{80+k}, s76")
    def gbase(self, dst, off, layer=None):
        A = self.A; d = int(dst[2:dst.index(":")])
        if layer is None:
            A(f"s_mul_i32 s68, {sLAYER}, {LSTRIDE}"); A(f"s_add_u32 s68, s68, {off}")
            A(f"s_add_u32 s{d}, s22, s68")
        else:
            A(f"s_add_u32 s{d}, s22, {off + layer*LSTRIDE}")
        A(f"s_addc_u32 s{d+1}, s23, 0")
    def cbase(self, dst, kind):
        A = self.A; d = int(dst[2:dst.index(":")])
        A(f"s_lshl_b32 s68, {sLAYER}, 16"); A(f"s_lshl_b32 s69, {sSIG}, 10"); A("s_add_u32 s68, s68, s69")
        if kind: A(f"s_add_u32 s68, s68, {kind*0x8000}")
        A(f"s_add_u32 s{d}, s24, s68"); A(f"s_addc_u32 s{d+1}, s25, 0")
    def maxops(self, dst, regs, first=True):
        out = []; regs = list(regs)
        if first:
            if len(regs) >= 3: out.append(f"v_max3_u32 {dst}, {regs[0]}, {regs[1]}, {regs[2]}"); regs = regs[3:]
            elif len(regs) == 2: out.append(f"v_max_u32 {dst}, {regs[0]}, {regs[1]}"); regs = []
            else: out.append(f"v_mov_b32 {dst}, {regs[0]}"); regs = []
        while len(regs) >= 2:
            out.append(f"v_max3_u32 {dst}, {dst}, {regs[0]}, {regs[1]}"); regs = regs[2:]
        if regs: out.append(f"v_max_u32 {dst}, {dst}, {regs[0]}")
        return out
    def chk_regs(self, f, base, nload):
        if self.o.fullcheck: return [f(base + k) for k in range(4 * nload)]
        return [f(base + 4 * k) for k in range(nload)]
    def poll_tail(self, chk, loop, done, sleep=0):
        A = self.A
        A(f"v_cmp_eq_u32 vcc, -1, {chk}")
        A(f"s_cbranch_vccz {done}")
        A(f"s_cmp_eq_u32 {sBUD}, 0"); A(f"s_cbranch_scc1 {done}")
        A(f"s_sub_u32 {sBUD}, {sBUD}, 1")
        if sleep: A(f"s_sleep {sleep}")
        A(f"s_branch {loop}")
    def gate(self, base, vaddr, off, dst, lab):
        if not self.o.gate: return
        A = self.A
        A(f"{lab}:")
        A(f"global_load_dword {dst}, {vaddr}, {base} offset:{off} sc1"); A("s_waitcnt vmcnt(0)")
        self.poll_tail(dst, lab, lab + "_d", sleep=self.o.gatesleep)
        A(f"{lab}_d:")
    def pub(self, instr):
        A = self.A
        l1 = A.label("PUBF"); l2 = A.label("PUBD")
        A(f"s_cmp_eq_u32 {sMODE}, 1"); A(f"s_cbranch_scc1 {l1}")
        A(instr + " sc1"); A(f"s_branch {l2}")
        A(f"{l1}:"); A(instr); A(f"{l2}:")
    def set_exec(self, lo, hi):
        A = self.A
        if lo == 0xFFFFFFFF and hi == 0xFFFFFFFF: A("s_mov_b64 exec, -1"); return
        A(f"s_mov_b32 exec_lo, {hex(lo)}"); A(f"s_mov_b32 exec_hi, {hex(hi)}")
    def ln_addr(self, dst):
        A = self.A
        A(f"v_and_b32 {dst}, 1, {LANE}"); A(f"v_mul_u32_u24 {dst}, 896, {dst}")
        A(f"v_lshrrev_b32 {TMP}, 4, {LANE}"); A(f"v_lshl_add_u32 {dst}, {TMP}, 4, {dst}")
    def xst_addr(self, dst):
        A = self.A
        A(f"v_bfe_u32 {TMP}, {LANE}, 4, 1"); A(f"v_mul_u32_u24 {dst}, 896, {TMP}")
        A(f"v_and_b32 {TMP}, 15, {LANE}"); A(f"v_lshl_add_u32 {dst}, {TMP}, 1, {dst}")
        A(f"s_lshl_b32 s68, {sSIG}, 5"); A(f"v_add_u32 {dst}, s68, {dst}")
    def pack_pair(self, dst, val, tmp):
        A = self.A
        A(f"v_mov_b32_dpp {tmp}, {val} quad_perm:[1,0,3,2] {DPP}")
        A(f"v_cvt_pk_bf16_f32 {dst}, {val}, {tmp}")

    def prologue(self):
        A = self.A; o = self.o
        wnt = " nt" if o.wnt else ""
        A(f"""
        s_cmp_ge_u32 s2, 256
        s_cbranch_scc1 L_end
        s_load_dwordx16 s[36:51], s[0:1], 0
        s_load_dwordx8 s[52:59], s[0:1], 64
        v_lshrrev_b32 v1, 6, v0
        v_and_b32 v0, 63, v0
        s_and_b32 {sGI}, s2, 7
        v_readfirstlane_b32 {sWAVE}, v1
        s_lshr_b32 {sJ}, s2, 3
        s_lshr_b32 s68, {sJ}, 3
        s_and_b32 {sSP}, {sJ}, 7
        s_and_b32 {sHL}, s68, 1
        s_lshr_b32 {sB}, s68, 1
        s_mov_b32 {sBUD}, {o.budget}
        s_mov_b32 {sLAYER}, 0
        s_mov_b32 {sMODE}, 0
        s_mov_b32 s60, 0xffff0000
        s_mov_b32 s61, 0xffff0000
        v_lshlrev_b32 {L16}, 4, {LANE}
        v_mov_b32 {CS}, 0
        s_lshl_b32 s68, {sGI}, 1
        s_add_u32 s68, s68, {sHL}
        s_lshl_b32 s69, {sB}, 4
        s_add_u32 s68, s68, s69
        s_lshl_b32 {sTILE}, s68, 21
        s_lshl_b32 s68, {sSP}, 15
        s_add_u32 {sTILE}, {sTILE}, s68
        s_lshl_b32 s68, {sWAVE}, 13
        s_add_u32 {sTILE}, {sTILE}, s68
        s_mul_i32 {sM0B}, {sWAVE}, {VW}
        """)
        A(f"s_mov_b32 {sROLE}, {ROLE_WQ}"); A(f"s_mov_b32 s62, {sJ}")
        for (lim, role) in ((8, ROLE_WO), (15, ROLE_GU), (22, ROLE_DN), (29, ROLE_NONE)):
            A(f"s_cmp_ge_u32 {sJ}, {lim}"); A(f"s_cselect_b32 {sROLE}, {role}, {sROLE}"); A(f"s_sub_u32 s68, {sJ}, {lim}")
            A(f"s_cmp_ge_u32 {sJ}, {lim}"); A("s_cselect_b32 s62, s68, s62")
        A(f"s_lshl_b32 {sSIG}, s62, 2"); A(f"s_add_u32 {sSIG}, {sSIG}, {sWAVE}")
        A(f"s_cmp_eq_u32 {sWAVE}, 0"); A("s_cbranch_scc0 L_noflag")
        A(f"v_mov_b32 {X(0)}, {LDS_FLAG}"); A(f"v_mov_b32 {X(1)}, 0"); A(f"ds_write_b32 {X(0)}, {X(1)}")
        A("L_noflag:")
        A("s_waitcnt lgkmcnt(0)")
        A("s_barrier")
        self.stamp(0)
        if o.prof:
            for k in range(1, 20): A(f"s_mov_b32 s{80+k}, 0")
        A(f"""
        s_load_dword {sTAG}, s[58:59], {EOFF}
        s_mov_b32 s8, s38
        s_mov_b32 s9, s39
        s_mov_b32 s10, 0x4000000
        s_mov_b32 s11, 0x00020000
        s_mov_b32 s12, s40
        s_mov_b32 s13, s41
        s_mov_b32 s14, 0x4000000
        s_mov_b32 s15, 0x00020000
        s_mov_b32 s4, s36
        s_mov_b32 s5, s37
        s_mov_b32 s16, s54
        s_mov_b32 s17, s55
        s_mov_b32 s18, s56
        s_mov_b32 s19, s57
        s_mov_b32 s20, s58
        s_mov_b32 s21, s59
        s_lshl_b32 s68, {sGI}, 16
        s_add_u32 s68, s68, {GOFF}
        s_add_u32 s22, s58, s68
        s_addc_u32 s23, s59, 0
        s_add_u32 s24, s58, {COFF}
        s_addc_u32 s25, s59, 0
        s_mov_b64 s[70:71], s[58:59]
        s_mov_b64 s[72:73], s[58:59]
        s_mov_b64 s[74:75], s[58:59]
        """)
        row8, c, off = X(2), X(3), X(4)
        A(f"v_lshrrev_b32 {row8}, 3, {LANE}"); A(f"v_and_b32 {c}, 7, {LANE}")
        A(f"s_cmp_eq_u32 {sROLE}, {ROLE_WO}"); A("s_cbranch_scc1 L_w1")
        A(f"s_cmp_eq_u32 {sROLE}, {ROLE_GU}"); A("s_cbranch_scc1 L_w2")
        A(f"s_cmp_eq_u32 {sROLE}, {ROLE_DN}"); A("s_cbranch_scc1 L_w3")
        A(f"s_cmp_eq_u32 {sROLE}, {ROLE_WQ}"); A("s_cbranch_scc1 L_w0")
        A(f"v_mov_b32 {off}, 0"); A("s_mov_b32 s63, 0"); A("s_mov_b32 s66, 0"); A("s_mov_b32 s67, 0")
        A("s_mov_b32 s64, s42"); A("s_mov_b32 s65, s43"); A("s_mov_b32 s78, s42"); A("s_mov_b32 s79, s43")
        A("s_branch L_wdone")
        A("L_w0:")
        A(f"s_mul_i32 s68, {sWAVE}, 112"); A(f"v_add_u32 {X(5)}, s68, {row8}"); A(f"v_lshlrev_b32 {off}, 13, {X(5)}")
        A(f"v_lshl_add_u32 {off}, {c}, 4, {off}"); A(f"s_lshl_b32 s68, {sGI}, 10"); A("s_lshl_b32 s69, s62, 7"); A("s_add_u32 s68, s68, s69"); A(f"v_add_u32 {off}, s68, {off}")
        A("s_mov_b32 s63, 14"); A(f"s_mov_b32 s66, {8*8192}"); A(f"s_mul_i32 s67, {sWAVE}, 14336")
        A("s_mov_b32 s64, s42"); A("s_mov_b32 s65, s43"); A("s_mov_b32 s78, s42"); A("s_mov_b32 s79, s43")
        self.ln_addr(X(8))
        for t in range(14):
            A(f"global_load_dwordx4 {TR(4*t,4)}, {X(8)}, {sXIN} offset:{t*64}")
        for k in range(8): A(f"v_mov_b32 {T(56+k)}, 0")
        self.set_exec(0xFFFFFFFF, 0x00FFFFFF)
        A(f"global_load_dwordx4 {TR(56,4)}, {L16}, {sXIN}"); A(f"global_load_dwordx4 {TR(60,4)}, {L16}, {sXIN} offset:896")
        A("s_mov_b64 exec, -1")
        A("s_branch L_wdone")
        A("L_w1:")
        A(f"v_and_b32 {X(5)}, 3, {row8}"); A(f"v_lshlrev_b32 {X(5)}, 3, {X(5)}"); A(f"v_lshrrev_b32 {X(6)}, 2, {row8}"); A(f"v_add_u32 {X(5)}, {X(5)}, {X(6)}")
        A(f"s_lshl_b32 s68, {sGI}, 9"); A(f"s_lshl_b32 s69, {sWAVE}, 7"); A("s_add_u32 s68, s68, s69"); A(f"v_add_u32 {X(5)}, s68, {X(5)}")
        A(f"v_mul_u32_u24 {off}, 896, {X(5)}"); A(f"v_lshl_add_u32 {off}, {c}, 4, {off}"); A("s_lshl_b32 s68, s62, 7"); A(f"v_add_u32 {off}, s68, {off}")
        A("s_mov_b32 s63, 16"); A("s_mov_b32 s66, 0"); A(f"s_mov_b32 s67, {sM0B}")
        A("s_mov_b32 s64, s44"); A("s_mov_b32 s65, s45"); A("s_mov_b32 s78, s44"); A("s_mov_b32 s79, s45")
        A("s_branch L_wdone")
        A("L_w2:")
        A(f"s_mul_i32 s68, {sWAVE}, 112"); A(f"v_add_u32 {X(5)}, s68, {row8}"); A(f"v_mul_u32_u24 {off}, 3584, {X(5)}")
        A(f"v_and_b32 {X(6)}, 3, {c}"); A(f"v_lshl_add_u32 {off}, {X(6)}, 4, {off}")
        A(f"s_mul_i32 s68, {sGI}, 448"); A("s_lshl_b32 s69, s62, 6"); A("s_add_u32 s68, s68, s69"); A(f"v_add_u32 {off}, s68, {off}")
        A("s_mov_b32 s63, 14"); A(f"s_mov_b32 s66, {8*3584}"); A(f"s_mul_i32 s67, {sWAVE}, 14336")
        A("s_mov_b32 s64, s48"); A("s_mov_b32 s65, s49"); A("s_mov_b32 s78, s50"); A("s_mov_b32 s79, s51")
        A("s_branch L_wdone")
        A("L_w3:")
        A(f"s_mul_i32 s68, {sGI}, 224"); A(f"s_mul_i32 s69, {sWAVE}, 56"); A("s_add_u32 s68, s68, s69"); A(f"v_add_u32 {X(5)}, s68, {row8}")
        A(f"v_mul_u32_u24 {off}, 896, {X(5)}"); A(f"v_lshl_add_u32 {off}, {c}, 4, {off}"); A("s_lshl_b32 s68, s62, 7"); A(f"v_add_u32 {off}, s68, {off}")
        A("s_mov_b32 s63, 7"); A(f"s_mov_b32 s66, {8*896}"); A(f"s_mul_i32 s67, {sWAVE}, 7168")
        A("s_mov_b32 s64, s52"); A("s_mov_b32 s65, s53"); A("s_mov_b32 s78, s52"); A("s_mov_b32 s79, s53")
        A("L_wdone:")
        A(f"v_cmp_le_u32 vcc, 4, {c}")
        A(f"v_mov_b32 {X(0)}, s64"); A(f"v_mov_b32 {X(5)}, s78"); A(f"v_cndmask_b32 {X(0)}, {X(0)}, {X(5)}, vcc")
        A(f"v_mov_b32 {X(1)}, s65"); A(f"v_mov_b32 {X(5)}, s79"); A(f"v_cndmask_b32 {X(1)}, {X(1)}, {X(5)}, vcc")
        A(f"v_add_co_u32 {X(0)}, vcc, {X(0)}, {off}"); A(f"v_addc_co_u32 {X(1)}, vcc, 0, {X(1)}, vcc")
        A("s_mov_b32 s68, s67"); A("s_mov_b32 s69, 0")
        A("s_cmp_eq_u32 s63, 0"); A("s_cbranch_scc1 L_wld_done")
        A("L_wld:")
        A("s_mov_b32 m0, s68")
        A("s_add_u32 s68, s68, 1024")
        A(f"global_load_lds_dwordx4 {XR(0,2)}, off{wnt}")
        A("s_add_u32 s69, s69, 1"); A("s_and_b32 s62, s69, 3"); A("s_cmp_eq_u32 s62, 0"); A(f"s_mov_b32 s76, {26*896}"); A(f"s_cselect_b32 s62, s76, {2*896}")
        A(f"s_cmp_eq_u32 {sROLE}, {ROLE_WO}"); A("s_cselect_b32 s62, s62, s66")
        A(f"v_add_co_u32 {X(0)}, vcc, s62, {X(0)}"); A(f"v_addc_co_u32 {X(1)}, vcc, 0, {X(1)}, vcc")
        A("s_cmp_lt_u32 s69, s63"); A("s_cbranch_scc1 L_wld")
        A("L_wld_done:")
        A("s_mov_b32 s48, 0x22222222"); A("s_mov_b32 s49, 0x22222222"); A("s_mov_b32 s50, 0x44444444"); A("s_mov_b32 s51, 0x44444444")
        A("s_mov_b32 s52, 0x88888888"); A("s_mov_b32 s53, 0x88888888")
        A(f"s_cmp_eq_u32 {sWAVE}, 3"); A("s_cbranch_scc0 L_noclr")
        for k in range(4): A(f"v_mov_b32 {X(12+k)}, -1")
        A(f"s_lshl_b32 s68, {sJ}, 11"); A(f"v_add_u32 {X(8)}, s68, {L16}")
        A(f"global_store_dwordx4 {X(8)}, {XR(12,4)}, {sG} sc1"); A(f"global_store_dwordx4 {X(8)}, {XR(12,4)}, {sG} offset:1024 sc1")
        A(f"s_lshl_b32 s68, s2, 9"); A(f"v_add_u32 {X(9)}, s68, {L16}")
        self.set_exec(0xFFFFFFFF, 0)
        A(f"global_store_dwordx4 {X(9)}, {XR(12,4)}, {sC} sc1")
        A("s_mov_b64 exec, -1")
        A("L_noclr:")

    def tr_reads(self):
        A = self.A
        a = X(8); r, c, g4 = X(10), X(9), TMP
        A(f"v_and_b32 {c}, 15, {LANE}"); A(f"v_lshrrev_b32 {r}, 2, {c}"); A(f"v_and_b32 {c}, 3, {c}")
        A(f"v_lshrrev_b32 {a}, 4, {LANE}"); A(f"v_lshlrev_b32 {a}, 3, {a}"); A(f"v_add_u32 {a}, {a}, {r}")
        A(f"v_lshlrev_b32 {a}, 7, {a}")
        A(f"s_cmp_eq_u32 {sROLE}, {ROLE_WO}"); A("s_cbranch_scc1 L_tr_wo")
        A(f"s_cmp_eq_u32 {sROLE}, {ROLE_GU}"); A("s_cbranch_scc1 L_tr_gu")
        A(f"v_lshl_add_u32 {a}, {c}, 3, {a}"); A(f"s_lshl_b32 s68, {sWAVE}, 5"); A(f"v_add_u32 {a}, s68, {a}")
        A("s_branch L_tr_n")
        A("L_tr_gu:")
        A(f"v_and_b32 {r}, 1, {c}"); A(f"v_lshl_add_u32 {a}, {r}, 3, {a}"); A(f"v_lshrrev_b32 {r}, 1, {c}"); A(f"v_lshl_add_u32 {a}, {r}, 6, {a}")
        A(f"s_lshl_b32 s68, {sWAVE}, 4"); A(f"v_add_u32 {a}, s68, {a}")
        A("L_tr_n:")
        for t in range(14):
            A(f"ds_read_b64_tr_b16 {WR(4*t,2)}, {a} offset:{t*4096}")
            A(f"ds_read_b64_tr_b16 {WR(4*t+2,2)}, {a} offset:{t*4096+512}")
            if t % 4 == 3: A("s_waitcnt lgkmcnt(0)")
        A("s_branch L_tr_d")
        A("L_tr_wo:")
        A(f"v_lshl_add_u32 {a}, {c}, 3, {a}"); A(f"v_add_u32 {a}, {sM0B}, {a}")
        for tt in range(4):
            for nt in range(4):
                k = 4 * (4 * tt + nt)
                A(f"ds_read_b64_tr_b16 {WR(k,2)}, {a} offset:{tt*4096+nt*32}")
                A(f"ds_read_b64_tr_b16 {WR(k+2,2)}, {a} offset:{tt*4096+nt*32+512}")
            A("s_waitcnt lgkmcnt(0)")
        A("L_tr_d:")
        A("s_waitcnt lgkmcnt(0)")
        A(f"s_add_u32 {sTAG}, {sTAG}, {hex(TAGC)}")
    def colsum(self):
        A = self.A
        for k in range(4): A(f"v_mov_b32 {X(4+k)}, 0x3f803f80")
        for t in range(14):
            A(f"v_mfma_f32_16x16x32_bf16 {XR(0,4)}, {XR(4,4)}, {WR(4*t,4)}, {'0' if t == 0 else XR(0,4)}")
        A(f"v_mov_b32 {CS}, {X(0)}")

    def ln_scalars(self, s1, s2, scale):
        ops = [f"v_mul_f32 {s1}, {f32(1/448)}, {s1}", f"v_mul_f32 {s2}, {f32(1/448)}, {s2}",
               f"v_fma_f32 {s2}, -{s1}, {s1}, {s2}", f"v_max_f32 {s2}, 0, {s2}", f"v_add_f32 {s2}, {f32(1e-5)}, {s2}", f"v_rsq_f32 {s2}, {s2}"]
        if scale != 1.0: ops.append(f"v_mul_f32 {s2}, {f32(scale)}, {s2}")
        return ops
    def ln_finish(self, mu, rs):
        A = self.A
        A(f"v_cndmask_b32 {X(4)}, {X(0)}, {X(1)}, {sSEL}")
        A(f"v_fma_f32 {X(4)}, -{mu}, {CS}, {X(4)}")
        A(f"v_mul_f32 {X(4)}, {X(4)}, {rs}")

    def stage_ln(self, rx, rst, layer, scale, lab, gate=None):
        A = self.A
        self.gbase(SA, rx, layer); self.gbase(SB, rst, layer)
        xa, sa = X(8), X(9)
        self.ln_addr(xa)
        A(f"v_bfe_u32 {sa}, {LANE}, 4, 1"); A(f"v_lshlrev_b32 {sa}, 8, {sa}"); A(f"v_lshrrev_b32 {TMP}, 5, {LANE}"); A(f"v_lshl_add_u32 {sa}, {TMP}, 7, {sa}")
        A(f"v_and_b32 {TMP}, 15, {LANE}"); A(f"v_lshl_add_u32 {sa}, {TMP}, 3, {sa}")
        A(f"v_mov_b32 {T(56)}, 0"); A(f"v_mov_b32 {T(57)}, 0")
        if gate: gate()
        D = XR(0, 4); chk = X(10); s1, s2, t1, t2 = T(58), T(59), T(60), T(61)
        A(f"{lab}:")
        self.set_exec(0xFFFFFFFF, 0x0FFF0FFF)
        A(f"global_load_dwordx2 {TR(56,2)}, {sa}, {SB} sc1")
        A("s_mov_b64 exec, -1")
        for t in range(14):
            A(f"global_load_dwordx4 {TR(4*t,4)}, {xa}, {SA} offset:{t*64} sc1")
        ops = [f"v_max_u32 {chk}, {T(56)}, {T(57)}",
               f"v_add_f32_dpp {s1}, {T(56)}, {T(56)} row_ror:8 {DPP}", f"v_add_f32_dpp {s2}, {T(57)}, {T(57)} row_ror:8 {DPP}"]
        mx = self.maxops(chk, self.chk_regs(T, 0, 14), first=False)
        red = []
        for sh in (4, 2, 1):
            red += [f"v_add_f32_dpp {s1}, {s1}, {s1} row_ror:{sh} {DPP}", f"v_add_f32_dpp {s2}, {s2}, {s2} row_ror:{sh} {DPP}"]
        red += [f"v_mov_b32 {t1}, {s1}", f"v_mov_b32 {t2}, {s2}", f"v_permlane32_swap_b32 {s1}, {t1}", f"v_permlane32_swap_b32 {s2}, {t2}",
                f"v_add_f32 {s1}, {s1}, {t1}", f"v_add_f32 {s2}, {s2}, {t2}"]
        red += self.ln_scalars(s1, s2, scale)
        A("s_waitcnt vmcnt(14)")
        for s in ops: A(s)
        A("s_waitcnt vmcnt(0)")
        for t in range(14):
            A(f"v_mfma_f32_16x16x32_bf16 {D}, {TR(4*t,4)}, {WR(4*t,4)}, {'0' if t == 0 else D}")
            n = 2
            while n and (red or mx):
                if red: A(red.pop(0)); n -= 1
                if n and mx: A(mx.pop(0)); n -= 1
        for s in mx + red: A(s)
        self.poll_tail(chk, lab, lab + "_d")
        A(f"{lab}_d:")
        self.ln_finish(s1, s2)

    def ld_setup(self):
        A = self.A
        vK, vV = X(18), X(19)
        A(f"v_and_b32 {X(8)}, 15, {LANE}"); A(f"v_lshrrev_b32 {X(9)}, 4, {LANE}")
        A(f"v_and_b32 {vK}, 3, {LANE}"); A(f"v_lshlrev_b32 {vK}, 4, {vK}"); A(f"v_lshl_add_u32 {vK}, {X(9)}, 6, {vK}")
        A(f"v_bfe_u32 {TMP}, {LANE}, 2, 2"); A(f"v_lshl_add_u32 {vK}, {TMP}, 11, {vK}")
        A(f"v_lshlrev_b32 {vV}, 11, {X(9)}"); A(f"v_lshl_add_u32 {vV}, {X(8)}, 4, {vV}")
    def throttle(self, win):
        if self.ob + 1 > win:
            self.A(f"s_waitcnt vmcnt({win - 4})"); self.ob = win - 4
        self.ob += 1
    def ktile(self, tau, win):
        A = self.A; f = " nt" if self.o.nt else ""
        A(f"s_add_u32 s68, {sTILE}, {tau*262144}")
        for t in range(8):
            n = tau * 8 + t
            self.throttle(win)
            A(f"buffer_load_dwordx4 a[{4*n}:{4*n+3}], {X(18)}, s[8:11], s68 offen offset:{(t//2)*512 + (t%2)*256}{f}")
    def vtile(self, tau, win, va=None):
        A = self.A; f = " nt" if self.o.nt else ""
        va = va or X(19)
        A(f"s_add_u32 s68, {sTILE}, {tau*262144}")
        for t in range(8):
            n = tau * 8 + t
            imm = (t // 2) * 512 + (t % 2) * 256
            self.throttle(win)
            if n < 2 * NLDS:
                A(f"s_add_u32 m0, {sM0B}, {n*1024 - imm}")
                A(f"buffer_load_dwordx4 {va}, s[12:15], s68 offen offset:{imm}{f} lds")
            else:
                m = n - 2 * NLDS
                A(f"buffer_load_dwordx4 {VRR(4*m,4)}, {va}, s[12:15], s68 offen offset:{imm}{f}")
    def arrive(self):
        A = self.A
        A("s_getreg_b32 s68, hwreg(HW_REG_XCC_ID, 0, 4)"); A("s_and_b32 s68, s68, 7"); A("s_mul_i32 s68, s68, 6")
        A("s_lshl_b64 s[78:79], 1, s68"); A("s_or_b32 s79, s79, 0x01000000")
        A(f"v_mov_b32 {X(10)}, s78"); A(f"v_mov_b32 {X(11)}, s79")
        A(f"s_lshl_b32 s69, {sGI}, 5"); A(f"v_mov_b32 {X(9)}, s69")
        A("s_mov_b64 exec, 1")
        A(f"global_atomic_add_x2 {X(9)}, {XR(10,2)}, {sDBG} sc1")
        A("s_mov_b64 exec, -1")
    def early_q(self):
        A = self.A
        self.colsum()
        s1a, s2a, s1b, s2b = X(12), X(13), X(14), X(15)
        for (base, s1, s2) in ((56, s1a, s2a), (60, s1b, s2b)):
            A(f"v_mov_b32 {s1}, 0"); A(f"v_mov_b32 {s2}, 0")
            for k in range(4):
                A(f"v_lshlrev_b32 {X(8)}, 16, {T(base+k)}"); A(f"v_and_b32 {X(9)}, 0xffff0000, {T(base+k)}")
                A(f"v_add_f32 {s1}, {s1}, {X(8)}"); A(f"v_fmac_f32 {s2}, {X(8)}, {X(8)}")
                A(f"v_add_f32 {s1}, {s1}, {X(9)}"); A(f"v_fmac_f32 {s2}, {X(9)}, {X(9)}")
        for sh in (8, 4, 2, 1):
            for r in (s1a, s2a, s1b, s2b): A(f"v_add_f32_dpp {r}, {r}, {r} row_ror:{sh} {DPP}")
        for swap in ("v_permlane16_swap_b32", "v_permlane32_swap_b32"):
            for r in (s1a, s2a, s1b, s2b):
                A(f"v_mov_b32 {X(8)}, {r}"); A(f"{swap} {r}, {X(8)}"); A(f"v_add_f32 {r}, {r}, {X(8)}")
        A(f"v_cndmask_b32 {s1a}, {s1a}, {s1b}, {sSEL}"); A(f"v_cndmask_b32 {s2a}, {s2a}, {s2b}, {sSEL}")
        for s in self.ln_scalars(s1a, s2a, QSCALE): A(s)
        D = XR(0, 4)
        for t in range(14):
            A(f"v_mfma_f32_16x16x32_bf16 {D}, {TR(4*t,4)}, {WR(4*t,4)}, {'0' if t == 0 else D}")
        self.ln_finish(s1a, s2a)
        self.pack_pair(X(4), X(4), X(6))
        A(f"v_mov_b32 {X(5)}, {sTAG}")
        A(f"v_bfe_u32 {X(7)}, {LANE}, 4, 1"); A(f"v_lshlrev_b32 {X(7)}, 11, {X(7)}"); A(f"v_and_b32 {X(8)}, 15, {LANE}"); A(f"v_lshl_add_u32 {X(7)}, {X(8)}, 2, {X(7)}")
        A(f"s_lshl_b32 s68, {sSIG}, 6"); A(f"v_add_u32 {X(7)}, s68, {X(7)}")
        A(f"s_lshl_b32 s68, {sGI}, 12"); A(f"s_add_u32 s68, s68, {QTOFF}"); A(f"s_add_u32 s70, s20, s68"); A("s_addc_u32 s71, s21, 0")
        self.set_exec(0x55555555, 0)
        A(f"global_store_dwordx2 {X(7)}, {XR(4,2)}, {SA} sc1")
        A("s_mov_b64 exec, -1")

    def stream(self):
        A = self.A; win = self.o.win
        self.ld_setup()
        self.ob = 0
        k0 = self.o.k0
        for tau in range(k0): self.ktile(tau, 64)
        A(f"s_waitcnt vmcnt({8*k0})")
        self.stamp(1)
        A("s_barrier")
        A(f"s_cmp_eq_u32 {sWAVE}, 3"); A("s_cbranch_scc0 L_noarr")
        self.arrive()
        A("L_noarr:")
        self.tr_reads()
        A("s_barrier")
        A(f"s_cmp_eq_u32 {sROLE}, {ROLE_GU}"); A("s_cbranch_scc0 L_nocs")
        self.colsum()
        A("L_nocs:")
        A(f"s_cmp_eq_u32 {sROLE}, {ROLE_WQ}"); A("s_cbranch_scc0 L_noeq")
        self.early_q()
        A("L_noeq:")
        self.stamp(2)
        self.ob = 8 * k0 + 2
        tp = self.o.trypoll
        for tau in range(k0, tp): self.ktile(tau, win)
        A(f"s_cmp_eq_u32 {sWAVE}, 0"); A("s_cbranch_scc0 L_np1")
        A(f"s_lshl_b32 s68, {sGI}, 12"); A(f"s_add_u32 s68, s68, {QTOFF}"); A(f"s_add_u32 s70, s20, s68"); A("s_addc_u32 s71, s21, 0")
        A(f"s_lshl_b32 s68, {sB}, 11"); A(f"s_lshl_b32 s78, {sHL}, 10"); A("s_add_u32 s68, s68, s78"); A(f"v_add_u32 {X(8)}, s68, {L16}")
        A(f"global_load_dwordx4 {XR(10,4)}, {X(8)}, {SA} sc1")
        A("L_np1:")
        ob = self.ob
        self.ob = 0
        self.ktile(tp, 64)
        A(f"s_cmp_eq_u32 {sWAVE}, 0"); A("s_cbranch_scc0 L_np2")
        A("s_waitcnt vmcnt(8)")
        A("L_q0:")
        A(f"v_xor_b32 {X(14)}, {sTAG}, {X(11)}"); A(f"v_xor_b32 {X(15)}, {sTAG}, {X(13)}"); A(f"v_or_b32 {X(14)}, {X(14)}, {X(15)}")
        A(f"v_cmp_ne_u32 vcc, 0, {X(14)}")
        A("s_cbranch_vccz L_q0_d")
        A(f"s_cmp_eq_u32 {sBUD}, 0"); A("s_cbranch_scc1 L_q0_d"); A(f"s_sub_u32 {sBUD}, {sBUD}, 1")
        A(f"global_load_dwordx4 {XR(10,4)}, {X(8)}, {SA} sc1"); A("s_waitcnt vmcnt(0)")
        A("s_branch L_q0")
        A("L_q0_d:")
        A(f"v_mov_b32 {X(11)}, {X(12)}")
        A(f"v_lshlrev_b32 {X(8)}, 3, {LANE}"); A(f"v_add_u32 {X(8)}, {LDS_QL}, {X(8)}")
        A(f"ds_write_b64 {X(8)}, {XR(10,2)}")
        A("s_waitcnt lgkmcnt(0)")
        A(f"v_mov_b32 {X(8)}, {LDS_FLAG}"); A(f"v_mov_b32 {X(9)}, 1"); A(f"ds_write_b32 {X(8)}, {X(9)}")
        self.stamp(4)
        A("L_np2:")
        self.ob = ob + 1 + 8
        for tau in range(tp + 1, 8): self.ktile(tau, win)
        for tau in range(self.o.vdist): self.vtile(tau, 64)
        self.stamp(5)

    def bar_check_finish(self):
        A = self.A
        A(f"s_cmp_eq_u32 {sLAYER}, 0"); A("s_cbranch_scc0 L_gb_done")
        A(f"v_and_b32 {TMP}, 7, {LANE}"); A(f"v_lshlrev_b32 {TMP}, 5, {TMP}")
        A("s_waitcnt vmcnt(0)")
        A("L_gb:")
        A(f"v_lshrrev_b32 {X(12)}, 24, {WBAR1}"); A(f"v_cmp_ne_u32 vcc, 32, {X(12)}")
        A("s_cbranch_vccz L_gb_d")
        A(f"s_cmp_eq_u32 {sBUD}, 0"); A("s_cbranch_scc1 L_gb_d"); A(f"s_sub_u32 {sBUD}, {sBUD}, 1"); A("s_sleep 4")
        A(f"global_load_dwordx2 {WBAR}, {TMP}, {sDBG} sc1"); A("s_waitcnt vmcnt(0)")
        A("s_branch L_gb")
        A("L_gb_d:")
        A("s_getreg_b32 s68, hwreg(HW_REG_XCC_ID, 0, 4)"); A("s_and_b32 s68, s68, 7"); A("s_mul_i32 s68, s68, 6")
        A("s_lshl_b64 s[78:79], 32, s68"); A("s_or_b32 s79, s79, 0x20000000")
        A(f"v_readlane_b32 s68, {WBAR0}, {sGI}"); A(f"v_readlane_b32 s69, {WBAR1}, {sGI}")
        A("s_cmp_eq_u64 s[68:69], s[78:79]"); A(f"s_cselect_b32 {sMODE}, 1, 0")
        if self.o.slow: A(f"s_mov_b32 {sMODE}, 0")
        A("L_gb_done:")

    def get_q(self):
        A = self.A
        A(f"s_cmp_eq_u32 {sLAYER}, 0"); A("s_cbranch_scc0 L_q1")
        A(f"v_mov_b32 {X(8)}, {LDS_FLAG}")
        A("L_fl:")
        A(f"ds_read_b32 {X(9)}, {X(8)}"); A("s_waitcnt lgkmcnt(0)")
        A(f"v_readfirstlane_b32 s68, {X(9)}")
        A("s_cmp_lg_u32 s68, 0"); A("s_cbranch_scc1 L_qlds")
        A(f"s_cmp_eq_u32 {sBUD}, 0"); A("s_cbranch_scc1 L_qlds"); A(f"s_sub_u32 {sBUD}, {sBUD}, 1"); A("s_sleep 2"); A("s_branch L_fl")
        A("L_q1:")
        A(f"s_cmp_eq_u32 {sWAVE}, 0"); A("s_cbranch_scc0 L_q1b")
        self.gbase(SA, R_Q, 1)
        A(f"s_lshl_b32 s68, {sB}, 10"); A(f"s_lshl_b32 s78, {sHL}, 9"); A("s_add_u32 s68, s68, s78"); A(f"v_add_u32 {X(8)}, s68, {L16}")
        self.set_exec(0xFFFFFFFF, 0)
        A("L_q1p:")
        A(f"global_load_dwordx4 {XR(10,4)}, {X(8)}, {SA} sc1"); A("s_waitcnt vmcnt(0)")
        for s in self.maxops(X(14), [X(10), X(11), X(12), X(13)]): A(s)
        self.poll_tail(X(14), "L_q1p", "L_q1p_d", sleep=self.o.qsleep)
        A("L_q1p_d:")
        A(f"v_add_u32 {X(8)}, {LDS_QL}, {L16}")
        A(f"ds_write_b128 {X(8)}, {XR(10,4)}")
        A("s_mov_b64 exec, -1")
        A("s_waitcnt lgkmcnt(0)")
        A("L_q1b:")
        A("s_barrier")
        A("L_qlds:")
        A(f"v_lshrrev_b32 {X(8)}, 4, {LANE}"); A(f"v_lshlrev_b32 {X(8)}, 6, {X(8)}"); A(f"v_and_b32 {TMP}, 3, {LANE}"); A(f"v_lshl_add_u32 {X(8)}, {TMP}, 4, {X(8)}")
        A(f"v_add_u32 {X(8)}, {LDS_QL}, {X(8)}")
        for t in range(2): A(f"ds_read_b128 {TR(32+4*t,4)}, {X(8)} offset:{t*256}")
        A(f"s_waitcnt vmcnt({8*self.o.vdist})")

    def attention(self):
        A = self.A
        S = lambda tau, r: T(4 * tau + r)
        mk = [X(16 + k) for k in range(4)]
        A(f"v_and_b32 {X(8)}, 15, {LANE}")
        for k in range(4):
            A(f"v_mov_b32 {mk[k]}, 0"); A(f"v_mov_b32 {X(9)}, 0xffff"); A(f"v_mov_b32 {X(12)}, 0xffff0000")
            A(f"v_cmp_eq_u32 vcc, {2*k}, {X(8)}"); A(f"v_cndmask_b32 {mk[k]}, {mk[k]}, {X(9)}, vcc")
            A(f"v_cmp_eq_u32 vcc, {2*k+1}, {X(8)}"); A(f"v_cndmask_b32 {mk[k]}, {mk[k]}, {X(12)}, vcc")
        A("s_waitcnt lgkmcnt(0)")
        m, m2 = X(14), X(15)
        va = X(13)
        A(f"v_add_u32 {va}, {sM0B}, {L16}")
        for k in range(8): A(f"v_mov_b32 {X(k)}, 0")
        Dq = lambda G: 40 + 4 * (G % 4)
        M1, M2, M3 = "s[48:49]", "s[50:51]", "s[52:53]"
        def c1(G): return f"v_cndmask_b32 {T(G)}, {T(Dq(G))}, {T(Dq(G)+1)}, {M1}"
        def c2(G): return f"v_cndmask_b32 {T(G)}, {T(G)}, {T(Dq(G)+2)}, {M2}"
        def c3(G): return f"v_cndmask_b32 {T(G)}, {T(G)}, {T(Dq(G)+3)}, {M3}"
        def d1(G): return f"v_add_f32_dpp {T(G)}, {T(G)}, {T(G)} quad_perm:[1,0,3,2] {DPP}"
        def d2(G): return f"v_add_f32_dpp {T(G)}, {T(G)}, {T(G)} quad_perm:[2,3,0,1] {DPP}"
        ok = lambda G: 0 <= G < 32
        for G in range(32 + 6):
            if ok(G): A(f"v_mfma_f32_16x16x32_bf16 {TR(Dq(G),4)}, a[{8*G}:{8*G+3}], {TR(32,4)}, 0")
            if ok(G - 2): A(c1(G - 2)); A(c2(G - 2))
            if ok(G): A(f"v_mfma_f32_16x16x32_bf16 {TR(Dq(G),4)}, a[{8*G+4}:{8*G+7}], {TR(36,4)}, {TR(Dq(G),4)}")
            if ok(G - 2): A(c3(G - 2))
            if ok(G - 3): A(d1(G - 3))
            if ok(G - 4): A(d2(G - 4))
            g5 = G - 5
            if ok(g5) and g5 % 2 == 1:
                if g5 == 1: A(f"v_max_f32 {m}, {T(0)}, {T(1)}")
                else: A(f"v_max3_f32 {m}, {m}, {T(g5-1)}, {T(g5)}")
        self.stamp(7)
        A(f"v_mov_b32 {m2}, {m}"); A(f"v_permlane16_swap_b32 {m}, {m2}"); A(f"v_max_f32 {m}, {m}, {m2}")
        A(f"v_mov_b32 {m2}, {m}"); A(f"v_permlane32_swap_b32 {m}, {m2}"); A(f"v_max_f32 {m}, {m}, {m2}")
        l = X(15); acc = [XR(0, 4), XR(4, 4)]
        A(f"v_mov_b32 {l}, 0")
        Bs = [TR(32, 4), TR(36, 4)]; Bb = [32, 36]
        stg = [40, 48, 56]
        VD = self.o.vdist
        vV = X(8)
        A(f"v_lshrrev_b32 {vV}, 4, {LANE}"); A(f"v_lshlrev_b32 {vV}, 11, {vV}"); A(f"v_and_b32 {TMP}, 15, {LANE}"); A(f"v_lshl_add_u32 {vV}, {TMP}, 4, {vV}")
        def younger(tile, at_tile):
            last_issued = min(at_tile + VD, 7)
            n = 8 * (last_issued - tile)
            if at_tile + VD >= 7: n += 1
            return n
        def tile_issue(tau):
            t2 = tau + VD
            if t2 > 7: return
            lab = A.label("VI")
            A(f"s_cmp_eq_u32 {sLAYER}, 0"); A(f"s_cbranch_scc0 {lab}")
            self.ob = 0
            self.vtile(t2, 64, vV)
            if t2 == 7:
                A(f"v_and_b32 {TMP}, 7, {LANE}"); A(f"v_lshlrev_b32 {TMP}, 5, {TMP}")
                A(f"global_load_dwordx2 {WBAR}, {TMP}, {sDBG} sc1")
            A(f"{lab}:")
        def lds_issue(q, at_tile):
            if q % 4 == 0: A(f"s_waitcnt vmcnt({younger(q // 4, at_tile)})")
            b = stg[q % 3]
            A(f"ds_read_b128 {TR(b,4)}, {va} offset:{q*2048}"); A(f"ds_read_b128 {TR(b+4,4)}, {va} offset:{q*2048+1024}")
        PF = 2
        def pre(q):
            tau, r = q // 4, q % 4
            s = S(tau, r); bb = Bb[q % 2]; pk = X(12) if q % 2 == 0 else X(9)
            return [f"v_sub_f32 {s}, {s}, {m}", f"v_exp_f32 {s}, {s}"], [f"v_cvt_pk_bf16_f32 {pk}, {s}, {s}", f"v_add_f32 {l}, {l}, {s}"] + [f"v_and_b32 {T(bb+k)}, {mk[k]}, {pk}" for k in range(4)]
        tile_issue(0)
        for q in range(min(PF, NLDS)): lds_issue(q, 0)
        a, b_ = pre(0)
        for s in a + b_: A(s)
        a, _ = pre(1)
        for s in a: A(s)
        for q in range(32):
            tau = q // 4
            if q % 4 == 0 and q > 0: tile_issue(tau)
            if q + PF < NLDS: lds_issue(q + PF, tau)
            if q < NLDS:
                A(f"s_waitcnt lgkmcnt({2 * min(PF, NLDS - 1 - q)})")
                b = stg[q % 3]; a0, a1 = TR(b, 4), TR(b + 4, 4)
            else:
                if q >= 28:
                    A(f"s_waitcnt vmcnt({(31 - q) * 2 + 1})")
                elif q == NLDS or q % 4 == 0:
                    A(f"s_waitcnt vmcnt({younger(tau, tau)})")
                mm = (q - NLDS) * 8; a0, a1 = VRR(mm, 4), VRR(mm + 4, 4)
            A(f"v_mfma_f32_16x16x32_bf16 {acc[0]}, {a0}, {Bs[q%2]}, {acc[0]}")
            if q + 1 < 32:
                _, b_ = pre(q + 1)
                for s in b_[:2]: A(s)
            A(f"v_mfma_f32_16x16x32_bf16 {acc[1]}, {a1}, {Bs[q%2]}, {acc[1]}")
            if q + 1 < 32:
                for s in b_[2:]: A(s)
            if q + 2 < 32:
                a, _ = pre(q + 2)
                for s in a: A(s)
        self.stamp(8)
        self.bar_check_finish()
        l2 = X(12)
        A(f"v_mov_b32 {l2}, {l}"); A(f"v_permlane16_swap_b32 {l}, {l2}"); A(f"v_add_f32 {l}, {l}, {l2}")
        A(f"v_mov_b32 {l2}, {l}"); A(f"v_permlane32_swap_b32 {l}, {l2}"); A(f"v_add_f32 {l}, {l}, {l2}")
        A(f"v_lshrrev_b32 {X(8)}, 4, {LANE}"); A(f"v_lshlrev_b32 {X(8)}, 7, {X(8)}"); A(f"v_and_b32 {X(9)}, 15, {LANE}"); A(f"v_lshl_add_u32 {X(8)}, {X(9)}, 4, {X(8)}")
        A(f"s_lshl_b32 s68, {sWAVE}, 10"); A(f"s_add_u32 s68, s68, {LDS_OP}"); A(f"v_add_u32 {X(8)}, s68, {X(8)}")
        A(f"s_lshl_b32 s68, {sWAVE}, 3"); A(f"s_add_u32 s68, s68, {LDS_MLP}"); A(f"v_mov_b32 {X(9)}, s68")
        self.set_exec(0x00FF00FF, 0x00FF00FF)
        A(f"ds_write_b128 {X(8)}, {XR(0,4)}"); A(f"ds_write_b128 {X(8)}, {XR(4,4)} offset:512")
        A("s_mov_b64 exec, 1")
        A(f"ds_write_b64 {X(9)}, {XR(14,2)}")
        A("s_mov_b64 exec, -1")
        A("s_waitcnt lgkmcnt(0)")
        A("s_barrier")
        self.stamp(9)

    def combine_publish(self):
        A = self.A
        A(f"v_add_u32 {X(8)}, {LDS_OP}, {L16}")
        for w in range(4): A(f"ds_read_b128 {TR(4*w,4)}, {X(8)} offset:{w*1024}")
        A(f"v_mov_b32 {X(9)}, {LDS_MLP}")
        A(f"ds_read_b128 {TR(16,4)}, {X(9)}"); A(f"ds_read_b128 {TR(20,4)}, {X(9)} offset:16")
        self.gbase(SA, R_O); self.gbase(SB, R_ML)
        a = X(10)
        A(f"v_lshrrev_b32 {a}, 3, {LANE}"); A(f"v_lshlrev_b32 {a}, 10, {a}")
        A(f"v_bfe_u32 {X(11)}, {LANE}, 1, 2"); A(f"v_lshl_add_u32 {a}, {X(11)}, 8, {a}")
        A(f"v_and_b32 {X(11)}, 1, {LANE}"); A(f"v_lshl_add_u32 {a}, {X(11)}, 3, {a}")
        A(f"s_lshl_b32 s68, {sB}, 3"); A(f"s_add_u32 s68, s68, {sSP}"); A("s_lshl_b32 s68, s68, 4"); A(f"s_lshl_b32 s78, {sHL}, 13"); A("s_add_u32 s68, s68, s78")
        A(f"v_add_u32 {a}, s68, {a}")
        A(f"s_lshl_b32 s68, {sHL}, 7"); A(f"s_lshl_b32 s78, {sB}, 6"); A("s_add_u32 s68, s68, s78"); A(f"s_lshl_b32 s78, {sSP}, 3"); A("s_add_u32 s68, s68, s78")
        A(f"v_mov_b32 {X(11)}, s68")
        M = T(24); f = [T(25 + w) for w in range(4)]; Lr = T(29)
        ms = [T(16), T(18), T(20), T(22)]; ls = [T(17), T(19), T(21), T(23)]
        A("s_waitcnt lgkmcnt(0)")
        A(f"v_max3_f32 {M}, {ms[0]}, {ms[1]}, {ms[2]}"); A(f"v_max_f32 {M}, {M}, {ms[3]}")
        for w in range(4): A(f"v_sub_f32 {f[w]}, {ms[w]}, {M}")
        for w in range(4): A(f"v_exp_f32 {f[w]}, {f[w]}")
        for r in range(4): A(f"v_mul_f32 {T(32+r)}, {f[0]}, {T(r)}")
        for w in range(1, 4):
            for r in range(4): A(f"v_fmac_f32 {T(32+r)}, {f[w]}, {T(4*w+r)}")
        A(f"v_cvt_pk_bf16_f32 {T(36)}, {T(32)}, {T(33)}"); A(f"v_cvt_pk_bf16_f32 {T(37)}, {T(34)}, {T(35)}")
        self.pub(f"global_store_dwordx2 {a}, {TR(36,2)}, {SA}")
        A(f"v_mul_f32 {T(39)}, {f[0]}, {ls[0]}")
        for w in range(1, 4): A(f"v_fmac_f32 {T(39)}, {f[w]}, {ls[w]}")
        A(f"v_mov_b32 {T(38)}, {M}")
        A("s_mov_b64 exec, 1")
        self.pub(f"global_store_dwordx2 {X(11)}, {TR(38,2)}, {SB}")
        A("s_mov_b64 exec, -1")

    def stage_wo(self):
        A = self.A
        self.gbase(SA, R_O); self.gbase(SC_, R_ML)
        A(f"s_lshl_b32 s68, {sWAVE}, 12"); A("s_add_u32 s70, s70, s68"); A("s_addc_u32 s71, s71, 0")
        a = X(16)
        A(f"v_lshrrev_b32 {a}, 5, {LANE}"); A(f"v_lshlrev_b32 {a}, 6, {a}")
        A(f"v_bfe_u32 {TMP}, {LANE}, 4, 1"); A(f"v_lshl_add_u32 {a}, {TMP}, 5, {a}")
        A(f"v_and_b32 {TMP}, 3, {LANE}"); A(f"v_lshl_add_u32 {a}, {TMP}, 3, {a}")
        A(f"s_lshr_b32 s68, {sWAVE}, 1"); A("s_lshl_b32 s68, s68, 7"); A(f"v_add_u32 {a}, s68, {a}")
        wa, ra = X(17), X(18)
        A(f"v_bfe_u32 {wa}, {LANE}, 4, 1"); A(f"v_lshlrev_b32 {wa}, 7, {wa}"); A(f"v_lshrrev_b32 {TMP}, 5, {LANE}"); A(f"v_lshl_add_u32 {wa}, {TMP}, 6, {wa}")
        A(f"v_and_b32 {TMP}, 15, {LANE}"); A(f"v_lshl_add_u32 {wa}, {TMP}, 2, {wa}")
        A(f"s_lshl_b32 s68, {sWAVE}, 9"); A(f"s_add_u32 s68, s68, {LDS_RED}"); A(f"v_add_u32 {wa}, s68, {wa}")
        A(f"v_lshrrev_b32 {ra}, 5, {LANE}"); A(f"v_lshlrev_b32 {ra}, 9, {ra}"); A(f"v_and_b32 {TMP}, 31, {LANE}"); A(f"v_lshl_add_u32 {ra}, {TMP}, 2, {ra}")
        A(f"s_lshl_b32 s68, {sWAVE}, 7"); A(f"s_add_u32 s68, s68, {LDS_RED}"); A(f"v_add_u32 {ra}, s68, {ra}")
        mv, lv = T(16), T(17)
        D = [TR(20 + 4 * nt, 4) for nt in range(4)]
        chk, M, t1, e, w = T(36), T(37), T(38), T(39), T(40)
        if self.o.gate:
            A("L_wog:")
            A(f"global_load_dwordx2 {TR(16,2)}, {a}, {SC_} sc1"); A("s_waitcnt vmcnt(0)")
            A(f"v_max_u32 {chk}, {mv}, {lv}")
            self.poll_tail(chk, "L_wog", "L_wog_d", sleep=self.o.gatesleep)
            A("L_wog_d:")
        A("L_wo:")
        A(f"global_load_dwordx2 {TR(16,2)}, {a}, {SC_} sc1")
        for tt in range(4):
            A(f"global_load_dwordx4 {TR(4*tt,4)}, {L16}, {SA} offset:{tt*1024} sc1")
        A("s_waitcnt vmcnt(4)")
        ops = [f"v_max_u32 {chk}, {mv}, {lv}",
               f"v_mov_b32_dpp {t1}, {mv} quad_perm:[1,0,3,2] {DPP}", f"v_max_f32 {M}, {mv}, {t1}",
               f"v_mov_b32_dpp {t1}, {M} quad_perm:[2,3,0,1] {DPP}", f"v_max_f32 {M}, {M}, {t1}",
               f"v_mov_b32 {t1}, {M}", f"v_permlane16_swap_b32 {M}, {t1}", f"v_max_f32 {M}, {M}, {t1}",
               f"v_sub_f32 {e}, {mv}, {M}", f"v_exp_f32 {e}, {e}", f"v_mul_f32 {M}, {e}, {lv}",
               f"v_mov_b32_dpp {t1}, {M} quad_perm:[1,0,3,2] {DPP}", f"v_add_f32 {M}, {M}, {t1}",
               f"v_mov_b32_dpp {t1}, {M} quad_perm:[2,3,0,1] {DPP}", f"v_add_f32 {M}, {M}, {t1}",
               f"v_mov_b32 {t1}, {M}", f"v_permlane16_swap_b32 {M}, {t1}", f"v_add_f32 {M}, {M}, {t1}",
               f"v_rcp_f32 {M}, {M}", f"v_mul_f32 {w}, {e}, {M}"]
        mx = self.maxops(chk, self.chk_regs(T, 0, 4), first=False)
        A(ops.pop(0)); A(ops.pop(0))
        A("s_waitcnt vmcnt(0)")
        for tt in range(4):
            for nt in range(4):
                A(f"v_mfma_f32_16x16x32_bf16 {D[nt]}, {TR(4*tt,4)}, {WR(4*(4*tt+nt),4)}, {'0' if tt == 0 else D[nt]}")
                if ops: A(ops.pop(0))
                if mx: A(mx.pop(0))
        for s in ops + mx: A(s)
        self.poll_tail(chk, "L_wo", "L_wo_d")
        A("L_wo_d:")
        acc = [T(41 + nt) for nt in range(4)]
        for r in range(4):
            for nt in range(4):
                op = "v_mul_f32_dpp" if r == 0 else "v_fmac_f32_dpp"
                A(f"{op} {acc[nt]}, {w}, {T(20+4*nt+r)} row_newbcast:{r} {DPP}")
        A(f"v_permlane16_swap_b32 {acc[0]}, {acc[1]}"); A(f"v_permlane16_swap_b32 {acc[2]}, {acc[3]}")
        A(f"v_add_f32 {acc[0]}, {acc[0]}, {acc[1]}"); A(f"v_add_f32 {acc[2]}, {acc[2]}, {acc[3]}")
        A(f"ds_write_b32 {wa}, {acc[0]}"); A(f"ds_write_b32 {wa}, {acc[2]} offset:256")
        self.cbase(SA, 0)
        A(f"v_lshlrev_b32 {X(9)}, 2, {LANE}"); A(f"s_lshl_b32 s68, {sGI}, 7"); A(f"v_add_u32 {X(9)}, s68, {X(9)}")
        A("s_waitcnt lgkmcnt(0)")
        A("s_barrier")
        A(f"ds_read_b32 {T(0)}, {ra}"); A(f"ds_read_b32 {T(1)}, {ra} offset:1024")
        A("s_waitcnt lgkmcnt(0)")
        A(f"v_add_f32 {T(0)}, {T(0)}, {T(1)}")
        A(f"v_mov_b32 {T(1)}, {T(0)}"); A(f"v_permlane32_swap_b32 {T(0)}, {T(1)}"); A(f"v_add_f32 {T(0)}, {T(0)}, {T(1)}")
        self.set_exec(0xFFFFFFFF, 0)
        A(f"global_store_dword {X(9)}, {T(0)}, {SA} sc1")
        A("s_mov_b64 exec, -1")

    def stage_rs(self):
        A = self.A
        l4 = X(8)
        A(f"v_lshlrev_b32 {l4}, 2, {LANE}")
        self.xst_addr(X(10))
        A(f"v_bfe_u32 {X(11)}, {LANE}, 4, 1"); A(f"v_lshlrev_b32 {X(11)}, 8, {X(11)}"); A(f"s_lshl_b32 s68, {sSIG}, 3"); A(f"v_add_u32 {X(11)}, s68, {X(11)}")
        A("L_rs:")
        A(f"global_load_ushort {X(5)}, {X(10)}, {SD} sc1")
        for k in range(4): A(f"global_load_dword {X(k)}, {l4}, {SA} offset:{k*256} sc1")
        A("s_waitcnt vmcnt(4)")
        A(f"v_lshlrev_b32 {X(6)}, 16, {X(5)}"); A(f"v_or_b32 {X(4)}, {X(6)}, {X(5)}")
        A("s_waitcnt vmcnt(0)")
        for s in self.maxops(X(4), [X(0), X(1), X(2), X(3)], first=False): A(s)
        A(f"v_add_f32 {X(0)}, {X(0)}, {X(1)}"); A(f"v_add_f32 {X(2)}, {X(2)}, {X(3)}")
        self.poll_tail(X(4), "L_rs", "L_rs_d")
        A("L_rs_d:")
        A(f"v_add_f32 {X(0)}, {X(0)}, {X(2)}")
        A(f"v_mov_b32 {X(1)}, {X(0)}"); A(f"v_permlane32_swap_b32 {X(0)}, {X(1)}"); A(f"v_add_f32 {X(0)}, {X(0)}, {X(1)}")
        if self.o.round2:
            A(f"v_cvt_pk_bf16_f32 {X(0)}, {X(0)}, {X(0)}"); A(f"v_and_b32 {X(0)}, 0xffff0000, {X(0)}")
        A(f"v_add_f32 {X(0)}, {X(6)}, {X(0)}")
        A(f"v_mov_b32_dpp {X(2)}, {X(0)} quad_perm:[1,0,3,2] {DPP}")
        A(f"v_cvt_pk_bf16_f32 {X(1)}, {X(0)}, {X(2)}")
        A("s_cmp_eq_u32 s78, 1"); A("s_cbranch_scc1 L_final")
        self.set_exec(0x55555555, 0)
        self.pub(f"global_store_dword {X(10)}, {X(1)}, {SB}")
        A("s_mov_b64 exec, -1")
        A(f"v_cvt_pk_bf16_f32 {X(2)}, {X(0)}, {X(0)}"); A(f"v_and_b32 {X(2)}, 0xffff0000, {X(2)}")
        A(f"v_mul_f32 {X(3)}, {X(2)}, {X(2)}")
        for sh in (1, 2, 4, 8):
            for r in (X(2), X(3)): A(f"v_add_f32_dpp {r}, {r}, {r} row_shr:{sh} {DPP}")
        self.set_exec(0x80008000, 0)
        self.pub(f"global_store_dwordx2 {X(11)}, {XR(2,2)}, {SC_}")
        A("s_mov_b64 exec, -1")

    def stage_gu(self):
        A = self.A
        self.gbase(SC_, R_H)
        A(f"v_bfe_u32 {X(7)}, {LANE}, 4, 1"); A(f"v_mul_u32_u24 {X(7)}, 448, {X(7)}"); A(f"v_and_b32 {TMP}, 15, {LANE}"); A(f"v_lshl_add_u32 {X(7)}, {TMP}, 1, {X(7)}")
        A(f"s_lshl_b32 s68, {sSIG}, 4"); A(f"v_add_u32 {X(7)}, s68, {X(7)}")
        def gate():
            if not self.o.gate: return
            self.cbase(SD, 0); A(f"v_lshlrev_b32 {X(11)}, 2, {LANE}")
            self.gate(SD, X(11), 768, X(12), "L_gug")
        self.stage_ln(R_X1, R_ST1, None, 1.0, "L_gu", gate)
        z = X(4)
        A(f"v_cvt_pk_bf16_f32 {z}, {z}, {z}"); A(f"v_and_b32 {z}, 0xffff0000, {z}")
        A(f"v_mov_b32_dpp {X(5)}, {z} row_ror:8 {DPP}")
        A(f"v_max_f32 {z}, 0, {z}"); A(f"v_mul_f32 {z}, {z}, {X(5)}")
        self.pack_pair(X(5), z, X(6))
        self.set_exec(0x00550055, 0)
        self.pub(f"global_store_dword {X(7)}, {X(5)}, {SC_}")
        A("s_mov_b64 exec, -1")

    def stage_dn(self):
        A = self.A
        self.gbase(SA, R_H)
        a = X(8)
        A(f"v_and_b32 {a}, 1, {LANE}"); A(f"v_mul_u32_u24 {a}, 448, {a}"); A(f"v_lshrrev_b32 {TMP}, 4, {LANE}"); A(f"v_lshl_add_u32 {a}, {TMP}, 4, {a}")
        self.cbase(SB, 1)
        A(f"v_lshlrev_b32 {X(9)}, 2, {LANE}"); A(f"s_lshl_b32 s68, {sGI}, 7"); A(f"v_add_u32 {X(9)}, s68, {X(9)}")
        if self.o.gate:
            self.gbase(SD, R_ST1); A(f"v_bfe_u32 {X(11)}, {LANE}, 4, 1"); A(f"v_lshlrev_b32 {X(11)}, 8, {X(11)}"); A(f"s_lshl_b32 s68, {sSIG}, 3"); A(f"v_add_u32 {X(11)}, s68, {X(11)}")
            self.gate(SD, X(11), 0, X(12), "L_dng")
        D = XR(0, 4)
        A("L_dn:")
        for t in range(7): A(f"global_load_dwordx4 {TR(4*t,4)}, {a}, {SA} offset:{t*64} sc1")
        mx = self.maxops(X(10), self.chk_regs(T, 0, 7))
        A("s_waitcnt vmcnt(0)")
        for t in range(7):
            A(f"v_mfma_f32_16x16x32_bf16 {D}, {TR(4*t,4)}, {WR(4*t,4)}, {'0' if t == 0 else D}")
            for _ in range(2):
                if mx: A(mx.pop(0))
        for s in mx: A(s)
        self.poll_tail(X(10), "L_dn", "L_dn_d")
        A("L_dn_d:")
        A(f"v_cndmask_b32 {X(4)}, {X(0)}, {X(1)}, {sSEL}")
        self.set_exec(0xFFFFFFFF, 0)
        A(f"global_store_dword {X(9)}, {X(4)}, {SB} sc1")
        A("s_mov_b64 exec, -1")

    def stage_q2(self):
        A = self.A
        self.gbase(SC_, R_Q, 1)
        A(f"v_bfe_u32 {X(7)}, {LANE}, 4, 1"); A(f"v_lshlrev_b32 {X(7)}, 10, {X(7)}"); A(f"v_and_b32 {TMP}, 15, {LANE}"); A(f"v_lshl_add_u32 {X(7)}, {TMP}, 1, {X(7)}")
        A(f"s_lshl_b32 s68, {sSIG}, 5"); A(f"v_add_u32 {X(7)}, s68, {X(7)}")
        def gate():
            if not self.o.gate: return
            A(f"s_min_u32 s68, {sSIG}, 27"); A("s_lshl_b32 s68, s68, 10"); A("s_add_u32 s68, s68, 0x8000")
            A("s_add_u32 s64, s24, s68"); A("s_addc_u32 s65, s25, 0"); A(f"v_lshlrev_b32 {X(11)}, 2, {LANE}")
            self.gate(SD, X(11), 768, X(12), "L_qg")
        self.stage_ln(R_X2, R_ST2, 0, QSCALE, "L_qx", gate)
        self.pack_pair(X(5), X(4), X(6))
        self.set_exec(0x55555555, 0)
        self.pub(f"global_store_dword {X(7)}, {X(5)}, {SC_}")
        A("s_mov_b64 exec, -1")

    def finish(self):
        A = self.A
        if not self.o.prof: return
        A("s_lshl_b32 s68, s2, 2"); A(f"s_add_u32 s68, s68, {sWAVE}"); A("s_lshl_b32 s68, s68, 7"); A(f"v_mov_b32 {X(0)}, s68")
        A("s_mov_b64 exec, 1")
        for k in range(20):
            A(f"v_mov_b32 {X(1)}, s{80+k}"); A(f"global_store_dword {X(0)}, {X(1)}, {sWS} offset:{4*k}")
        for k in range(9):
            A(f"v_mov_b32 {X(1)}, s{36+k}"); A(f"global_store_dword {X(0)}, {X(1)}, {sWS} offset:{80+4*k}")
        A(f"v_mov_b32 {X(1)}, {sMODE}"); A(f"global_store_dword {X(0)}, {X(1)}, {sWS} offset:116")
        A(f"v_mov_b32 {X(1)}, {sBUD}"); A(f"global_store_dword {X(0)}, {X(1)}, {sWS} offset:120")

    def build(self):
        A = self.A; o = self.o
        self.prologue()
        if o.prof:
            for k in range(9): A(f"s_mov_b32 s{36+k}, 0")
        self.stream()
        A("L_layer:")
        self.get_q()
        self.stamp(6)
        self.attention()
        A(f"s_cmp_eq_u32 {sWAVE}, 0"); A("s_cbranch_scc0 L_nocomb")
        self.combine_publish()
        self.stamp(10)
        A("L_nocomb:")
        A(f"s_cmp_eq_u32 {sROLE}, {ROLE_GU}"); A("s_cbranch_scc1 L_gu_s")
        A(f"s_cmp_eq_u32 {sROLE}, {ROLE_DN}"); A("s_cbranch_scc1 L_dn_s")
        A(f"s_cmp_eq_u32 {sROLE}, {ROLE_WQ}"); A("s_cbranch_scc1 L_wq_s")
        A(f"s_cmp_eq_u32 {sROLE}, {ROLE_WO}"); A("s_cbranch_scc0 L_next")
        self.stage_wo()
        self.stamp(11)
        self.cbase(SA, 0); self.gbase(SB, R_X1); self.gbase(SC_, R_ST1); A("s_mov_b32 s78, 0")
        self.gbase(SD, R_X2, 0)
        A(f"s_cmp_eq_u32 {sLAYER}, 0"); A("s_cselect_b32 s64, s4, s64"); A("s_cselect_b32 s65, s5, s65")
        A("L_rs_entry:")
        self.stage_rs()
        self.stamp(12)
        A("s_branch L_next")
        A("L_gu_s:")
        self.stage_gu()
        self.stamp(13)
        A("s_branch L_next")
        A("L_dn_s:")
        self.stage_dn()
        self.stamp(14)
        self.cbase(SA, 1); self.gbase(SB, R_X2); self.gbase(SC_, R_ST2); self.gbase(SD, R_X1); A(f"s_mov_b32 s78, {sLAYER}")
        A("s_branch L_rs_entry")
        A("L_wq_s:")
        A(f"s_cmp_eq_u32 {sLAYER}, 1"); A("s_cbranch_scc1 L_fin")
        self.stage_q2()
        self.stamp(15)
        A("L_next:")
        A(f"s_cmp_eq_u32 {sLAYER}, 1"); A("s_cbranch_scc1 L_fin")
        A(f"s_mov_b32 {sLAYER}, 1")
        A("s_branch L_layer")
        A("L_final:")
        A(f"s_cmp_eq_u32 {sGI}, 0"); A("s_cbranch_scc0 L_fin")
        self.set_exec(0x55555555, 0)
        A(f"global_store_dword {X(10)}, {X(1)}, {sOUT}")
        A(f"s_cmp_eq_u32 {sSIG}, 0"); A("s_cbranch_scc0 L_noep")
        A("s_mov_b64 exec, 1")
        A(f"v_mov_b32 {X(2)}, {EOFF}"); A(f"v_mov_b32 {X(3)}, {sTAG}")
        A(f"global_store_dword {X(2)}, {X(3)}, {sWS}")
        A("L_noep:")
        A("s_mov_b64 exec, -1")
        A("L_fin:")
        self.stamp(16)
        self.finish()
        A("L_end:")
        A("s_endpgm")
        lines, n = hazard.fix(A.L, verbose=o.verbose)
        A.L = lines
        return A

def main():
    ap = argparse.ArgumentParser()
    ap.add_argument("-o", default="k2.s")
    ap.add_argument("--prof", action="store_true")
    ap.add_argument("--slow", action="store_true")
    ap.add_argument("--nt", type=int, default=1)
    ap.add_argument("--wnt", type=int, default=1)
    ap.add_argument("--win", type=int, default=12)
    ap.add_argument("--winv", type=int, default=60)
    ap.add_argument("--budget", type=int, default=200000)
    ap.add_argument("--gate", type=int, default=1)
    ap.add_argument("--gatesleep", type=int, default=1)
    ap.add_argument("--qsleep", type=int, default=1)
    ap.add_argument("--trypoll", type=int, default=4)
    ap.add_argument("--k0", type=int, default=3)
    ap.add_argument("--vdist", type=int, default=3)
    ap.add_argument("--fullcheck", type=int, default=0)
    ap.add_argument("--round2", type=int, default=1)
    ap.add_argument("--stamps", default=None)
    ap.add_argument("--verbose", action="store_true")
    o = ap.parse_args()
    g = Gen(o); A = g.build(); A.write(o.o)
    print("wrote", o.o, len(A.L), "lines")
main()
```

```python
import sys, argparse, struct
from asmlib import Asm, NAME
import hazard

GOFF = 0x100000; LSTRIDE = 0x8000
R_Q = 0x0000; R_ML = 0x0800; R_X1 = 0x0A00; R_ST1 = 0x1100; R_H = 0x1300; R_X2 = 0x1800; R_ST2 = 0x1F00; R_O = 0x4000
COFF = GOFF + 0x80000
EOFF = 0x0F0000
QTOFF = 0x0F8000
TAGC = 0x9E3779B9
NLDS = 19
VW = NLDS * 2048
LDS_OP = 4 * VW; LDS_MLP = LDS_OP + 4096; LDS_QL = LDS_MLP + 64; LDS_FLAG = LDS_QL + 512; LDS_RED = LDS_FLAG + 64
assert LDS_RED + 2048 <= 163840
LOG2E = 1.4426950408889634
QSCALE = LOG2E / 16.0
ROLE_WQ, ROLE_WO, ROLE_GU, ROLE_DN, ROLE_NONE = 0, 1, 2, 3, 4

def f32(x): return "0x%08x" % struct.unpack("<I", struct.pack("<f", x))[0]
def X(n): assert 0 <= n < 20; return f"v{4+n}"
def T(n): assert 0 <= n < 64; return f"v{24+n}"
def W(n): assert 0 <= n < 64; return f"v{88+n}"
def VR(n): assert 0 <= n < 104; return f"v{152+n}"
def rng(f, a, n):
    s = f(a); k = int(s[1:]); assert n == 1 or k % 2 == 0, (s, n); return f"{s[0]}[{k}:{k+n-1}]"
def XR(a, n): return rng(X, a, n)
def TR(a, n): return rng(T, a, n)
def WR(a, n): return rng(W, a, n)
def VRR(a, n): return rng(VR, a, n)
LANE = "v0"; CS = "v1"; L16 = "v2"; TMP = "v3"
sM0B = "s3"
sXIN = "s[4:5]"
sOUT = "s[16:17]"; sDBG = "s[18:19]"; sWS = "s[20:21]"; sG = "s[22:23]"; sC = "s[24:25]"
sWAVE = "s26"; sGI = "s27"; sJ = "s28"; sHL = "s29"; sB = "s30"; sSP = "s31"
sMODE = "s32"; sBUD = "s33"; sLAYER = "s34"; sTILE = "s35"
sTAG = "s46"; sROLE = "s6"; sSIG = "s7"
sSEL = "s[60:61]"
SA = "s[70:71]"; SB = "s[72:73]"; SC_ = "s[74:75]"; SD = "s[64:65]"
WBAR = "v[14:15]"; WBAR0 = "v14"; WBAR1 = "v15"
DPP = "row_mask:0xf bank_mask:0xf"

class Gen:
    def __init__(self, opt):
        self.o = opt; self.A = Asm(); self.ob = 0
    def stamp(self, k):
        if not self.o.prof: return
        if self.o.stamps is not None and k not in [int(x) for x in self.o.stamps.split(",")]: return
        A = self.A
        A("s_memrealtime s[76:77]"); A("s_waitcnt lgkmcnt(0)")
        if 6 <= k <= 14:
            A(f"s_cmp_eq_u32 {sLAYER}, 0"); A(f"s_cselect_b32 s{80+k}, s76, s{80+k}"); A(f"s_cselect_b32 s{30+k}, s{30+k}, s76")
        else:
            A(f"s_mov_b32 s{80+k}, s76")
    def dstamp(self, word, neg=False, layer=None):
        if not self.o.dbgstamps: return
        A = self.A
        lab = A.label("DS")
        if layer is not None:
            A(f"s_cmp_eq_u32 {sLAYER}, {layer}"); A(f"s_cbranch_scc0 {lab}")
        A("s_memrealtime s[76:77]"); A("s_waitcnt lgkmcnt(0)")
        if neg: A("s_not_b32 s76, s76")
        A(f"v_mov_b32 v86, s76"); A(f"v_mov_b32 v87, {4*word}")
        A("s_mov_b64 s[78:79], exec"); A("s_mov_b64 exec, 1")
        A(f"global_atomic_umax v87, v86, {sDBG}")
        A("s_mov_b64 exec, s[78:79]")
        A(f"{lab}:")
    def gbase(self, dst, off, layer=None):
        A = self.A; d = int(dst[2:dst.index(":")])
        if layer is None:
            A(f"s_mul_i32 s68, {sLAYER}, {LSTRIDE}"); A(f"s_add_u32 s68, s68, {off}")
            A(f"s_add_u32 s{d}, s22, s68")
        else:
            A(f"s_add_u32 s{d}, s22, {off + layer*LSTRIDE}")
        A(f"s_addc_u32 s{d+1}, s23, 0")
    def cbase(self, dst, kind):
        A = self.A; d = int(dst[2:dst.index(":")])
        A(f"s_lshl_b32 s68, {sLAYER}, 16"); A(f"s_lshl_b32 s69, {sSIG}, 10"); A("s_add_u32 s68, s68, s69")
        if kind: A(f"s_add_u32 s68, s68, {kind*0x8000}")
        A(f"s_add_u32 s{d}, s24, s68"); A(f"s_addc_u32 s{d+1}, s25, 0")
    def maxops(self, dst, regs, first=True):
        out = []; regs = list(regs)
        if first:
            if len(regs) >= 3: out.append(f"v_max3_u32 {dst}, {regs[0]}, {regs[1]}, {regs[2]}"); regs = regs[3:]
            elif len(regs) == 2: out.append(f"v_max_u32 {dst}, {regs[0]}, {regs[1]}"); regs = []
            else: out.append(f"v_mov_b32 {dst}, {regs[0]}"); regs = []
        while len(regs) >= 2:
            out.append(f"v_max3_u32 {dst}, {dst}, {regs[0]}, {regs[1]}"); regs = regs[2:]
        if regs: out.append(f"v_max_u32 {dst}, {dst}, {regs[0]}")
        return out
    def chk_regs(self, f, base, nload):
        if self.o.fullcheck: return [f(base + k) for k in range(4 * nload)]
        return [f(base + 4 * k) for k in range(nload)]
    def poll_tail(self, chk, loop, done, sleep=0):
        A = self.A
        A(f"v_cmp_eq_u32 vcc, -1, {chk}")
        A(f"s_cbranch_vccz {done}")
        A(f"s_cmp_eq_u32 {sBUD}, 0"); A(f"s_cbranch_scc1 {done}")
        A(f"s_sub_u32 {sBUD}, {sBUD}, 1")
        if sleep: A(f"s_sleep {sleep}")
        A(f"s_branch {loop}")
    def gate(self, base, vaddr, off, dst, lab):
        if not self.o.gate: return
        A = self.A
        A(f"{lab}:")
        A(f"global_load_dword {dst}, {vaddr}, {base} offset:{off} sc1"); A("s_waitcnt vmcnt(0)")
        self.poll_tail(dst, lab, lab + "_d", sleep=self.o.gatesleep)
        A(f"{lab}_d:")
    def pub(self, instr):
        A = self.A
        l1 = A.label("PUBF"); l2 = A.label("PUBD")
        A(f"s_cmp_eq_u32 {sMODE}, 1"); A(f"s_cbranch_scc1 {l1}")
        A(instr + " sc1"); A(f"s_branch {l2}")
        A(f"{l1}:"); A(instr); A(f"{l2}:")
    def set_exec(self, lo, hi):
        A = self.A
        if lo == 0xFFFFFFFF and hi == 0xFFFFFFFF: A("s_mov_b64 exec, -1"); return
        A(f"s_mov_b32 exec_lo, {hex(lo)}"); A(f"s_mov_b32 exec_hi, {hex(hi)}")
    def ln_addr(self, dst):
        A = self.A
        A(f"v_and_b32 {dst}, 1, {LANE}"); A(f"v_mul_u32_u24 {dst}, 896, {dst}")
        A(f"v_lshrrev_b32 {TMP}, 4, {LANE}"); A(f"v_lshl_add_u32 {dst}, {TMP}, 4, {dst}")
    def xst_addr(self, dst):
        A = self.A
        A(f"v_bfe_u32 {TMP}, {LANE}, 4, 1"); A(f"v_mul_u32_u24 {dst}, 896, {TMP}")
        A(f"v_and_b32 {TMP}, 15, {LANE}"); A(f"v_lshl_add_u32 {dst}, {TMP}, 1, {dst}")
        A(f"s_lshl_b32 s68, {sSIG}, 5"); A(f"v_add_u32 {dst}, s68, {dst}")
    def pack_pair(self, dst, val, tmp):
        A = self.A
        A(f"v_mov_b32_dpp {tmp}, {val} quad_perm:[1,0,3,2] {DPP}")
        A(f"v_cvt_pk_bf16_f32 {dst}, {val}, {tmp}")

    def prologue(self):
        A = self.A; o = self.o
        wnt = " nt" if o.wnt else ""
        A(f"""
        s_cmp_ge_u32 s2, 256
        s_cbranch_scc1 L_end
        {"s_memrealtime s[100:101]" if o.dbgstamps else ""}
        s_load_dwordx16 s[36:51], s[0:1], 0
        s_load_dwordx8 s[52:59], s[0:1], 64
        v_lshrrev_b32 v1, 6, v0
        v_and_b32 v0, 63, v0
        s_and_b32 {sGI}, s2, 7
        v_readfirstlane_b32 {sWAVE}, v1
        s_lshr_b32 {sJ}, s2, 3
        s_lshr_b32 s68, {sJ}, 3
        s_and_b32 {sSP}, {sJ}, 7
        s_and_b32 {sHL}, s68, 1
        s_lshr_b32 {sB}, s68, 1
        s_mov_b32 {sBUD}, {o.budget}
        s_mov_b32 {sLAYER}, 0
        s_mov_b32 {sMODE}, 0
        s_mov_b32 s60, 0xffff0000
        s_mov_b32 s61, 0xffff0000
        v_lshlrev_b32 {L16}, 4, {LANE}
        v_mov_b32 {CS}, 0
        s_lshl_b32 s68, {sGI}, 1
        s_add_u32 s68, s68, {sHL}
        s_lshl_b32 s69, {sB}, 4
        s_add_u32 s68, s68, s69
        s_lshl_b32 {sTILE}, s68, 21
        s_lshl_b32 s68, {sSP}, 15
        s_add_u32 {sTILE}, {sTILE}, s68
        s_lshl_b32 s68, {sWAVE}, 13
        s_add_u32 {sTILE}, {sTILE}, s68
        s_mul_i32 {sM0B}, {sWAVE}, {VW}
        """)
        A(f"s_mov_b32 {sROLE}, {ROLE_WQ}"); A(f"s_mov_b32 s62, {sJ}")
        for (lim, role) in ((8, ROLE_WO), (15, ROLE_GU), (22, ROLE_DN), (29, ROLE_NONE)):
            A(f"s_cmp_ge_u32 {sJ}, {lim}"); A(f"s_cselect_b32 {sROLE}, {role}, {sROLE}"); A(f"s_sub_u32 s68, {sJ}, {lim}")
            A(f"s_cmp_ge_u32 {sJ}, {lim}"); A("s_cselect_b32 s62, s68, s62")
        A(f"s_lshl_b32 {sSIG}, s62, 2"); A(f"s_add_u32 {sSIG}, {sSIG}, {sWAVE}")
        A(f"s_cmp_eq_u32 {sWAVE}, 0"); A("s_cbranch_scc0 L_noflag")
        A(f"v_mov_b32 {X(0)}, {LDS_FLAG}"); A(f"v_mov_b32 {X(1)}, 0"); A(f"ds_write_b32 {X(0)}, {X(1)}")
        A("L_noflag:")
        A("s_waitcnt lgkmcnt(0)")
        A("s_barrier")
        self.stamp(0)
        if o.prof:
            for k in range(1, 20): A(f"s_mov_b32 s{80+k}, 0")
        A(f"""
        s_load_dword {sTAG}, s[58:59], {EOFF}
        s_mov_b32 s8, s38
        s_mov_b32 s9, s39
        s_mov_b32 s10, 0x4000000
        s_mov_b32 s11, 0x00020000
        s_mov_b32 s12, s40
        s_mov_b32 s13, s41
        s_mov_b32 s14, 0x4000000
        s_mov_b32 s15, 0x00020000
        s_mov_b32 s4, s36
        s_mov_b32 s5, s37
        s_mov_b32 s16, s54
        s_mov_b32 s17, s55
        s_mov_b32 s18, s56
        s_mov_b32 s19, s57
        s_mov_b32 s20, s58
        s_mov_b32 s21, s59
        s_lshl_b32 s68, {sGI}, 16
        s_add_u32 s68, s68, {GOFF}
        s_add_u32 s22, s58, s68
        s_addc_u32 s23, s59, 0
        s_add_u32 s24, s58, {COFF}
        s_addc_u32 s25, s59, 0
        s_mov_b64 s[70:71], s[58:59]
        s_mov_b64 s[72:73], s[58:59]
        s_mov_b64 s[74:75], s[58:59]
        """)
        if o.dbgstamps:
            A("s_not_b32 s100, s100"); A("v_mov_b32 v86, s100"); A("v_mov_b32 v87, 8"); A("s_mov_b64 exec, 1")
            A(f"global_atomic_umax v87, v86, {sDBG}"); A("s_mov_b64 exec, -1")
            self.dstamp(3, neg=True)
        row8, c, off = X(2), X(3), X(4)
        A(f"v_lshrrev_b32 {row8}, 3, {LANE}"); A(f"v_and_b32 {c}, 7, {LANE}")
        A(f"s_cmp_eq_u32 {sROLE}, {ROLE_WO}"); A("s_cbranch_scc1 L_w1")
        A(f"s_cmp_eq_u32 {sROLE}, {ROLE_GU}"); A("s_cbranch_scc1 L_w2")
        A(f"s_cmp_eq_u32 {sROLE}, {ROLE_DN}"); A("s_cbranch_scc1 L_w3")
        A(f"s_cmp_eq_u32 {sROLE}, {ROLE_WQ}"); A("s_cbranch_scc1 L_w0")
        A(f"v_mov_b32 {off}, 0"); A("s_mov_b32 s63, 0"); A("s_mov_b32 s66, 0"); A("s_mov_b32 s67, 0")
        A("s_mov_b32 s64, s42"); A("s_mov_b32 s65, s43"); A("s_mov_b32 s78, s42"); A("s_mov_b32 s79, s43")
        A("s_branch L_wdone")
        A("L_w0:")
        A(f"s_mul_i32 s68, {sWAVE}, 112"); A(f"v_add_u32 {X(5)}, s68, {row8}"); A(f"v_lshlrev_b32 {off}, 13, {X(5)}")
        A(f"v_lshl_add_u32 {off}, {c}, 4, {off}"); A(f"s_lshl_b32 s68, {sGI}, 10"); A("s_lshl_b32 s69, s62, 7"); A("s_add_u32 s68, s68, s69"); A(f"v_add_u32 {off}, s68, {off}")
        A("s_mov_b32 s63, 14"); A(f"s_mov_b32 s66, {8*8192}"); A(f"s_mul_i32 s67, {sWAVE}, 14336")
        A("s_mov_b32 s64, s42"); A("s_mov_b32 s65, s43"); A("s_mov_b32 s78, s42"); A("s_mov_b32 s79, s43")
        self.ln_addr(X(8))
        for t in range(14):
            A(f"global_load_dwordx4 {TR(4*t,4)}, {X(8)}, {sXIN} offset:{t*64}")
        for k in range(8): A(f"v_mov_b32 {T(56+k)}, 0")
        self.set_exec(0xFFFFFFFF, 0x00FFFFFF)
        A(f"global_load_dwordx4 {TR(56,4)}, {L16}, {sXIN}"); A(f"global_load_dwordx4 {TR(60,4)}, {L16}, {sXIN} offset:896")
        A("s_mov_b64 exec, -1")
        A("s_branch L_wdone")
        A("L_w1:")
        A(f"v_and_b32 {X(5)}, 3, {row8}"); A(f"v_lshlrev_b32 {X(5)}, 3, {X(5)}"); A(f"v_lshrrev_b32 {X(6)}, 2, {row8}"); A(f"v_add_u32 {X(5)}, {X(5)}, {X(6)}")
        A(f"s_lshl_b32 s68, {sGI}, 9"); A(f"s_lshl_b32 s69, {sWAVE}, 7"); A("s_add_u32 s68, s68, s69"); A(f"v_add_u32 {X(5)}, s68, {X(5)}")
        A(f"v_mul_u32_u24 {off}, 896, {X(5)}"); A(f"v_lshl_add_u32 {off}, {c}, 4, {off}"); A("s_lshl_b32 s68, s62, 7"); A(f"v_add_u32 {off}, s68, {off}")
        A("s_mov_b32 s63, 16"); A("s_mov_b32 s66, 0"); A(f"s_mov_b32 s67, {sM0B}")
        A("s_mov_b32 s64, s44"); A("s_mov_b32 s65, s45"); A("s_mov_b32 s78, s44"); A("s_mov_b32 s79, s45")
        A("s_branch L_wdone")
        A("L_w2:")
        A(f"s_mul_i32 s68, {sWAVE}, 112"); A(f"v_add_u32 {X(5)}, s68, {row8}"); A(f"v_mul_u32_u24 {off}, 3584, {X(5)}")
        A(f"v_and_b32 {X(6)}, 3, {c}"); A(f"v_lshl_add_u32 {off}, {X(6)}, 4, {off}")
        A(f"s_mul_i32 s68, {sGI}, 448"); A("s_lshl_b32 s69, s62, 6"); A("s_add_u32 s68, s68, s69"); A(f"v_add_u32 {off}, s68, {off}")
        A("s_mov_b32 s63, 14"); A(f"s_mov_b32 s66, {8*3584}"); A(f"s_mul_i32 s67, {sWAVE}, 14336")
        A("s_mov_b32 s64, s48"); A("s_mov_b32 s65, s49"); A("s_mov_b32 s78, s50"); A("s_mov_b32 s79, s51")
        A("s_branch L_wdone")
        A("L_w3:")
        A(f"s_mul_i32 s68, {sGI}, 224"); A(f"s_mul_i32 s69, {sWAVE}, 56"); A("s_add_u32 s68, s68, s69"); A(f"v_add_u32 {X(5)}, s68, {row8}")
        A(f"v_mul_u32_u24 {off}, 896, {X(5)}"); A(f"v_lshl_add_u32 {off}, {c}, 4, {off}"); A("s_lshl_b32 s68, s62, 7"); A(f"v_add_u32 {off}, s68, {off}")
        A("s_mov_b32 s63, 7"); A(f"s_mov_b32 s66, {8*896}"); A(f"s_mul_i32 s67, {sWAVE}, 7168")
        A("s_mov_b32 s64, s52"); A("s_mov_b32 s65, s53"); A("s_mov_b32 s78, s52"); A("s_mov_b32 s79, s53")
        A("L_wdone:")
        A(f"v_cmp_le_u32 vcc, 4, {c}")
        A(f"v_mov_b32 {X(0)}, s64"); A(f"v_mov_b32 {X(5)}, s78"); A(f"v_cndmask_b32 {X(0)}, {X(0)}, {X(5)}, vcc")
        A(f"v_mov_b32 {X(1)}, s65"); A(f"v_mov_b32 {X(5)}, s79"); A(f"v_cndmask_b32 {X(1)}, {X(1)}, {X(5)}, vcc")
        A(f"v_add_co_u32 {X(0)}, vcc, {X(0)}, {off}"); A(f"v_addc_co_u32 {X(1)}, vcc, 0, {X(1)}, vcc")
        A("s_mov_b32 s68, s67"); A("s_mov_b32 s69, 0")
        A("s_cmp_eq_u32 s63, 0"); A("s_cbranch_scc1 L_wld_done")
        A("L_wld:")
        A("s_mov_b32 m0, s68")
        A("s_add_u32 s68, s68, 1024")
        A(f"global_load_lds_dwordx4 {XR(0,2)}, off{wnt}")
        A("s_add_u32 s69, s69, 1"); A("s_and_b32 s62, s69, 3"); A("s_cmp_eq_u32 s62, 0"); A(f"s_mov_b32 s76, {26*896}"); A(f"s_cselect_b32 s62, s76, {2*896}")
        A(f"s_cmp_eq_u32 {sROLE}, {ROLE_WO}"); A("s_cselect_b32 s62, s62, s66")
        A(f"v_add_co_u32 {X(0)}, vcc, s62, {X(0)}"); A(f"v_addc_co_u32 {X(1)}, vcc, 0, {X(1)}, vcc")
        A("s_cmp_lt_u32 s69, s63"); A("s_cbranch_scc1 L_wld")
        A("L_wld_done:")
        A("s_mov_b32 s48, 0x22222222"); A("s_mov_b32 s49, 0x22222222"); A("s_mov_b32 s50, 0x44444444"); A("s_mov_b32 s51, 0x44444444")
        A("s_mov_b32 s52, 0x88888888"); A("s_mov_b32 s53, 0x88888888")
        A(f"s_cmp_eq_u32 {sWAVE}, 3"); A("s_cbranch_scc0 L_noclr")
        for k in range(4): A(f"v_mov_b32 {X(12+k)}, -1")
        A(f"s_lshl_b32 s68, {sJ}, 11"); A(f"v_add_u32 {X(8)}, s68, {L16}")
        A(f"global_store_dwordx4 {X(8)}, {XR(12,4)}, {sG} sc1"); A(f"global_store_dwordx4 {X(8)}, {XR(12,4)}, {sG} offset:1024 sc1")
        A(f"s_lshl_b32 s68, s2, 9"); A(f"v_add_u32 {X(9)}, s68, {L16}")
        self.set_exec(0xFFFFFFFF, 0)
        A(f"global_store_dwordx4 {X(9)}, {XR(12,4)}, {sC} sc1")
        A("s_mov_b64 exec, -1")
        A("L_noclr:")

    def tr_reads(self):
        A = self.A
        a = X(8); r, c, g4 = X(10), X(9), TMP
        A(f"v_and_b32 {c}, 15, {LANE}"); A(f"v_lshrrev_b32 {r}, 2, {c}"); A(f"v_and_b32 {c}, 3, {c}")
        A(f"v_lshrrev_b32 {a}, 4, {LANE}"); A(f"v_lshlrev_b32 {a}, 3, {a}"); A(f"v_add_u32 {a}, {a}, {r}")
        A(f"v_lshlrev_b32 {a}, 7, {a}")
        A(f"s_cmp_eq_u32 {sROLE}, {ROLE_WO}"); A("s_cbranch_scc1 L_tr_wo")
        A(f"s_cmp_eq_u32 {sROLE}, {ROLE_GU}"); A("s_cbranch_scc1 L_tr_gu")
        A(f"v_lshl_add_u32 {a}, {c}, 3, {a}"); A(f"s_lshl_b32 s68, {sWAVE}, 5"); A(f"v_add_u32 {a}, s68, {a}")
        A("s_branch L_tr_n")
        A("L_tr_gu:")
        A(f"v_and_b32 {r}, 1, {c}"); A(f"v_lshl_add_u32 {a}, {r}, 3, {a}"); A(f"v_lshrrev_b32 {r}, 1, {c}"); A(f"v_lshl_add_u32 {a}, {r}, 6, {a}")
        A(f"s_lshl_b32 s68, {sWAVE}, 4"); A(f"v_add_u32 {a}, s68, {a}")
        A("L_tr_n:")
        for t in range(14):
            A(f"ds_read_b64_tr_b16 {WR(4*t,2)}, {a} offset:{t*4096}")
            A(f"ds_read_b64_tr_b16 {WR(4*t+2,2)}, {a} offset:{t*4096+512}")
            if t % 4 == 3: A("s_waitcnt lgkmcnt(0)")
        A("s_branch L_tr_d")
        A("L_tr_wo:")
        A(f"v_lshl_add_u32 {a}, {c}, 3, {a}"); A(f"v_add_u32 {a}, {sM0B}, {a}")
        for tt in range(4):
            for nt in range(4):
                k = 4 * (4 * tt + nt)
                A(f"ds_read_b64_tr_b16 {WR(k,2)}, {a} offset:{tt*4096+nt*32}")
                A(f"ds_read_b64_tr_b16 {WR(k+2,2)}, {a} offset:{tt*4096+nt*32+512}")
            A("s_waitcnt lgkmcnt(0)")
        A("L_tr_d:")
        A("s_waitcnt lgkmcnt(0)")
        A(f"s_add_u32 {sTAG}, {sTAG}, {hex(TAGC)}")
    def colsum(self):
        A = self.A
        for k in range(4): A(f"v_mov_b32 {X(4+k)}, 0x3f803f80")
        for t in range(14):
            A(f"v_mfma_f32_16x16x32_bf16 {XR(0,4)}, {XR(4,4)}, {WR(4*t,4)}, {'0' if t == 0 else XR(0,4)}")
        A(f"v_mov_b32 {CS}, {X(0)}")

    def ln_scalars(self, s1, s2, scale):
        ops = [f"v_mul_f32 {s1}, {f32(1/448)}, {s1}", f"v_mul_f32 {s2}, {f32(1/448)}, {s2}",
               f"v_fma_f32 {s2}, -{s1}, {s1}, {s2}", f"v_max_f32 {s2}, 0, {s2}", f"v_add_f32 {s2}, {f32(1e-5)}, {s2}", f"v_rsq_f32 {s2}, {s2}"]
        if scale != 1.0: ops.append(f"v_mul_f32 {s2}, {f32(scale)}, {s2}")
        return ops
    def ln_finish(self, mu, rs):
        A = self.A
        A(f"v_cndmask_b32 {X(4)}, {X(0)}, {X(1)}, {sSEL}")
        A(f"v_fma_f32 {X(4)}, -{mu}, {CS}, {X(4)}")
        A(f"v_mul_f32 {X(4)}, {X(4)}, {rs}")

    def stage_ln(self, rx, rst, layer, scale, lab, gate=None):
        A = self.A
        self.gbase(SA, rx, layer); self.gbase(SB, rst, layer)
        xa, sa = X(8), X(9)
        self.ln_addr(xa)
        A(f"v_bfe_u32 {sa}, {LANE}, 4, 1"); A(f"v_lshlrev_b32 {sa}, 8, {sa}"); A(f"v_lshrrev_b32 {TMP}, 5, {LANE}"); A(f"v_lshl_add_u32 {sa}, {TMP}, 7, {sa}")
        A(f"v_and_b32 {TMP}, 15, {LANE}"); A(f"v_lshl_add_u32 {sa}, {TMP}, 3, {sa}")
        A(f"v_mov_b32 {T(56)}, 0"); A(f"v_mov_b32 {T(57)}, 0")
        if gate: gate()
        D = XR(0, 4); chk = X(10); s1, s2, t1, t2 = T(58), T(59), T(60), T(61)
        A(f"{lab}:")
        self.set_exec(0xFFFFFFFF, 0x0FFF0FFF)
        A(f"global_load_dwordx2 {TR(56,2)}, {sa}, {SB} sc1")
        A("s_mov_b64 exec, -1")
        for t in range(14):
            A(f"global_load_dwordx4 {TR(4*t,4)}, {xa}, {SA} offset:{t*64} sc1")
        ops = [f"v_max_u32 {chk}, {T(56)}, {T(57)}",
               f"v_add_f32_dpp {s1}, {T(56)}, {T(56)} row_ror:8 {DPP}", f"v_add_f32_dpp {s2}, {T(57)}, {T(57)} row_ror:8 {DPP}"]
        mx = self.maxops(chk, self.chk_regs(T, 0, 14), first=False)
        red = []
        for sh in (4, 2, 1):
            red += [f"v_add_f32_dpp {s1}, {s1}, {s1} row_ror:{sh} {DPP}", f"v_add_f32_dpp {s2}, {s2}, {s2} row_ror:{sh} {DPP}"]
        red += [f"v_mov_b32 {t1}, {s1}", f"v_mov_b32 {t2}, {s2}", f"v_permlane32_swap_b32 {s1}, {t1}", f"v_permlane32_swap_b32 {s2}, {t2}",
                f"v_add_f32 {s1}, {s1}, {t1}", f"v_add_f32 {s2}, {s2}, {t2}"]
        red += self.ln_scalars(s1, s2, scale)
        A("s_waitcnt vmcnt(14)")
        for s in ops: A(s)
        A("s_waitcnt vmcnt(0)")
        for t in range(14):
            A(f"v_mfma_f32_16x16x32_bf16 {D}, {TR(4*t,4)}, {WR(4*t,4)}, {'0' if t == 0 else D}")
            n = 2
            while n and (red or mx):
                if red: A(red.pop(0)); n -= 1
                if n and mx: A(mx.pop(0)); n -= 1
        for s in mx + red: A(s)
        self.poll_tail(chk, lab, lab + "_d")
        A(f"{lab}_d:")
        self.ln_finish(s1, s2)

    def ld_setup(self):
        A = self.A
        vK, vV = X(18), X(19)
        A(f"v_and_b32 {X(8)}, 15, {LANE}"); A(f"v_lshrrev_b32 {X(9)}, 4, {LANE}")
        A(f"v_and_b32 {vK}, 3, {LANE}"); A(f"v_lshlrev_b32 {vK}, 4, {vK}"); A(f"v_lshl_add_u32 {vK}, {X(9)}, 6, {vK}")
        A(f"v_bfe_u32 {TMP}, {LANE}, 2, 2"); A(f"v_lshl_add_u32 {vK}, {TMP}, 11, {vK}")
        A(f"v_lshlrev_b32 {vV}, 11, {X(9)}"); A(f"v_lshl_add_u32 {vV}, {X(8)}, 4, {vV}")
    def throttle(self, win):
        if self.ob + 1 > win:
            self.A(f"s_waitcnt vmcnt({win - 4})"); self.ob = win - 4
        self.ob += 1
    def ktile(self, tau, win):
        A = self.A; f = " nt" if self.o.nt else ""
        A(f"s_add_u32 s68, {sTILE}, {tau*262144}")
        for t in range(8):
            n = tau * 8 + t
            self.throttle(win)
            A(f"buffer_load_dwordx4 a[{4*n}:{4*n+3}], {X(18)}, s[8:11], s68 offen offset:{(t//2)*512 + (t%2)*256}{f}")
    def vtile(self, tau, win, va=None):
        A = self.A; f = " nt" if self.o.nt else ""
        va = va or X(19)
        A(f"s_add_u32 s68, {sTILE}, {tau*262144}")
        for t in range(8):
            n = tau * 8 + t
            imm = (t // 2) * 512 + (t % 2) * 256
            self.throttle(win)
            if n < 2 * NLDS:
                A(f"s_add_u32 m0, {sM0B}, {n*1024 - imm}")
                A(f"buffer_load_dwordx4 {va}, s[12:15], s68 offen offset:{imm}{f} lds")
            else:
                m = n - 2 * NLDS
                A(f"buffer_load_dwordx4 {VRR(4*m,4)}, {va}, s[12:15], s68 offen offset:{imm}{f}")
    def arrive(self):
        A = self.A
        A("s_getreg_b32 s68, hwreg(HW_REG_XCC_ID, 0, 4)"); A("s_and_b32 s68, s68, 7"); A("s_mul_i32 s68, s68, 6")
        A("s_lshl_b64 s[78:79], 1, s68"); A("s_or_b32 s79, s79, 0x01000000")
        A(f"v_mov_b32 {X(10)}, s78"); A(f"v_mov_b32 {X(11)}, s79")
        A(f"s_lshl_b32 s69, {sGI}, 5"); A(f"v_mov_b32 {X(9)}, s69")
        A("s_mov_b64 exec, 1")
        A(f"global_atomic_add_x2 {X(9)}, {XR(10,2)}, {sDBG} sc1")
        A("s_mov_b64 exec, -1")
    def early_q(self):
        A = self.A
        self.colsum()
        s1a, s2a, s1b, s2b = X(12), X(13), X(14), X(15)
        for (base, s1, s2) in ((56, s1a, s2a), (60, s1b, s2b)):
            A(f"v_mov_b32 {s1}, 0"); A(f"v_mov_b32 {s2}, 0")
            for k in range(4):
                A(f"v_lshlrev_b32 {X(8)}, 16, {T(base+k)}"); A(f"v_and_b32 {X(9)}, 0xffff0000, {T(base+k)}")
                A(f"v_add_f32 {s1}, {s1}, {X(8)}"); A(f"v_fmac_f32 {s2}, {X(8)}, {X(8)}")
                A(f"v_add_f32 {s1}, {s1}, {X(9)}"); A(f"v_fmac_f32 {s2}, {X(9)}, {X(9)}")
        for sh in (8, 4, 2, 1):
            for r in (s1a, s2a, s1b, s2b): A(f"v_add_f32_dpp {r}, {r}, {r} row_ror:{sh} {DPP}")
        for swap in ("v_permlane16_swap_b32", "v_permlane32_swap_b32"):
            for r in (s1a, s2a, s1b, s2b):
                A(f"v_mov_b32 {X(8)}, {r}"); A(f"{swap} {r}, {X(8)}"); A(f"v_add_f32 {r}, {r}, {X(8)}")
        A(f"v_cndmask_b32 {s1a}, {s1a}, {s1b}, {sSEL}"); A(f"v_cndmask_b32 {s2a}, {s2a}, {s2b}, {sSEL}")
        for s in self.ln_scalars(s1a, s2a, QSCALE): A(s)
        D = XR(0, 4)
        for t in range(14):
            A(f"v_mfma_f32_16x16x32_bf16 {D}, {TR(4*t,4)}, {WR(4*t,4)}, {'0' if t == 0 else D}")
        self.ln_finish(s1a, s2a)
        self.pack_pair(X(4), X(4), X(6))
        A(f"v_mov_b32 {X(5)}, {sTAG}")
        A(f"v_bfe_u32 {X(7)}, {LANE}, 4, 1"); A(f"v_lshlrev_b32 {X(7)}, 11, {X(7)}"); A(f"v_and_b32 {X(8)}, 15, {LANE}"); A(f"v_lshl_add_u32 {X(7)}, {X(8)}, 2, {X(7)}")
        A(f"s_lshl_b32 s68, {sSIG}, 6"); A(f"v_add_u32 {X(7)}, s68, {X(7)}")
        A(f"s_lshl_b32 s68, {sGI}, 12"); A(f"s_add_u32 s68, s68, {QTOFF}"); A(f"s_add_u32 s70, s20, s68"); A("s_addc_u32 s71, s21, 0")
        self.set_exec(0x55555555, 0)
        A(f"global_store_dwordx2 {X(7)}, {XR(4,2)}, {SA} sc1")
        A("s_mov_b64 exec, -1")

    def stream(self):
        A = self.A; win = self.o.win
        self.ld_setup()
        self.ob = 0
        k0 = self.o.k0
        for tau in range(k0): self.ktile(tau, 64)
        A(f"s_waitcnt vmcnt({8*k0})")
        self.stamp(1)
        A("s_barrier")
        A(f"s_cmp_eq_u32 {sWAVE}, 3"); A("s_cbranch_scc0 L_noarr")
        self.arrive()
        A("L_noarr:")
        self.tr_reads()
        A("s_barrier")
        A(f"s_cmp_eq_u32 {sROLE}, {ROLE_GU}"); A("s_cbranch_scc0 L_nocs")
        self.colsum()
        A("L_nocs:")
        A(f"s_cmp_eq_u32 {sROLE}, {ROLE_WQ}"); A("s_cbranch_scc0 L_noeq")
        self.early_q()
        A("L_noeq:")
        self.stamp(2)
        self.ob = 8 * k0 + 2
        tp = self.o.trypoll
        for tau in range(k0, tp): self.ktile(tau, win)
        A(f"s_cmp_eq_u32 {sWAVE}, 0"); A("s_cbranch_scc0 L_np1")
        A(f"s_lshl_b32 s68, {sGI}, 12"); A(f"s_add_u32 s68, s68, {QTOFF}"); A(f"s_add_u32 s70, s20, s68"); A("s_addc_u32 s71, s21, 0")
        A(f"s_lshl_b32 s68, {sB}, 11"); A(f"s_lshl_b32 s78, {sHL}, 10"); A("s_add_u32 s68, s68, s78"); A(f"v_add_u32 {X(8)}, s68, {L16}")
        A(f"global_load_dwordx4 {XR(10,4)}, {X(8)}, {SA} sc1")
        A("L_np1:")
        ob = self.ob
        self.ob = 0
        self.ktile(tp, 64)
        A(f"s_cmp_eq_u32 {sWAVE}, 0"); A("s_cbranch_scc0 L_np2")
        A("s_waitcnt vmcnt(8)")
        A("L_q0:")
        A(f"v_xor_b32 {X(14)}, {sTAG}, {X(11)}"); A(f"v_xor_b32 {X(15)}, {sTAG}, {X(13)}"); A(f"v_or_b32 {X(14)}, {X(14)}, {X(15)}")
        A(f"v_cmp_ne_u32 vcc, 0, {X(14)}")
        A("s_cbranch_vccz L_q0_d")
        A(f"s_cmp_eq_u32 {sBUD}, 0"); A("s_cbranch_scc1 L_q0_d"); A(f"s_sub_u32 {sBUD}, {sBUD}, 1")
        A(f"global_load_dwordx4 {XR(10,4)}, {X(8)}, {SA} sc1"); A("s_waitcnt vmcnt(0)")
        A("s_branch L_q0")
        A("L_q0_d:")
        A(f"v_mov_b32 {X(11)}, {X(12)}")
        A(f"v_lshlrev_b32 {X(8)}, 3, {LANE}"); A(f"v_add_u32 {X(8)}, {LDS_QL}, {X(8)}")
        A(f"ds_write_b64 {X(8)}, {XR(10,2)}")
        A("s_waitcnt lgkmcnt(0)")
        A(f"v_mov_b32 {X(8)}, {LDS_FLAG}"); A(f"v_mov_b32 {X(9)}, 1"); A(f"ds_write_b32 {X(8)}, {X(9)}")
        self.stamp(4)
        A("L_np2:")
        self.ob = ob + 1 + 8
        for tau in range(tp + 1, 8): self.ktile(tau, win)
        for tau in range(self.o.vdist): self.vtile(tau, 64)
        self.stamp(5)
        self.dstamp(4)

    def bar_check_finish(self):
        A = self.A
        A(f"s_cmp_eq_u32 {sLAYER}, 0"); A("s_cbranch_scc0 L_gb_done")
        A(f"v_and_b32 {TMP}, 7, {LANE}"); A(f"v_lshlrev_b32 {TMP}, 5, {TMP}")
        A("s_waitcnt vmcnt(0)")
        A("L_gb:")
        A(f"v_lshrrev_b32 {X(12)}, 24, {WBAR1}"); A(f"v_cmp_ne_u32 vcc, 32, {X(12)}")
        A("s_cbranch_vccz L_gb_d")
        A(f"s_cmp_eq_u32 {sBUD}, 0"); A("s_cbranch_scc1 L_gb_d"); A(f"s_sub_u32 {sBUD}, {sBUD}, 1"); A("s_sleep 4")
        A(f"global_load_dwordx2 {WBAR}, {TMP}, {sDBG} sc1"); A("s_waitcnt vmcnt(0)")
        A("s_branch L_gb")
        A("L_gb_d:")
        A("s_getreg_b32 s68, hwreg(HW_REG_XCC_ID, 0, 4)"); A("s_and_b32 s68, s68, 7"); A("s_mul_i32 s68, s68, 6")
        A("s_lshl_b64 s[78:79], 32, s68"); A("s_or_b32 s79, s79, 0x20000000")
        A(f"v_readlane_b32 s68, {WBAR0}, {sGI}"); A(f"v_readlane_b32 s69, {WBAR1}, {sGI}")
        A("s_cmp_eq_u64 s[68:69], s[78:79]"); A(f"s_cselect_b32 {sMODE}, 1, 0")
        if self.o.slow: A(f"s_mov_b32 {sMODE}, 0")
        A("L_gb_done:")

    def get_q(self):
        A = self.A
        A(f"s_cmp_eq_u32 {sLAYER}, 0"); A("s_cbranch_scc0 L_q1")
        A(f"v_mov_b32 {X(8)}, {LDS_FLAG}")
        A("L_fl:")
        A(f"ds_read_b32 {X(9)}, {X(8)}"); A("s_waitcnt lgkmcnt(0)")
        A(f"v_readfirstlane_b32 s68, {X(9)}")
        A("s_cmp_lg_u32 s68, 0"); A("s_cbranch_scc1 L_qlds")
        A(f"s_cmp_eq_u32 {sBUD}, 0"); A("s_cbranch_scc1 L_qlds"); A(f"s_sub_u32 {sBUD}, {sBUD}, 1"); A("s_sleep 2"); A("s_branch L_fl")
        A("L_q1:")
        A(f"s_cmp_eq_u32 {sWAVE}, 0"); A("s_cbranch_scc0 L_q1b")
        self.gbase(SA, R_Q, 1)
        A(f"s_lshl_b32 s68, {sB}, 10"); A(f"s_lshl_b32 s78, {sHL}, 9"); A("s_add_u32 s68, s68, s78"); A(f"v_add_u32 {X(8)}, s68, {L16}")
        self.set_exec(0xFFFFFFFF, 0)
        A("L_q1p:")
        A(f"global_load_dwordx4 {XR(10,4)}, {X(8)}, {SA} sc1"); A("s_waitcnt vmcnt(0)")
        for s in self.maxops(X(14), [X(10), X(11), X(12), X(13)]): A(s)
        self.poll_tail(X(14), "L_q1p", "L_q1p_d", sleep=self.o.qsleep)
        A("L_q1p_d:")
        A(f"v_add_u32 {X(8)}, {LDS_QL}, {L16}")
        A(f"ds_write_b128 {X(8)}, {XR(10,4)}")
        A("s_mov_b64 exec, -1")
        A("s_waitcnt lgkmcnt(0)")
        A("L_q1b:")
        A("s_barrier")
        A("L_qlds:")
        A(f"v_lshrrev_b32 {X(8)}, 4, {LANE}"); A(f"v_lshlrev_b32 {X(8)}, 6, {X(8)}"); A(f"v_and_b32 {TMP}, 3, {LANE}"); A(f"v_lshl_add_u32 {X(8)}, {TMP}, 4, {X(8)}")
        A(f"v_add_u32 {X(8)}, {LDS_QL}, {X(8)}")
        for t in range(2): A(f"ds_read_b128 {TR(32+4*t,4)}, {X(8)} offset:{t*256}")
        A(f"s_waitcnt vmcnt({8*self.o.vdist})")

    def attention(self):
        A = self.A
        S = lambda tau, r: T(4 * tau + r)
        mk = [X(16 + k) for k in range(4)]
        A(f"v_and_b32 {X(8)}, 15, {LANE}")
        for k in range(4):
            A(f"v_mov_b32 {mk[k]}, 0"); A(f"v_mov_b32 {X(9)}, 0xffff"); A(f"v_mov_b32 {X(12)}, 0xffff0000")
            A(f"v_cmp_eq_u32 vcc, {2*k}, {X(8)}"); A(f"v_cndmask_b32 {mk[k]}, {mk[k]}, {X(9)}, vcc")
            A(f"v_cmp_eq_u32 vcc, {2*k+1}, {X(8)}"); A(f"v_cndmask_b32 {mk[k]}, {mk[k]}, {X(12)}, vcc")
        A("s_waitcnt lgkmcnt(0)")
        m, m2 = X(14), X(15)
        va = X(13)
        A(f"v_add_u32 {va}, {sM0B}, {L16}")
        for k in range(8): A(f"v_mov_b32 {X(k)}, 0")
        Dq = lambda G: 40 + 4 * (G % 4)
        M1, M2, M3 = "s[48:49]", "s[50:51]", "s[52:53]"
        def c1(G): return f"v_cndmask_b32 {T(G)}, {T(Dq(G))}, {T(Dq(G)+1)}, {M1}"
        def c2(G): return f"v_cndmask_b32 {T(G)}, {T(G)}, {T(Dq(G)+2)}, {M2}"
        def c3(G): return f"v_cndmask_b32 {T(G)}, {T(G)}, {T(Dq(G)+3)}, {M3}"
        def d1(G): return f"v_add_f32_dpp {T(G)}, {T(G)}, {T(G)} quad_perm:[1,0,3,2] {DPP}"
        def d2(G): return f"v_add_f32_dpp {T(G)}, {T(G)}, {T(G)} quad_perm:[2,3,0,1] {DPP}"
        ok = lambda G: 0 <= G < 32
        for G in range(32 + 6):
            if ok(G): A(f"v_mfma_f32_16x16x32_bf16 {TR(Dq(G),4)}, a[{8*G}:{8*G+3}], {TR(32,4)}, 0")
            if ok(G - 2): A(c1(G - 2)); A(c2(G - 2))
            if ok(G): A(f"v_mfma_f32_16x16x32_bf16 {TR(Dq(G),4)}, a[{8*G+4}:{8*G+7}], {TR(36,4)}, {TR(Dq(G),4)}")
            if ok(G - 2): A(c3(G - 2))
            if ok(G - 3): A(d1(G - 3))
            if ok(G - 4): A(d2(G - 4))
            g5 = G - 5
            if ok(g5) and g5 % 2 == 1:
                if g5 == 1: A(f"v_max_f32 {m}, {T(0)}, {T(1)}")
                else: A(f"v_max3_f32 {m}, {m}, {T(g5-1)}, {T(g5)}")
        self.stamp(7)
        A(f"v_mov_b32 {m2}, {m}"); A(f"v_permlane16_swap_b32 {m}, {m2}"); A(f"v_max_f32 {m}, {m}, {m2}")
        A(f"v_mov_b32 {m2}, {m}"); A(f"v_permlane32_swap_b32 {m}, {m2}"); A(f"v_max_f32 {m}, {m}, {m2}")
        l = X(15); acc = [XR(0, 4), XR(4, 4)]
        A(f"v_mov_b32 {l}, 0")
        Bs = [TR(32, 4), TR(36, 4)]; Bb = [32, 36]
        stg = [40, 48, 56]
        VD = self.o.vdist
        vV = X(8)
        A(f"v_lshrrev_b32 {vV}, 4, {LANE}"); A(f"v_lshlrev_b32 {vV}, 11, {vV}"); A(f"v_and_b32 {TMP}, 15, {LANE}"); A(f"v_lshl_add_u32 {vV}, {TMP}, 4, {vV}")
        def younger(tile, at_tile):
            last_issued = min(at_tile + VD, 7)
            n = 8 * (last_issued - tile)
            if at_tile + VD >= 7: n += 1
            return n
        def tile_issue(tau):
            t2 = tau + VD
            if t2 > 7: return
            lab = A.label("VI")
            A(f"s_cmp_eq_u32 {sLAYER}, 0"); A(f"s_cbranch_scc0 {lab}")
            self.ob = 0
            self.vtile(t2, 64, vV)
            if t2 == 7:
                A(f"v_and_b32 {TMP}, 7, {LANE}"); A(f"v_lshlrev_b32 {TMP}, 5, {TMP}")
                A(f"global_load_dwordx2 {WBAR}, {TMP}, {sDBG} sc1")
            A(f"{lab}:")
        def lds_issue(q, at_tile):
            if q % 4 == 0: A(f"s_waitcnt vmcnt({younger(q // 4, at_tile)})")
            b = stg[q % 3]
            A(f"ds_read_b128 {TR(b,4)}, {va} offset:{q*2048}"); A(f"ds_read_b128 {TR(b+4,4)}, {va} offset:{q*2048+1024}")
        PF = 2
        def pre(q):
            tau, r = q // 4, q % 4
            s = S(tau, r); bb = Bb[q % 2]; pk = X(12) if q % 2 == 0 else X(9)
            return [f"v_sub_f32 {s}, {s}, {m}", f"v_exp_f32 {s}, {s}"], [f"v_cvt_pk_bf16_f32 {pk}, {s}, {s}", f"v_add_f32 {l}, {l}, {s}"] + [f"v_and_b32 {T(bb+k)}, {mk[k]}, {pk}" for k in range(4)]
        tile_issue(0)
        for q in range(min(PF, NLDS)): lds_issue(q, 0)
        a, b_ = pre(0)
        for s in a + b_: A(s)
        a, _ = pre(1)
        for s in a: A(s)
        for q in range(32):
            tau = q // 4
            if q % 4 == 0 and q > 0: tile_issue(tau)
            if q + PF < NLDS: lds_issue(q + PF, tau)
            if q < NLDS:
                A(f"s_waitcnt lgkmcnt({2 * min(PF, NLDS - 1 - q)})")
                b = stg[q % 3]; a0, a1 = TR(b, 4), TR(b + 4, 4)
            else:
                if q >= 28:
                    A(f"s_waitcnt vmcnt({(31 - q) * 2 + 1})")
                elif q == NLDS or q % 4 == 0:
                    A(f"s_waitcnt vmcnt({younger(tau, tau)})")
                mm = (q - NLDS) * 8; a0, a1 = VRR(mm, 4), VRR(mm + 4, 4)
            A(f"v_mfma_f32_16x16x32_bf16 {acc[0]}, {a0}, {Bs[q%2]}, {acc[0]}")
            if q + 1 < 32:
                _, b_ = pre(q + 1)
                for s in b_[:2]: A(s)
            A(f"v_mfma_f32_16x16x32_bf16 {acc[1]}, {a1}, {Bs[q%2]}, {acc[1]}")
            if q + 1 < 32:
                for s in b_[2:]: A(s)
            if q + 2 < 32:
                a, _ = pre(q + 2)
                for s in a: A(s)
        self.stamp(8)
        self.bar_check_finish()
        self.dstamp(5, layer=0); self.dstamp(7, layer=1)
        l2 = X(12)
        A(f"v_mov_b32 {l2}, {l}"); A(f"v_permlane16_swap_b32 {l}, {l2}"); A(f"v_add_f32 {l}, {l}, {l2}")
        A(f"v_mov_b32 {l2}, {l}"); A(f"v_permlane32_swap_b32 {l}, {l2}"); A(f"v_add_f32 {l}, {l}, {l2}")
        A(f"v_lshrrev_b32 {X(8)}, 4, {LANE}"); A(f"v_lshlrev_b32 {X(8)}, 7, {X(8)}"); A(f"v_and_b32 {X(9)}, 15, {LANE}"); A(f"v_lshl_add_u32 {X(8)}, {X(9)}, 4, {X(8)}")
        A(f"s_lshl_b32 s68, {sWAVE}, 10"); A(f"s_add_u32 s68, s68, {LDS_OP}"); A(f"v_add_u32 {X(8)}, s68, {X(8)}")
        A(f"s_lshl_b32 s68, {sWAVE}, 3"); A(f"s_add_u32 s68, s68, {LDS_MLP}"); A(f"v_mov_b32 {X(9)}, s68")
        self.set_exec(0x00FF00FF, 0x00FF00FF)
        A(f"ds_write_b128 {X(8)}, {XR(0,4)}"); A(f"ds_write_b128 {X(8)}, {XR(4,4)} offset:512")
        A("s_mov_b64 exec, 1")
        A(f"ds_write_b64 {X(9)}, {XR(14,2)}")
        A("s_mov_b64 exec, -1")
        A("s_waitcnt lgkmcnt(0)")
        A("s_barrier")
        self.stamp(9)

    def combine_publish(self):
        A = self.A
        A(f"v_add_u32 {X(8)}, {LDS_OP}, {L16}")
        for w in range(4): A(f"ds_read_b128 {TR(4*w,4)}, {X(8)} offset:{w*1024}")
        A(f"v_mov_b32 {X(9)}, {LDS_MLP}")
        A(f"ds_read_b128 {TR(16,4)}, {X(9)}"); A(f"ds_read_b128 {TR(20,4)}, {X(9)} offset:16")
        self.gbase(SA, R_O); self.gbase(SB, R_ML)
        a = X(10)
        A(f"v_lshrrev_b32 {a}, 3, {LANE}"); A(f"v_lshlrev_b32 {a}, 10, {a}")
        A(f"v_bfe_u32 {X(11)}, {LANE}, 1, 2"); A(f"v_lshl_add_u32 {a}, {X(11)}, 8, {a}")
        A(f"v_and_b32 {X(11)}, 1, {LANE}"); A(f"v_lshl_add_u32 {a}, {X(11)}, 3, {a}")
        A(f"s_lshl_b32 s68, {sB}, 3"); A(f"s_add_u32 s68, s68, {sSP}"); A("s_lshl_b32 s68, s68, 4"); A(f"s_lshl_b32 s78, {sHL}, 13"); A("s_add_u32 s68, s68, s78")
        A(f"v_add_u32 {a}, s68, {a}")
        A(f"s_lshl_b32 s68, {sHL}, 7"); A(f"s_lshl_b32 s78, {sB}, 6"); A("s_add_u32 s68, s68, s78"); A(f"s_lshl_b32 s78, {sSP}, 3"); A("s_add_u32 s68, s68, s78")
        A(f"v_mov_b32 {X(11)}, s68")
        M = T(24); f = [T(25 + w) for w in range(4)]; Lr = T(29)
        ms = [T(16), T(18), T(20), T(22)]; ls = [T(17), T(19), T(21), T(23)]
        A("s_waitcnt lgkmcnt(0)")
        A(f"v_max3_f32 {M}, {ms[0]}, {ms[1]}, {ms[2]}"); A(f"v_max_f32 {M}, {M}, {ms[3]}")
        for w in range(4): A(f"v_sub_f32 {f[w]}, {ms[w]}, {M}")
        for w in range(4): A(f"v_exp_f32 {f[w]}, {f[w]}")
        for r in range(4): A(f"v_mul_f32 {T(32+r)}, {f[0]}, {T(r)}")
        for w in range(1, 4):
            for r in range(4): A(f"v_fmac_f32 {T(32+r)}, {f[w]}, {T(4*w+r)}")
        A(f"v_cvt_pk_bf16_f32 {T(36)}, {T(32)}, {T(33)}"); A(f"v_cvt_pk_bf16_f32 {T(37)}, {T(34)}, {T(35)}")
        self.pub(f"global_store_dwordx2 {a}, {TR(36,2)}, {SA}")
        A(f"v_mul_f32 {T(39)}, {f[0]}, {ls[0]}")
        for w in range(1, 4): A(f"v_fmac_f32 {T(39)}, {f[w]}, {ls[w]}")
        A(f"v_mov_b32 {T(38)}, {M}")
        A("s_mov_b64 exec, 1")
        self.pub(f"global_store_dwordx2 {X(11)}, {TR(38,2)}, {SB}")
        A("s_mov_b64 exec, -1")

    def stage_wo(self):
        A = self.A
        self.gbase(SA, R_O); self.gbase(SC_, R_ML)
        A(f"s_lshl_b32 s68, {sWAVE}, 12"); A("s_add_u32 s70, s70, s68"); A("s_addc_u32 s71, s71, 0")
        a = X(16)
        A(f"v_lshrrev_b32 {a}, 5, {LANE}"); A(f"v_lshlrev_b32 {a}, 6, {a}")
        A(f"v_bfe_u32 {TMP}, {LANE}, 4, 1"); A(f"v_lshl_add_u32 {a}, {TMP}, 5, {a}")
        A(f"v_and_b32 {TMP}, 3, {LANE}"); A(f"v_lshl_add_u32 {a}, {TMP}, 3, {a}")
        A(f"s_lshr_b32 s68, {sWAVE}, 1"); A("s_lshl_b32 s68, s68, 7"); A(f"v_add_u32 {a}, s68, {a}")
        wa, ra = X(17), X(18)
        A(f"v_bfe_u32 {wa}, {LANE}, 4, 1"); A(f"v_lshlrev_b32 {wa}, 7, {wa}"); A(f"v_lshrrev_b32 {TMP}, 5, {LANE}"); A(f"v_lshl_add_u32 {wa}, {TMP}, 6, {wa}")
        A(f"v_and_b32 {TMP}, 15, {LANE}"); A(f"v_lshl_add_u32 {wa}, {TMP}, 2, {wa}")
        A(f"s_lshl_b32 s68, {sWAVE}, 9"); A(f"s_add_u32 s68, s68, {LDS_RED}"); A(f"v_add_u32 {wa}, s68, {wa}")
        A(f"v_lshrrev_b32 {ra}, 5, {LANE}"); A(f"v_lshlrev_b32 {ra}, 9, {ra}"); A(f"v_and_b32 {TMP}, 31, {LANE}"); A(f"v_lshl_add_u32 {ra}, {TMP}, 2, {ra}")
        A(f"s_lshl_b32 s68, {sWAVE}, 7"); A(f"s_add_u32 s68, s68, {LDS_RED}"); A(f"v_add_u32 {ra}, s68, {ra}")
        mv, lv = T(16), T(17)
        D = [TR(20 + 4 * nt, 4) for nt in range(4)]
        chk, M, t1, e, w = T(36), T(37), T(38), T(39), T(40)
        if self.o.gate:
            A("L_wog:")
            A(f"global_load_dwordx2 {TR(16,2)}, {a}, {SC_} sc1"); A("s_waitcnt vmcnt(0)")
            A(f"v_max_u32 {chk}, {mv}, {lv}")
            self.poll_tail(chk, "L_wog", "L_wog_d", sleep=self.o.gatesleep)
            A("L_wog_d:")
        A("L_wo:")
        A(f"global_load_dwordx2 {TR(16,2)}, {a}, {SC_} sc1")
        for tt in range(4):
            A(f"global_load_dwordx4 {TR(4*tt,4)}, {L16}, {SA} offset:{tt*1024} sc1")
        A("s_waitcnt vmcnt(4)")
        ops = [f"v_max_u32 {chk}, {mv}, {lv}",
               f"v_mov_b32_dpp {t1}, {mv} quad_perm:[1,0,3,2] {DPP}", f"v_max_f32 {M}, {mv}, {t1}",
               f"v_mov_b32_dpp {t1}, {M} quad_perm:[2,3,0,1] {DPP}", f"v_max_f32 {M}, {M}, {t1}",
               f"v_mov_b32 {t1}, {M}", f"v_permlane16_swap_b32 {M}, {t1}", f"v_max_f32 {M}, {M}, {t1}",
               f"v_sub_f32 {e}, {mv}, {M}", f"v_exp_f32 {e}, {e}", f"v_mul_f32 {M}, {e}, {lv}",
               f"v_mov_b32_dpp {t1}, {M} quad_perm:[1,0,3,2] {DPP}", f"v_add_f32 {M}, {M}, {t1}",
               f"v_mov_b32_dpp {t1}, {M} quad_perm:[2,3,0,1] {DPP}", f"v_add_f32 {M}, {M}, {t1}",
               f"v_mov_b32 {t1}, {M}", f"v_permlane16_swap_b32 {M}, {t1}", f"v_add_f32 {M}, {M}, {t1}",
               f"v_rcp_f32 {M}, {M}", f"v_mul_f32 {w}, {e}, {M}"]
        mx = self.maxops(chk, self.chk_regs(T, 0, 4), first=False)
        A(ops.pop(0)); A(ops.pop(0))
        A("s_waitcnt vmcnt(0)")
        for tt in range(4):
            for nt in range(4):
                A(f"v_mfma_f32_16x16x32_bf16 {D[nt]}, {TR(4*tt,4)}, {WR(4*(4*tt+nt),4)}, {'0' if tt == 0 else D[nt]}")
                if ops: A(ops.pop(0))
                if mx: A(mx.pop(0))
        for s in ops + mx: A(s)
        self.poll_tail(chk, "L_wo", "L_wo_d")
        A("L_wo_d:")
        acc = [T(41 + nt) for nt in range(4)]
        for r in range(4):
            for nt in range(4):
                op = "v_mul_f32_dpp" if r == 0 else "v_fmac_f32_dpp"
                A(f"{op} {acc[nt]}, {w}, {T(20+4*nt+r)} row_newbcast:{r} {DPP}")
        A(f"v_permlane16_swap_b32 {acc[0]}, {acc[1]}"); A(f"v_permlane16_swap_b32 {acc[2]}, {acc[3]}")
        A(f"v_add_f32 {acc[0]}, {acc[0]}, {acc[1]}"); A(f"v_add_f32 {acc[2]}, {acc[2]}, {acc[3]}")
        A(f"ds_write_b32 {wa}, {acc[0]}"); A(f"ds_write_b32 {wa}, {acc[2]} offset:256")
        self.cbase(SA, 0)
        A(f"v_lshlrev_b32 {X(9)}, 2, {LANE}"); A(f"s_lshl_b32 s68, {sGI}, 7"); A(f"v_add_u32 {X(9)}, s68, {X(9)}")
        A("s_waitcnt lgkmcnt(0)")
        A("s_barrier")
        A(f"ds_read_b32 {T(0)}, {ra}"); A(f"ds_read_b32 {T(1)}, {ra} offset:1024")
        A("s_waitcnt lgkmcnt(0)")
        A(f"v_add_f32 {T(0)}, {T(0)}, {T(1)}")
        A(f"v_mov_b32 {T(1)}, {T(0)}"); A(f"v_permlane32_swap_b32 {T(0)}, {T(1)}"); A(f"v_add_f32 {T(0)}, {T(0)}, {T(1)}")
        self.set_exec(0xFFFFFFFF, 0)
        A(f"global_store_dword {X(9)}, {T(0)}, {SA} sc1")
        A("s_mov_b64 exec, -1")

    def stage_rs(self):
        A = self.A
        l4 = X(8)
        A(f"v_lshlrev_b32 {l4}, 2, {LANE}")
        self.xst_addr(X(10))
        A(f"v_bfe_u32 {X(11)}, {LANE}, 4, 1"); A(f"v_lshlrev_b32 {X(11)}, 8, {X(11)}"); A(f"s_lshl_b32 s68, {sSIG}, 3"); A(f"v_add_u32 {X(11)}, s68, {X(11)}")
        A("L_rs:")
        A(f"global_load_ushort {X(5)}, {X(10)}, {SD} sc1")
        for k in range(4): A(f"global_load_dword {X(k)}, {l4}, {SA} offset:{k*256} sc1")
        A("s_waitcnt vmcnt(4)")
        A(f"v_lshlrev_b32 {X(6)}, 16, {X(5)}"); A(f"v_or_b32 {X(4)}, {X(6)}, {X(5)}")
        A("s_waitcnt vmcnt(0)")
        for s in self.maxops(X(4), [X(0), X(1), X(2), X(3)], first=False): A(s)
        A(f"v_add_f32 {X(0)}, {X(0)}, {X(1)}"); A(f"v_add_f32 {X(2)}, {X(2)}, {X(3)}")
        self.poll_tail(X(4), "L_rs", "L_rs_d")
        A("L_rs_d:")
        A(f"v_add_f32 {X(0)}, {X(0)}, {X(2)}")
        A(f"v_mov_b32 {X(1)}, {X(0)}"); A(f"v_permlane32_swap_b32 {X(0)}, {X(1)}"); A(f"v_add_f32 {X(0)}, {X(0)}, {X(1)}")
        if self.o.round2:
            A(f"v_cvt_pk_bf16_f32 {X(0)}, {X(0)}, {X(0)}"); A(f"v_and_b32 {X(0)}, 0xffff0000, {X(0)}")
        A(f"v_add_f32 {X(0)}, {X(6)}, {X(0)}")
        A(f"v_mov_b32_dpp {X(2)}, {X(0)} quad_perm:[1,0,3,2] {DPP}")
        A(f"v_cvt_pk_bf16_f32 {X(1)}, {X(0)}, {X(2)}")
        A("s_cmp_eq_u32 s78, 1"); A("s_cbranch_scc1 L_final")
        self.set_exec(0x55555555, 0)
        self.pub(f"global_store_dword {X(10)}, {X(1)}, {SB}")
        A("s_mov_b64 exec, -1")
        A(f"v_cvt_pk_bf16_f32 {X(2)}, {X(0)}, {X(0)}"); A(f"v_and_b32 {X(2)}, 0xffff0000, {X(2)}")
        A(f"v_mul_f32 {X(3)}, {X(2)}, {X(2)}")
        for sh in (1, 2, 4, 8):
            for r in (X(2), X(3)): A(f"v_add_f32_dpp {r}, {r}, {r} row_shr:{sh} {DPP}")
        self.set_exec(0x80008000, 0)
        self.pub(f"global_store_dwordx2 {X(11)}, {XR(2,2)}, {SC_}")
        A("s_mov_b64 exec, -1")

    def stage_gu(self):
        A = self.A
        self.gbase(SC_, R_H)
        A(f"v_bfe_u32 {X(7)}, {LANE}, 4, 1"); A(f"v_mul_u32_u24 {X(7)}, 448, {X(7)}"); A(f"v_and_b32 {TMP}, 15, {LANE}"); A(f"v_lshl_add_u32 {X(7)}, {TMP}, 1, {X(7)}")
        A(f"s_lshl_b32 s68, {sSIG}, 4"); A(f"v_add_u32 {X(7)}, s68, {X(7)}")
        def gate():
            if not self.o.gate: return
            self.cbase(SD, 0); A(f"v_lshlrev_b32 {X(11)}, 2, {LANE}")
            self.gate(SD, X(11), 768, X(12), "L_gug")
        self.stage_ln(R_X1, R_ST1, None, 1.0, "L_gu", gate)
        z = X(4)
        A(f"v_cvt_pk_bf16_f32 {z}, {z}, {z}"); A(f"v_and_b32 {z}, 0xffff0000, {z}")
        A(f"v_mov_b32_dpp {X(5)}, {z} row_ror:8 {DPP}")
        A(f"v_max_f32 {z}, 0, {z}"); A(f"v_mul_f32 {z}, {z}, {X(5)}")
        self.pack_pair(X(5), z, X(6))
        self.set_exec(0x00550055, 0)
        self.pub(f"global_store_dword {X(7)}, {X(5)}, {SC_}")
        A("s_mov_b64 exec, -1")

    def stage_dn(self):
        A = self.A
        self.gbase(SA, R_H)
        a = X(8)
        A(f"v_and_b32 {a}, 1, {LANE}"); A(f"v_mul_u32_u24 {a}, 448, {a}"); A(f"v_lshrrev_b32 {TMP}, 4, {LANE}"); A(f"v_lshl_add_u32 {a}, {TMP}, 4, {a}")
        self.cbase(SB, 1)
        A(f"v_lshlrev_b32 {X(9)}, 2, {LANE}"); A(f"s_lshl_b32 s68, {sGI}, 7"); A(f"v_add_u32 {X(9)}, s68, {X(9)}")
        if self.o.gate:
            self.gbase(SD, R_ST1); A(f"v_bfe_u32 {X(11)}, {LANE}, 4, 1"); A(f"v_lshlrev_b32 {X(11)}, 8, {X(11)}"); A(f"s_lshl_b32 s68, {sSIG}, 3"); A(f"v_add_u32 {X(11)}, s68, {X(11)}")
            self.gate(SD, X(11), 0, X(12), "L_dng")
        D = XR(0, 4)
        A("L_dn:")
        for t in range(7): A(f"global_load_dwordx4 {TR(4*t,4)}, {a}, {SA} offset:{t*64} sc1")
        mx = self.maxops(X(10), self.chk_regs(T, 0, 7))
        A("s_waitcnt vmcnt(0)")
        for t in range(7):
            A(f"v_mfma_f32_16x16x32_bf16 {D}, {TR(4*t,4)}, {WR(4*t,4)}, {'0' if t == 0 else D}")
            for _ in range(2):
                if mx: A(mx.pop(0))
        for s in mx: A(s)
        self.poll_tail(X(10), "L_dn", "L_dn_d")
        A("L_dn_d:")
        A(f"v_cndmask_b32 {X(4)}, {X(0)}, {X(1)}, {sSEL}")
        self.set_exec(0xFFFFFFFF, 0)
        A(f"global_store_dword {X(9)}, {X(4)}, {SB} sc1")
        A("s_mov_b64 exec, -1")

    def stage_q2(self):
        A = self.A
        self.gbase(SC_, R_Q, 1)
        A(f"v_bfe_u32 {X(7)}, {LANE}, 4, 1"); A(f"v_lshlrev_b32 {X(7)}, 10, {X(7)}"); A(f"v_and_b32 {TMP}, 15, {LANE}"); A(f"v_lshl_add_u32 {X(7)}, {TMP}, 1, {X(7)}")
        A(f"s_lshl_b32 s68, {sSIG}, 5"); A(f"v_add_u32 {X(7)}, s68, {X(7)}")
        def gate():
            if not self.o.gate: return
            A(f"s_min_u32 s68, {sSIG}, 27"); A("s_lshl_b32 s68, s68, 10"); A("s_add_u32 s68, s68, 0x8000")
            A("s_add_u32 s64, s24, s68"); A("s_addc_u32 s65, s25, 0"); A(f"v_lshlrev_b32 {X(11)}, 2, {LANE}")
            self.gate(SD, X(11), 768, X(12), "L_qg")
        self.stage_ln(R_X2, R_ST2, 0, QSCALE, "L_qx", gate)
        self.pack_pair(X(5), X(4), X(6))
        self.set_exec(0x55555555, 0)
        self.pub(f"global_store_dword {X(7)}, {X(5)}, {SC_}")
        A("s_mov_b64 exec, -1")

    def finish(self):
        A = self.A
        if not self.o.prof: return
        A("s_lshl_b32 s68, s2, 2"); A(f"s_add_u32 s68, s68, {sWAVE}"); A("s_lshl_b32 s68, s68, 7"); A(f"v_mov_b32 {X(0)}, s68")
        A("s_mov_b64 exec, 1")
        for k in range(20):
            A(f"v_mov_b32 {X(1)}, s{80+k}"); A(f"global_store_dword {X(0)}, {X(1)}, {sWS} offset:{4*k}")
        for k in range(9):
            A(f"v_mov_b32 {X(1)}, s{36+k}"); A(f"global_store_dword {X(0)}, {X(1)}, {sWS} offset:{80+4*k}")
        A(f"v_mov_b32 {X(1)}, {sMODE}"); A(f"global_store_dword {X(0)}, {X(1)}, {sWS} offset:116")
        A(f"v_mov_b32 {X(1)}, {sBUD}"); A(f"global_store_dword {X(0)}, {X(1)}, {sWS} offset:120")

    def build(self):
        A = self.A; o = self.o
        self.prologue()
        if o.prof:
            for k in range(9): A(f"s_mov_b32 s{36+k}, 0")
        self.stream()
        A("L_layer:")
        self.get_q()
        self.stamp(6)
        self.attention()
        A(f"s_cmp_eq_u32 {sWAVE}, 0"); A("s_cbranch_scc0 L_nocomb")
        self.combine_publish()
        self.stamp(10)
        A("L_nocomb:")
        A(f"s_cmp_eq_u32 {sROLE}, {ROLE_GU}"); A("s_cbranch_scc1 L_gu_s")
        A(f"s_cmp_eq_u32 {sROLE}, {ROLE_DN}"); A("s_cbranch_scc1 L_dn_s")
        A(f"s_cmp_eq_u32 {sROLE}, {ROLE_WQ}"); A("s_cbranch_scc1 L_wq_s")
        A(f"s_cmp_eq_u32 {sROLE}, {ROLE_WO}"); A("s_cbranch_scc0 L_next")
        self.stage_wo()
        self.stamp(11)
        self.cbase(SA, 0); self.gbase(SB, R_X1); self.gbase(SC_, R_ST1); A("s_mov_b32 s78, 0")
        self.gbase(SD, R_X2, 0)
        A(f"s_cmp_eq_u32 {sLAYER}, 0"); A("s_cselect_b32 s64, s4, s64"); A("s_cselect_b32 s65, s5, s65")
        A("L_rs_entry:")
        self.stage_rs()
        self.stamp(12)
        A("s_branch L_next")
        A("L_gu_s:")
        self.stage_gu()
        self.stamp(13)
        A("s_branch L_next")
        A("L_dn_s:")
        self.stage_dn()
        self.stamp(14)
        self.cbase(SA, 1); self.gbase(SB, R_X2); self.gbase(SC_, R_ST2); self.gbase(SD, R_X1); A(f"s_mov_b32 s78, {sLAYER}")
        A("s_branch L_rs_entry")
        A("L_wq_s:")
        A(f"s_cmp_eq_u32 {sLAYER}, 1"); A("s_cbranch_scc1 L_fin")
        self.stage_q2()
        self.stamp(15)
        A("L_next:")
        A(f"s_cmp_eq_u32 {sLAYER}, 1"); A("s_cbranch_scc1 L_fin")
        A(f"s_mov_b32 {sLAYER}, 1")
        A("s_branch L_layer")
        A("L_final:")
        A(f"s_cmp_eq_u32 {sGI}, 0"); A("s_cbranch_scc0 L_fin")
        self.set_exec(0x55555555, 0)
        A(f"global_store_dword {X(10)}, {X(1)}, {sOUT}")
        A(f"s_cmp_eq_u32 {sSIG}, 0"); A("s_cbranch_scc0 L_noep")
        A("s_mov_b64 exec, 1")
        A(f"v_mov_b32 {X(2)}, {EOFF}"); A(f"v_mov_b32 {X(3)}, {sTAG}")
        A(f"global_store_dword {X(2)}, {X(3)}, {sWS}")
        A("L_noep:")
        A("s_mov_b64 exec, -1")
        A("L_fin:")
        self.dstamp(10)
        self.stamp(16)
        self.finish()
        A("L_end:")
        A("s_endpgm")
        lines, n = hazard.fix(A.L, verbose=o.verbose)
        A.L = lines
        return A

def main():
    ap = argparse.ArgumentParser()
    ap.add_argument("-o", default="k2.s")
    ap.add_argument("--prof", action="store_true")
    ap.add_argument("--slow", action="store_true")
    ap.add_argument("--nt", type=int, default=1)
    ap.add_argument("--wnt", type=int, default=1)
    ap.add_argument("--win", type=int, default=12)
    ap.add_argument("--winv", type=int, default=60)
    ap.add_argument("--budget", type=int, default=200000)
    ap.add_argument("--gate", type=int, default=1)
    ap.add_argument("--gatesleep", type=int, default=1)
    ap.add_argument("--qsleep", type=int, default=1)
    ap.add_argument("--trypoll", type=int, default=4)
    ap.add_argument("--k0", type=int, default=3)
    ap.add_argument("--vdist", type=int, default=3)
    ap.add_argument("--fullcheck", type=int, default=0)
    ap.add_argument("--round2", type=int, default=1)
    ap.add_argument("--stamps", default=None)
    ap.add_argument("--verbose", action="store_true")
    ap.add_argument("--dbgstamps", action="store_true")
    o = ap.parse_args()
    g = Gen(o); A = g.build(); A.write(o.o)
    print("wrote", o.o, len(A.L), "lines")
main()
```

```python
import sys, argparse, struct
from asmlib import Asm, NAME
import hazard

GOFF = 0x100000; LSTRIDE = 0x8000
R_Q = 0x0000; R_ML = 0x0800; R_X1 = 0x0A00; R_ST1 = 0x1100; R_H = 0x1300; R_X2 = 0x1800; R_ST2 = 0x1F00; R_O = 0x4000
COFF = GOFF + 0x80000
EOFF = 0x0F0000
QTOFF = 0x0F8000
TAGC = 0x9E3779B9
NLDS = 19
VW = NLDS * 2048
LDS_OP = 4 * VW; LDS_MLP = LDS_OP + 4096; LDS_QL = LDS_MLP + 64; LDS_FLAG = LDS_QL + 512; LDS_RED = LDS_FLAG + 64
assert LDS_RED + 2048 <= 163840
LOG2E = 1.4426950408889634
QSCALE = LOG2E / 16.0
ROLE_WQ, ROLE_WO, ROLE_GU, ROLE_DN, ROLE_NONE = 0, 1, 2, 3, 4

def f32(x): return "0x%08x" % struct.unpack("<I", struct.pack("<f", x))[0]
def X(n): assert 0 <= n < 20; return f"v{4+n}"
def T(n): assert 0 <= n < 64; return f"v{24+n}"
def W(n): assert 0 <= n < 64; return f"v{88+n}"
def VR(n): assert 0 <= n < 104; return f"v{152+n}"
def rng(f, a, n):
    s = f(a); k = int(s[1:]); assert n == 1 or k % 2 == 0, (s, n); return f"{s[0]}[{k}:{k+n-1}]"
def XR(a, n): return rng(X, a, n)
def TR(a, n): return rng(T, a, n)
def WR(a, n): return rng(W, a, n)
def VRR(a, n): return rng(VR, a, n)
LANE = "v0"; CS = "v1"; L16 = "v2"; TMP = "v3"
sM0B = "s3"
sXIN = "s[4:5]"
sOUT = "s[16:17]"; sDBG = "s[18:19]"; sWS = "s[20:21]"; sG = "s[22:23]"; sC = "s[24:25]"
sWAVE = "s26"; sGI = "s27"; sJ = "s28"; sHL = "s29"; sB = "s30"; sSP = "s31"
sMODE = "s32"; sBUD = "s33"; sLAYER = "s34"; sTILE = "s35"
sTAG = "s46"; sROLE = "s6"; sSIG = "s7"
sSEL = "s[60:61]"
SA = "s[70:71]"; SB = "s[72:73]"; SC_ = "s[74:75]"; SD = "s[64:65]"
WBAR = "v[14:15]"; WBAR0 = "v14"; WBAR1 = "v15"
DPP = "row_mask:0xf bank_mask:0xf"

class Gen:
    def __init__(self, opt):
        self.o = opt; self.A = Asm(); self.ob = 0
    def stamp(self, k):
        if not self.o.prof: return
        if self.o.stamps is not None and k not in [int(x) for x in self.o.stamps.split(",")]: return
        A = self.A
        A("s_memrealtime s[76:77]"); A("s_waitcnt lgkmcnt(0)")
        if 6 <= k <= 14:
            A(f"s_cmp_eq_u32 {sLAYER}, 0"); A(f"s_cselect_b32 s{80+k}, s76, s{80+k}"); A(f"s_cselect_b32 s{30+k}, s{30+k}, s76")
        else:
            A(f"s_mov_b32 s{80+k}, s76")
    def dstamp(self, word, neg=False, layer=None):
        if not self.o.dbgstamps: return
        A = self.A
        lab = A.label("DS")
        A("s_cmp_eq_u32 s2, 176"); A(f"s_cbranch_scc0 {lab}"); A(f"s_cmp_eq_u32 {sWAVE}, 0"); A(f"s_cbranch_scc0 {lab}")
        if layer is not None:
            A(f"s_cmp_eq_u32 {sLAYER}, {layer}"); A(f"s_cbranch_scc0 {lab}")
        A("s_memrealtime s[76:77]"); A("s_waitcnt lgkmcnt(0)")
        A(f"v_mov_b32 v86, s76"); A(f"v_mov_b32 v87, {4*word}")
        A("s_mov_b64 s[78:79], exec"); A("s_mov_b64 exec, 1")
        A(f"global_store_dword v87, v86, {sDBG}")
        A("s_mov_b64 exec, s[78:79]")
        A(f"{lab}:")
    def gbase(self, dst, off, layer=None):
        A = self.A; d = int(dst[2:dst.index(":")])
        if layer is None:
            A(f"s_mul_i32 s68, {sLAYER}, {LSTRIDE}"); A(f"s_add_u32 s68, s68, {off}")
            A(f"s_add_u32 s{d}, s22, s68")
        else:
            A(f"s_add_u32 s{d}, s22, {off + layer*LSTRIDE}")
        A(f"s_addc_u32 s{d+1}, s23, 0")
    def cbase(self, dst, kind):
        A = self.A; d = int(dst[2:dst.index(":")])
        A(f"s_lshl_b32 s68, {sLAYER}, 16"); A(f"s_lshl_b32 s69, {sSIG}, 10"); A("s_add_u32 s68, s68, s69")
        if kind: A(f"s_add_u32 s68, s68, {kind*0x8000}")
        A(f"s_add_u32 s{d}, s24, s68"); A(f"s_addc_u32 s{d+1}, s25, 0")
    def maxops(self, dst, regs, first=True):
        out = []; regs = list(regs)
        if first:
            if len(regs) >= 3: out.append(f"v_max3_u32 {dst}, {regs[0]}, {regs[1]}, {regs[2]}"); regs = regs[3:]
            elif len(regs) == 2: out.append(f"v_max_u32 {dst}, {regs[0]}, {regs[1]}"); regs = []
            else: out.append(f"v_mov_b32 {dst}, {regs[0]}"); regs = []
        while len(regs) >= 2:
            out.append(f"v_max3_u32 {dst}, {dst}, {regs[0]}, {regs[1]}"); regs = regs[2:]
        if regs: out.append(f"v_max_u32 {dst}, {dst}, {regs[0]}")
        return out
    def chk_regs(self, f, base, nload):
        if self.o.fullcheck: return [f(base + k) for k in range(4 * nload)]
        return [f(base + 4 * k) for k in range(nload)]
    def poll_tail(self, chk, loop, done, sleep=0):
        A = self.A
        A(f"v_cmp_eq_u32 vcc, -1, {chk}")
        A(f"s_cbranch_vccz {done}")
        A(f"s_cmp_eq_u32 {sBUD}, 0"); A(f"s_cbranch_scc1 {done}")
        A(f"s_sub_u32 {sBUD}, {sBUD}, 1")
        if sleep: A(f"s_sleep {sleep}")
        A(f"s_branch {loop}")
    def gate(self, base, vaddr, off, dst, lab):
        if not self.o.gate: return
        A = self.A
        A(f"{lab}:")
        A(f"global_load_dword {dst}, {vaddr}, {base} offset:{off} sc1"); A("s_waitcnt vmcnt(0)")
        self.poll_tail(dst, lab, lab + "_d", sleep=self.o.gatesleep)
        A(f"{lab}_d:")
    def pub(self, instr):
        A = self.A
        l1 = A.label("PUBF"); l2 = A.label("PUBD")
        A(f"s_cmp_eq_u32 {sMODE}, 1"); A(f"s_cbranch_scc1 {l1}")
        A(instr + " sc1"); A(f"s_branch {l2}")
        A(f"{l1}:"); A(instr); A(f"{l2}:")
    def set_exec(self, lo, hi):
        A = self.A
        if lo == 0xFFFFFFFF and hi == 0xFFFFFFFF: A("s_mov_b64 exec, -1"); return
        A(f"s_mov_b32 exec_lo, {hex(lo)}"); A(f"s_mov_b32 exec_hi, {hex(hi)}")
    def ln_addr(self, dst):
        A = self.A
        A(f"v_and_b32 {dst}, 1, {LANE}"); A(f"v_mul_u32_u24 {dst}, 896, {dst}")
        A(f"v_lshrrev_b32 {TMP}, 4, {LANE}"); A(f"v_lshl_add_u32 {dst}, {TMP}, 4, {dst}")
    def xst_addr(self, dst):
        A = self.A
        A(f"v_bfe_u32 {TMP}, {LANE}, 4, 1"); A(f"v_mul_u32_u24 {dst}, 896, {TMP}")
        A(f"v_and_b32 {TMP}, 15, {LANE}"); A(f"v_lshl_add_u32 {dst}, {TMP}, 1, {dst}")
        A(f"s_lshl_b32 s68, {sSIG}, 5"); A(f"v_add_u32 {dst}, s68, {dst}")
    def pack_pair(self, dst, val, tmp):
        A = self.A
        A(f"v_mov_b32_dpp {tmp}, {val} quad_perm:[1,0,3,2] {DPP}")
        A(f"v_cvt_pk_bf16_f32 {dst}, {val}, {tmp}")

    def prologue(self):
        A = self.A; o = self.o
        wnt = " nt" if o.wnt else ""
        A(f"""
        s_cmp_ge_u32 s2, 256
        s_cbranch_scc1 L_end
        {"s_memrealtime s[100:101]" if o.dbgstamps else ""}
        s_load_dwordx16 s[36:51], s[0:1], 0
        s_load_dwordx8 s[52:59], s[0:1], 64
        v_lshrrev_b32 v1, 6, v0
        v_and_b32 v0, 63, v0
        s_and_b32 {sGI}, s2, 7
        v_readfirstlane_b32 {sWAVE}, v1
        s_lshr_b32 {sJ}, s2, 3
        s_lshr_b32 s68, {sJ}, 3
        s_and_b32 {sSP}, {sJ}, 7
        s_and_b32 {sHL}, s68, 1
        s_lshr_b32 {sB}, s68, 1
        s_mov_b32 {sBUD}, {o.budget}
        s_mov_b32 {sLAYER}, 0
        s_mov_b32 {sMODE}, 0
        s_mov_b32 s60, 0xffff0000
        s_mov_b32 s61, 0xffff0000
        v_lshlrev_b32 {L16}, 4, {LANE}
        v_mov_b32 {CS}, 0
        s_lshl_b32 s68, {sGI}, 1
        s_add_u32 s68, s68, {sHL}
        s_lshl_b32 s69, {sB}, 4
        s_add_u32 s68, s68, s69
        s_lshl_b32 {sTILE}, s68, 21
        s_lshl_b32 s68, {sSP}, 15
        s_add_u32 {sTILE}, {sTILE}, s68
        s_lshl_b32 s68, {sWAVE}, 13
        s_add_u32 {sTILE}, {sTILE}, s68
        s_mul_i32 {sM0B}, {sWAVE}, {VW}
        """)
        A(f"s_mov_b32 {sROLE}, {ROLE_WQ}"); A(f"s_mov_b32 s62, {sJ}")
        for (lim, role) in ((8, ROLE_WO), (15, ROLE_GU), (22, ROLE_DN), (29, ROLE_NONE)):
            A(f"s_cmp_ge_u32 {sJ}, {lim}"); A(f"s_cselect_b32 {sROLE}, {role}, {sROLE}"); A(f"s_sub_u32 s68, {sJ}, {lim}")
            A(f"s_cmp_ge_u32 {sJ}, {lim}"); A("s_cselect_b32 s62, s68, s62")
        A(f"s_lshl_b32 {sSIG}, s62, 2"); A(f"s_add_u32 {sSIG}, {sSIG}, {sWAVE}")
        A(f"s_cmp_eq_u32 {sWAVE}, 0"); A("s_cbranch_scc0 L_noflag")
        A(f"v_mov_b32 {X(0)}, {LDS_FLAG}"); A(f"v_mov_b32 {X(1)}, 0"); A(f"ds_write_b32 {X(0)}, {X(1)}")
        A("L_noflag:")
        A("s_waitcnt lgkmcnt(0)")
        A("s_barrier")
        self.stamp(0)
        if o.prof:
            for k in range(1, 20): A(f"s_mov_b32 s{80+k}, 0")
        A(f"""
        s_load_dword {sTAG}, s[58:59], {EOFF}
        s_mov_b32 s8, s38
        s_mov_b32 s9, s39
        s_mov_b32 s10, 0x4000000
        s_mov_b32 s11, 0x00020000
        s_mov_b32 s12, s40
        s_mov_b32 s13, s41
        s_mov_b32 s14, 0x4000000
        s_mov_b32 s15, 0x00020000
        s_mov_b32 s4, s36
        s_mov_b32 s5, s37
        s_mov_b32 s16, s54
        s_mov_b32 s17, s55
        s_mov_b32 s18, s56
        s_mov_b32 s19, s57
        s_mov_b32 s20, s58
        s_mov_b32 s21, s59
        s_lshl_b32 s68, {sGI}, 16
        s_add_u32 s68, s68, {GOFF}
        s_add_u32 s22, s58, s68
        s_addc_u32 s23, s59, 0
        s_add_u32 s24, s58, {COFF}
        s_addc_u32 s25, s59, 0
        s_mov_b64 s[70:71], s[58:59]
        s_mov_b64 s[72:73], s[58:59]
        s_mov_b64 s[74:75], s[58:59]
        """)
        if o.dbgstamps:
            A("s_cmp_eq_u32 s2, 176"); A("s_cbranch_scc0 L_ds0"); A(f"s_cmp_eq_u32 {sWAVE}, 0"); A("s_cbranch_scc0 L_ds0")
            A("v_mov_b32 v86, s100"); A("v_mov_b32 v87, 8"); A("s_mov_b64 exec, 1")
            A(f"global_store_dword v87, v86, {sDBG}"); A("s_mov_b64 exec, -1")
            A("L_ds0:")
            self.dstamp(3)
        row8, c, off = X(2), X(3), X(4)
        A(f"v_lshrrev_b32 {row8}, 3, {LANE}"); A(f"v_and_b32 {c}, 7, {LANE}")
        A(f"s_cmp_eq_u32 {sROLE}, {ROLE_WO}"); A("s_cbranch_scc1 L_w1")
        A(f"s_cmp_eq_u32 {sROLE}, {ROLE_GU}"); A("s_cbranch_scc1 L_w2")
        A(f"s_cmp_eq_u32 {sROLE}, {ROLE_DN}"); A("s_cbranch_scc1 L_w3")
        A(f"s_cmp_eq_u32 {sROLE}, {ROLE_WQ}"); A("s_cbranch_scc1 L_w0")
        A(f"v_mov_b32 {off}, 0"); A("s_mov_b32 s63, 0"); A("s_mov_b32 s66, 0"); A("s_mov_b32 s67, 0")
        A("s_mov_b32 s64, s42"); A("s_mov_b32 s65, s43"); A("s_mov_b32 s78, s42"); A("s_mov_b32 s79, s43")
        A("s_branch L_wdone")
        A("L_w0:")
        A(f"s_mul_i32 s68, {sWAVE}, 112"); A(f"v_add_u32 {X(5)}, s68, {row8}"); A(f"v_lshlrev_b32 {off}, 13, {X(5)}")
        A(f"v_lshl_add_u32 {off}, {c}, 4, {off}"); A(f"s_lshl_b32 s68, {sGI}, 10"); A("s_lshl_b32 s69, s62, 7"); A("s_add_u32 s68, s68, s69"); A(f"v_add_u32 {off}, s68, {off}")
        A("s_mov_b32 s63, 14"); A(f"s_mov_b32 s66, {8*8192}"); A(f"s_mul_i32 s67, {sWAVE}, 14336")
        A("s_mov_b32 s64, s42"); A("s_mov_b32 s65, s43"); A("s_mov_b32 s78, s42"); A("s_mov_b32 s79, s43")
        self.ln_addr(X(8))
        for t in range(14):
            A(f"global_load_dwordx4 {TR(4*t,4)}, {X(8)}, {sXIN} offset:{t*64}")
        for k in range(8): A(f"v_mov_b32 {T(56+k)}, 0")
        self.set_exec(0xFFFFFFFF, 0x00FFFFFF)
        A(f"global_load_dwordx4 {TR(56,4)}, {L16}, {sXIN}"); A(f"global_load_dwordx4 {TR(60,4)}, {L16}, {sXIN} offset:896")
        A("s_mov_b64 exec, -1")
        A("s_branch L_wdone")
        A("L_w1:")
        A(f"v_and_b32 {X(5)}, 3, {row8}"); A(f"v_lshlrev_b32 {X(5)}, 3, {X(5)}"); A(f"v_lshrrev_b32 {X(6)}, 2, {row8}"); A(f"v_add_u32 {X(5)}, {X(5)}, {X(6)}")
        A(f"s_lshl_b32 s68, {sGI}, 9"); A(f"s_lshl_b32 s69, {sWAVE}, 7"); A("s_add_u32 s68, s68, s69"); A(f"v_add_u32 {X(5)}, s68, {X(5)}")
        A(f"v_mul_u32_u24 {off}, 896, {X(5)}"); A(f"v_lshl_add_u32 {off}, {c}, 4, {off}"); A("s_lshl_b32 s68, s62, 7"); A(f"v_add_u32 {off}, s68, {off}")
        A("s_mov_b32 s63, 16"); A("s_mov_b32 s66, 0"); A(f"s_mov_b32 s67, {sM0B}")
        A("s_mov_b32 s64, s44"); A("s_mov_b32 s65, s45"); A("s_mov_b32 s78, s44"); A("s_mov_b32 s79, s45")
        A("s_branch L_wdone")
        A("L_w2:")
        A(f"s_mul_i32 s68, {sWAVE}, 112"); A(f"v_add_u32 {X(5)}, s68, {row8}"); A(f"v_mul_u32_u24 {off}, 3584, {X(5)}")
        A(f"v_and_b32 {X(6)}, 3, {c}"); A(f"v_lshl_add_u32 {off}, {X(6)}, 4, {off}")
        A(f"s_mul_i32 s68, {sGI}, 448"); A("s_lshl_b32 s69, s62, 6"); A("s_add_u32 s68, s68, s69"); A(f"v_add_u32 {off}, s68, {off}")
        A("s_mov_b32 s63, 14"); A(f"s_mov_b32 s66, {8*3584}"); A(f"s_mul_i32 s67, {sWAVE}, 14336")
        A("s_mov_b32 s64, s48"); A("s_mov_b32 s65, s49"); A("s_mov_b32 s78, s50"); A("s_mov_b32 s79, s51")
        A("s_branch L_wdone")
        A("L_w3:")
        A(f"s_mul_i32 s68, {sGI}, 224"); A(f"s_mul_i32 s69, {sWAVE}, 56"); A("s_add_u32 s68, s68, s69"); A(f"v_add_u32 {X(5)}, s68, {row8}")
        A(f"v_mul_u32_u24 {off}, 896, {X(5)}"); A(f"v_lshl_add_u32 {off}, {c}, 4, {off}"); A("s_lshl_b32 s68, s62, 7"); A(f"v_add_u32 {off}, s68, {off}")
        A("s_mov_b32 s63, 7"); A(f"s_mov_b32 s66, {8*896}"); A(f"s_mul_i32 s67, {sWAVE}, 7168")
        A("s_mov_b32 s64, s52"); A("s_mov_b32 s65, s53"); A("s_mov_b32 s78, s52"); A("s_mov_b32 s79, s53")
        A("L_wdone:")
        A(f"v_cmp_le_u32 vcc, 4, {c}")
        A(f"v_mov_b32 {X(0)}, s64"); A(f"v_mov_b32 {X(5)}, s78"); A(f"v_cndmask_b32 {X(0)}, {X(0)}, {X(5)}, vcc")
        A(f"v_mov_b32 {X(1)}, s65"); A(f"v_mov_b32 {X(5)}, s79"); A(f"v_cndmask_b32 {X(1)}, {X(1)}, {X(5)}, vcc")
        A(f"v_add_co_u32 {X(0)}, vcc, {X(0)}, {off}"); A(f"v_addc_co_u32 {X(1)}, vcc, 0, {X(1)}, vcc")
        A("s_mov_b32 s68, s67"); A("s_mov_b32 s69, 0")
        A("s_cmp_eq_u32 s63, 0"); A("s_cbranch_scc1 L_wld_done")
        A("L_wld:")
        A("s_mov_b32 m0, s68")
        A("s_add_u32 s68, s68, 1024")
        A(f"global_load_lds_dwordx4 {XR(0,2)}, off{wnt}")
        A("s_add_u32 s69, s69, 1"); A("s_and_b32 s62, s69, 3"); A("s_cmp_eq_u32 s62, 0"); A(f"s_mov_b32 s76, {26*896}"); A(f"s_cselect_b32 s62, s76, {2*896}")
        A(f"s_cmp_eq_u32 {sROLE}, {ROLE_WO}"); A("s_cselect_b32 s62, s62, s66")
        A(f"v_add_co_u32 {X(0)}, vcc, s62, {X(0)}"); A(f"v_addc_co_u32 {X(1)}, vcc, 0, {X(1)}, vcc")
        A("s_cmp_lt_u32 s69, s63"); A("s_cbranch_scc1 L_wld")
        A("L_wld_done:")
        A("s_mov_b32 s48, 0x22222222"); A("s_mov_b32 s49, 0x22222222"); A("s_mov_b32 s50, 0x44444444"); A("s_mov_b32 s51, 0x44444444")
        A("s_mov_b32 s52, 0x88888888"); A("s_mov_b32 s53, 0x88888888")
        A(f"s_cmp_eq_u32 {sWAVE}, 3"); A("s_cbranch_scc0 L_noclr")
        for k in range(4): A(f"v_mov_b32 {X(12+k)}, -1")
        A(f"s_lshl_b32 s68, {sJ}, 11"); A(f"v_add_u32 {X(8)}, s68, {L16}")
        A(f"global_store_dwordx4 {X(8)}, {XR(12,4)}, {sG} sc1"); A(f"global_store_dwordx4 {X(8)}, {XR(12,4)}, {sG} offset:1024 sc1")
        A(f"s_lshl_b32 s68, s2, 9"); A(f"v_add_u32 {X(9)}, s68, {L16}")
        self.set_exec(0xFFFFFFFF, 0)
        A(f"global_store_dwordx4 {X(9)}, {XR(12,4)}, {sC} sc1")
        A("s_mov_b64 exec, -1")
        A("L_noclr:")

    def tr_reads(self):
        A = self.A
        a = X(8); r, c, g4 = X(10), X(9), TMP
        A(f"v_and_b32 {c}, 15, {LANE}"); A(f"v_lshrrev_b32 {r}, 2, {c}"); A(f"v_and_b32 {c}, 3, {c}")
        A(f"v_lshrrev_b32 {a}, 4, {LANE}"); A(f"v_lshlrev_b32 {a}, 3, {a}"); A(f"v_add_u32 {a}, {a}, {r}")
        A(f"v_lshlrev_b32 {a}, 7, {a}")
        A(f"s_cmp_eq_u32 {sROLE}, {ROLE_WO}"); A("s_cbranch_scc1 L_tr_wo")
        A(f"s_cmp_eq_u32 {sROLE}, {ROLE_GU}"); A("s_cbranch_scc1 L_tr_gu")
        A(f"v_lshl_add_u32 {a}, {c}, 3, {a}"); A(f"s_lshl_b32 s68, {sWAVE}, 5"); A(f"v_add_u32 {a}, s68, {a}")
        A("s_branch L_tr_n")
        A("L_tr_gu:")
        A(f"v_and_b32 {r}, 1, {c}"); A(f"v_lshl_add_u32 {a}, {r}, 3, {a}"); A(f"v_lshrrev_b32 {r}, 1, {c}"); A(f"v_lshl_add_u32 {a}, {r}, 6, {a}")
        A(f"s_lshl_b32 s68, {sWAVE}, 4"); A(f"v_add_u32 {a}, s68, {a}")
        A("L_tr_n:")
        for t in range(14):
            A(f"ds_read_b64_tr_b16 {WR(4*t,2)}, {a} offset:{t*4096}")
            A(f"ds_read_b64_tr_b16 {WR(4*t+2,2)}, {a} offset:{t*4096+512}")
            if t % 4 == 3: A("s_waitcnt lgkmcnt(0)")
        A("s_branch L_tr_d")
        A("L_tr_wo:")
        A(f"v_lshl_add_u32 {a}, {c}, 3, {a}"); A(f"v_add_u32 {a}, {sM0B}, {a}")
        for tt in range(4):
            for nt in range(4):
                k = 4 * (4 * tt + nt)
                A(f"ds_read_b64_tr_b16 {WR(k,2)}, {a} offset:{tt*4096+nt*32}")
                A(f"ds_read_b64_tr_b16 {WR(k+2,2)}, {a} offset:{tt*4096+nt*32+512}")
            A("s_waitcnt lgkmcnt(0)")
        A("L_tr_d:")
        A("s_waitcnt lgkmcnt(0)")
        A(f"s_add_u32 {sTAG}, {sTAG}, {hex(TAGC)}")
    def colsum(self):
        A = self.A
        for k in range(4): A(f"v_mov_b32 {X(4+k)}, 0x3f803f80")
        for t in range(14):
            A(f"v_mfma_f32_16x16x32_bf16 {XR(0,4)}, {XR(4,4)}, {WR(4*t,4)}, {'0' if t == 0 else XR(0,4)}")
        A(f"v_mov_b32 {CS}, {X(0)}")

    def ln_scalars(self, s1, s2, scale):
        ops = [f"v_mul_f32 {s1}, {f32(1/448)}, {s1}", f"v_mul_f32 {s2}, {f32(1/448)}, {s2}",
               f"v_fma_f32 {s2}, -{s1}, {s1}, {s2}", f"v_max_f32 {s2}, 0, {s2}", f"v_add_f32 {s2}, {f32(1e-5)}, {s2}", f"v_rsq_f32 {s2}, {s2}"]
        if scale != 1.0: ops.append(f"v_mul_f32 {s2}, {f32(scale)}, {s2}")
        return ops
    def ln_finish(self, mu, rs):
        A = self.A
        A(f"v_cndmask_b32 {X(4)}, {X(0)}, {X(1)}, {sSEL}")
        A(f"v_fma_f32 {X(4)}, -{mu}, {CS}, {X(4)}")
        A(f"v_mul_f32 {X(4)}, {X(4)}, {rs}")

    def stage_ln(self, rx, rst, layer, scale, lab, gate=None):
        A = self.A
        self.gbase(SA, rx, layer); self.gbase(SB, rst, layer)
        xa, sa = X(8), X(9)
        self.ln_addr(xa)
        A(f"v_bfe_u32 {sa}, {LANE}, 4, 1"); A(f"v_lshlrev_b32 {sa}, 8, {sa}"); A(f"v_lshrrev_b32 {TMP}, 5, {LANE}"); A(f"v_lshl_add_u32 {sa}, {TMP}, 7, {sa}")
        A(f"v_and_b32 {TMP}, 15, {LANE}"); A(f"v_lshl_add_u32 {sa}, {TMP}, 3, {sa}")
        A(f"v_mov_b32 {T(56)}, 0"); A(f"v_mov_b32 {T(57)}, 0")
        if gate: gate()
        D = XR(0, 4); chk = X(10); s1, s2, t1, t2 = T(58), T(59), T(60), T(61)
        A(f"{lab}:")
        self.set_exec(0xFFFFFFFF, 0x0FFF0FFF)
        A(f"global_load_dwordx2 {TR(56,2)}, {sa}, {SB} sc1")
        A("s_mov_b64 exec, -1")
        for t in range(14):
            A(f"global_load_dwordx4 {TR(4*t,4)}, {xa}, {SA} offset:{t*64} sc1")
        ops = [f"v_max_u32 {chk}, {T(56)}, {T(57)}",
               f"v_add_f32_dpp {s1}, {T(56)}, {T(56)} row_ror:8 {DPP}", f"v_add_f32_dpp {s2}, {T(57)}, {T(57)} row_ror:8 {DPP}"]
        mx = self.maxops(chk, self.chk_regs(T, 0, 14), first=False)
        red = []
        for sh in (4, 2, 1):
            red += [f"v_add_f32_dpp {s1}, {s1}, {s1} row_ror:{sh} {DPP}", f"v_add_f32_dpp {s2}, {s2}, {s2} row_ror:{sh} {DPP}"]
        red += [f"v_mov_b32 {t1}, {s1}", f"v_mov_b32 {t2}, {s2}", f"v_permlane32_swap_b32 {s1}, {t1}", f"v_permlane32_swap_b32 {s2}, {t2}",
                f"v_add_f32 {s1}, {s1}, {t1}", f"v_add_f32 {s2}, {s2}, {t2}"]
        red += self.ln_scalars(s1, s2, scale)
        A("s_waitcnt vmcnt(14)")
        for s in ops: A(s)
        A("s_waitcnt vmcnt(0)")
        for t in range(14):
            A(f"v_mfma_f32_16x16x32_bf16 {D}, {TR(4*t,4)}, {WR(4*t,4)}, {'0' if t == 0 else D}")
            n = 2
            while n and (red or mx):
                if red: A(red.pop(0)); n -= 1
                if n and mx: A(mx.pop(0)); n -= 1
        for s in mx + red: A(s)
        self.poll_tail(chk, lab, lab + "_d")
        A(f"{lab}_d:")
        self.ln_finish(s1, s2)

    def ld_setup(self):
        A = self.A
        vK, vV = X(18), X(19)
        A(f"v_and_b32 {X(8)}, 15, {LANE}"); A(f"v_lshrrev_b32 {X(9)}, 4, {LANE}")
        A(f"v_and_b32 {vK}, 3, {LANE}"); A(f"v_lshlrev_b32 {vK}, 4, {vK}"); A(f"v_lshl_add_u32 {vK}, {X(9)}, 6, {vK}")
        A(f"v_bfe_u32 {TMP}, {LANE}, 2, 2"); A(f"v_lshl_add_u32 {vK}, {TMP}, 11, {vK}")
        A(f"v_lshlrev_b32 {vV}, 11, {X(9)}"); A(f"v_lshl_add_u32 {vV}, {X(8)}, 4, {vV}")
    def throttle(self, win):
        if self.ob + 1 > win:
            self.A(f"s_waitcnt vmcnt({win - 4})"); self.ob = win - 4
        self.ob += 1
    def ktile(self, tau, win):
        A = self.A; f = " nt" if self.o.nt else ""
        A(f"s_add_u32 s68, {sTILE}, {tau*262144}")
        for t in range(8):
            n = tau * 8 + t
            self.throttle(win)
            A(f"buffer_load_dwordx4 a[{4*n}:{4*n+3}], {X(18)}, s[8:11], s68 offen offset:{(t//2)*512 + (t%2)*256}{f}")
    def vtile(self, tau, win, va=None):
        A = self.A; f = " nt" if self.o.nt else ""
        va = va or X(19)
        A(f"s_add_u32 s68, {sTILE}, {tau*262144}")
        for t in range(8):
            n = tau * 8 + t
            imm = (t // 2) * 512 + (t % 2) * 256
            self.throttle(win)
            if n < 2 * NLDS:
                A(f"s_add_u32 m0, {sM0B}, {n*1024 - imm}")
                A(f"buffer_load_dwordx4 {va}, s[12:15], s68 offen offset:{imm}{f} lds")
            else:
                m = n - 2 * NLDS
                A(f"buffer_load_dwordx4 {VRR(4*m,4)}, {va}, s[12:15], s68 offen offset:{imm}{f}")
    def arrive(self):
        A = self.A
        A("s_getreg_b32 s68, hwreg(HW_REG_XCC_ID, 0, 4)"); A("s_and_b32 s68, s68, 7"); A("s_mul_i32 s68, s68, 6")
        A("s_lshl_b64 s[78:79], 1, s68"); A("s_or_b32 s79, s79, 0x01000000")
        A(f"v_mov_b32 {X(10)}, s78"); A(f"v_mov_b32 {X(11)}, s79")
        A(f"s_lshl_b32 s69, {sGI}, 5"); A(f"v_mov_b32 {X(9)}, s69")
        A("s_mov_b64 exec, 1")
        A(f"global_atomic_add_x2 {X(9)}, {XR(10,2)}, {sDBG} sc1")
        A("s_mov_b64 exec, -1")
    def early_q(self):
        A = self.A
        self.colsum()
        s1a, s2a, s1b, s2b = X(12), X(13), X(14), X(15)
        for (base, s1, s2) in ((56, s1a, s2a), (60, s1b, s2b)):
            A(f"v_mov_b32 {s1}, 0"); A(f"v_mov_b32 {s2}, 0")
            for k in range(4):
                A(f"v_lshlrev_b32 {X(8)}, 16, {T(base+k)}"); A(f"v_and_b32 {X(9)}, 0xffff0000, {T(base+k)}")
                A(f"v_add_f32 {s1}, {s1}, {X(8)}"); A(f"v_fmac_f32 {s2}, {X(8)}, {X(8)}")
                A(f"v_add_f32 {s1}, {s1}, {X(9)}"); A(f"v_fmac_f32 {s2}, {X(9)}, {X(9)}")
        for sh in (8, 4, 2, 1):
            for r in (s1a, s2a, s1b, s2b): A(f"v_add_f32_dpp {r}, {r}, {r} row_ror:{sh} {DPP}")
        for swap in ("v_permlane16_swap_b32", "v_permlane32_swap_b32"):
            for r in (s1a, s2a, s1b, s2b):
                A(f"v_mov_b32 {X(8)}, {r}"); A(f"{swap} {r}, {X(8)}"); A(f"v_add_f32 {r}, {r}, {X(8)}")
        A(f"v_cndmask_b32 {s1a}, {s1a}, {s1b}, {sSEL}"); A(f"v_cndmask_b32 {s2a}, {s2a}, {s2b}, {sSEL}")
        for s in self.ln_scalars(s1a, s2a, QSCALE): A(s)
        D = XR(0, 4)
        for t in range(14):
            A(f"v_mfma_f32_16x16x32_bf16 {D}, {TR(4*t,4)}, {WR(4*t,4)}, {'0' if t == 0 else D}")
        self.ln_finish(s1a, s2a)
        self.pack_pair(X(4), X(4), X(6))
        A(f"v_mov_b32 {X(5)}, {sTAG}")
        A(f"v_bfe_u32 {X(7)}, {LANE}, 4, 1"); A(f"v_lshlrev_b32 {X(7)}, 11, {X(7)}"); A(f"v_and_b32 {X(8)}, 15, {LANE}"); A(f"v_lshl_add_u32 {X(7)}, {X(8)}, 2, {X(7)}")
        A(f"s_lshl_b32 s68, {sSIG}, 6"); A(f"v_add_u32 {X(7)}, s68, {X(7)}")
        A(f"s_lshl_b32 s68, {sGI}, 12"); A(f"s_add_u32 s68, s68, {QTOFF}"); A(f"s_add_u32 s70, s20, s68"); A("s_addc_u32 s71, s21, 0")
        self.set_exec(0x55555555, 0)
        A(f"global_store_dwordx2 {X(7)}, {XR(4,2)}, {SA} sc1")
        A("s_mov_b64 exec, -1")

    def stream(self):
        A = self.A; win = self.o.win
        self.ld_setup()
        self.ob = 0
        k0 = self.o.k0
        for tau in range(k0): self.ktile(tau, 64)
        A(f"s_waitcnt vmcnt({8*k0})")
        self.stamp(1)
        A("s_barrier")
        A(f"s_cmp_eq_u32 {sWAVE}, 3"); A("s_cbranch_scc0 L_noarr")
        self.arrive()
        A("L_noarr:")
        self.tr_reads()
        A("s_barrier")
        A(f"s_cmp_eq_u32 {sROLE}, {ROLE_GU}"); A("s_cbranch_scc0 L_nocs")
        self.colsum()
        A("L_nocs:")
        A(f"s_cmp_eq_u32 {sROLE}, {ROLE_WQ}"); A("s_cbranch_scc0 L_noeq")
        self.early_q()
        A("L_noeq:")
        self.stamp(2)
        self.ob = 8 * k0 + 2
        tp = self.o.trypoll
        for tau in range(k0, tp): self.ktile(tau, win)
        A(f"s_cmp_eq_u32 {sWAVE}, 0"); A("s_cbranch_scc0 L_np1")
        A(f"s_lshl_b32 s68, {sGI}, 12"); A(f"s_add_u32 s68, s68, {QTOFF}"); A(f"s_add_u32 s70, s20, s68"); A("s_addc_u32 s71, s21, 0")
        A(f"s_lshl_b32 s68, {sB}, 11"); A(f"s_lshl_b32 s78, {sHL}, 10"); A("s_add_u32 s68, s68, s78"); A(f"v_add_u32 {X(8)}, s68, {L16}")
        A(f"global_load_dwordx4 {XR(10,4)}, {X(8)}, {SA} sc1")
        A("L_np1:")
        ob = self.ob
        self.ob = 0
        self.ktile(tp, 64)
        A(f"s_cmp_eq_u32 {sWAVE}, 0"); A("s_cbranch_scc0 L_np2")
        A("s_waitcnt vmcnt(8)")
        A("L_q0:")
        A(f"v_xor_b32 {X(14)}, {sTAG}, {X(11)}"); A(f"v_xor_b32 {X(15)}, {sTAG}, {X(13)}"); A(f"v_or_b32 {X(14)}, {X(14)}, {X(15)}")
        A(f"v_cmp_ne_u32 vcc, 0, {X(14)}")
        A("s_cbranch_vccz L_q0_d")
        A(f"s_cmp_eq_u32 {sBUD}, 0"); A("s_cbranch_scc1 L_q0_d"); A(f"s_sub_u32 {sBUD}, {sBUD}, 1")
        A(f"global_load_dwordx4 {XR(10,4)}, {X(8)}, {SA} sc1"); A("s_waitcnt vmcnt(0)")
        A("s_branch L_q0")
        A("L_q0_d:")
        A(f"v_mov_b32 {X(11)}, {X(12)}")
        A(f"v_lshlrev_b32 {X(8)}, 3, {LANE}"); A(f"v_add_u32 {X(8)}, {LDS_QL}, {X(8)}")
        A(f"ds_write_b64 {X(8)}, {XR(10,2)}")
        A("s_waitcnt lgkmcnt(0)")
        A(f"v_mov_b32 {X(8)}, {LDS_FLAG}"); A(f"v_mov_b32 {X(9)}, 1"); A(f"ds_write_b32 {X(8)}, {X(9)}")
        self.stamp(4)
        A("L_np2:")
        self.ob = ob + 1 + 8
        for tau in range(tp + 1, 8): self.ktile(tau, win)
        for tau in range(self.o.vdist): self.vtile(tau, 64)
        self.stamp(5)
        self.dstamp(4)

    def bar_check_finish(self):
        A = self.A
        A(f"s_cmp_eq_u32 {sLAYER}, 0"); A("s_cbranch_scc0 L_gb_done")
        A(f"v_and_b32 {TMP}, 7, {LANE}"); A(f"v_lshlrev_b32 {TMP}, 5, {TMP}")
        A("s_waitcnt vmcnt(0)")
        A("L_gb:")
        A(f"v_lshrrev_b32 {X(12)}, 24, {WBAR1}"); A(f"v_cmp_ne_u32 vcc, 32, {X(12)}")
        A("s_cbranch_vccz L_gb_d")
        A(f"s_cmp_eq_u32 {sBUD}, 0"); A("s_cbranch_scc1 L_gb_d"); A(f"s_sub_u32 {sBUD}, {sBUD}, 1"); A("s_sleep 4")
        A(f"global_load_dwordx2 {WBAR}, {TMP}, {sDBG} sc1"); A("s_waitcnt vmcnt(0)")
        A("s_branch L_gb")
        A("L_gb_d:")
        A("s_getreg_b32 s68, hwreg(HW_REG_XCC_ID, 0, 4)"); A("s_and_b32 s68, s68, 7"); A("s_mul_i32 s68, s68, 6")
        A("s_lshl_b64 s[78:79], 32, s68"); A("s_or_b32 s79, s79, 0x20000000")
        A(f"v_readlane_b32 s68, {WBAR0}, {sGI}"); A(f"v_readlane_b32 s69, {WBAR1}, {sGI}")
        A("s_cmp_eq_u64 s[68:69], s[78:79]"); A(f"s_cselect_b32 {sMODE}, 1, 0")
        if self.o.slow: A(f"s_mov_b32 {sMODE}, 0")
        A("L_gb_done:")

    def get_q(self):
        A = self.A
        A(f"s_cmp_eq_u32 {sLAYER}, 0"); A("s_cbranch_scc0 L_q1")
        A(f"v_mov_b32 {X(8)}, {LDS_FLAG}")
        A("L_fl:")
        A(f"ds_read_b32 {X(9)}, {X(8)}"); A("s_waitcnt lgkmcnt(0)")
        A(f"v_readfirstlane_b32 s68, {X(9)}")
        A("s_cmp_lg_u32 s68, 0"); A("s_cbranch_scc1 L_qlds")
        A(f"s_cmp_eq_u32 {sBUD}, 0"); A("s_cbranch_scc1 L_qlds"); A(f"s_sub_u32 {sBUD}, {sBUD}, 1"); A("s_sleep 2"); A("s_branch L_fl")
        A("L_q1:")
        A(f"s_cmp_eq_u32 {sWAVE}, 0"); A("s_cbranch_scc0 L_q1b")
        self.gbase(SA, R_Q, 1)
        A(f"s_lshl_b32 s68, {sB}, 10"); A(f"s_lshl_b32 s78, {sHL}, 9"); A("s_add_u32 s68, s68, s78"); A(f"v_add_u32 {X(8)}, s68, {L16}")
        self.set_exec(0xFFFFFFFF, 0)
        A("L_q1p:")
        A(f"global_load_dwordx4 {XR(10,4)}, {X(8)}, {SA} sc1"); A("s_waitcnt vmcnt(0)")
        for s in self.maxops(X(14), [X(10), X(11), X(12), X(13)]): A(s)
        self.poll_tail(X(14), "L_q1p", "L_q1p_d", sleep=self.o.qsleep)
        A("L_q1p_d:")
        A(f"v_add_u32 {X(8)}, {LDS_QL}, {L16}")
        A(f"ds_write_b128 {X(8)}, {XR(10,4)}")
        A("s_mov_b64 exec, -1")
        A("s_waitcnt lgkmcnt(0)")
        A("L_q1b:")
        A("s_barrier")
        A("L_qlds:")
        A(f"v_lshrrev_b32 {X(8)}, 4, {LANE}"); A(f"v_lshlrev_b32 {X(8)}, 6, {X(8)}"); A(f"v_and_b32 {TMP}, 3, {LANE}"); A(f"v_lshl_add_u32 {X(8)}, {TMP}, 4, {X(8)}")
        A(f"v_add_u32 {X(8)}, {LDS_QL}, {X(8)}")
        for t in range(2): A(f"ds_read_b128 {TR(32+4*t,4)}, {X(8)} offset:{t*256}")
        A(f"s_waitcnt vmcnt({8*self.o.vdist})")

    def attention(self):
        A = self.A
        S = lambda tau, r: T(4 * tau + r)
        mk = [X(16 + k) for k in range(4)]
        A(f"v_and_b32 {X(8)}, 15, {LANE}")
        for k in range(4):
            A(f"v_mov_b32 {mk[k]}, 0"); A(f"v_mov_b32 {X(9)}, 0xffff"); A(f"v_mov_b32 {X(12)}, 0xffff0000")
            A(f"v_cmp_eq_u32 vcc, {2*k}, {X(8)}"); A(f"v_cndmask_b32 {mk[k]}, {mk[k]}, {X(9)}, vcc")
            A(f"v_cmp_eq_u32 vcc, {2*k+1}, {X(8)}"); A(f"v_cndmask_b32 {mk[k]}, {mk[k]}, {X(12)}, vcc")
        A("s_waitcnt lgkmcnt(0)")
        m, m2 = X(14), X(15)
        va = X(13)
        A(f"v_add_u32 {va}, {sM0B}, {L16}")
        for k in range(8): A(f"v_mov_b32 {X(k)}, 0")
        Dq = lambda G: 40 + 4 * (G % 4)
        M1, M2, M3 = "s[48:49]", "s[50:51]", "s[52:53]"
        def c1(G): return f"v_cndmask_b32 {T(G)}, {T(Dq(G))}, {T(Dq(G)+1)}, {M1}"
        def c2(G): return f"v_cndmask_b32 {T(G)}, {T(G)}, {T(Dq(G)+2)}, {M2}"
        def c3(G): return f"v_cndmask_b32 {T(G)}, {T(G)}, {T(Dq(G)+3)}, {M3}"
        def d1(G): return f"v_add_f32_dpp {T(G)}, {T(G)}, {T(G)} quad_perm:[1,0,3,2] {DPP}"
        def d2(G): return f"v_add_f32_dpp {T(G)}, {T(G)}, {T(G)} quad_perm:[2,3,0,1] {DPP}"
        ok = lambda G: 0 <= G < 32
        for G in range(32 + 6):
            if ok(G): A(f"v_mfma_f32_16x16x32_bf16 {TR(Dq(G),4)}, a[{8*G}:{8*G+3}], {TR(32,4)}, 0")
            if ok(G - 2): A(c1(G - 2)); A(c2(G - 2))
            if ok(G): A(f"v_mfma_f32_16x16x32_bf16 {TR(Dq(G),4)}, a[{8*G+4}:{8*G+7}], {TR(36,4)}, {TR(Dq(G),4)}")
            if ok(G - 2): A(c3(G - 2))
            if ok(G - 3): A(d1(G - 3))
            if ok(G - 4): A(d2(G - 4))
            g5 = G - 5
            if ok(g5) and g5 % 2 == 1:
                if g5 == 1: A(f"v_max_f32 {m}, {T(0)}, {T(1)}")
                else: A(f"v_max3_f32 {m}, {m}, {T(g5-1)}, {T(g5)}")
        self.stamp(7)
        A(f"v_mov_b32 {m2}, {m}"); A(f"v_permlane16_swap_b32 {m}, {m2}"); A(f"v_max_f32 {m}, {m}, {m2}")
        A(f"v_mov_b32 {m2}, {m}"); A(f"v_permlane32_swap_b32 {m}, {m2}"); A(f"v_max_f32 {m}, {m}, {m2}")
        l = X(15); acc = [XR(0, 4), XR(4, 4)]
        A(f"v_mov_b32 {l}, 0")
        Bs = [TR(32, 4), TR(36, 4)]; Bb = [32, 36]
        stg = [40, 48, 56]
        VD = self.o.vdist
        vV = X(8)
        A(f"v_lshrrev_b32 {vV}, 4, {LANE}"); A(f"v_lshlrev_b32 {vV}, 11, {vV}"); A(f"v_and_b32 {TMP}, 15, {LANE}"); A(f"v_lshl_add_u32 {vV}, {TMP}, 4, {vV}")
        def younger(tile, at_tile):
            last_issued = min(at_tile + VD, 7)
            n = 8 * (last_issued - tile)
            if at_tile + VD >= 7: n += 1
            return n
        def tile_issue(tau):
            t2 = tau + VD
            if t2 > 7: return
            lab = A.label("VI")
            A(f"s_cmp_eq_u32 {sLAYER}, 0"); A(f"s_cbranch_scc0 {lab}")
            self.ob = 0
            self.vtile(t2, 64, vV)
            if t2 == 7:
                A(f"v_and_b32 {TMP}, 7, {LANE}"); A(f"v_lshlrev_b32 {TMP}, 5, {TMP}")
                A(f"global_load_dwordx2 {WBAR}, {TMP}, {sDBG} sc1")
            A(f"{lab}:")
        def lds_issue(q, at_tile):
            if q % 4 == 0: A(f"s_waitcnt vmcnt({younger(q // 4, at_tile)})")
            b = stg[q % 3]
            A(f"ds_read_b128 {TR(b,4)}, {va} offset:{q*2048}"); A(f"ds_read_b128 {TR(b+4,4)}, {va} offset:{q*2048+1024}")
        PF = 2
        def pre(q):
            tau, r = q // 4, q % 4
            s = S(tau, r); bb = Bb[q % 2]; pk = X(12) if q % 2 == 0 else X(9)
            return [f"v_sub_f32 {s}, {s}, {m}", f"v_exp_f32 {s}, {s}"], [f"v_cvt_pk_bf16_f32 {pk}, {s}, {s}", f"v_add_f32 {l}, {l}, {s}"] + [f"v_and_b32 {T(bb+k)}, {mk[k]}, {pk}" for k in range(4)]
        tile_issue(0)
        for q in range(min(PF, NLDS)): lds_issue(q, 0)
        a, b_ = pre(0)
        for s in a + b_: A(s)
        a, _ = pre(1)
        for s in a: A(s)
        for q in range(32):
            tau = q // 4
            if q % 4 == 0 and q > 0: tile_issue(tau)
            if q + PF < NLDS: lds_issue(q + PF, tau)
            if q < NLDS:
                A(f"s_waitcnt lgkmcnt({2 * min(PF, NLDS - 1 - q)})")
                b = stg[q % 3]; a0, a1 = TR(b, 4), TR(b + 4, 4)
            else:
                if q >= 28:
                    A(f"s_waitcnt vmcnt({(31 - q) * 2 + 1})")
                elif q == NLDS or q % 4 == 0:
                    A(f"s_waitcnt vmcnt({younger(tau, tau)})")
                mm = (q - NLDS) * 8; a0, a1 = VRR(mm, 4), VRR(mm + 4, 4)
            A(f"v_mfma_f32_16x16x32_bf16 {acc[0]}, {a0}, {Bs[q%2]}, {acc[0]}")
            if q + 1 < 32:
                _, b_ = pre(q + 1)
                for s in b_[:2]: A(s)
            A(f"v_mfma_f32_16x16x32_bf16 {acc[1]}, {a1}, {Bs[q%2]}, {acc[1]}")
            if q + 1 < 32:
                for s in b_[2:]: A(s)
            if q + 2 < 32:
                a, _ = pre(q + 2)
                for s in a: A(s)
        self.stamp(8)
        self.bar_check_finish()
        self.dstamp(5, layer=0); self.dstamp(7, layer=1)
        l2 = X(12)
        A(f"v_mov_b32 {l2}, {l}"); A(f"v_permlane16_swap_b32 {l}, {l2}"); A(f"v_add_f32 {l}, {l}, {l2}")
        A(f"v_mov_b32 {l2}, {l}"); A(f"v_permlane32_swap_b32 {l}, {l2}"); A(f"v_add_f32 {l}, {l}, {l2}")
        A(f"v_lshrrev_b32 {X(8)}, 4, {LANE}"); A(f"v_lshlrev_b32 {X(8)}, 7, {X(8)}"); A(f"v_and_b32 {X(9)}, 15, {LANE}"); A(f"v_lshl_add_u32 {X(8)}, {X(9)}, 4, {X(8)}")
        A(f"s_lshl_b32 s68, {sWAVE}, 10"); A(f"s_add_u32 s68, s68, {LDS_OP}"); A(f"v_add_u32 {X(8)}, s68, {X(8)}")
        A(f"s_lshl_b32 s68, {sWAVE}, 3"); A(f"s_add_u32 s68, s68, {LDS_MLP}"); A(f"v_mov_b32 {X(9)}, s68")
        self.set_exec(0x00FF00FF, 0x00FF00FF)
        A(f"ds_write_b128 {X(8)}, {XR(0,4)}"); A(f"ds_write_b128 {X(8)}, {XR(4,4)} offset:512")
        A("s_mov_b64 exec, 1")
        A(f"ds_write_b64 {X(9)}, {XR(14,2)}")
        A("s_mov_b64 exec, -1")
        A("s_waitcnt lgkmcnt(0)")
        A("s_barrier")
        self.stamp(9)

    def combine_publish(self):
        A = self.A
        A(f"v_add_u32 {X(8)}, {LDS_OP}, {L16}")
        for w in range(4): A(f"ds_read_b128 {TR(4*w,4)}, {X(8)} offset:{w*1024}")
        A(f"v_mov_b32 {X(9)}, {LDS_MLP}")
        A(f"ds_read_b128 {TR(16,4)}, {X(9)}"); A(f"ds_read_b128 {TR(20,4)}, {X(9)} offset:16")
        self.gbase(SA, R_O); self.gbase(SB, R_ML)
        a = X(10)
        A(f"v_lshrrev_b32 {a}, 3, {LANE}"); A(f"v_lshlrev_b32 {a}, 10, {a}")
        A(f"v_bfe_u32 {X(11)}, {LANE}, 1, 2"); A(f"v_lshl_add_u32 {a}, {X(11)}, 8, {a}")
        A(f"v_and_b32 {X(11)}, 1, {LANE}"); A(f"v_lshl_add_u32 {a}, {X(11)}, 3, {a}")
        A(f"s_lshl_b32 s68, {sB}, 3"); A(f"s_add_u32 s68, s68, {sSP}"); A("s_lshl_b32 s68, s68, 4"); A(f"s_lshl_b32 s78, {sHL}, 13"); A("s_add_u32 s68, s68, s78")
        A(f"v_add_u32 {a}, s68, {a}")
        A(f"s_lshl_b32 s68, {sHL}, 7"); A(f"s_lshl_b32 s78, {sB}, 6"); A("s_add_u32 s68, s68, s78"); A(f"s_lshl_b32 s78, {sSP}, 3"); A("s_add_u32 s68, s68, s78")
        A(f"v_mov_b32 {X(11)}, s68")
        M = T(24); f = [T(25 + w) for w in range(4)]; Lr = T(29)
        ms = [T(16), T(18), T(20), T(22)]; ls = [T(17), T(19), T(21), T(23)]
        A("s_waitcnt lgkmcnt(0)")
        A(f"v_max3_f32 {M}, {ms[0]}, {ms[1]}, {ms[2]}"); A(f"v_max_f32 {M}, {M}, {ms[3]}")
        for w in range(4): A(f"v_sub_f32 {f[w]}, {ms[w]}, {M}")
        for w in range(4): A(f"v_exp_f32 {f[w]}, {f[w]}")
        for r in range(4): A(f"v_mul_f32 {T(32+r)}, {f[0]}, {T(r)}")
        for w in range(1, 4):
            for r in range(4): A(f"v_fmac_f32 {T(32+r)}, {f[w]}, {T(4*w+r)}")
        A(f"v_cvt_pk_bf16_f32 {T(36)}, {T(32)}, {T(33)}"); A(f"v_cvt_pk_bf16_f32 {T(37)}, {T(34)}, {T(35)}")
        self.pub(f"global_store_dwordx2 {a}, {TR(36,2)}, {SA}")
        A(f"v_mul_f32 {T(39)}, {f[0]}, {ls[0]}")
        for w in range(1, 4): A(f"v_fmac_f32 {T(39)}, {f[w]}, {ls[w]}")
        A(f"v_mov_b32 {T(38)}, {M}")
        A("s_mov_b64 exec, 1")
        self.pub(f"global_store_dwordx2 {X(11)}, {TR(38,2)}, {SB}")
        A("s_mov_b64 exec, -1")

    def stage_wo(self):
        A = self.A
        self.gbase(SA, R_O); self.gbase(SC_, R_ML)
        A(f"s_lshl_b32 s68, {sWAVE}, 12"); A("s_add_u32 s70, s70, s68"); A("s_addc_u32 s71, s71, 0")
        a = X(16)
        A(f"v_lshrrev_b32 {a}, 5, {LANE}"); A(f"v_lshlrev_b32 {a}, 6, {a}")
        A(f"v_bfe_u32 {TMP}, {LANE}, 4, 1"); A(f"v_lshl_add_u32 {a}, {TMP}, 5, {a}")
        A(f"v_and_b32 {TMP}, 3, {LANE}"); A(f"v_lshl_add_u32 {a}, {TMP}, 3, {a}")
        A(f"s_lshr_b32 s68, {sWAVE}, 1"); A("s_lshl_b32 s68, s68, 7"); A(f"v_add_u32 {a}, s68, {a}")
        wa, ra = X(17), X(18)
        A(f"v_bfe_u32 {wa}, {LANE}, 4, 1"); A(f"v_lshlrev_b32 {wa}, 7, {wa}"); A(f"v_lshrrev_b32 {TMP}, 5, {LANE}"); A(f"v_lshl_add_u32 {wa}, {TMP}, 6, {wa}")
        A(f"v_and_b32 {TMP}, 15, {LANE}"); A(f"v_lshl_add_u32 {wa}, {TMP}, 2, {wa}")
        A(f"s_lshl_b32 s68, {sWAVE}, 9"); A(f"s_add_u32 s68, s68, {LDS_RED}"); A(f"v_add_u32 {wa}, s68, {wa}")
        A(f"v_lshrrev_b32 {ra}, 5, {LANE}"); A(f"v_lshlrev_b32 {ra}, 9, {ra}"); A(f"v_and_b32 {TMP}, 31, {LANE}"); A(f"v_lshl_add_u32 {ra}, {TMP}, 2, {ra}")
        A(f"s_lshl_b32 s68, {sWAVE}, 7"); A(f"s_add_u32 s68, s68, {LDS_RED}"); A(f"v_add_u32 {ra}, s68, {ra}")
        mv, lv = T(16), T(17)
        D = [TR(20 + 4 * nt, 4) for nt in range(4)]
        chk, M, t1, e, w = T(36), T(37), T(38), T(39), T(40)
        if self.o.gate:
            A("L_wog:")
            A(f"global_load_dwordx2 {TR(16,2)}, {a}, {SC_} sc1"); A("s_waitcnt vmcnt(0)")
            A(f"v_max_u32 {chk}, {mv}, {lv}")
            self.poll_tail(chk, "L_wog", "L_wog_d", sleep=self.o.gatesleep)
            A("L_wog_d:")
        A("L_wo:")
        A(f"global_load_dwordx2 {TR(16,2)}, {a}, {SC_} sc1")
        for tt in range(4):
            A(f"global_load_dwordx4 {TR(4*tt,4)}, {L16}, {SA} offset:{tt*1024} sc1")
        A("s_waitcnt vmcnt(4)")
        ops = [f"v_max_u32 {chk}, {mv}, {lv}",
               f"v_mov_b32_dpp {t1}, {mv} quad_perm:[1,0,3,2] {DPP}", f"v_max_f32 {M}, {mv}, {t1}",
               f"v_mov_b32_dpp {t1}, {M} quad_perm:[2,3,0,1] {DPP}", f"v_max_f32 {M}, {M}, {t1}",
               f"v_mov_b32 {t1}, {M}", f"v_permlane16_swap_b32 {M}, {t1}", f"v_max_f32 {M}, {M}, {t1}",
               f"v_sub_f32 {e}, {mv}, {M}", f"v_exp_f32 {e}, {e}", f"v_mul_f32 {M}, {e}, {lv}",
               f"v_mov_b32_dpp {t1}, {M} quad_perm:[1,0,3,2] {DPP}", f"v_add_f32 {M}, {M}, {t1}",
               f"v_mov_b32_dpp {t1}, {M} quad_perm:[2,3,0,1] {DPP}", f"v_add_f32 {M}, {M}, {t1}",
               f"v_mov_b32 {t1}, {M}", f"v_permlane16_swap_b32 {M}, {t1}", f"v_add_f32 {M}, {M}, {t1}",
               f"v_rcp_f32 {M}, {M}", f"v_mul_f32 {w}, {e}, {M}"]
        mx = self.maxops(chk, self.chk_regs(T, 0, 4), first=False)
        A(ops.pop(0)); A(ops.pop(0))
        A("s_waitcnt vmcnt(0)")
        for tt in range(4):
            for nt in range(4):
                A(f"v_mfma_f32_16x16x32_bf16 {D[nt]}, {TR(4*tt,4)}, {WR(4*(4*tt+nt),4)}, {'0' if tt == 0 else D[nt]}")
                if ops: A(ops.pop(0))
                if mx: A(mx.pop(0))
        for s in ops + mx: A(s)
        self.poll_tail(chk, "L_wo", "L_wo_d")
        A("L_wo_d:")
        acc = [T(41 + nt) for nt in range(4)]
        for r in range(4):
            for nt in range(4):
                op = "v_mul_f32_dpp" if r == 0 else "v_fmac_f32_dpp"
                A(f"{op} {acc[nt]}, {w}, {T(20+4*nt+r)} row_newbcast:{r} {DPP}")
        A(f"v_permlane16_swap_b32 {acc[0]}, {acc[1]}"); A(f"v_permlane16_swap_b32 {acc[2]}, {acc[3]}")
        A(f"v_add_f32 {acc[0]}, {acc[0]}, {acc[1]}"); A(f"v_add_f32 {acc[2]}, {acc[2]}, {acc[3]}")
        A(f"ds_write_b32 {wa}, {acc[0]}"); A(f"ds_write_b32 {wa}, {acc[2]} offset:256")
        self.cbase(SA, 0)
        A(f"v_lshlrev_b32 {X(9)}, 2, {LANE}"); A(f"s_lshl_b32 s68, {sGI}, 7"); A(f"v_add_u32 {X(9)}, s68, {X(9)}")
        A("s_waitcnt lgkmcnt(0)")
        A("s_barrier")
        A(f"ds_read_b32 {T(0)}, {ra}"); A(f"ds_read_b32 {T(1)}, {ra} offset:1024")
        A("s_waitcnt lgkmcnt(0)")
        A(f"v_add_f32 {T(0)}, {T(0)}, {T(1)}")
        A(f"v_mov_b32 {T(1)}, {T(0)}"); A(f"v_permlane32_swap_b32 {T(0)}, {T(1)}"); A(f"v_add_f32 {T(0)}, {T(0)}, {T(1)}")
        self.set_exec(0xFFFFFFFF, 0)
        A(f"global_store_dword {X(9)}, {T(0)}, {SA} sc1")
        A("s_mov_b64 exec, -1")

    def stage_rs(self):
        A = self.A
        l4 = X(8)
        A(f"v_lshlrev_b32 {l4}, 2, {LANE}")
        self.xst_addr(X(10))
        A(f"v_bfe_u32 {X(11)}, {LANE}, 4, 1"); A(f"v_lshlrev_b32 {X(11)}, 8, {X(11)}"); A(f"s_lshl_b32 s68, {sSIG}, 3"); A(f"v_add_u32 {X(11)}, s68, {X(11)}")
        A("L_rs:")
        A(f"global_load_ushort {X(5)}, {X(10)}, {SD} sc1")
        for k in range(4): A(f"global_load_dword {X(k)}, {l4}, {SA} offset:{k*256} sc1")
        A("s_waitcnt vmcnt(4)")
        A(f"v_lshlrev_b32 {X(6)}, 16, {X(5)}"); A(f"v_or_b32 {X(4)}, {X(6)}, {X(5)}")
        A("s_waitcnt vmcnt(0)")
        for s in self.maxops(X(4), [X(0), X(1), X(2), X(3)], first=False): A(s)
        A(f"v_add_f32 {X(0)}, {X(0)}, {X(1)}"); A(f"v_add_f32 {X(2)}, {X(2)}, {X(3)}")
        self.poll_tail(X(4), "L_rs", "L_rs_d")
        A("L_rs_d:")
        A(f"v_add_f32 {X(0)}, {X(0)}, {X(2)}")
        A(f"v_mov_b32 {X(1)}, {X(0)}"); A(f"v_permlane32_swap_b32 {X(0)}, {X(1)}"); A(f"v_add_f32 {X(0)}, {X(0)}, {X(1)}")
        if self.o.round2:
            A(f"v_cvt_pk_bf16_f32 {X(0)}, {X(0)}, {X(0)}"); A(f"v_and_b32 {X(0)}, 0xffff0000, {X(0)}")
        A(f"v_add_f32 {X(0)}, {X(6)}, {X(0)}")
        A(f"v_mov_b32_dpp {X(2)}, {X(0)} quad_perm:[1,0,3,2] {DPP}")
        A(f"v_cvt_pk_bf16_f32 {X(1)}, {X(0)}, {X(2)}")
        A("s_cmp_eq_u32 s78, 1"); A("s_cbranch_scc1 L_final")
        self.set_exec(0x55555555, 0)
        self.pub(f"global_store_dword {X(10)}, {X(1)}, {SB}")
        A("s_mov_b64 exec, -1")
        A(f"v_cvt_pk_bf16_f32 {X(2)}, {X(0)}, {X(0)}"); A(f"v_and_b32 {X(2)}, 0xffff0000, {X(2)}")
        A(f"v_mul_f32 {X(3)}, {X(2)}, {X(2)}")
        for sh in (1, 2, 4, 8):
            for r in (X(2), X(3)): A(f"v_add_f32_dpp {r}, {r}, {r} row_shr:{sh} {DPP}")
        self.set_exec(0x80008000, 0)
        self.pub(f"global_store_dwordx2 {X(11)}, {XR(2,2)}, {SC_}")
        A("s_mov_b64 exec, -1")

    def stage_gu(self):
        A = self.A
        self.gbase(SC_, R_H)
        A(f"v_bfe_u32 {X(7)}, {LANE}, 4, 1"); A(f"v_mul_u32_u24 {X(7)}, 448, {X(7)}"); A(f"v_and_b32 {TMP}, 15, {LANE}"); A(f"v_lshl_add_u32 {X(7)}, {TMP}, 1, {X(7)}")
        A(f"s_lshl_b32 s68, {sSIG}, 4"); A(f"v_add_u32 {X(7)}, s68, {X(7)}")
        def gate():
            if not self.o.gate: return
            self.cbase(SD, 0); A(f"v_lshlrev_b32 {X(11)}, 2, {LANE}")
            self.gate(SD, X(11), 768, X(12), "L_gug")
        self.stage_ln(R_X1, R_ST1, None, 1.0, "L_gu", gate)
        z = X(4)
        A(f"v_cvt_pk_bf16_f32 {z}, {z}, {z}"); A(f"v_and_b32 {z}, 0xffff0000, {z}")
        A(f"v_mov_b32_dpp {X(5)}, {z} row_ror:8 {DPP}")
        A(f"v_max_f32 {z}, 0, {z}"); A(f"v_mul_f32 {z}, {z}, {X(5)}")
        self.pack_pair(X(5), z, X(6))
        self.set_exec(0x00550055, 0)
        self.pub(f"global_store_dword {X(7)}, {X(5)}, {SC_}")
        A("s_mov_b64 exec, -1")

    def stage_dn(self):
        A = self.A
        self.gbase(SA, R_H)
        a = X(8)
        A(f"v_and_b32 {a}, 1, {LANE}"); A(f"v_mul_u32_u24 {a}, 448, {a}"); A(f"v_lshrrev_b32 {TMP}, 4, {LANE}"); A(f"v_lshl_add_u32 {a}, {TMP}, 4, {a}")
        self.cbase(SB, 1)
        A(f"v_lshlrev_b32 {X(9)}, 2, {LANE}"); A(f"s_lshl_b32 s68, {sGI}, 7"); A(f"v_add_u32 {X(9)}, s68, {X(9)}")
        if self.o.gate:
            self.gbase(SD, R_ST1); A(f"v_bfe_u32 {X(11)}, {LANE}, 4, 1"); A(f"v_lshlrev_b32 {X(11)}, 8, {X(11)}"); A(f"s_lshl_b32 s68, {sSIG}, 3"); A(f"v_add_u32 {X(11)}, s68, {X(11)}")
            self.gate(SD, X(11), 0, X(12), "L_dng")
        D = XR(0, 4)
        A("L_dn:")
        for t in range(7): A(f"global_load_dwordx4 {TR(4*t,4)}, {a}, {SA} offset:{t*64} sc1")
        mx = self.maxops(X(10), self.chk_regs(T, 0, 7))
        A("s_waitcnt vmcnt(0)")
        for t in range(7):
            A(f"v_mfma_f32_16x16x32_bf16 {D}, {TR(4*t,4)}, {WR(4*t,4)}, {'0' if t == 0 else D}")
            for _ in range(2):
                if mx: A(mx.pop(0))
        for s in mx: A(s)
        self.poll_tail(X(10), "L_dn", "L_dn_d")
        A("L_dn_d:")
        A(f"v_cndmask_b32 {X(4)}, {X(0)}, {X(1)}, {sSEL}")
        self.set_exec(0xFFFFFFFF, 0)
        A(f"global_store_dword {X(9)}, {X(4)}, {SB} sc1")
        A("s_mov_b64 exec, -1")

    def stage_q2(self):
        A = self.A
        self.gbase(SC_, R_Q, 1)
        A(f"v_bfe_u32 {X(7)}, {LANE}, 4, 1"); A(f"v_lshlrev_b32 {X(7)}, 10, {X(7)}"); A(f"v_and_b32 {TMP}, 15, {LANE}"); A(f"v_lshl_add_u32 {X(7)}, {TMP}, 1, {X(7)}")
        A(f"s_lshl_b32 s68, {sSIG}, 5"); A(f"v_add_u32 {X(7)}, s68, {X(7)}")
        def gate():
            if not self.o.gate: return
            A(f"s_min_u32 s68, {sSIG}, 27"); A("s_lshl_b32 s68, s68, 10"); A("s_add_u32 s68, s68, 0x8000")
            A("s_add_u32 s64, s24, s68"); A("s_addc_u32 s65, s25, 0"); A(f"v_lshlrev_b32 {X(11)}, 2, {LANE}")
            self.gate(SD, X(11), 768, X(12), "L_qg")
        self.stage_ln(R_X2, R_ST2, 0, QSCALE, "L_qx", gate)
        self.pack_pair(X(5), X(4), X(6))
        self.set_exec(0x55555555, 0)
        self.pub(f"global_store_dword {X(7)}, {X(5)}, {SC_}")
        A("s_mov_b64 exec, -1")

    def finish(self):
        A = self.A
        if not self.o.prof: return
        A("s_lshl_b32 s68, s2, 2"); A(f"s_add_u32 s68, s68, {sWAVE}"); A("s_lshl_b32 s68, s68, 7"); A(f"v_mov_b32 {X(0)}, s68")
        A("s_mov_b64 exec, 1")
        for k in range(20):
            A(f"v_mov_b32 {X(1)}, s{80+k}"); A(f"global_store_dword {X(0)}, {X(1)}, {sWS} offset:{4*k}")
        for k in range(9):
            A(f"v_mov_b32 {X(1)}, s{36+k}"); A(f"global_store_dword {X(0)}, {X(1)}, {sWS} offset:{80+4*k}")
        A(f"v_mov_b32 {X(1)}, {sMODE}"); A(f"global_store_dword {X(0)}, {X(1)}, {sWS} offset:116")
        A(f"v_mov_b32 {X(1)}, {sBUD}"); A(f"global_store_dword {X(0)}, {X(1)}, {sWS} offset:120")

    def build(self):
        A = self.A; o = self.o
        self.prologue()
        if o.prof:
            for k in range(9): A(f"s_mov_b32 s{36+k}, 0")
        self.stream()
        A("L_layer:")
        self.get_q()
        self.stamp(6)
        self.attention()
        A(f"s_cmp_eq_u32 {sWAVE}, 0"); A("s_cbranch_scc0 L_nocomb")
        self.combine_publish()
        self.stamp(10)
        A("L_nocomb:")
        A(f"s_cmp_eq_u32 {sROLE}, {ROLE_GU}"); A("s_cbranch_scc1 L_gu_s")
        A(f"s_cmp_eq_u32 {sROLE}, {ROLE_DN}"); A("s_cbranch_scc1 L_dn_s")
        A(f"s_cmp_eq_u32 {sROLE}, {ROLE_WQ}"); A("s_cbranch_scc1 L_wq_s")
        A(f"s_cmp_eq_u32 {sROLE}, {ROLE_WO}"); A("s_cbranch_scc0 L_next")
        self.stage_wo()
        self.stamp(11)
        self.cbase(SA, 0); self.gbase(SB, R_X1); self.gbase(SC_, R_ST1); A("s_mov_b32 s78, 0")
        self.gbase(SD, R_X2, 0)
        A(f"s_cmp_eq_u32 {sLAYER}, 0"); A("s_cselect_b32 s64, s4, s64"); A("s_cselect_b32 s65, s5, s65")
        A("L_rs_entry:")
        self.stage_rs()
        self.stamp(12)
        self.dstamp(6, layer=0)
        A("s_branch L_next")
        A("L_gu_s:")
        self.stage_gu()
        self.stamp(13)
        A("s_branch L_next")
        A("L_dn_s:")
        self.stage_dn()
        self.stamp(14)
        self.cbase(SA, 1); self.gbase(SB, R_X2); self.gbase(SC_, R_ST2); self.gbase(SD, R_X1); A(f"s_mov_b32 s78, {sLAYER}")
        A("s_branch L_rs_entry")
        A("L_wq_s:")
        A(f"s_cmp_eq_u32 {sLAYER}, 1"); A("s_cbranch_scc1 L_fin")
        self.stage_q2()
        self.stamp(15)
        A("L_next:")
        A(f"s_cmp_eq_u32 {sLAYER}, 1"); A("s_cbranch_scc1 L_fin")
        A(f"s_mov_b32 {sLAYER}, 1")
        A("s_branch L_layer")
        A("L_final:")
        A(f"s_cmp_eq_u32 {sGI}, 0"); A("s_cbranch_scc0 L_fin")
        self.set_exec(0x55555555, 0)
        A(f"global_store_dword {X(10)}, {X(1)}, {sOUT}")
        A(f"s_cmp_eq_u32 {sSIG}, 0"); A("s_cbranch_scc0 L_noep")
        A("s_mov_b64 exec, 1")
        A(f"v_mov_b32 {X(2)}, {EOFF}"); A(f"v_mov_b32 {X(3)}, {sTAG}")
        A(f"global_store_dword {X(2)}, {X(3)}, {sWS}")
        A("L_noep:")
        A("s_mov_b64 exec, -1")
        A("L_fin:")
        self.dstamp(10)
        self.stamp(16)
        self.finish()
        A("L_end:")
        A("s_endpgm")
        lines, n = hazard.fix(A.L, verbose=o.verbose)
        A.L = lines
        return A

def main():
    ap = argparse.ArgumentParser()
    ap.add_argument("-o", default="k2.s")
    ap.add_argument("--prof", action="store_true")
    ap.add_argument("--slow", action="store_true")
    ap.add_argument("--nt", type=int, default=1)
    ap.add_argument("--wnt", type=int, default=1)
    ap.add_argument("--win", type=int, default=12)
    ap.add_argument("--winv", type=int, default=60)
    ap.add_argument("--budget", type=int, default=200000)
    ap.add_argument("--gate", type=int, default=1)
    ap.add_argument("--gatesleep", type=int, default=1)
    ap.add_argument("--qsleep", type=int, default=1)
    ap.add_argument("--trypoll", type=int, default=4)
    ap.add_argument("--k0", type=int, default=3)
    ap.add_argument("--vdist", type=int, default=3)
    ap.add_argument("--fullcheck", type=int, default=0)
    ap.add_argument("--round2", type=int, default=1)
    ap.add_argument("--stamps", default=None)
    ap.add_argument("--verbose", action="store_true")
    ap.add_argument("--dbgstamps", action="store_true")
    o = ap.parse_args()
    g = Gen(o); A = g.build(); A.write(o.o)
    print("wrote", o.o, len(A.L), "lines")
main()
```

```python
import sys, argparse, struct
from asmlib import Asm, NAME
import hazard

GOFF = 0x100000; LSTRIDE = 0x8000
R_Q = 0x0000; R_ML = 0x0800; R_X1 = 0x0A00; R_ST1 = 0x1100; R_H = 0x1300; R_X2 = 0x1800; R_ST2 = 0x1F00; R_O = 0x4000
COFF = GOFF + 0x80000
EOFF = 0x0F0000
QTOFF = 0x0F8000
TAGC = 0x9E3779B9
NLDS = 19
VW = NLDS * 2048
LDS_OP = 4 * VW; LDS_MLP = LDS_OP + 4096; LDS_QL = LDS_MLP + 64; LDS_FLAG = LDS_QL + 512; LDS_RED = LDS_FLAG + 64
assert LDS_RED + 2048 <= 163840
LOG2E = 1.4426950408889634
QSCALE = LOG2E / 16.0
ROLE_WQ, ROLE_WO, ROLE_GU, ROLE_DN, ROLE_NONE = 0, 1, 2, 3, 4

def f32(x): return "0x%08x" % struct.unpack("<I", struct.pack("<f", x))[0]
def X(n): assert 0 <= n < 20; return f"v{4+n}"
def T(n): assert 0 <= n < 64; return f"v{24+n}"
def W(n): assert 0 <= n < 64; return f"v{88+n}"
def VR(n): assert 0 <= n < 104; return f"v{152+n}"
def rng(f, a, n):
    s = f(a); k = int(s[1:]); assert n == 1 or k % 2 == 0, (s, n); return f"{s[0]}[{k}:{k+n-1}]"
def XR(a, n): return rng(X, a, n)
def TR(a, n): return rng(T, a, n)
def WR(a, n): return rng(W, a, n)
def VRR(a, n): return rng(VR, a, n)
LANE = "v0"; CS = "v1"; L16 = "v2"; TMP = "v3"
sM0B = "s3"
sXIN = "s[4:5]"
sOUT = "s[16:17]"; sDBG = "s[18:19]"; sWS = "s[20:21]"; sG = "s[22:23]"; sC = "s[24:25]"
sWAVE = "s26"; sGI = "s27"; sJ = "s28"; sHL = "s29"; sB = "s30"; sSP = "s31"
sMODE = "s32"; sBUD = "s33"; sLAYER = "s34"; sTILE = "s35"
sTAG = "s46"; sROLE = "s6"; sSIG = "s7"; sS4 = "s47"
sSEL = "s[60:61]"
sMA = "s[54:55]"
SA = "s[70:71]"; SB = "s[72:73]"; SC_ = "s[74:75]"; SD = "s[64:65]"
WBAR = "v[14:15]"; WBAR0 = "v14"; WBAR1 = "v15"
DPP = "row_mask:0xf bank_mask:0xf"

class Gen:
    def __init__(self, opt):
        self.o = opt; self.A = Asm(); self.ob = 0
    def stamp(self, k):
        if not self.o.prof: return
        if self.o.stamps is not None and k not in [int(x) for x in self.o.stamps.split(",")]: return
        A = self.A
        A("s_memrealtime s[76:77]"); A("s_waitcnt lgkmcnt(0)")
        if 6 <= k <= 14:
            A(f"s_cmp_eq_u32 {sLAYER}, 0"); A(f"s_cselect_b32 s{80+k}, s76, s{80+k}"); A(f"s_cselect_b32 s{30+k}, s{30+k}, s76")
        else:
            A(f"s_mov_b32 s{80+k}, s76")
    def dstamp(self, word, neg=False, layer=None):
        if not self.o.dbgstamps: return
        A = self.A
        lab = A.label("DS")
        A("s_cmp_eq_u32 s2, 176"); A(f"s_cbranch_scc0 {lab}"); A(f"s_cmp_eq_u32 {sWAVE}, 0"); A(f"s_cbranch_scc0 {lab}")
        if layer is not None:
            A(f"s_cmp_eq_u32 {sLAYER}, {layer}"); A(f"s_cbranch_scc0 {lab}")
        A("s_memrealtime s[76:77]"); A("s_waitcnt lgkmcnt(0)")
        A(f"v_mov_b32 v86, s76"); A(f"v_mov_b32 v87, {4*word}")
        A("s_mov_b64 s[78:79], exec"); A("s_mov_b64 exec, 1")
        A(f"global_store_dword v87, v86, {sDBG}")
        A("s_mov_b64 exec, s[78:79]")
        A(f"{lab}:")
    def fst(self, k, which="ln"):
        if self.o.fine != which: return
        A = self.A
        A("s_memtime s[76:77]"); A("s_waitcnt lgkmcnt(0)"); A(f"s_mov_b32 s{90+k}, s76")
    def gbase(self, dst, off, layer=None):
        A = self.A; d = int(dst[2:dst.index(":")])
        if layer is None:
            A(f"s_mul_i32 s68, {sLAYER}, {LSTRIDE}"); A(f"s_add_u32 s68, s68, {off}")
            A(f"s_add_u32 s{d}, s22, s68")
        else:
            A(f"s_add_u32 s{d}, s22, {off + layer*LSTRIDE}")
        A(f"s_addc_u32 s{d+1}, s23, 0")
    def cbase(self, dst, kind, consumer=True):
        A = self.A; d = int(dst[2:dst.index(":")])
        A(f"s_lshl_b32 s68, {sLAYER}, 19"); A(f"s_lshl_b32 s69, {sS4}, 10"); A("s_add_u32 s68, s68, s69")
        if consumer: A(f"s_lshl_b32 s69, {sGI}, 15"); A("s_add_u32 s68, s68, s69")
        if kind: A(f"s_add_u32 s68, s68, {kind*0x40000}")
        A(f"s_add_u32 s{d}, s24, s68"); A(f"s_addc_u32 s{d+1}, s25, 0")
    def p_publish(self, base, vaddr, val):
        A = self.A; d = int(base[2:base.index(":")])
        for c in range(8):
            A(f"global_store_dword {vaddr}, {val}, {base} sc1")
            if c != 7: A(f"s_add_u32 s{d}, s{d}, 0x8000"); A(f"s_addc_u32 s{d+1}, s{d+1}, 0")
    def maxops(self, dst, regs, first=True):
        out = []; regs = list(regs)
        if first:
            if len(regs) >= 3: out.append(f"v_max3_u32 {dst}, {regs[0]}, {regs[1]}, {regs[2]}"); regs = regs[3:]
            elif len(regs) == 2: out.append(f"v_max_u32 {dst}, {regs[0]}, {regs[1]}"); regs = []
            else: out.append(f"v_mov_b32 {dst}, {regs[0]}"); regs = []
        while len(regs) >= 2:
            out.append(f"v_max3_u32 {dst}, {dst}, {regs[0]}, {regs[1]}"); regs = regs[2:]
        if regs: out.append(f"v_max_u32 {dst}, {dst}, {regs[0]}")
        return out
    def chk_regs(self, f, base, nload):
        if self.o.fullcheck: return [f(base + k) for k in range(4 * nload)]
        return [f(base + 4 * k) for k in range(nload)]
    def poll_tail(self, chk, loop, done, sleep=0):
        A = self.A
        A(f"v_cmp_eq_u32 vcc, -1, {chk}")
        A(f"s_cbranch_vccz {done}")
        A(f"s_cmp_eq_u32 {sBUD}, 0"); A(f"s_cbranch_scc1 {done}")
        A(f"s_sub_u32 {sBUD}, {sBUD}, 1")
        if sleep: A(f"s_sleep {sleep}")
        A(f"s_branch {loop}")
    def gate(self, base, vaddr, off, dst, lab):
        if not self.o.gate: return
        A = self.A
        A(f"{lab}:")
        A(f"global_load_dword {dst}, {vaddr}, {base} offset:{off} sc1"); A("s_waitcnt vmcnt(0)")
        self.poll_tail(dst, lab, lab + "_d", sleep=self.o.gatesleep)
        A(f"{lab}_d:")
    def pub(self, instr):
        A = self.A
        l1 = A.label("PUBF"); l2 = A.label("PUBD")
        A(f"s_cmp_eq_u32 {sMODE}, 1"); A(f"s_cbranch_scc1 {l1}")
        A(instr + " sc1"); A(f"s_branch {l2}")
        A(f"{l1}:"); A(instr); A(f"{l2}:")
    def set_exec(self, lo, hi):
        A = self.A
        if lo == 0xFFFFFFFF and hi == 0xFFFFFFFF: A("s_mov_b64 exec, -1"); return
        A(f"s_mov_b32 exec_lo, {hex(lo)}"); A(f"s_mov_b32 exec_hi, {hex(hi)}")
    def ln_addr(self, dst):
        A = self.A
        A(f"v_and_b32 {dst}, 1, {LANE}"); A(f"v_mul_u32_u24 {dst}, 896, {dst}")
        A(f"v_lshrrev_b32 {TMP}, 4, {LANE}"); A(f"v_lshl_add_u32 {dst}, {TMP}, 4, {dst}")
    def xst_addr(self, dst):
        A = self.A
        A(f"v_bfe_u32 {TMP}, {LANE}, 4, 1"); A(f"v_mul_u32_u24 {dst}, 896, {TMP}")
        A(f"v_and_b32 {TMP}, 15, {LANE}"); A(f"v_lshl_add_u32 {dst}, {TMP}, 1, {dst}")
        A(f"s_lshl_b32 s68, {sSIG}, 5"); A(f"v_add_u32 {dst}, s68, {dst}")
    def pack_pair(self, dst, val, tmp):
        A = self.A
        A(f"v_mov_b32_dpp {tmp}, {val} quad_perm:[1,0,3,2] {DPP}")
        A(f"v_cvt_pk_bf16_f32 {dst}, {val}, {tmp}")

    def prologue(self):
        A = self.A; o = self.o
        wnt = " nt" if o.wnt else ""
        A(f"""
        s_cmp_ge_u32 s2, 256
        s_cbranch_scc1 L_end
        {"s_memrealtime s[100:101]" if o.dbgstamps else ""}
        s_load_dwordx16 s[36:51], s[0:1], 0
        s_load_dwordx8 s[52:59], s[0:1], 64
        v_lshrrev_b32 v1, 6, v0
        v_and_b32 v0, 63, v0
        s_and_b32 {sGI}, s2, 7
        v_readfirstlane_b32 {sWAVE}, v1
        s_lshr_b32 {sJ}, s2, 3
        s_lshr_b32 s68, {sJ}, 3
        s_and_b32 {sSP}, {sJ}, 7
        s_and_b32 {sHL}, s68, 1
        s_lshr_b32 {sB}, s68, 1
        s_mov_b32 {sBUD}, {o.budget}
        s_mov_b32 {sLAYER}, 0
        s_mov_b32 {sMODE}, 0
        s_mov_b32 s60, 0xffff0000
        s_mov_b32 s61, 0xffff0000
        v_lshlrev_b32 {L16}, 4, {LANE}
        v_mov_b32 {CS}, 0
        s_lshl_b32 s68, {sGI}, 1
        s_add_u32 s68, s68, {sHL}
        s_lshl_b32 s69, {sB}, 4
        s_add_u32 s68, s68, s69
        s_lshl_b32 {sTILE}, s68, 21
        s_lshl_b32 s68, {sSP}, 15
        s_add_u32 {sTILE}, {sTILE}, s68
        s_lshl_b32 s68, {sWAVE}, 13
        s_add_u32 {sTILE}, {sTILE}, s68
        s_mul_i32 {sM0B}, {sWAVE}, {VW}
        """)
        A(f"s_mov_b32 {sROLE}, {ROLE_WQ}"); A(f"s_mov_b32 s62, {sJ}")
        for (lim, role) in ((8, ROLE_WO), (15, ROLE_GU), (22, ROLE_DN), (29, ROLE_NONE)):
            A(f"s_cmp_ge_u32 {sJ}, {lim}"); A(f"s_cselect_b32 {sROLE}, {role}, {sROLE}"); A(f"s_sub_u32 s68, {sJ}, {lim}")
            A(f"s_cmp_ge_u32 {sJ}, {lim}"); A("s_cselect_b32 s62, s68, s62")
        A(f"s_lshl_b32 {sSIG}, s62, 2"); A(f"s_add_u32 {sSIG}, {sSIG}, {sWAVE}")
        A(f"s_cmp_eq_u32 {sWAVE}, 0"); A("s_cbranch_scc0 L_noflag")
        A(f"v_mov_b32 {X(0)}, {LDS_FLAG}"); A(f"v_mov_b32 {X(1)}, 0"); A(f"ds_write_b32 {X(0)}, {X(1)}")
        A("L_noflag:")
        A("s_waitcnt lgkmcnt(0)")
        A("s_barrier")
        self.stamp(0)
        if o.prof:
            for k in range(1, 20): A(f"s_mov_b32 s{80+k}, 0")
        A(f"""
        s_load_dword {sTAG}, s[58:59], {EOFF}
        s_sub_u32 {sS4}, {sSIG}, {sWAVE}
        s_mov_b32 s8, s38
        s_mov_b32 s9, s39
        s_mov_b32 s10, 0x4000000
        s_mov_b32 s11, 0x00020000
        s_mov_b32 s12, s40
        s_mov_b32 s13, s41
        s_mov_b32 s14, 0x4000000
        s_mov_b32 s15, 0x00020000
        s_mov_b32 s4, s36
        s_mov_b32 s5, s37
        s_mov_b32 s16, s54
        s_mov_b32 s17, s55
        s_mov_b32 s18, s56
        s_mov_b32 s19, s57
        s_mov_b32 s20, s58
        s_mov_b32 s21, s59
        s_lshl_b32 s68, {sGI}, 16
        s_add_u32 s68, s68, {GOFF}
        s_add_u32 s22, s58, s68
        s_addc_u32 s23, s59, 0
        s_add_u32 s24, s58, {COFF}
        s_addc_u32 s25, s59, 0
        s_mov_b64 s[70:71], s[58:59]
        s_mov_b64 s[72:73], s[58:59]
        s_mov_b64 s[74:75], s[58:59]
        """)
        if o.dbgstamps:
            A("s_cmp_eq_u32 s2, 176"); A("s_cbranch_scc0 L_ds0"); A(f"s_cmp_eq_u32 {sWAVE}, 0"); A("s_cbranch_scc0 L_ds0")
            A("v_mov_b32 v86, s100"); A("v_mov_b32 v87, 8"); A("s_mov_b64 exec, 1")
            A(f"global_store_dword v87, v86, {sDBG}"); A("s_mov_b64 exec, -1")
            A("L_ds0:")
            self.dstamp(3)
        row8, c, off = X(2), X(3), X(4)
        A(f"v_lshrrev_b32 {row8}, 3, {LANE}"); A(f"v_and_b32 {c}, 7, {LANE}")
        A(f"s_cmp_eq_u32 {sROLE}, {ROLE_WO}"); A("s_cbranch_scc1 L_w1")
        A(f"s_cmp_eq_u32 {sROLE}, {ROLE_GU}"); A("s_cbranch_scc1 L_w2")
        A(f"s_cmp_eq_u32 {sROLE}, {ROLE_DN}"); A("s_cbranch_scc1 L_w3")
        A(f"s_cmp_eq_u32 {sROLE}, {ROLE_WQ}"); A("s_cbranch_scc1 L_w0")
        A(f"v_mov_b32 {off}, 0"); A("s_mov_b32 s63, 0"); A("s_mov_b32 s66, 0"); A("s_mov_b32 s67, 0")
        A("s_mov_b32 s64, s42"); A("s_mov_b32 s65, s43"); A("s_mov_b32 s78, s42"); A("s_mov_b32 s79, s43")
        A("s_branch L_wdone")
        A("L_w0:")
        A(f"s_mul_i32 s68, {sWAVE}, 112"); A(f"v_add_u32 {X(5)}, s68, {row8}"); A(f"v_lshlrev_b32 {off}, 13, {X(5)}")
        A(f"v_lshl_add_u32 {off}, {c}, 4, {off}"); A(f"s_lshl_b32 s68, {sGI}, 10"); A("s_lshl_b32 s69, s62, 7"); A("s_add_u32 s68, s68, s69"); A(f"v_add_u32 {off}, s68, {off}")
        A("s_mov_b32 s63, 14"); A(f"s_mov_b32 s66, {8*8192}"); A(f"s_mul_i32 s67, {sWAVE}, 14336")
        A("s_mov_b32 s64, s42"); A("s_mov_b32 s65, s43"); A("s_mov_b32 s78, s42"); A("s_mov_b32 s79, s43")
        self.ln_addr(X(8))
        self.set_exec(0x00030003, 0x00030003)
        for t in range(14):
            A(f"global_load_dwordx4 {TR(4*t,4)}, {X(8)}, {sXIN} offset:{t*64}")
        A("s_mov_b64 exec, -1")
        for k in range(8): A(f"v_mov_b32 {T(56+k)}, 0")
        self.set_exec(0xFFFFFFFF, 0x00FFFFFF)
        A(f"global_load_dwordx4 {TR(56,4)}, {L16}, {sXIN}"); A(f"global_load_dwordx4 {TR(60,4)}, {L16}, {sXIN} offset:896")
        A("s_mov_b64 exec, -1")
        A("s_branch L_wdone")
        A("L_w1:")
        A(f"v_and_b32 {X(5)}, 3, {row8}"); A(f"v_lshlrev_b32 {X(5)}, 3, {X(5)}"); A(f"v_lshrrev_b32 {X(6)}, 2, {row8}"); A(f"v_add_u32 {X(5)}, {X(5)}, {X(6)}")
        A(f"s_lshl_b32 s68, {sGI}, 9"); A(f"s_lshl_b32 s69, {sWAVE}, 7"); A("s_add_u32 s68, s68, s69"); A(f"v_add_u32 {X(5)}, s68, {X(5)}")
        A(f"v_mul_u32_u24 {off}, 896, {X(5)}"); A(f"v_lshl_add_u32 {off}, {c}, 4, {off}"); A("s_lshl_b32 s68, s62, 7"); A(f"v_add_u32 {off}, s68, {off}")
        A("s_mov_b32 s63, 16"); A("s_mov_b32 s66, 0"); A(f"s_mov_b32 s67, {sM0B}")
        A("s_mov_b32 s64, s44"); A("s_mov_b32 s65, s45"); A("s_mov_b32 s78, s44"); A("s_mov_b32 s79, s45")
        A("s_branch L_wdone")
        A("L_w2:")
        A(f"s_mul_i32 s68, {sWAVE}, 112"); A(f"v_add_u32 {X(5)}, s68, {row8}"); A(f"v_mul_u32_u24 {off}, 3584, {X(5)}")
        A(f"v_and_b32 {X(6)}, 3, {c}"); A(f"v_lshl_add_u32 {off}, {X(6)}, 4, {off}")
        A(f"s_mul_i32 s68, {sGI}, 448"); A("s_lshl_b32 s69, s62, 6"); A("s_add_u32 s68, s68, s69"); A(f"v_add_u32 {off}, s68, {off}")
        A("s_mov_b32 s63, 14"); A(f"s_mov_b32 s66, {8*3584}"); A(f"s_mul_i32 s67, {sWAVE}, 14336")
        A("s_mov_b32 s64, s48"); A("s_mov_b32 s65, s49"); A("s_mov_b32 s78, s50"); A("s_mov_b32 s79, s51")
        A("s_branch L_wdone")
        A("L_w3:")
        A(f"s_mul_i32 s68, {sGI}, 224"); A(f"s_mul_i32 s69, {sWAVE}, 56"); A("s_add_u32 s68, s68, s69"); A(f"v_add_u32 {X(5)}, s68, {row8}")
        A(f"v_mul_u32_u24 {off}, 896, {X(5)}"); A(f"v_lshl_add_u32 {off}, {c}, 4, {off}"); A("s_lshl_b32 s68, s62, 7"); A(f"v_add_u32 {off}, s68, {off}")
        A("s_mov_b32 s63, 7"); A(f"s_mov_b32 s66, {8*896}"); A(f"s_mul_i32 s67, {sWAVE}, 7168")
        A("s_mov_b32 s64, s52"); A("s_mov_b32 s65, s53"); A("s_mov_b32 s78, s52"); A("s_mov_b32 s79, s53")
        A("L_wdone:")
        A(f"v_cmp_le_u32 vcc, 4, {c}")
        A(f"v_mov_b32 {X(0)}, s64"); A(f"v_mov_b32 {X(5)}, s78"); A(f"v_cndmask_b32 {X(0)}, {X(0)}, {X(5)}, vcc")
        A(f"v_mov_b32 {X(1)}, s65"); A(f"v_mov_b32 {X(5)}, s79"); A(f"v_cndmask_b32 {X(1)}, {X(1)}, {X(5)}, vcc")
        A(f"v_add_co_u32 {X(0)}, vcc, {X(0)}, {off}"); A(f"v_addc_co_u32 {X(1)}, vcc, 0, {X(1)}, vcc")
        A("s_mov_b32 s68, s67"); A("s_mov_b32 s69, 0")
        A("s_cmp_eq_u32 s63, 0"); A("s_cbranch_scc1 L_wld_done")
        A("L_wld:")
        A("s_mov_b32 m0, s68")
        A("s_add_u32 s68, s68, 1024")
        A(f"global_load_lds_dwordx4 {XR(0,2)}, off{wnt}")
        A("s_add_u32 s69, s69, 1"); A("s_and_b32 s62, s69, 3"); A("s_cmp_eq_u32 s62, 0"); A(f"s_mov_b32 s76, {26*896}"); A(f"s_cselect_b32 s62, s76, {2*896}")
        A(f"s_cmp_eq_u32 {sROLE}, {ROLE_WO}"); A("s_cselect_b32 s62, s62, s66")
        A(f"v_add_co_u32 {X(0)}, vcc, s62, {X(0)}"); A(f"v_addc_co_u32 {X(1)}, vcc, 0, {X(1)}, vcc")
        A("s_cmp_lt_u32 s69, s63"); A("s_cbranch_scc1 L_wld")
        A("L_wld_done:")
        A("s_mov_b32 s48, 0x22222222"); A("s_mov_b32 s49, 0x22222222"); A("s_mov_b32 s50, 0x44444444"); A("s_mov_b32 s51, 0x44444444")
        A("s_mov_b32 s52, 0x88888888"); A("s_mov_b32 s53, 0x88888888")
        A("s_mov_b32 s54, 0x00030003"); A("s_mov_b32 s55, 0x00030003")
        A(f"s_cmp_eq_u32 {sWAVE}, 3"); A("s_cbranch_scc0 L_noclr")
        for k in range(4): A(f"v_mov_b32 {X(12+k)}, -1")
        A(f"s_lshl_b32 s68, {sJ}, 11"); A(f"v_add_u32 {X(8)}, s68, {L16}")
        A(f"global_store_dwordx4 {X(8)}, {XR(12,4)}, {sG} sc1"); A(f"global_store_dwordx4 {X(8)}, {XR(12,4)}, {sG} offset:1024 sc1")
        A(f"s_lshl_b32 s68, s2, 12"); A(f"v_add_u32 {X(9)}, s68, {L16}")
        for k in range(4): A(f"global_store_dwordx4 {X(9)}, {XR(12,4)}, {sC} offset:{k*1024} sc1")
        A("L_noclr:")

    def tr_reads(self):
        A = self.A
        a = X(8); r, c, g4 = X(10), X(9), TMP
        A(f"v_and_b32 {c}, 15, {LANE}"); A(f"v_lshrrev_b32 {r}, 2, {c}"); A(f"v_and_b32 {c}, 3, {c}")
        A(f"v_lshrrev_b32 {a}, 4, {LANE}"); A(f"v_lshlrev_b32 {a}, 3, {a}"); A(f"v_add_u32 {a}, {a}, {r}")
        A(f"v_lshlrev_b32 {a}, 7, {a}")
        A(f"s_cmp_eq_u32 {sROLE}, {ROLE_WO}"); A("s_cbranch_scc1 L_tr_wo")
        A(f"s_cmp_eq_u32 {sROLE}, {ROLE_GU}"); A("s_cbranch_scc1 L_tr_gu")
        A(f"s_cmp_eq_u32 {sROLE}, {ROLE_DN}"); A("s_cbranch_scc1 L_tr_dn")
        A(f"v_lshl_add_u32 {a}, {c}, 3, {a}"); A(f"s_lshl_b32 s68, {sWAVE}, 5"); A(f"v_add_u32 {a}, s68, {a}")
        A("s_branch L_tr_n")
        A("L_tr_gu:")
        A(f"v_and_b32 {r}, 1, {c}"); A(f"v_lshl_add_u32 {a}, {r}, 3, {a}"); A(f"v_lshrrev_b32 {r}, 1, {c}"); A(f"v_lshl_add_u32 {a}, {r}, 6, {a}")
        A(f"s_lshl_b32 s68, {sWAVE}, 4"); A(f"v_add_u32 {a}, s68, {a}")
        A("L_tr_n:")
        for t in range(14):
            A(f"ds_read_b64_tr_b16 {WR(4*t,2)}, {a} offset:{t*4096}")
            A(f"ds_read_b64_tr_b16 {WR(4*t+2,2)}, {a} offset:{t*4096+512}")
            if t % 4 == 3: A("s_waitcnt lgkmcnt(0)")
        A("s_branch L_tr_d")
        A("L_tr_dn:")
        A(f"v_lshl_add_u32 {a}, {c}, 3, {a}"); A(f"s_and_b32 s68, {sWAVE}, 1"); A("s_lshl_b32 s68, s68, 6"); A(f"v_add_u32 {a}, s68, {a}")
        for t in range(7):
            for u in range(2):
                k = 4 * (2 * t + u)
                A(f"ds_read_b64_tr_b16 {WR(k,2)}, {a} offset:{t*4096+u*32}")
                A(f"ds_read_b64_tr_b16 {WR(k+2,2)}, {a} offset:{t*4096+u*32+512}")
            if t % 2 == 1: A("s_waitcnt lgkmcnt(0)")
        A("s_branch L_tr_d")
        A("L_tr_wo:")
        A(f"v_lshl_add_u32 {a}, {c}, 3, {a}"); A(f"v_add_u32 {a}, {sM0B}, {a}")
        for tt in range(4):
            for nt in range(4):
                k = 4 * (4 * tt + nt)
                A(f"ds_read_b64_tr_b16 {WR(k,2)}, {a} offset:{tt*4096+nt*32}")
                A(f"ds_read_b64_tr_b16 {WR(k+2,2)}, {a} offset:{tt*4096+nt*32+512}")
            A("s_waitcnt lgkmcnt(0)")
        A("L_tr_d:")
        A("s_waitcnt lgkmcnt(0)")
        A(f"s_add_u32 {sTAG}, {sTAG}, {hex(TAGC)}")
    def colsum(self):
        A = self.A
        for k in range(4): A(f"v_mov_b32 {X(4+k)}, 0x3f803f80")
        for t in range(14):
            A(f"v_mfma_f32_16x16x32_bf16 {XR(0,4)}, {XR(4,4)}, {WR(4*t,4)}, {'0' if t == 0 else XR(0,4)}")
        A(f"v_mov_b32 {CS}, {X(0)}")

    def ln_scalars(self, s1, s2, scale):
        ops = [f"v_mul_f32 {s1}, {f32(1/448)}, {s1}", f"v_mul_f32 {s2}, {f32(1/448)}, {s2}",
               f"v_fma_f32 {s2}, -{s1}, {s1}, {s2}", f"v_max_f32 {s2}, 0, {s2}", f"v_add_f32 {s2}, {f32(1e-5)}, {s2}", f"v_rsq_f32 {s2}, {s2}"]
        if scale != 1.0: ops.append(f"v_mul_f32 {s2}, {f32(scale)}, {s2}")
        return ops
    def ln_finish(self, mu, rs):
        A = self.A
        A(f"v_permlane16_swap_b32 {X(0)}, {X(1)}")
        A(f"v_fma_f32 {X(4)}, -{mu}, {CS}, {X(0)}")
        A(f"v_mul_f32 {X(4)}, {X(4)}, {rs}")

    def stage_ln(self, rx, rst, layer, scale, lab, sleep=0):
        A = self.A
        LX = LDS_RED; LS = LDS_OP
        xa, sa = X(8), X(9)
        self.ln_addr(xa); A(f"v_add_u32 {xa}, {LX}, {xa}")
        A(f"v_bfe_u32 {sa}, {LANE}, 4, 1"); A(f"v_lshlrev_b32 {sa}, 8, {sa}"); A(f"v_lshrrev_b32 {TMP}, 5, {LANE}"); A(f"v_lshl_add_u32 {sa}, {TMP}, 7, {sa}")
        A(f"v_and_b32 {TMP}, 15, {LANE}"); A(f"v_lshl_add_u32 {sa}, {TMP}, 3, {sa}")
        A(f"s_cmp_eq_u32 {sWAVE}, 1"); A(f"s_cbranch_scc0 {lab}_b")
        self.gbase(SA, rx, layer); self.gbase(SB, rst, layer)
        for k in range(4, 10): A(f"v_mov_b32 {T(k)}, 0")
        A(f"v_add_u32 {X(10)}, {LX}, {L16}"); A(f"v_add_u32 {X(11)}, {LDS_RED + 1792 - 1792 + 0}, {L16}")
        A(f"v_add_u32 {X(12)}, {LS}, {sa}")
        self.fst(1)
        A(f"{lab}:")
        if self.o.fine == "ln": A("s_add_u32 s99, s99, 1")
        self.fst(2)
        A(f"global_load_dwordx4 {TR(0,4)}, {L16}, {SA} sc1")
        self.set_exec(0xFFFFFFFF, 0x0000FFFF)
        A(f"global_load_dwordx4 {TR(4,4)}, {L16}, {SA} offset:1024 sc1")
        self.set_exec(0xFFFFFFFF, 0x0FFF0FFF)
        A(f"global_load_dwordx2 {TR(8,2)}, {sa}, {SB} sc1")
        A("s_mov_b64 exec, -1")
        A("s_waitcnt vmcnt(0)")
        self.fst(3)
        for s in self.maxops(X(13), [T(k) for k in range(10)]): A(s)
        self.poll_tail(X(13), lab, lab + "_d", sleep=sleep)
        A(f"{lab}_d:")
        A(f"ds_write_b128 {X(10)}, {TR(0,4)}")
        A(f"ds_write_b64 {X(12)}, {TR(8,2)}")
        self.set_exec(0xFFFFFFFF, 0x0000FFFF)
        A(f"ds_write_b128 {X(10)}, {TR(4,4)} offset:1024")
        A("s_mov_b64 exec, -1")
        A("s_waitcnt lgkmcnt(0)")
        A(f"{lab}_b:")
        A("s_barrier")
        D = XR(0, 4); s1, s2, t1, t2 = T(58), T(59), T(60), T(61)
        A(f"v_add_u32 {sa}, {LS}, {sa}")
        A(f"ds_read_b64 {TR(56,2)}, {sa}")
        for t in range(14): A(f"ds_read_b128 {TR(4*t,4)}, {xa} offset:{t*64}")
        red = [f"v_add_f32_dpp {s1}, {T(56)}, {T(56)} row_ror:8 {DPP}", f"v_add_f32_dpp {s2}, {T(57)}, {T(57)} row_ror:8 {DPP}"]
        for sh in (4, 2, 1):
            red += [f"v_add_f32_dpp {s1}, {s1}, {s1} row_ror:{sh} {DPP}", f"v_add_f32_dpp {s2}, {s2}, {s2} row_ror:{sh} {DPP}"]
        red += [f"v_mov_b32 {t1}, {s1}", f"v_mov_b32 {t2}, {s2}", f"v_permlane32_swap_b32 {s1}, {t1}", f"v_permlane32_swap_b32 {s2}, {t2}",
                f"v_add_f32 {s1}, {s1}, {t1}", f"v_add_f32 {s2}, {s2}, {t2}"]
        red += self.ln_scalars(s1, s2, scale)
        for t in range(14):
            if t in (0, 4, 8): A(f"s_waitcnt lgkmcnt({max(13 - t - 3, 0)})")
            if t == 12: A("s_waitcnt lgkmcnt(0)")
            A(f"v_mfma_f32_16x16x32_bf16 {D}, {TR(4*t,4)}, {WR(4*t,4)}, {'0' if t == 0 else D}")
            n = 2 if t % 2 == 0 else 1
            while n and red: A(red.pop(0)); n -= 1
        for s in red: A(s)
        self.fst(4)
        self.ln_finish(s1, s2)

    def ld_setup(self):
        A = self.A
        vK, vV = X(18), X(19)
        A(f"v_and_b32 {X(8)}, 15, {LANE}"); A(f"v_lshrrev_b32 {X(9)}, 4, {LANE}")
        A(f"v_and_b32 {vK}, 3, {LANE}"); A(f"v_lshlrev_b32 {vK}, 4, {vK}"); A(f"v_lshl_add_u32 {vK}, {X(9)}, 6, {vK}")
        A(f"v_bfe_u32 {TMP}, {LANE}, 2, 2"); A(f"v_lshl_add_u32 {vK}, {TMP}, 11, {vK}")
        A(f"v_lshlrev_b32 {vV}, 11, {X(9)}"); A(f"v_lshl_add_u32 {vV}, {X(8)}, 4, {vV}")
    def throttle(self, win):
        if self.ob + 1 > win:
            self.A(f"s_waitcnt vmcnt({win - 4})"); self.ob = win - 4
        self.ob += 1
    def ktile(self, tau, win):
        A = self.A; f = " nt" if self.o.nt else ""
        A(f"s_add_u32 s68, {sTILE}, {tau*262144}")
        for t in range(8):
            n = tau * 8 + t
            self.throttle(win)
            A(f"buffer_load_dwordx4 a[{4*n}:{4*n+3}], {X(18)}, s[8:11], s68 offen offset:{(t//2)*512 + (t%2)*256}{f}")
    def vtile(self, tau, win, va=None):
        A = self.A; f = " nt" if self.o.nt else ""
        va = va or X(19)
        A(f"s_add_u32 s68, {sTILE}, {tau*262144}")
        for t in range(8):
            n = tau * 8 + t
            imm = (t // 2) * 512 + (t % 2) * 256
            self.throttle(win)
            if n < 2 * NLDS:
                A(f"s_add_u32 m0, {sM0B}, {n*1024 - imm}")
                A(f"buffer_load_dwordx4 {va}, s[12:15], s68 offen offset:{imm}{f} lds")
            else:
                m = n - 2 * NLDS
                A(f"buffer_load_dwordx4 {VRR(4*m,4)}, {va}, s[12:15], s68 offen offset:{imm}{f}")
    def arrive(self):
        A = self.A
        A("s_getreg_b32 s68, hwreg(HW_REG_XCC_ID, 0, 4)"); A("s_and_b32 s68, s68, 7"); A("s_mul_i32 s68, s68, 6")
        A("s_lshl_b64 s[78:79], 1, s68"); A("s_or_b32 s79, s79, 0x01000000")
        A(f"v_mov_b32 {X(10)}, s78"); A(f"v_mov_b32 {X(11)}, s79")
        A(f"s_lshl_b32 s69, {sGI}, 5"); A(f"v_mov_b32 {X(9)}, s69")
        A("s_mov_b64 exec, 1")
        A(f"global_atomic_add_x2 {X(9)}, {XR(10,2)}, {sDBG} sc1")
        A("s_mov_b64 exec, -1")
    def early_q(self):
        A = self.A
        self.colsum()
        s1a, s2a, s1b, s2b = X(12), X(13), X(14), X(15)
        for (base, s1, s2) in ((56, s1a, s2a), (60, s1b, s2b)):
            A(f"v_mov_b32 {s1}, 0"); A(f"v_mov_b32 {s2}, 0")
            for k in range(4):
                A(f"v_lshlrev_b32 {X(8)}, 16, {T(base+k)}"); A(f"v_and_b32 {X(9)}, 0xffff0000, {T(base+k)}")
                A(f"v_add_f32 {s1}, {s1}, {X(8)}"); A(f"v_fmac_f32 {s2}, {X(8)}, {X(8)}")
                A(f"v_add_f32 {s1}, {s1}, {X(9)}"); A(f"v_fmac_f32 {s2}, {X(9)}, {X(9)}")
        for sh in (8, 4, 2, 1):
            for r in (s1a, s2a, s1b, s2b): A(f"v_add_f32_dpp {r}, {r}, {r} row_ror:{sh} {DPP}")
        for swap in ("v_permlane16_swap_b32", "v_permlane32_swap_b32"):
            for r in (s1a, s2a, s1b, s2b):
                A(f"v_mov_b32 {X(8)}, {r}"); A(f"{swap} {r}, {X(8)}"); A(f"v_add_f32 {r}, {r}, {X(8)}")
        A(f"v_cndmask_b32 {s1a}, {s1a}, {s1b}, {sSEL}"); A(f"v_cndmask_b32 {s2a}, {s2a}, {s2b}, {sSEL}")
        for s in self.ln_scalars(s1a, s2a, QSCALE): A(s)
        D = XR(0, 4)
        for t in range(14):
            A(f"v_mfma_f32_16x16x32_bf16 {D}, {TR(4*t,4)}, {WR(4*t,4)}, {'0' if t == 0 else D}")
        self.ln_finish(s1a, s2a)
        self.pack_pair(X(4), X(4), X(6))
        A(f"v_mov_b32 {X(5)}, {sTAG}")
        A(f"v_bfe_u32 {X(7)}, {LANE}, 4, 1"); A(f"v_lshlrev_b32 {X(7)}, 11, {X(7)}"); A(f"v_and_b32 {X(8)}, 15, {LANE}"); A(f"v_lshl_add_u32 {X(7)}, {X(8)}, 2, {X(7)}")
        A(f"s_lshl_b32 s68, {sSIG}, 6"); A(f"v_add_u32 {X(7)}, s68, {X(7)}")
        A(f"s_lshl_b32 s68, {sGI}, 12"); A(f"s_add_u32 s68, s68, {QTOFF}"); A(f"s_add_u32 s70, s20, s68"); A("s_addc_u32 s71, s21, 0")
        self.set_exec(0x55555555, 0)
        A(f"global_store_dwordx2 {X(7)}, {XR(4,2)}, {SA} sc1")
        A("s_mov_b64 exec, -1")

    def stream(self):
        A = self.A; win = self.o.win
        self.ld_setup()
        self.ob = 0
        k0 = self.o.k0
        for tau in range(k0): self.ktile(tau, 64)
        A(f"s_waitcnt vmcnt({8*k0})")
        self.stamp(1)
        A("s_barrier")
        A(f"s_cmp_eq_u32 {sWAVE}, 3"); A("s_cbranch_scc0 L_noarr")
        self.arrive()
        A("L_noarr:")
        self.ob = 0
        self.ktile(k0, 64)
        self.tr_reads()
        A("s_barrier")
        self.ktile(k0 + 1, 64)
        A(f"s_cmp_eq_u32 {sROLE}, {ROLE_GU}"); A("s_cbranch_scc0 L_nocs")
        self.colsum()
        A("L_nocs:")
        A(f"s_cmp_eq_u32 {sROLE}, {ROLE_WQ}"); A("s_cbranch_scc0 L_noeq")
        self.early_q()
        A("L_noeq:")
        self.stamp(2)
        self.ob = 8 * (k0 + 2) + 2
        tp = max(self.o.trypoll, k0 + 2)
        for tau in range(k0 + 2, tp): self.ktile(tau, win)
        A(f"s_cmp_eq_u32 {sWAVE}, 0"); A("s_cbranch_scc0 L_np1")
        A(f"s_lshl_b32 s68, {sGI}, 12"); A(f"s_add_u32 s68, s68, {QTOFF}"); A(f"s_add_u32 s70, s20, s68"); A("s_addc_u32 s71, s21, 0")
        A(f"s_lshl_b32 s68, {sB}, 11"); A(f"s_lshl_b32 s78, {sHL}, 10"); A("s_add_u32 s68, s68, s78"); A(f"v_add_u32 {X(8)}, s68, {L16}")
        A(f"global_load_dwordx4 {XR(10,4)}, {X(8)}, {SA} sc1")
        A("L_np1:")
        ob = self.ob
        self.ob = 0
        self.ktile(tp, 64)
        A(f"s_cmp_eq_u32 {sWAVE}, 0"); A("s_cbranch_scc0 L_np2")
        A("s_waitcnt vmcnt(8)")
        A("L_q0:")
        A(f"v_xor_b32 {X(14)}, {sTAG}, {X(11)}"); A(f"v_xor_b32 {X(15)}, {sTAG}, {X(13)}"); A(f"v_or_b32 {X(14)}, {X(14)}, {X(15)}")
        A(f"v_cmp_ne_u32 vcc, 0, {X(14)}")
        A("s_cbranch_vccz L_q0_d")
        A(f"s_cmp_eq_u32 {sBUD}, 0"); A("s_cbranch_scc1 L_q0_d"); A(f"s_sub_u32 {sBUD}, {sBUD}, 1")
        A(f"global_load_dwordx4 {XR(10,4)}, {X(8)}, {SA} sc1"); A("s_waitcnt vmcnt(0)")
        A("s_branch L_q0")
        A("L_q0_d:")
        A(f"v_mov_b32 {X(11)}, {X(12)}")
        A(f"v_lshlrev_b32 {X(8)}, 3, {LANE}"); A(f"v_add_u32 {X(8)}, {LDS_QL}, {X(8)}")
        A(f"ds_write_b64 {X(8)}, {XR(10,2)}")
        A("s_waitcnt lgkmcnt(0)")
        A(f"v_mov_b32 {X(8)}, {LDS_FLAG}"); A(f"v_mov_b32 {X(9)}, 1"); A(f"ds_write_b32 {X(8)}, {X(9)}")
        self.stamp(4)
        A("L_np2:")
        self.ob = ob + 1 + 8
        for tau in range(tp + 1, 8): self.ktile(tau, win)
        for tau in range(self.o.vdist): self.vtile(tau, 64)
        self.stamp(5)
        self.dstamp(4)

    def bar_check_finish(self):
        A = self.A
        A(f"s_cmp_eq_u32 {sLAYER}, 0"); A("s_cbranch_scc0 L_gb_done")
        A(f"v_and_b32 {TMP}, 7, {LANE}"); A(f"v_lshlrev_b32 {TMP}, 5, {TMP}")
        A("s_waitcnt vmcnt(0)")
        A("s_mov_b64 exec, 0xff")
        A("L_gb:")
        A(f"v_lshrrev_b32 {X(12)}, 24, {WBAR1}"); A(f"v_cmp_ne_u32 vcc, 32, {X(12)}")
        A("s_cbranch_vccz L_gb_d")
        A(f"s_cmp_eq_u32 {sBUD}, 0"); A("s_cbranch_scc1 L_gb_d"); A(f"s_sub_u32 {sBUD}, {sBUD}, 1"); A("s_sleep 4")
        A(f"global_load_dwordx2 {WBAR}, {TMP}, {sDBG} sc1"); A("s_waitcnt vmcnt(0)")
        A("s_branch L_gb")
        A("L_gb_d:")
        A("s_mov_b64 exec, -1")
        A("s_getreg_b32 s68, hwreg(HW_REG_XCC_ID, 0, 4)"); A("s_and_b32 s68, s68, 7"); A("s_mul_i32 s68, s68, 6")
        A("s_lshl_b64 s[78:79], 32, s68"); A("s_or_b32 s79, s79, 0x20000000")
        A(f"v_readlane_b32 s68, {WBAR0}, {sGI}"); A(f"v_readlane_b32 s69, {WBAR1}, {sGI}")
        A("s_cmp_eq_u64 s[68:69], s[78:79]"); A(f"s_cselect_b32 {sMODE}, 1, 0")
        if self.o.slow: A(f"s_mov_b32 {sMODE}, 0")
        A("L_gb_done:")

    def get_q(self):
        A = self.A
        A(f"s_cmp_eq_u32 {sLAYER}, 0"); A("s_cbranch_scc0 L_q1")
        A(f"v_mov_b32 {X(8)}, {LDS_FLAG}")
        A("L_fl:")
        A(f"ds_read_b32 {X(9)}, {X(8)}"); A("s_waitcnt lgkmcnt(0)")
        A(f"v_readfirstlane_b32 s68, {X(9)}")
        A("s_cmp_lg_u32 s68, 0"); A("s_cbranch_scc1 L_qlds")
        A(f"s_cmp_eq_u32 {sBUD}, 0"); A("s_cbranch_scc1 L_qlds"); A(f"s_sub_u32 {sBUD}, {sBUD}, 1"); A("s_sleep 2"); A("s_branch L_fl")
        A("L_q1:")
        A(f"s_cmp_eq_u32 {sWAVE}, 0"); A("s_cbranch_scc0 L_q1b")
        self.gbase(SA, R_Q, 1)
        A(f"s_lshl_b32 s68, {sB}, 10"); A(f"s_lshl_b32 s78, {sHL}, 9"); A("s_add_u32 s68, s68, s78"); A(f"v_add_u32 {X(8)}, s68, {L16}")
        self.set_exec(0xFFFFFFFF, 0)
        A("L_q1p:")
        A(f"global_load_dwordx4 {XR(10,4)}, {X(8)}, {SA} sc1"); A("s_waitcnt vmcnt(0)")
        for s in self.maxops(X(14), [X(10), X(11), X(12), X(13)]): A(s)
        self.poll_tail(X(14), "L_q1p", "L_q1p_d", sleep=self.o.qsleep)
        A("L_q1p_d:")
        A(f"v_add_u32 {X(8)}, {LDS_QL}, {L16}")
        A(f"ds_write_b128 {X(8)}, {XR(10,4)}")
        A("s_mov_b64 exec, -1")
        A("s_waitcnt lgkmcnt(0)")
        A("L_q1b:")
        A("s_barrier")
        A("L_qlds:")
        A(f"v_lshrrev_b32 {X(8)}, 4, {LANE}"); A(f"v_lshlrev_b32 {X(8)}, 6, {X(8)}"); A(f"v_and_b32 {TMP}, 3, {LANE}"); A(f"v_lshl_add_u32 {X(8)}, {TMP}, 4, {X(8)}")
        A(f"v_add_u32 {X(8)}, {LDS_QL}, {X(8)}")
        for t in range(2): A(f"ds_read_b128 {TR(32+4*t,4)}, {X(8)} offset:{t*256}")
        A(f"s_waitcnt vmcnt({8*self.o.vdist})")

    def attention(self):
        A = self.A
        S = lambda tau, r: T(4 * tau + r)
        mk = [X(16 + k) for k in range(4)]
        A(f"v_and_b32 {X(8)}, 15, {LANE}")
        for k in range(4):
            A(f"v_mov_b32 {mk[k]}, 0"); A(f"v_mov_b32 {X(9)}, 0xffff"); A(f"v_mov_b32 {X(12)}, 0xffff0000")
            A(f"v_cmp_eq_u32 vcc, {2*k}, {X(8)}"); A(f"v_cndmask_b32 {mk[k]}, {mk[k]}, {X(9)}, vcc")
            A(f"v_cmp_eq_u32 vcc, {2*k+1}, {X(8)}"); A(f"v_cndmask_b32 {mk[k]}, {mk[k]}, {X(12)}, vcc")
        A("s_waitcnt lgkmcnt(0)")
        m, m2 = X(14), X(15)
        va = X(13)
        A(f"v_add_u32 {va}, {sM0B}, {L16}")
        for k in range(8): A(f"v_mov_b32 {X(k)}, 0")
        Dq = lambda G: 40 + 4 * (G % 4)
        M1, M2, M3 = "s[48:49]", "s[50:51]", "s[52:53]"
        def c1(G): return f"v_cndmask_b32 {T(G)}, {T(Dq(G))}, {T(Dq(G)+1)}, {M1}"
        def c2(G): return f"v_cndmask_b32 {T(G)}, {T(G)}, {T(Dq(G)+2)}, {M2}"
        def c3(G): return f"v_cndmask_b32 {T(G)}, {T(G)}, {T(Dq(G)+3)}, {M3}"
        def d1(G): return f"v_add_f32_dpp {T(G)}, {T(G)}, {T(G)} quad_perm:[1,0,3,2] {DPP}"
        def d2(G): return f"v_add_f32_dpp {T(G)}, {T(G)}, {T(G)} quad_perm:[2,3,0,1] {DPP}"
        ok = lambda G: 0 <= G < 32
        for G in range(32 + 6):
            if ok(G): A(f"v_mfma_f32_16x16x32_bf16 {TR(Dq(G),4)}, a[{8*G}:{8*G+3}], {TR(32,4)}, 0")
            if ok(G - 2): A(c1(G - 2)); A(c2(G - 2))
            if ok(G): A(f"v_mfma_f32_16x16x32_bf16 {TR(Dq(G),4)}, a[{8*G+4}:{8*G+7}], {TR(36,4)}, {TR(Dq(G),4)}")
            if ok(G - 2): A(c3(G - 2))
            if ok(G - 3): A(d1(G - 3))
            if ok(G - 4): A(d2(G - 4))
            g5 = G - 5
            if ok(g5) and g5 % 2 == 1:
                if g5 == 1: A(f"v_max_f32 {m}, {T(0)}, {T(1)}")
                else: A(f"v_max3_f32 {m}, {m}, {T(g5-1)}, {T(g5)}")
        self.stamp(7)
        A(f"v_mov_b32 {m2}, {m}"); A(f"v_permlane16_swap_b32 {m}, {m2}"); A(f"v_max_f32 {m}, {m}, {m2}")
        A(f"v_mov_b32 {m2}, {m}"); A(f"v_permlane32_swap_b32 {m}, {m2}"); A(f"v_max_f32 {m}, {m}, {m2}")
        l = X(15); acc = [XR(0, 4), XR(4, 4)]
        A(f"v_mov_b32 {l}, 0")
        Bs = [TR(32, 4), TR(36, 4)]; Bb = [32, 36]
        stg = [40, 48, 56]
        VD = self.o.vdist
        vV = X(8)
        A(f"v_lshrrev_b32 {vV}, 4, {LANE}"); A(f"v_lshlrev_b32 {vV}, 11, {vV}"); A(f"v_and_b32 {TMP}, 15, {LANE}"); A(f"v_lshl_add_u32 {vV}, {TMP}, 4, {vV}")
        def younger(tile, at_tile):
            last_issued = min(at_tile + VD, 7)
            n = 8 * (last_issued - tile)
            if at_tile + VD >= 7: n += 1
            return n
        def tile_issue(tau):
            t2 = tau + VD
            if t2 > 7: return
            lab = A.label("VI")
            A(f"s_cmp_eq_u32 {sLAYER}, 0"); A(f"s_cbranch_scc0 {lab}")
            self.ob = 0
            self.vtile(t2, 64, vV)
            if t2 == 7:
                A(f"v_and_b32 {TMP}, 7, {LANE}"); A(f"v_lshlrev_b32 {TMP}, 5, {TMP}")
                A("s_mov_b64 exec, 0xff")
                A(f"global_load_dwordx2 {WBAR}, {TMP}, {sDBG} sc1")
                A("s_mov_b64 exec, -1")
            A(f"{lab}:")
        def lds_issue(q, at_tile):
            if q % 4 == 0: A(f"s_waitcnt vmcnt({younger(q // 4, at_tile)})")
            b = stg[q % 3]
            A(f"ds_read_b128 {TR(b,4)}, {va} offset:{q*2048}"); A(f"ds_read_b128 {TR(b+4,4)}, {va} offset:{q*2048+1024}")
        PF = 2
        def pre(q):
            tau, r = q // 4, q % 4
            s = S(tau, r); bb = Bb[q % 2]; pk = X(12) if q % 2 == 0 else X(9)
            return [f"v_sub_f32 {s}, {s}, {m}", f"v_exp_f32 {s}, {s}"], [f"v_cvt_pk_bf16_f32 {pk}, {s}, {s}", f"v_add_f32 {l}, {l}, {s}"] + [f"v_and_b32 {T(bb+k)}, {mk[k]}, {pk}" for k in range(4)]
        tile_issue(0)
        for q in range(min(PF, NLDS)): lds_issue(q, 0)
        a, b_ = pre(0)
        for s in a + b_: A(s)
        a, _ = pre(1)
        for s in a: A(s)
        for q in range(32):
            tau = q // 4
            if q % 4 == 0 and q > 0: tile_issue(tau)
            if q + PF < NLDS: lds_issue(q + PF, tau)
            if q < NLDS:
                A(f"s_waitcnt lgkmcnt({2 * min(PF, NLDS - 1 - q)})")
                b = stg[q % 3]; a0, a1 = TR(b, 4), TR(b + 4, 4)
            else:
                if q >= 28:
                    A(f"s_waitcnt vmcnt({(31 - q) * 2 + 1})")
                elif q == NLDS or q % 4 == 0:
                    A(f"s_waitcnt vmcnt({younger(tau, tau)})")
                mm = (q - NLDS) * 8; a0, a1 = VRR(mm, 4), VRR(mm + 4, 4)
            A(f"v_mfma_f32_16x16x32_bf16 {acc[0]}, {a0}, {Bs[q%2]}, {acc[0]}")
            if q + 1 < 32:
                _, b_ = pre(q + 1)
                for s in b_[:2]: A(s)
            A(f"v_mfma_f32_16x16x32_bf16 {acc[1]}, {a1}, {Bs[q%2]}, {acc[1]}")
            if q + 1 < 32:
                for s in b_[2:]: A(s)
            if q + 2 < 32:
                a, _ = pre(q + 2)
                for s in a: A(s)
        self.stamp(8)
        self.bar_check_finish()
        self.dstamp(5, layer=0); self.dstamp(7, layer=1)
        l2 = X(12)
        A(f"v_mov_b32 {l2}, {l}"); A(f"v_permlane16_swap_b32 {l}, {l2}"); A(f"v_add_f32 {l}, {l}, {l2}")
        A(f"v_mov_b32 {l2}, {l}"); A(f"v_permlane32_swap_b32 {l}, {l2}"); A(f"v_add_f32 {l}, {l}, {l2}")
        A(f"v_lshrrev_b32 {X(8)}, 4, {LANE}"); A(f"v_lshlrev_b32 {X(8)}, 7, {X(8)}"); A(f"v_and_b32 {X(9)}, 15, {LANE}"); A(f"v_lshl_add_u32 {X(8)}, {X(9)}, 4, {X(8)}")
        A(f"s_lshl_b32 s68, {sWAVE}, 10"); A(f"s_add_u32 s68, s68, {LDS_OP}"); A(f"v_add_u32 {X(8)}, s68, {X(8)}")
        A(f"s_lshl_b32 s68, {sWAVE}, 3"); A(f"s_add_u32 s68, s68, {LDS_MLP}"); A(f"v_mov_b32 {X(9)}, s68")
        self.set_exec(0x00FF00FF, 0x00FF00FF)
        A(f"ds_write_b128 {X(8)}, {XR(0,4)}"); A(f"ds_write_b128 {X(8)}, {XR(4,4)} offset:512")
        A("s_mov_b64 exec, 1")
        A(f"ds_write_b64 {X(9)}, {XR(14,2)}")
        A("s_mov_b64 exec, -1")
        A("s_waitcnt lgkmcnt(0)")
        A("s_barrier")
        self.stamp(9)

    def combine_publish(self):
        A = self.A
        A(f"v_add_u32 {X(8)}, {LDS_OP}, {L16}")
        for w in range(4): A(f"ds_read_b128 {TR(4*w,4)}, {X(8)} offset:{w*1024}")
        A(f"v_mov_b32 {X(9)}, {LDS_MLP}")
        A(f"ds_read_b128 {TR(16,4)}, {X(9)}"); A(f"ds_read_b128 {TR(20,4)}, {X(9)} offset:16")
        self.gbase(SA, R_O); self.gbase(SB, R_ML)
        a = X(10)
        A(f"v_lshrrev_b32 {a}, 3, {LANE}"); A(f"v_lshlrev_b32 {a}, 10, {a}")
        A(f"v_bfe_u32 {X(11)}, {LANE}, 1, 2"); A(f"v_lshl_add_u32 {a}, {X(11)}, 8, {a}")
        A(f"v_and_b32 {X(11)}, 1, {LANE}"); A(f"v_lshl_add_u32 {a}, {X(11)}, 3, {a}")
        A(f"s_lshl_b32 s68, {sB}, 3"); A(f"s_add_u32 s68, s68, {sSP}"); A("s_lshl_b32 s68, s68, 4"); A(f"s_lshl_b32 s78, {sHL}, 13"); A("s_add_u32 s68, s68, s78")
        A(f"v_add_u32 {a}, s68, {a}")
        A(f"s_lshl_b32 s68, {sHL}, 7"); A(f"s_lshl_b32 s78, {sB}, 6"); A("s_add_u32 s68, s68, s78"); A(f"s_lshl_b32 s78, {sSP}, 3"); A("s_add_u32 s68, s68, s78")
        A(f"v_mov_b32 {X(11)}, s68")
        M = T(24); f = [T(25 + w) for w in range(4)]; Lr = T(29)
        ms = [T(16), T(18), T(20), T(22)]; ls = [T(17), T(19), T(21), T(23)]
        A("s_waitcnt lgkmcnt(0)")
        A(f"v_max3_f32 {M}, {ms[0]}, {ms[1]}, {ms[2]}"); A(f"v_max_f32 {M}, {M}, {ms[3]}")
        for w in range(4): A(f"v_sub_f32 {f[w]}, {ms[w]}, {M}")
        for w in range(4): A(f"v_exp_f32 {f[w]}, {f[w]}")
        for r in range(4): A(f"v_mul_f32 {T(32+r)}, {f[0]}, {T(r)}")
        for w in range(1, 4):
            for r in range(4): A(f"v_fmac_f32 {T(32+r)}, {f[w]}, {T(4*w+r)}")
        A(f"v_cvt_pk_bf16_f32 {T(36)}, {T(32)}, {T(33)}"); A(f"v_cvt_pk_bf16_f32 {T(37)}, {T(34)}, {T(35)}")
        self.pub(f"global_store_dwordx2 {a}, {TR(36,2)}, {SA}")
        A(f"v_mul_f32 {T(39)}, {f[0]}, {ls[0]}")
        for w in range(1, 4): A(f"v_fmac_f32 {T(39)}, {f[w]}, {ls[w]}")
        A(f"v_mov_b32 {T(38)}, {M}")
        A("s_mov_b64 exec, 1")
        self.pub(f"global_store_dwordx2 {X(11)}, {TR(38,2)}, {SB}")
        A("s_mov_b64 exec, -1")

    def stage_wo(self):
        A = self.A
        self.gbase(SA, R_O); self.gbase(SC_, R_ML)
        A(f"s_lshl_b32 s68, {sWAVE}, 12"); A("s_add_u32 s70, s70, s68"); A("s_addc_u32 s71, s71, 0")
        a = X(16)
        A(f"v_lshrrev_b32 {a}, 5, {LANE}"); A(f"v_lshlrev_b32 {a}, 6, {a}")
        A(f"v_bfe_u32 {TMP}, {LANE}, 4, 1"); A(f"v_lshl_add_u32 {a}, {TMP}, 5, {a}")
        A(f"v_and_b32 {TMP}, 3, {LANE}"); A(f"v_lshl_add_u32 {a}, {TMP}, 3, {a}")
        A(f"s_lshr_b32 s68, {sWAVE}, 1"); A("s_lshl_b32 s68, s68, 7"); A(f"v_add_u32 {a}, s68, {a}")
        wa, ra = X(17), X(18)
        A(f"v_bfe_u32 {wa}, {LANE}, 4, 1"); A(f"v_lshlrev_b32 {wa}, 7, {wa}"); A(f"v_lshrrev_b32 {TMP}, 5, {LANE}"); A(f"v_lshl_add_u32 {wa}, {TMP}, 6, {wa}")
        A(f"v_and_b32 {TMP}, 15, {LANE}"); A(f"v_lshl_add_u32 {wa}, {TMP}, 2, {wa}")
        A(f"s_lshl_b32 s68, {sWAVE}, 9"); A(f"s_add_u32 s68, s68, {LDS_RED}"); A(f"v_add_u32 {wa}, s68, {wa}")
        A(f"v_lshrrev_b32 {ra}, 5, {LANE}"); A(f"v_lshlrev_b32 {ra}, 7, {ra}"); A(f"v_and_b32 {TMP}, 31, {LANE}"); A(f"v_lshl_add_u32 {ra}, {TMP}, 2, {ra}")
        A(f"s_and_b32 s68, {sWAVE}, 1"); A("s_lshl_b32 s68, s68, 8"); A(f"s_add_u32 s68, s68, {LDS_RED}"); A(f"v_add_u32 {ra}, s68, {ra}")
        mv, lv = T(16), T(17)
        D = [TR(20 + 4 * nt, 4) for nt in range(4)]
        chk, M, t1, e, w = T(36), T(37), T(38), T(39), T(40)
        A(f"v_mov_b32 {chk}, 0")
        self.fst(0, "wo")
        if self.o.fine == "wo": A("s_mov_b32 s99, 0")
        if self.o.gate:
            self.set_exec(0x000F000F, 0x000F000F)
            A("L_wog:")
            A(f"global_load_dwordx2 {TR(16,2)}, {a}, {SC_} sc1"); A("s_waitcnt vmcnt(0)")
            A(f"v_max_u32 {chk}, {mv}, {lv}")
            self.poll_tail(chk, "L_wog", "L_wog_d", sleep=self.o.gatesleep)
            A("L_wog_d:")
        A("L_wo:")
        if self.o.fine == "wo": A("s_add_u32 s99, s99, 1")
        self.fst(1, "wo")
        self.set_exec(0x000F000F, 0x000F000F)
        A(f"global_load_dwordx2 {TR(16,2)}, {a}, {SC_} sc1")
        A("s_mov_b64 exec, -1")
        for tt in range(4):
            A(f"global_load_dwordx4 {TR(4*tt,4)}, {L16}, {SA} offset:{tt*1024} sc1")
        A("s_waitcnt vmcnt(4)")
        self.set_exec(0x000F000F, 0x000F000F)
        A(f"v_max_u32 {chk}, {mv}, {lv}")
        A("s_mov_b64 exec, -1")
        A("s_waitcnt vmcnt(0)")
        self.fst(2, "wo")
        for s in self.maxops(t1, self.chk_regs(T, 0, 4) + [chk]): A(s)
        self.poll_tail(t1, "L_wo", "L_wo_d")
        A("L_wo_d:")
        ops = [f"v_mov_b32_dpp {t1}, {mv} quad_perm:[1,0,3,2] {DPP}", f"v_max_f32 {M}, {mv}, {t1}",
               f"v_mov_b32_dpp {t1}, {M} quad_perm:[2,3,0,1] {DPP}", f"v_max_f32 {M}, {M}, {t1}",
               f"v_mov_b32 {t1}, {M}", f"v_permlane16_swap_b32 {M}, {t1}", f"v_max_f32 {M}, {M}, {t1}",
               f"v_sub_f32 {e}, {mv}, {M}", f"v_exp_f32 {e}, {e}", f"v_mul_f32 {M}, {e}, {lv}",
               f"v_mov_b32_dpp {t1}, {M} quad_perm:[1,0,3,2] {DPP}", f"v_add_f32 {M}, {M}, {t1}",
               f"v_mov_b32_dpp {t1}, {M} quad_perm:[2,3,0,1] {DPP}", f"v_add_f32 {M}, {M}, {t1}",
               f"v_mov_b32 {t1}, {M}", f"v_permlane16_swap_b32 {M}, {t1}", f"v_add_f32 {M}, {M}, {t1}",
               f"v_rcp_f32 {M}, {M}", f"v_mul_f32 {w}, {e}, {M}"]
        for tt in range(4):
            for nt in range(4):
                A(f"v_mfma_f32_16x16x32_bf16 {D[nt]}, {TR(4*tt,4)}, {WR(4*(4*tt+nt),4)}, {'0' if tt == 0 else D[nt]}")
                if ops: A(ops.pop(0))
        for s in ops: A(s)
        acc = [T(41 + nt) for nt in range(4)]
        for r in range(4):
            for nt in range(4):
                op = "v_mul_f32_dpp" if r == 0 else "v_fmac_f32_dpp"
                A(f"{op} {acc[nt]}, {w}, {T(20+4*nt+r)} row_newbcast:{r} {DPP}")
        A(f"v_permlane16_swap_b32 {acc[0]}, {acc[1]}"); A(f"v_permlane16_swap_b32 {acc[2]}, {acc[3]}")
        A(f"v_add_f32 {acc[0]}, {acc[0]}, {acc[1]}"); A(f"v_add_f32 {acc[2]}, {acc[2]}, {acc[3]}")
        self.fst(3, "wo")
        A(f"ds_write_b32 {wa}, {acc[0]}"); A(f"ds_write_b32 {wa}, {acc[2]} offset:256")
        self.cbase(SA, 0, consumer=False)
        self.p_addr(X(9))
        A("s_waitcnt lgkmcnt(0)")
        A("s_barrier")
        self.fst(4, "wo")
        A(f"s_cmp_ge_u32 {sWAVE}, 2"); A("s_cbranch_scc1 L_wo_rs")
        for ww in range(4): A(f"ds_read_b32 {T(ww)}, {ra} offset:{ww*512}")
        A("s_waitcnt lgkmcnt(2)")
        A(f"v_add_f32 {T(0)}, {T(0)}, {T(1)}")
        A("s_waitcnt lgkmcnt(0)")
        A(f"v_add_f32 {T(2)}, {T(2)}, {T(3)}"); A(f"v_add_f32 {T(0)}, {T(0)}, {T(2)}")
        self.p_publish(SA, X(9), T(0))
        self.fst(5, "wo")
        self.stamp(11)
        A("s_branch L_next")
        A("L_wo_rs:")

    def p_addr(self, dst):
        A = self.A
        A(f"v_lshrrev_b32 {dst}, 5, {LANE}"); A(f"v_lshlrev_b32 {dst}, 10, {dst}"); A(f"v_and_b32 {TMP}, 31, {LANE}"); A(f"v_lshl_add_u32 {dst}, {TMP}, 2, {dst}")
        A(f"s_and_b32 s68, {sWAVE}, 1"); A("s_lshl_b32 s68, s68, 11"); A(f"s_lshl_b32 s69, {sGI}, 7"); A("s_add_u32 s68, s68, s69"); A(f"v_add_u32 {dst}, s68, {dst}")

    def stage_rs(self):
        A = self.A
        pa, xa, sa = X(8), X(10), X(11)
        A(f"v_lshrrev_b32 {X(12)}, 5, {LANE}"); A(f"s_and_b32 s68, {sWAVE}, 1"); A("s_lshl_b32 s68, s68, 1"); A(f"s_add_u32 s68, s68, {sS4}"); A(f"v_add_u32 {X(12)}, s68, {X(12)}")
        A(f"v_lshrrev_b32 {pa}, 5, {LANE}"); A(f"v_lshlrev_b32 {pa}, 10, {pa}"); A(f"v_and_b32 {TMP}, 31, {LANE}"); A(f"v_lshl_add_u32 {pa}, {TMP}, 2, {pa}")
        A(f"s_and_b32 s68, {sWAVE}, 1"); A("s_lshl_b32 s68, s68, 11"); A(f"v_add_u32 {pa}, s68, {pa}")
        A(f"v_bfe_u32 {TMP}, {LANE}, 4, 1"); A(f"v_mul_u32_u24 {xa}, 896, {TMP}"); A(f"v_lshlrev_b32 {sa}, 8, {TMP}")
        A(f"v_lshl_add_u32 {xa}, {X(12)}, 5, {xa}"); A(f"v_lshl_add_u32 {sa}, {X(12)}, 3, {sa}")
        A(f"v_and_b32 {TMP}, 15, {LANE}"); A(f"v_lshl_add_u32 {xa}, {TMP}, 1, {xa}")
        self.fst(6, "wo")
        NS = self.o.rsets
        A("L_rsr:")
        A(f"global_load_ushort {X(13)}, {xa}, {SD} sc1"); A("s_waitcnt vmcnt(0)")
        A(f"v_lshlrev_b32 {X(6)}, 16, {X(13)}"); A(f"v_or_b32 {X(4)}, {X(6)}, {X(13)}")
        self.poll_tail(X(4), "L_rsr", "L_rsr_d")
        A("L_rsr_d:")
        def issue(k):
            for g in range(8): A(f"global_load_dword {T(8*k+g)}, {pa}, {SA} offset:{g*128} sc1")
        for k in range(NS - 1): issue(k)
        A("L_rs:")
        for k in range(NS):
            issue((k + NS - 1) % NS)
            A(f"s_waitcnt vmcnt({8*(NS-1)})")
            for s in self.maxops(X(4), [T(8*k+g) for g in range(8)]): A(s)
            A(f"v_cmp_eq_u32 vcc, -1, {X(4)}")
            A(f"s_cbranch_vccz L_rs_ok{k}")
        A(f"s_cmp_eq_u32 {sBUD}, 0"); A("s_cbranch_scc1 L_rs_ok0"); A(f"s_sub_u32 {sBUD}, {sBUD}, 1")
        A("s_branch L_rs")
        for k in range(NS):
            A(f"L_rs_ok{k}:")
            b_ = 8 * k
            A(f"v_add_f32 {X(0)}, {T(b_)}, {T(b_+1)}"); A(f"v_add_f32 {X(1)}, {T(b_+2)}, {T(b_+3)}"); A(f"v_add_f32 {X(2)}, {T(b_+4)}, {T(b_+5)}"); A(f"v_add_f32 {X(3)}, {T(b_+6)}, {T(b_+7)}")
            if k != NS - 1: A("s_branch L_rs_d")
        A("L_rs_d:")
        self.fst(8, "wo")
        A(f"v_add_f32 {X(0)}, {X(0)}, {X(1)}"); A(f"v_add_f32 {X(2)}, {X(2)}, {X(3)}"); A(f"v_add_f32 {X(0)}, {X(0)}, {X(2)}")
        if self.o.round2:
            A(f"v_cvt_pk_bf16_f32 {X(0)}, {X(0)}, {X(0)}"); A(f"v_and_b32 {X(0)}, 0xffff0000, {X(0)}")
        A(f"v_add_f32 {X(0)}, {X(6)}, {X(0)}")
        if self.o.perturb:
            lab = A.label("PT")
            A("s_cmp_eq_u32 s78, 1"); A(f"s_cbranch_scc0 {lab}"); A(f"s_cmp_eq_u32 {sSIG}, 2"); A(f"s_cbranch_scc0 {lab}")
            A("s_mov_b64 exec, 1"); A(f"v_add_f32 {X(0)}, {f32(self.o.perturb)}, {X(0)}"); A("s_mov_b64 exec, -1")
            A(f"{lab}:")
        A(f"v_mov_b32_dpp {X(2)}, {X(0)} quad_perm:[1,0,3,2] {DPP}")
        A(f"v_cvt_pk_bf16_f32 {X(1)}, {X(0)}, {X(2)}")
        A("s_cmp_eq_u32 s78, 1"); A("s_cbranch_scc1 L_final")
        self.set_exec(0x55555555, 0x55555555)
        self.pub(f"global_store_dword {xa}, {X(1)}, {SB}")
        A("s_mov_b64 exec, -1")
        A(f"v_cvt_pk_bf16_f32 {X(2)}, {X(0)}, {X(0)}"); A(f"v_and_b32 {X(2)}, 0xffff0000, {X(2)}")
        A(f"v_mul_f32 {X(3)}, {X(2)}, {X(2)}")
        for sh in (1, 2, 4, 8):
            for r in (X(2), X(3)): A(f"v_add_f32_dpp {r}, {r}, {r} row_shr:{sh} {DPP}")
        self.set_exec(0x80008000, 0x80008000)
        self.pub(f"global_store_dwordx2 {sa}, {XR(2,2)}, {SC_}")
        A("s_mov_b64 exec, -1")
        self.stamp(12)
        A("s_waitcnt vmcnt(0)")

    def stage_gu(self):
        A = self.A
        self.gbase(SC_, R_H)
        A(f"v_bfe_u32 {X(7)}, {LANE}, 4, 1"); A(f"v_mul_u32_u24 {X(7)}, 448, {X(7)}"); A(f"v_and_b32 {TMP}, 15, {LANE}"); A(f"v_lshl_add_u32 {X(7)}, {TMP}, 1, {X(7)}")
        A(f"s_lshl_b32 s68, {sSIG}, 4"); A(f"v_add_u32 {X(7)}, s68, {X(7)}")
        self.stage_ln(R_X1, R_ST1, None, 1.0, "L_gu", sleep=self.o.lnsleep)
        z = X(4)
        A(f"v_cvt_pk_bf16_f32 {z}, {z}, {z}"); A(f"v_and_b32 {z}, 0xffff0000, {z}")
        A(f"v_mov_b32_dpp {X(5)}, {z} row_ror:8 {DPP}")
        A(f"v_max_f32 {z}, 0, {z}"); A(f"v_mul_f32 {z}, {z}, {X(5)}")
        self.pack_pair(X(5), z, X(6))
        self.set_exec(0x00550055, 0)
        self.pub(f"global_store_dword {X(7)}, {X(5)}, {SC_}")
        A("s_mov_b64 exec, -1")
        self.fst(5)

    def dn_fetch(self):
        A = self.A
        A(f"s_cmp_eq_u32 {sWAVE}, 1"); A("s_cbranch_scc0 L_dn_b")
        self.gbase(SA, R_H)
        A(f"v_add_u32 {X(10)}, {LDS_RED}, {L16}")
        self.set_exec(0xFFFFFFFF, 0x00FFFFFF)
        A("L_dn:")
        A(f"global_load_dwordx4 {TR(0,4)}, {L16}, {SA} sc1"); A("s_waitcnt vmcnt(0)")
        for s in self.maxops(X(11), [T(0), T(1), T(2), T(3)]): A(s)
        self.poll_tail(X(11), "L_dn", "L_dn_d", sleep=self.o.lnsleep)
        A("L_dn_d:")
        A(f"ds_write_b128 {X(10)}, {TR(0,4)}")
        A("s_mov_b64 exec, -1")
        A("s_waitcnt lgkmcnt(0)")
        A("L_dn_b:")
        A("s_barrier")
    def stage_dn(self):
        A = self.A
        a = X(8)
        A(f"v_and_b32 {a}, 1, {LANE}"); A(f"v_mul_u32_u24 {a}, 448, {a}"); A(f"v_lshrrev_b32 {TMP}, 4, {LANE}"); A(f"v_lshl_add_u32 {a}, {TMP}, 4, {a}")
        A(f"v_add_u32 {a}, {LDS_RED}, {a}")
        self.cbase(SB, 1, consumer=False)
        self.p_addr(X(9))
        self.dn_fetch()
        A(f"s_cmp_ge_u32 {sWAVE}, 2"); A("s_cbranch_scc1 L_dn_rs")
        D = [XR(0, 4), XR(4, 4)]
        for t in range(7): A(f"ds_read_b128 {TR(4*t,4)}, {a} offset:{t*64}")
        for t in range(7):
            if t in (0, 3, 5): A(f"s_waitcnt lgkmcnt({ {0: 4, 3: 2, 5: 0}[t] })")
            for u in range(2):
                A(f"v_mfma_f32_16x16x32_bf16 {D[u]}, {TR(4*t,4)}, {WR(4*(2*t+u),4)}, {'0' if t == 0 else D[u]}")
        A(f"v_permlane16_swap_b32 {X(0)}, {X(1)}"); A(f"v_permlane16_swap_b32 {X(4)}, {X(5)}")
        A(f"v_permlane32_swap_b32 {X(0)}, {X(4)}")
        self.p_publish(SB, X(9), X(0))

    def stage_q2(self):
        A = self.A
        self.gbase(SC_, R_Q, 1)
        A(f"v_bfe_u32 {X(7)}, {LANE}, 4, 1"); A(f"v_lshlrev_b32 {X(7)}, 10, {X(7)}"); A(f"v_and_b32 {TMP}, 15, {LANE}"); A(f"v_lshl_add_u32 {X(7)}, {TMP}, 1, {X(7)}")
        A(f"s_lshl_b32 s68, {sSIG}, 5"); A(f"v_add_u32 {X(7)}, s68, {X(7)}")
        self.stage_ln(R_X2, R_ST2, 0, QSCALE, "L_qx", sleep=self.o.lnsleep)
        self.pack_pair(X(5), X(4), X(6))
        self.set_exec(0x55555555, 0)
        self.pub(f"global_store_dword {X(7)}, {X(5)}, {SC_}")
        A("s_mov_b64 exec, -1")

    def finish(self):
        A = self.A
        if not self.o.prof: return
        A("s_lshl_b32 s68, s2, 2"); A(f"s_add_u32 s68, s68, {sWAVE}"); A("s_lshl_b32 s68, s68, 7"); A(f"v_mov_b32 {X(0)}, s68")
        A("s_mov_b64 exec, 1")
        for k in range(20):
            A(f"v_mov_b32 {X(1)}, s{80+k}"); A(f"global_store_dword {X(0)}, {X(1)}, {sWS} offset:{4*k}")
        for k in range(9):
            A(f"v_mov_b32 {X(1)}, s{36+k}"); A(f"global_store_dword {X(0)}, {X(1)}, {sWS} offset:{80+4*k}")
        A(f"v_mov_b32 {X(1)}, {sMODE}"); A(f"global_store_dword {X(0)}, {X(1)}, {sWS} offset:116")
        A(f"v_mov_b32 {X(1)}, {sBUD}"); A(f"global_store_dword {X(0)}, {X(1)}, {sWS} offset:120")

    def build(self):
        A = self.A; o = self.o
        self.prologue()
        if o.prof:
            for k in range(9): A(f"s_mov_b32 s{36+k}, 0")
        self.stream()
        A("L_layer:")
        self.get_q()
        self.stamp(6)
        self.attention()
        A(f"s_cmp_eq_u32 {sWAVE}, 0"); A("s_cbranch_scc0 L_nocomb")
        self.combine_publish()
        self.stamp(10)
        A("L_nocomb:")
        A(f"s_cmp_eq_u32 {sROLE}, {ROLE_GU}"); A("s_cbranch_scc1 L_gu_s")
        A(f"s_cmp_eq_u32 {sROLE}, {ROLE_DN}"); A("s_cbranch_scc1 L_dn_s")
        A(f"s_cmp_eq_u32 {sROLE}, {ROLE_WQ}"); A("s_cbranch_scc1 L_wq_s")
        A(f"s_cmp_eq_u32 {sROLE}, {ROLE_WO}"); A("s_cbranch_scc0 L_next")
        self.stage_wo()
        self.cbase(SA, 0); self.gbase(SB, R_X1); self.gbase(SC_, R_ST1); A("s_mov_b32 s78, 0")
        self.gbase(SD, R_X2, 0)
        A(f"s_cmp_eq_u32 {sLAYER}, 0"); A("s_cselect_b32 s64, s4, s64"); A("s_cselect_b32 s65, s5, s65")
        A("L_rs_entry:")
        self.stage_rs()
        self.dstamp(6, layer=0)
        A("s_branch L_next")
        A("L_gu_s:")
        self.stage_gu()
        self.stamp(13)
        A("s_branch L_next")
        A("L_dn_s:")
        self.stage_dn()
        self.stamp(14)
        A("s_branch L_next")
        A("L_dn_rs:")
        self.cbase(SA, 1); self.gbase(SB, R_X2); self.gbase(SC_, R_ST2); self.gbase(SD, R_X1); A(f"s_mov_b32 s78, {sLAYER}")
        A("s_branch L_rs_entry")
        A("L_wq_s:")
        A(f"s_cmp_eq_u32 {sLAYER}, 1"); A("s_cbranch_scc1 L_fin")
        self.stage_q2()
        self.stamp(15)
        A("L_next:")
        A(f"s_cmp_eq_u32 {sLAYER}, 1"); A("s_cbranch_scc1 L_fin")
        A(f"s_mov_b32 {sLAYER}, 1")
        A("s_branch L_layer")
        A("L_final:")
        A(f"s_cmp_eq_u32 {sGI}, 0"); A("s_cbranch_scc0 L_fin")
        self.set_exec(0x55555555, 0x55555555)
        A(f"global_store_dword {X(10)}, {X(1)}, {sOUT}")
        A(f"s_cmp_eq_u32 {sSIG}, 2"); A("s_cbranch_scc0 L_noep")
        A("s_mov_b64 exec, 1")
        A(f"v_mov_b32 {X(2)}, {EOFF}"); A(f"v_mov_b32 {X(3)}, {sTAG}")
        A(f"global_store_dword {X(2)}, {X(3)}, {sWS}")
        A("L_noep:")
        A("s_mov_b64 exec, -1")
        A("L_fin:")
        self.dstamp(10)
        self.stamp(16)
        self.finish()
        A("L_end:")
        A("s_endpgm")
        lines, n = hazard.fix(A.L, verbose=o.verbose)
        A.L = lines
        return A

def main():
    ap = argparse.ArgumentParser()
    ap.add_argument("-o", default="k2.s")
    ap.add_argument("--prof", action="store_true")
    ap.add_argument("--slow", action="store_true")
    ap.add_argument("--nt", type=int, default=1)
    ap.add_argument("--wnt", type=int, default=1)
    ap.add_argument("--win", type=int, default=12)
    ap.add_argument("--winv", type=int, default=60)
    ap.add_argument("--budget", type=int, default=200000)
    ap.add_argument("--gate", type=int, default=0)
    ap.add_argument("--gatesleep", type=int, default=1)
    ap.add_argument("--qsleep", type=int, default=1)
    ap.add_argument("--trypoll", type=int, default=5)
    ap.add_argument("--k0", type=int, default=2)
    ap.add_argument("--rsets", type=int, default=1)
    ap.add_argument("--lnsleep", type=int, default=0)
    ap.add_argument("--perturb", type=float, default=0.0)
    ap.add_argument("--vdist", type=int, default=3)
    ap.add_argument("--fullcheck", type=int, default=0)
    ap.add_argument("--round2", type=int, default=1)
    ap.add_argument("--stamps", default=None)
    ap.add_argument("--verbose", action="store_true")
    ap.add_argument("--dbgstamps", action="store_true")
    ap.add_argument("--fine", default="")
    o = ap.parse_args()
    g = Gen(o); A = g.build(); A.write(o.o)
    print("wrote", o.o, len(A.L), "lines")
main()
```

```python
import sys, argparse, struct
from asmlib import Asm, NAME
import hazard

GOFF = 0x100000; LSTRIDE = 0x8000
R_Q = 0x0000; R_ML = 0x0800; R_X1 = 0x0A00; R_ST1 = 0x1100; R_H = 0x1300; R_X2 = 0x1800; R_ST2 = 0x1F00; R_O = 0x4000
COFF = GOFF + 0x80000
EOFF = 0x0F0000
QTOFF = 0x0F8000
TAGC = 0x9E3779B9
NLDS = 19
VW = NLDS * 2048
LDS_OP = 4 * VW; LDS_MLP = LDS_OP + 4096; LDS_QL = LDS_MLP + 64; LDS_FLAG = LDS_QL + 512; LDS_RED = LDS_FLAG + 64
assert LDS_RED + 2048 <= 163840
LOG2E = 1.4426950408889634
QSCALE = LOG2E / 16.0
ROLE_WQ, ROLE_WO, ROLE_GU, ROLE_DN, ROLE_NONE = 0, 1, 2, 3, 4

def f32(x): return "0x%08x" % struct.unpack("<I", struct.pack("<f", x))[0]
def X(n): assert 0 <= n < 20; return f"v{4+n}"
def T(n): assert 0 <= n < 64; return f"v{24+n}"
def W(n): assert 0 <= n < 64; return f"v{88+n}"
def VR(n): assert 0 <= n < 104; return f"v{152+n}"
def rng(f, a, n):
    s = f(a); k = int(s[1:]); assert n == 1 or k % 2 == 0, (s, n); return f"{s[0]}[{k}:{k+n-1}]"
def XR(a, n): return rng(X, a, n)
def TR(a, n): return rng(T, a, n)
def WR(a, n): return rng(W, a, n)
def VRR(a, n): return rng(VR, a, n)
LANE = "v0"; CS = "v1"; L16 = "v2"; TMP = "v3"
sM0B = "s3"
sXIN = "s[4:5]"
sOUT = "s[16:17]"; sDBG = "s[18:19]"; sWS = "s[20:21]"; sG = "s[22:23]"; sC = "s[24:25]"
sWAVE = "s26"; sGI = "s27"; sJ = "s28"; sHL = "s29"; sB = "s30"; sSP = "s31"
sMODE = "s32"; sBUD = "s33"; sLAYER = "s34"; sTILE = "s35"
sTAG = "s46"; sROLE = "s6"; sSIG = "s7"; sS4 = "s47"
sSEL = "s[60:61]"
sMA = "s[54:55]"
SA = "s[70:71]"; SB = "s[72:73]"; SC_ = "s[74:75]"; SD = "s[64:65]"
WBAR = "v[14:15]"; WBAR0 = "v14"; WBAR1 = "v15"
DPP = "row_mask:0xf bank_mask:0xf"

class Gen:
    def __init__(self, opt):
        self.o = opt; self.A = Asm(); self.ob = 0
    def stamp(self, k):
        if not self.o.prof: return
        if self.o.stamps is not None and k not in [int(x) for x in self.o.stamps.split(",")]: return
        A = self.A
        A("s_memrealtime s[76:77]"); A("s_waitcnt lgkmcnt(0)")
        if 6 <= k <= 14:
            A(f"s_cmp_eq_u32 {sLAYER}, 0"); A(f"s_cselect_b32 s{80+k}, s76, s{80+k}"); A(f"s_cselect_b32 s{30+k}, s{30+k}, s76")
        else:
            A(f"s_mov_b32 s{80+k}, s76")
    def dstamp(self, word, neg=False, layer=None):
        if not self.o.dbgstamps: return
        A = self.A
        lab = A.label("DS")
        A("s_cmp_eq_u32 s2, 176"); A(f"s_cbranch_scc0 {lab}"); A(f"s_cmp_eq_u32 {sWAVE}, 0"); A(f"s_cbranch_scc0 {lab}")
        if layer is not None:
            A(f"s_cmp_eq_u32 {sLAYER}, {layer}"); A(f"s_cbranch_scc0 {lab}")
        A("s_memrealtime s[76:77]"); A("s_waitcnt lgkmcnt(0)")
        A(f"v_mov_b32 v86, s76"); A(f"v_mov_b32 v87, {4*word}")
        A("s_mov_b64 s[78:79], exec"); A("s_mov_b64 exec, 1")
        A(f"global_store_dword v87, v86, {sDBG}")
        A("s_mov_b64 exec, s[78:79]")
        A(f"{lab}:")
    def fst(self, k, which="ln"):
        if self.o.fine != which: return
        A = self.A
        A("s_memtime s[76:77]"); A("s_waitcnt lgkmcnt(0)"); A(f"s_mov_b32 s{90+k}, s76")
    def gbase(self, dst, off, layer=None):
        A = self.A; d = int(dst[2:dst.index(":")])
        if layer is None:
            A(f"s_mul_i32 s68, {sLAYER}, {LSTRIDE}"); A(f"s_add_u32 s68, s68, {off}")
            A(f"s_add_u32 s{d}, s22, s68")
        else:
            A(f"s_add_u32 s{d}, s22, {off + layer*LSTRIDE}")
        A(f"s_addc_u32 s{d+1}, s23, 0")
    def cbase(self, dst, kind, consumer=True):
        A = self.A; d = int(dst[2:dst.index(":")]); L = self.o.playout
        A(f"s_lshl_b32 s68, {sLAYER}, 19"); A(f"s_lshl_b32 s69, {sS4}, {10 if L == 0 else 13}"); A("s_add_u32 s68, s68, s69")
        if consumer:
            sh = {0: 15, 1: 7, 2: 10}[L]; extra = {0: 0, 1: 4096, 2: 0}[L]
        else:
            sh = {0: 7, 1: 10, 2: 7}[L]; extra = {0: 0, 1: 0, 2: 4096}[L]
        A(f"s_lshl_b32 s69, {sGI}, {sh}"); A("s_add_u32 s68, s68, s69"); A(f"s_add_u32 s68, s68, {kind*0x40000 + extra}")
        A(f"s_add_u32 s{d}, s24, s68"); A(f"s_addc_u32 s{d+1}, s25, 0")
    def p_publish(self, base, vaddr, val):
        A = self.A; d = int(base[2:base.index(":")]); L = self.o.playout
        for c in range(8):
            if L == 0:
                A(f"global_store_dword {vaddr}, {val}, {base} sc1")
                if c != 7: A(f"s_add_u32 s{d}, s{d}, 0x8000"); A(f"s_addc_u32 s{d+1}, s{d+1}, 0")
            elif L == 1: A(f"global_store_dword {vaddr}, {val}, {base} offset:{c*128} sc1")
            else: A(f"global_store_dword {vaddr}, {val}, {base} offset:{c*1024 - 4096} sc1")
    def p_poll_off(self, g):
        return {0: g * 128, 1: g * 1024 - 4096, 2: g * 128}[self.o.playout]
    def maxops(self, dst, regs, first=True):
        out = []; regs = list(regs)
        if first:
            if len(regs) >= 3: out.append(f"v_max3_u32 {dst}, {regs[0]}, {regs[1]}, {regs[2]}"); regs = regs[3:]
            elif len(regs) == 2: out.append(f"v_max_u32 {dst}, {regs[0]}, {regs[1]}"); regs = []
            else: out.append(f"v_mov_b32 {dst}, {regs[0]}"); regs = []
        while len(regs) >= 2:
            out.append(f"v_max3_u32 {dst}, {dst}, {regs[0]}, {regs[1]}"); regs = regs[2:]
        if regs: out.append(f"v_max_u32 {dst}, {dst}, {regs[0]}")
        return out
    def chk_regs(self, f, base, nload):
        if self.o.fullcheck: return [f(base + k) for k in range(4 * nload)]
        return [f(base + 4 * k) for k in range(nload)]
    def poll_tail(self, chk, loop, done, sleep=0):
        A = self.A
        A(f"v_cmp_eq_u32 vcc, -1, {chk}")
        A(f"s_cbranch_vccz {done}")
        A(f"s_cmp_eq_u32 {sBUD}, 0"); A(f"s_cbranch_scc1 {done}")
        A(f"s_sub_u32 {sBUD}, {sBUD}, 1")
        if sleep: A(f"s_sleep {sleep}")
        A(f"s_branch {loop}")
    def gate(self, base, vaddr, off, dst, lab):
        if not self.o.gate: return
        A = self.A
        A(f"{lab}:")
        A(f"global_load_dword {dst}, {vaddr}, {base} offset:{off} sc1"); A("s_waitcnt vmcnt(0)")
        self.poll_tail(dst, lab, lab + "_d", sleep=self.o.gatesleep)
        A(f"{lab}_d:")
    def pub(self, instr):
        A = self.A
        l1 = A.label("PUBF"); l2 = A.label("PUBD")
        A(f"s_cmp_eq_u32 {sMODE}, 1"); A(f"s_cbranch_scc1 {l1}")
        A(instr + " sc1"); A(f"s_branch {l2}")
        A(f"{l1}:"); A(instr); A(f"{l2}:")
    def set_exec(self, lo, hi):
        A = self.A
        if lo == 0xFFFFFFFF and hi == 0xFFFFFFFF: A("s_mov_b64 exec, -1"); return
        A(f"s_mov_b32 exec_lo, {hex(lo)}"); A(f"s_mov_b32 exec_hi, {hex(hi)}")
    def ln_addr(self, dst):
        A = self.A
        A(f"v_and_b32 {dst}, 1, {LANE}"); A(f"v_mul_u32_u24 {dst}, 896, {dst}")
        A(f"v_lshrrev_b32 {TMP}, 4, {LANE}"); A(f"v_lshl_add_u32 {dst}, {TMP}, 4, {dst}")
    def xst_addr(self, dst):
        A = self.A
        A(f"v_bfe_u32 {TMP}, {LANE}, 4, 1"); A(f"v_mul_u32_u24 {dst}, 896, {TMP}")
        A(f"v_and_b32 {TMP}, 15, {LANE}"); A(f"v_lshl_add_u32 {dst}, {TMP}, 1, {dst}")
        A(f"s_lshl_b32 s68, {sSIG}, 5"); A(f"v_add_u32 {dst}, s68, {dst}")
    def pack_pair(self, dst, val, tmp):
        A = self.A
        A(f"v_mov_b32_dpp {tmp}, {val} quad_perm:[1,0,3,2] {DPP}")
        A(f"v_cvt_pk_bf16_f32 {dst}, {val}, {tmp}")

    def prologue(self):
        A = self.A; o = self.o
        wnt = " nt" if o.wnt else ""
        A(f"""
        s_cmp_ge_u32 s2, 256
        s_cbranch_scc1 L_end
        {"s_memrealtime s[100:101]" if o.dbgstamps else ""}
        s_load_dwordx16 s[36:51], s[0:1], 0
        s_load_dwordx8 s[52:59], s[0:1], 64
        v_lshrrev_b32 v1, 6, v0
        v_and_b32 v0, 63, v0
        s_and_b32 {sGI}, s2, 7
        v_readfirstlane_b32 {sWAVE}, v1
        s_lshr_b32 {sJ}, s2, 3
        s_lshr_b32 s68, {sJ}, 3
        s_and_b32 {sSP}, {sJ}, 7
        s_and_b32 {sHL}, s68, 1
        s_lshr_b32 {sB}, s68, 1
        s_mov_b32 {sBUD}, {o.budget}
        s_mov_b32 {sLAYER}, 0
        s_mov_b32 {sMODE}, 0
        s_mov_b32 s60, 0xffff0000
        s_mov_b32 s61, 0xffff0000
        v_lshlrev_b32 {L16}, 4, {LANE}
        v_mov_b32 {CS}, 0
        s_lshl_b32 s68, {sGI}, 1
        s_add_u32 s68, s68, {sHL}
        s_lshl_b32 s69, {sB}, 4
        s_add_u32 s68, s68, s69
        s_lshl_b32 {sTILE}, s68, 21
        s_lshl_b32 s68, {sSP}, 15
        s_add_u32 {sTILE}, {sTILE}, s68
        s_lshl_b32 s68, {sWAVE}, 13
        s_add_u32 {sTILE}, {sTILE}, s68
        s_mul_i32 {sM0B}, {sWAVE}, {VW}
        """)
        A(f"s_mov_b32 {sROLE}, {ROLE_WQ}"); A(f"s_mov_b32 s62, {sJ}")
        for (lim, role) in ((8, ROLE_WO), (15, ROLE_GU), (22, ROLE_DN), (29, ROLE_NONE)):
            A(f"s_cmp_ge_u32 {sJ}, {lim}"); A(f"s_cselect_b32 {sROLE}, {role}, {sROLE}"); A(f"s_sub_u32 s68, {sJ}, {lim}")
            A(f"s_cmp_ge_u32 {sJ}, {lim}"); A("s_cselect_b32 s62, s68, s62")
        A(f"s_lshl_b32 {sSIG}, s62, 2"); A(f"s_add_u32 {sSIG}, {sSIG}, {sWAVE}")
        A("s_waitcnt lgkmcnt(0)")
        self.stamp(0)
        if o.prof:
            for k in range(1, 20): A(f"s_mov_b32 s{80+k}, 0")
        A(f"""
        s_load_dword {sTAG}, s[58:59], {EOFF}
        s_sub_u32 {sS4}, {sSIG}, {sWAVE}
        s_mov_b32 s8, s38
        s_mov_b32 s9, s39
        s_mov_b32 s10, 0x4000000
        s_mov_b32 s11, 0x00020000
        s_mov_b32 s12, s40
        s_mov_b32 s13, s41
        s_mov_b32 s14, 0x4000000
        s_mov_b32 s15, 0x00020000
        s_mov_b32 s4, s36
        s_mov_b32 s5, s37
        s_mov_b32 s16, s54
        s_mov_b32 s17, s55
        s_mov_b32 s18, s56
        s_mov_b32 s19, s57
        s_mov_b32 s20, s58
        s_mov_b32 s21, s59
        s_lshl_b32 s68, {sGI}, 16
        s_add_u32 s68, s68, {GOFF}
        s_add_u32 s22, s58, s68
        s_addc_u32 s23, s59, 0
        s_add_u32 s24, s58, {COFF}
        s_addc_u32 s25, s59, 0
        s_mov_b64 s[70:71], s[58:59]
        s_mov_b64 s[72:73], s[58:59]
        s_mov_b64 s[74:75], s[58:59]
        """)
        if o.dbgstamps:
            A("s_cmp_eq_u32 s2, 176"); A("s_cbranch_scc0 L_ds0"); A(f"s_cmp_eq_u32 {sWAVE}, 0"); A("s_cbranch_scc0 L_ds0")
            A("v_mov_b32 v86, s100"); A("v_mov_b32 v87, 8"); A("s_mov_b64 exec, 1")
            A(f"global_store_dword v87, v86, {sDBG}"); A("s_mov_b64 exec, -1")
            A("L_ds0:")
            self.dstamp(3)
        self.ld_setup()
        self.ob = 0
        self.ktile(0, 64)
        if o.prefetch: self.prefetch_weights()
        for tau in range(1, o.k0): self.ktile(tau, 64)
        if 8 * o.k0 + (14 if o.prefetch else 0) > 16: A("s_waitcnt vmcnt(16)")
        row8, c, off = X(2), X(3), X(4)
        A(f"v_lshrrev_b32 {row8}, 3, {LANE}"); A(f"v_and_b32 {c}, 7, {LANE}")
        A(f"s_cmp_eq_u32 {sROLE}, {ROLE_WO}"); A("s_cbranch_scc1 L_w1")
        A(f"s_cmp_eq_u32 {sROLE}, {ROLE_GU}"); A("s_cbranch_scc1 L_w2")
        A(f"s_cmp_eq_u32 {sROLE}, {ROLE_DN}"); A("s_cbranch_scc1 L_w3")
        A(f"s_cmp_eq_u32 {sROLE}, {ROLE_WQ}"); A("s_cbranch_scc1 L_w0")
        A(f"v_mov_b32 {off}, 0"); A("s_mov_b32 s63, 0"); A("s_mov_b32 s66, 0"); A("s_mov_b32 s67, 0")
        A("s_mov_b32 s64, s42"); A("s_mov_b32 s65, s43"); A("s_mov_b32 s78, s42"); A("s_mov_b32 s79, s43")
        A("s_branch L_wdone")
        A("L_w0:")
        A(f"s_mul_i32 s68, {sWAVE}, 112"); A(f"v_add_u32 {X(5)}, s68, {row8}"); A(f"v_lshlrev_b32 {off}, 13, {X(5)}")
        A(f"v_lshl_add_u32 {off}, {c}, 4, {off}"); A(f"s_lshl_b32 s68, {sGI}, 10"); A("s_lshl_b32 s69, s62, 7"); A("s_add_u32 s68, s68, s69"); A(f"v_add_u32 {off}, s68, {off}")
        A("s_mov_b32 s63, 14"); A(f"s_mov_b32 s66, {8*8192}"); A(f"s_mul_i32 s67, {sWAVE}, 14336")
        A("s_mov_b32 s64, s42"); A("s_mov_b32 s65, s43"); A("s_mov_b32 s78, s42"); A("s_mov_b32 s79, s43")
        self.ln_addr(X(8))
        self.set_exec(0x00030003, 0x00030003)
        for t in range(14):
            A(f"global_load_dwordx4 {TR(4*t,4)}, {X(8)}, {sXIN} offset:{t*64}")
        A("s_mov_b64 exec, -1")
        for k in range(8): A(f"v_mov_b32 {T(56+k)}, 0")
        self.set_exec(0xFFFFFFFF, 0x00FFFFFF)
        A(f"global_load_dwordx4 {TR(56,4)}, {L16}, {sXIN}"); A(f"global_load_dwordx4 {TR(60,4)}, {L16}, {sXIN} offset:896")
        A("s_mov_b64 exec, -1")
        A("s_branch L_wdone")
        A("L_w1:")
        A(f"v_and_b32 {X(5)}, 3, {row8}"); A(f"v_lshlrev_b32 {X(5)}, 3, {X(5)}"); A(f"v_lshrrev_b32 {X(6)}, 2, {row8}"); A(f"v_add_u32 {X(5)}, {X(5)}, {X(6)}")
        A(f"s_lshl_b32 s68, {sGI}, 9"); A(f"s_lshl_b32 s69, {sWAVE}, 7"); A("s_add_u32 s68, s68, s69"); A(f"v_add_u32 {X(5)}, s68, {X(5)}")
        A(f"v_mul_u32_u24 {off}, 896, {X(5)}"); A(f"v_lshl_add_u32 {off}, {c}, 4, {off}"); A("s_lshl_b32 s68, s62, 7"); A(f"v_add_u32 {off}, s68, {off}")
        A(f"v_lshrrev_b32 {X(12)}, 5, {LANE}"); A(f"s_and_b32 s68, {sWAVE}, 1"); A("s_lshl_b32 s68, s68, 1"); A(f"s_add_u32 s68, s68, {sS4}"); A(f"v_add_u32 {X(12)}, s68, {X(12)}")
        A(f"v_bfe_u32 {TMP}, {LANE}, 4, 1"); A(f"v_mul_u32_u24 {X(10)}, 896, {TMP}"); A(f"v_lshl_add_u32 {X(10)}, {X(12)}, 5, {X(10)}")
        A(f"v_and_b32 {TMP}, 15, {LANE}"); A(f"v_lshl_add_u32 {X(10)}, {TMP}, 1, {X(10)}")
        A(f"global_load_ushort {CS}, {X(10)}, {sXIN}")
        A("s_mov_b32 s63, 16"); A("s_mov_b32 s66, 0"); A(f"s_mov_b32 s67, {sM0B}")
        A("s_mov_b32 s64, s44"); A("s_mov_b32 s65, s45"); A("s_mov_b32 s78, s44"); A("s_mov_b32 s79, s45")
        A("s_branch L_wdone")
        A("L_w2:")
        A(f"s_mul_i32 s68, {sWAVE}, 112"); A(f"v_add_u32 {X(5)}, s68, {row8}"); A(f"v_mul_u32_u24 {off}, 3584, {X(5)}")
        A(f"v_and_b32 {X(6)}, 3, {c}"); A(f"v_lshl_add_u32 {off}, {X(6)}, 4, {off}")
        A(f"s_mul_i32 s68, {sGI}, 448"); A("s_lshl_b32 s69, s62, 6"); A("s_add_u32 s68, s68, s69"); A(f"v_add_u32 {off}, s68, {off}")
        A("s_mov_b32 s63, 14"); A(f"s_mov_b32 s66, {8*3584}"); A(f"s_mul_i32 s67, {sWAVE}, 14336")
        A("s_mov_b32 s64, s48"); A("s_mov_b32 s65, s49"); A("s_mov_b32 s78, s50"); A("s_mov_b32 s79, s51")
        A("s_branch L_wdone")
        A("L_w3:")
        A(f"s_mul_i32 s68, {sGI}, 224"); A(f"s_mul_i32 s69, {sWAVE}, 56"); A("s_add_u32 s68, s68, s69"); A(f"v_add_u32 {X(5)}, s68, {row8}")
        A(f"v_mul_u32_u24 {off}, 896, {X(5)}"); A(f"v_lshl_add_u32 {off}, {c}, 4, {off}"); A("s_lshl_b32 s68, s62, 7"); A(f"v_add_u32 {off}, s68, {off}")
        A("s_mov_b32 s63, 7"); A(f"s_mov_b32 s66, {8*896}"); A(f"s_mul_i32 s67, {sWAVE}, 7168")
        A("s_mov_b32 s64, s52"); A("s_mov_b32 s65, s53"); A("s_mov_b32 s78, s52"); A("s_mov_b32 s79, s53")
        A("L_wdone:")
        A(f"v_cmp_le_u32 vcc, 4, {c}")
        A(f"v_mov_b32 {X(0)}, s64"); A(f"v_mov_b32 {X(5)}, s78"); A(f"v_cndmask_b32 {X(0)}, {X(0)}, {X(5)}, vcc")
        A(f"v_mov_b32 {X(1)}, s65"); A(f"v_mov_b32 {X(5)}, s79"); A(f"v_cndmask_b32 {X(1)}, {X(1)}, {X(5)}, vcc")
        A(f"v_add_co_u32 {X(0)}, vcc, {X(0)}, {off}"); A(f"v_addc_co_u32 {X(1)}, vcc, 0, {X(1)}, vcc")
        A("s_mov_b32 s68, s67"); A("s_mov_b32 s69, 0")
        if "now" in self.o.exp: A("s_mov_b32 s63, 0")
        if "nogu" in self.o.exp:
            A(f"s_cmp_eq_u32 {sROLE}, {ROLE_GU}"); A("s_cselect_b32 s63, 0, s63")
        A("s_cmp_eq_u32 s63, 0"); A("s_cbranch_scc1 L_wld_done")
        A("L_wld:")
        A("s_mov_b32 m0, s68")
        A("s_add_u32 s68, s68, 1024")
        A(f"global_load_lds_dwordx4 {XR(0,2)}, off{wnt}")
        A("s_add_u32 s69, s69, 1"); A("s_and_b32 s62, s69, 3"); A("s_cmp_eq_u32 s62, 0"); A(f"s_mov_b32 s76, {26*896}"); A(f"s_cselect_b32 s62, s76, {2*896}")
        A(f"s_cmp_eq_u32 {sROLE}, {ROLE_WO}"); A("s_cselect_b32 s62, s62, s66")
        A(f"v_add_co_u32 {X(0)}, vcc, s62, {X(0)}"); A(f"v_addc_co_u32 {X(1)}, vcc, 0, {X(1)}, vcc")
        A("s_cmp_lt_u32 s69, s63"); A("s_cbranch_scc1 L_wld")
        A("L_wld_done:")
        A("s_mov_b32 s48, 0x22222222"); A("s_mov_b32 s49, 0x22222222"); A("s_mov_b32 s50, 0x44444444"); A("s_mov_b32 s51, 0x44444444")
        A("s_mov_b32 s52, 0x88888888"); A("s_mov_b32 s53, 0x88888888")
        A("s_mov_b32 s54, 0x00030003"); A("s_mov_b32 s55, 0x00030003")
        A("s_mov_b32 s56, 0x000c000c"); A("s_mov_b32 s57, 0x000c000c"); A("s_mov_b32 s58, 0x00300030"); A("s_mov_b32 s59, 0x00300030")
        A("s_mov_b32 s62, 0x00c000c0"); A("s_mov_b32 s63, 0x00c000c0")
        A(f"s_cmp_eq_u32 {sWAVE}, 3"); A("s_cbranch_scc0 L_noclr")
        for k in range(4): A(f"v_mov_b32 {X(12+k)}, -1")
        A(f"s_lshl_b32 s68, {sJ}, 11"); A(f"v_add_u32 {X(8)}, s68, {L16}")
        A(f"global_store_dwordx4 {X(8)}, {XR(12,4)}, {sG} sc1"); A(f"global_store_dwordx4 {X(8)}, {XR(12,4)}, {sG} offset:1024 sc1")
        A(f"s_lshl_b32 s68, s2, 12"); A(f"v_add_u32 {X(9)}, s68, {L16}")
        for k in range(4): A(f"global_store_dwordx4 {X(9)}, {XR(12,4)}, {sC} offset:{k*1024} sc1")
        A("L_noclr:")

    def prefetch_weights(self):
        A = self.A
        f = {0: "", 1: "", 2: " nt"}[self.o.prefetch]
        u = "s78"
        A(f"s_lshl_b32 {u}, {sJ}, 2"); A(f"s_add_u32 {u}, {u}, {sWAVE}")
        d = [192]
        def ld(addr, base, off=0):
            A(f"global_load_dwordx4 a[{d[0]}:{d[0]+3}], {addr}, {base}" + (f" offset:{off}" if off else "") + f); d[0] += 4
        A(f"s_cmp_lt_u32 {u}, 112"); A("s_cbranch_scc0 L_pf1")
        A(f"s_lshl_b32 s68, {u}, 15"); A(f"s_lshl_b32 s69, {sGI}, 10"); A("s_add_u32 s68, s68, s69"); A(f"v_add_u32 {X(10)}, s68, {L16}")
        for k in range(4):
            ld(X(10), "s[42:43]")
            if k != 3: A(f"v_add_u32 {X(10)}, 8192, {X(10)}")
        A(f"v_lshrrev_b32 {X(11)}, 5, {LANE}"); A(f"v_mul_u32_u24 {X(11)}, 3584, {X(11)}"); A(f"v_and_b32 {X(12)}, 31, {LANE}"); A(f"v_lshl_add_u32 {X(11)}, {X(12)}, 4, {X(11)}")
        A(f"s_mul_i32 s68, {u}, {4*3584}"); A(f"s_mul_i32 s69, {sGI}, 448"); A("s_add_u32 s68, s68, s69"); A(f"v_add_u32 {X(11)}, s68, {X(11)}")
        A(f"v_add_u32 {X(12)}, 7168, {X(11)}")
        self.set_exec(0x0FFFFFFF, 0x0FFFFFFF)
        for base in ("s[48:49]", "s[50:51]"):
            ld(X(11), base); ld(X(12), base)
        A("s_mov_b64 exec, -1")
        A("L_pf1:")
        d[0] = 224
        A(f"s_mul_i32 s68, {sGI}, 458752"); A(f"s_mul_i32 s69, {u}, 3584"); A("s_add_u32 s68, s68, s69"); A(f"v_add_u32 {X(10)}, s68, {L16}")
        for k in range(3): ld(X(10), "s[44:45]", k * 1024)
        self.set_exec(0xFFFFFFFF, 0)
        ld(X(10), "s[44:45]", 3072)
        A("s_mov_b64 exec, -1")
        A(f"s_mul_i32 s68, {sGI}, 200704"); A(f"s_mul_i32 s69, {u}, 1568"); A("s_add_u32 s68, s68, s69"); A(f"v_add_u32 {X(10)}, s68, {L16}")
        ld(X(10), "s[52:53]")
        self.set_exec(0xFFFFFFFF, 0x3)
        ld(X(10), "s[52:53]", 1024)
        A("s_mov_b64 exec, -1")

    def tr_reads(self):
        A = self.A
        a = X(8); r, c, g4 = X(10), X(9), TMP
        A(f"v_and_b32 {c}, 15, {LANE}"); A(f"v_lshrrev_b32 {r}, 2, {c}"); A(f"v_and_b32 {c}, 3, {c}")
        A(f"v_lshrrev_b32 {a}, 4, {LANE}"); A(f"v_lshlrev_b32 {a}, 3, {a}"); A(f"v_add_u32 {a}, {a}, {r}")
        A(f"v_lshlrev_b32 {a}, 7, {a}")
        A(f"s_cmp_eq_u32 {sROLE}, {ROLE_WO}"); A("s_cbranch_scc1 L_tr_wo")
        A(f"s_cmp_eq_u32 {sROLE}, {ROLE_GU}"); A("s_cbranch_scc1 L_tr_gu")
        A(f"s_cmp_eq_u32 {sROLE}, {ROLE_DN}"); A("s_cbranch_scc1 L_tr_dn")
        A(f"v_lshl_add_u32 {a}, {c}, 3, {a}"); A(f"s_lshl_b32 s68, {sWAVE}, 5"); A(f"v_add_u32 {a}, s68, {a}")
        A("s_branch L_tr_n")
        A("L_tr_gu:")
        A(f"v_and_b32 {r}, 1, {c}"); A(f"v_lshl_add_u32 {a}, {r}, 3, {a}"); A(f"v_lshrrev_b32 {r}, 1, {c}"); A(f"v_lshl_add_u32 {a}, {r}, 6, {a}")
        A(f"s_lshl_b32 s68, {sWAVE}, 4"); A(f"v_add_u32 {a}, s68, {a}")
        A("L_tr_n:")
        for t in range(14):
            A(f"ds_read_b64_tr_b16 {WR(4*t,2)}, {a} offset:{t*4096}")
            A(f"ds_read_b64_tr_b16 {WR(4*t+2,2)}, {a} offset:{t*4096+512}")
            if t % 4 == 3: A("s_waitcnt lgkmcnt(0)")
        A("s_branch L_tr_d")
        A("L_tr_dn:")
        A(f"v_lshl_add_u32 {a}, {c}, 3, {a}"); A(f"s_and_b32 s68, {sWAVE}, 1"); A("s_lshl_b32 s68, s68, 6"); A(f"v_add_u32 {a}, s68, {a}")
        for t in range(7):
            for u in range(2):
                k = 4 * (2 * t + u)
                A(f"ds_read_b64_tr_b16 {WR(k,2)}, {a} offset:{t*4096+u*32}")
                A(f"ds_read_b64_tr_b16 {WR(k+2,2)}, {a} offset:{t*4096+u*32+512}")
            if t % 2 == 1: A("s_waitcnt lgkmcnt(0)")
        A("s_branch L_tr_d")
        A("L_tr_wo:")
        A(f"v_lshl_add_u32 {a}, {c}, 3, {a}"); A(f"v_add_u32 {a}, {sM0B}, {a}")
        for tt in range(4):
            for nt in range(4):
                k = 4 * (4 * tt + nt)
                A(f"ds_read_b64_tr_b16 {WR(k,2)}, {a} offset:{tt*4096+nt*32}")
                A(f"ds_read_b64_tr_b16 {WR(k+2,2)}, {a} offset:{tt*4096+nt*32+512}")
            A("s_waitcnt lgkmcnt(0)")
        A("L_tr_d:")
        A("s_waitcnt lgkmcnt(0)")
        A(f"s_add_u32 {sTAG}, {sTAG}, {hex(TAGC)}")
    def colsum(self):
        A = self.A
        for k in range(4): A(f"v_mov_b32 {X(4+k)}, 0x3f803f80")
        for t in range(14):
            A(f"v_mfma_f32_16x16x32_bf16 {XR(0,4)}, {XR(4,4)}, {WR(4*t,4)}, {'0' if t == 0 else XR(0,4)}")
        A(f"v_mov_b32 {CS}, {X(0)}")

    def ln_scalars(self, s1, s2, scale):
        ops = [f"v_mul_f32 {s1}, {f32(1/448)}, {s1}", f"v_mul_f32 {s2}, {f32(1/448)}, {s2}",
               f"v_fma_f32 {s2}, -{s1}, {s1}, {s2}", f"v_max_f32 {s2}, 0, {s2}", f"v_add_f32 {s2}, {f32(1e-5)}, {s2}", f"v_rsq_f32 {s2}, {s2}"]
        if scale != 1.0: ops.append(f"v_mul_f32 {s2}, {f32(scale)}, {s2}")
        return ops
    def ln_finish(self, mu, rs):
        A = self.A
        A(f"v_permlane16_swap_b32 {X(0)}, {X(1)}")
        A(f"v_fma_f32 {X(4)}, -{mu}, {CS}, {X(0)}")
        A(f"v_mul_f32 {X(4)}, {X(4)}, {rs}")

    def stage_ln(self, rx, rst, layer, scale, lab, sleep=0):
        A = self.A
        LX = LDS_RED; LS = LDS_OP
        xa, sa = X(8), X(9)
        self.ln_addr(xa); A(f"v_add_u32 {xa}, {LX}, {xa}")
        A(f"v_bfe_u32 {sa}, {LANE}, 4, 1"); A(f"v_lshlrev_b32 {sa}, 8, {sa}"); A(f"v_lshrrev_b32 {TMP}, 5, {LANE}"); A(f"v_lshl_add_u32 {sa}, {TMP}, 7, {sa}")
        A(f"v_and_b32 {TMP}, 15, {LANE}"); A(f"v_lshl_add_u32 {sa}, {TMP}, 3, {sa}")
        A(f"s_cmp_eq_u32 {sWAVE}, 1"); A(f"s_cbranch_scc0 {lab}_b")
        self.gbase(SA, rx, layer); self.gbase(SB, rst, layer)
        for k in range(4, 10): A(f"v_mov_b32 {T(k)}, 0")
        A(f"v_add_u32 {X(10)}, {LX}, {L16}"); A(f"v_add_u32 {X(11)}, {LDS_RED + 1792 - 1792 + 0}, {L16}")
        A(f"v_add_u32 {X(12)}, {LS}, {sa}")
        self.fst(1)
        A(f"{lab}:")
        if self.o.fine == "ln": A("s_add_u32 s99, s99, 1")
        self.fst(2)
        A(f"global_load_dwordx4 {TR(0,4)}, {L16}, {SA} sc1")
        self.set_exec(0xFFFFFFFF, 0x0000FFFF)
        A(f"global_load_dwordx4 {TR(4,4)}, {L16}, {SA} offset:1024 sc1")
        self.set_exec(0xFFFFFFFF, 0x0FFF0FFF)
        A(f"global_load_dwordx2 {TR(8,2)}, {sa}, {SB} sc1")
        A("s_mov_b64 exec, -1")
        A("s_waitcnt vmcnt(0)")
        self.fst(3)
        for s in self.maxops(X(13), [T(k) for k in range(10)]): A(s)
        self.poll_tail(X(13), lab, lab + "_d", sleep=sleep)
        A(f"{lab}_d:")
        A(f"ds_write_b128 {X(10)}, {TR(0,4)}")
        A(f"ds_write_b64 {X(12)}, {TR(8,2)}")
        self.set_exec(0xFFFFFFFF, 0x0000FFFF)
        A(f"ds_write_b128 {X(10)}, {TR(4,4)} offset:1024")
        A("s_mov_b64 exec, -1")
        A("s_waitcnt lgkmcnt(0)")
        A(f"{lab}_b:")
        A("s_barrier")
        D = XR(0, 4); s1, s2, t1, t2 = T(58), T(59), T(60), T(61)
        A(f"v_add_u32 {sa}, {LS}, {sa}")
        A(f"ds_read_b64 {TR(56,2)}, {sa}")
        for t in range(14): A(f"ds_read_b128 {TR(4*t,4)}, {xa} offset:{t*64}")
        red = [f"v_add_f32_dpp {s1}, {T(56)}, {T(56)} row_ror:8 {DPP}", f"v_add_f32_dpp {s2}, {T(57)}, {T(57)} row_ror:8 {DPP}"]
        for sh in (4, 2, 1):
            red += [f"v_add_f32_dpp {s1}, {s1}, {s1} row_ror:{sh} {DPP}", f"v_add_f32_dpp {s2}, {s2}, {s2} row_ror:{sh} {DPP}"]
        red += [f"v_mov_b32 {t1}, {s1}", f"v_mov_b32 {t2}, {s2}", f"v_permlane32_swap_b32 {s1}, {t1}", f"v_permlane32_swap_b32 {s2}, {t2}",
                f"v_add_f32 {s1}, {s1}, {t1}", f"v_add_f32 {s2}, {s2}, {t2}"]
        red += self.ln_scalars(s1, s2, scale)
        for t in range(14):
            if t in (0, 4, 8): A(f"s_waitcnt lgkmcnt({max(13 - t - 3, 0)})")
            if t == 12: A("s_waitcnt lgkmcnt(0)")
            A(f"v_mfma_f32_16x16x32_bf16 {D}, {TR(4*t,4)}, {WR(4*t,4)}, {'0' if t == 0 else D}")
            n = 2 if t % 2 == 0 else 1
            while n and red: A(red.pop(0)); n -= 1
        for s in red: A(s)
        self.fst(4)
        self.ln_finish(s1, s2)

    def ld_setup(self):
        A = self.A
        vK, vV = X(18), X(19)
        A(f"v_and_b32 {X(8)}, 15, {LANE}"); A(f"v_lshrrev_b32 {X(9)}, 4, {LANE}")
        A(f"v_and_b32 {vK}, 3, {LANE}"); A(f"v_lshlrev_b32 {vK}, 4, {vK}"); A(f"v_lshl_add_u32 {vK}, {X(9)}, 6, {vK}")
        A(f"v_bfe_u32 {TMP}, {LANE}, 2, 2"); A(f"v_lshl_add_u32 {vK}, {TMP}, 11, {vK}")
        A(f"v_lshlrev_b32 {vV}, 11, {X(9)}"); A(f"v_lshl_add_u32 {vV}, {X(8)}, 4, {vV}")
    def throttle(self, win):
        if self.ob + 1 > win:
            self.A(f"s_waitcnt vmcnt({win - 4})"); self.ob = win - 4
        self.ob += 1
    def ktile(self, tau, win):
        A = self.A; f = " nt" if self.o.nt else ""
        A(f"s_add_u32 s68, {sTILE}, {tau*262144}")
        for t in range(8):
            n = tau * 8 + t
            self.throttle(win)
            A(f"buffer_load_dwordx4 a[{4*n}:{4*n+3}], {X(18)}, s[8:11], s68 offen offset:{(t//2)*512 + (t%2)*256}{f}")
    def vtile(self, tau, win, va=None):
        A = self.A; f = " nt" if self.o.nt else ""
        va = va or X(19)
        A(f"s_add_u32 s68, {sTILE}, {tau*262144}")
        for t in range(8):
            n = tau * 8 + t
            imm = (t // 2) * 512 + (t % 2) * 256
            self.throttle(win)
            if n < 2 * NLDS:
                A(f"s_add_u32 m0, {sM0B}, {n*1024 - imm}")
                A(f"buffer_load_dwordx4 {va}, s[12:15], s68 offen offset:{imm}{f} lds")
            else:
                m = n - 2 * NLDS
                A(f"buffer_load_dwordx4 {VRR(4*m,4)}, {va}, s[12:15], s68 offen offset:{imm}{f}")
    def arrive(self):
        A = self.A
        A("s_getreg_b32 s68, hwreg(HW_REG_XCC_ID, 0, 4)"); A("s_and_b32 s68, s68, 7"); A("s_mul_i32 s68, s68, 6")
        A("s_lshl_b64 s[78:79], 1, s68"); A("s_or_b32 s79, s79, 0x01000000")
        A(f"v_mov_b32 {X(10)}, s78"); A(f"v_mov_b32 {X(11)}, s79")
        A(f"s_lshl_b32 s69, {sGI}, 5"); A(f"v_mov_b32 {X(9)}, s69")
        A("s_mov_b64 exec, 1")
        A(f"global_atomic_add_x2 {X(9)}, {XR(10,2)}, {sDBG} sc1")
        A("s_mov_b64 exec, -1")
    def early_q(self):
        A = self.A
        self.colsum()
        s1a, s2a, s1b, s2b = X(12), X(13), X(14), X(15)
        for (base, s1, s2) in ((56, s1a, s2a), (60, s1b, s2b)):
            A(f"v_mov_b32 {s1}, 0"); A(f"v_mov_b32 {s2}, 0")
            for k in range(4):
                A(f"v_lshlrev_b32 {X(8)}, 16, {T(base+k)}"); A(f"v_and_b32 {X(9)}, 0xffff0000, {T(base+k)}")
                A(f"v_add_f32 {s1}, {s1}, {X(8)}"); A(f"v_fmac_f32 {s2}, {X(8)}, {X(8)}")
                A(f"v_add_f32 {s1}, {s1}, {X(9)}"); A(f"v_fmac_f32 {s2}, {X(9)}, {X(9)}")
        for sh in (8, 4, 2, 1):
            for r in (s1a, s2a, s1b, s2b): A(f"v_add_f32_dpp {r}, {r}, {r} row_ror:{sh} {DPP}")
        for swap in ("v_permlane16_swap_b32", "v_permlane32_swap_b32"):
            for r in (s1a, s2a, s1b, s2b):
                A(f"v_mov_b32 {X(8)}, {r}"); A(f"{swap} {r}, {X(8)}"); A(f"v_add_f32 {r}, {r}, {X(8)}")
        A(f"v_cndmask_b32 {s1a}, {s1a}, {s1b}, {sSEL}"); A(f"v_cndmask_b32 {s2a}, {s2a}, {s2b}, {sSEL}")
        for s in self.ln_scalars(s1a, s2a, QSCALE): A(s)
        D = XR(0, 4)
        for t in range(14):
            A(f"v_mfma_f32_16x16x32_bf16 {D}, {TR(4*t,4)}, {WR(4*t,4)}, {'0' if t == 0 else D}")
        self.ln_finish(s1a, s2a)
        self.pack_pair(X(4), X(4), X(6))
        A(f"v_mov_b32 {X(5)}, {sTAG}")
        A(f"v_bfe_u32 {X(7)}, {LANE}, 4, 1"); A(f"v_lshlrev_b32 {X(7)}, 11, {X(7)}"); A(f"v_and_b32 {X(8)}, 15, {LANE}"); A(f"v_lshl_add_u32 {X(7)}, {X(8)}, 2, {X(7)}")
        A(f"s_lshl_b32 s68, {sSIG}, 6"); A(f"v_add_u32 {X(7)}, s68, {X(7)}")
        A(f"s_lshl_b32 s68, {sGI}, 12"); A(f"s_add_u32 s68, s68, {QTOFF}"); A(f"s_add_u32 s70, s20, s68"); A("s_addc_u32 s71, s21, 0")
        self.set_exec(0x55555555, 0)
        A(f"global_store_dwordx2 {X(7)}, {XR(4,2)}, {SA} sc1")
        A("s_mov_b64 exec, -1")

    def stream(self):
        A = self.A; win = self.o.win
        k0 = self.o.k0
        self.ob = 0
        self.ktile(k0, 64)
        A("s_waitcnt vmcnt(8) lgkmcnt(0)")
        self.stamp(1)
        A("s_barrier")
        A(f"s_cmp_eq_u32 {sWAVE}, 3"); A("s_cbranch_scc0 L_noarr")
        self.arrive()
        A("L_noarr:")
        self.ob = 0
        self.ktile(k0 + 1, 64)
        self.tr_reads()
        A("s_barrier")
        self.ktile(k0 + 2, 64)
        A(f"s_cmp_eq_u32 {sROLE}, {ROLE_GU}"); A("s_cbranch_scc0 L_nocs")
        self.colsum()
        A("L_nocs:")
        A(f"s_cmp_eq_u32 {sROLE}, {ROLE_WQ}"); A("s_cbranch_scc0 L_noeq")
        self.early_q()
        A("L_noeq:")
        self.stamp(2)
        self.ob = 8 * 3 + 2
        tp = k0 + 3
        for tau in range(tp, 8): self.ktile(tau, win)
        A(f"s_lshl_b32 s68, {sGI}, 12"); A(f"s_add_u32 s68, s68, {QTOFF}"); A(f"s_add_u32 s70, s20, s68"); A("s_addc_u32 s71, s21, 0")
        A(f"s_lshl_b32 s68, {sB}, 11"); A(f"s_lshl_b32 s78, {sHL}, 10"); A("s_add_u32 s68, s68, s78"); A(f"v_add_u32 {X(14)}, s68, {L16}")
        A(f"global_load_dwordx4 {XR(10,4)}, {X(14)}, {SA} sc1")
        for tau in range(self.o.vdist): self.vtile(tau, 64)
        self.stamp(5)
        self.dstamp(4)

    def bar_check_finish(self):
        A = self.A
        A(f"s_cmp_eq_u32 {sLAYER}, 0"); A("s_cbranch_scc0 L_gb_done")
        A("s_mov_b64 exec, 0xff")
        A("L_gb:")
        A(f"v_lshrrev_b32 {TMP}, 24, {WBAR1}"); A(f"v_cmp_ne_u32 vcc, 32, {TMP}")
        A("s_cbranch_vccz L_gb_d")
        A(f"s_cmp_eq_u32 {sBUD}, 0"); A("s_cbranch_scc1 L_gb_d"); A(f"s_sub_u32 {sBUD}, {sBUD}, 1"); A("s_sleep 4")
        A(f"v_and_b32 {TMP}, 7, {LANE}"); A(f"v_lshlrev_b32 {TMP}, 5, {TMP}")
        A(f"global_load_dwordx2 {WBAR}, {TMP}, {sDBG} sc1"); A("s_waitcnt vmcnt(0)")
        A("s_branch L_gb")
        A("L_gb_d:")
        A("s_mov_b64 exec, -1")
        A("s_getreg_b32 s68, hwreg(HW_REG_XCC_ID, 0, 4)"); A("s_and_b32 s68, s68, 7"); A("s_mul_i32 s68, s68, 6")
        A("s_lshl_b64 s[78:79], 32, s68"); A("s_or_b32 s79, s79, 0x20000000")
        A(f"v_readlane_b32 s68, {WBAR0}, {sGI}"); A(f"v_readlane_b32 s69, {WBAR1}, {sGI}")
        A("s_cmp_eq_u64 s[68:69], s[78:79]"); A(f"s_cselect_b32 {sMODE}, 1, 0")
        if self.o.slow: A(f"s_mov_b32 {sMODE}, 0")
        A("L_gb_done:")

    def att_setup(self):
        A = self.A
        mk = [X(16 + k) for k in range(4)]
        A(f"v_and_b32 {TMP}, 1, {LANE}"); A(f"v_lshlrev_b32 {TMP}, 4, {TMP}"); A(f"v_mov_b32 {X(9)}, 0xffff"); A(f"v_lshlrev_b32 {X(9)}, {TMP}, {X(9)}")
        for k, pr in enumerate((sMA, "s[56:57]", "s[58:59]", "s[62:63]")):
            A(f"v_cndmask_b32 {mk[k]}, 0, {X(9)}, {pr}")
        A(f"v_lshrrev_b32 {X(8)}, 4, {LANE}"); A(f"v_lshlrev_b32 {X(8)}, 11, {X(8)}"); A(f"v_and_b32 {TMP}, 15, {LANE}"); A(f"v_lshl_add_u32 {X(8)}, {TMP}, 4, {X(8)}")

    def get_q(self):
        A = self.A
        self.att_setup()
        qa = T(62)
        A(f"v_lshrrev_b32 {qa}, 4, {LANE}"); A(f"v_lshlrev_b32 {qa}, 6, {qa}"); A(f"v_and_b32 {TMP}, 3, {LANE}"); A(f"v_lshl_add_u32 {qa}, {TMP}, 4, {qa}")
        A(f"v_add_u32 {qa}, {LDS_QL}, {qa}")
        A(f"s_cmp_eq_u32 {sLAYER}, 0"); A("s_cbranch_scc0 L_q1")
        A(f"s_waitcnt vmcnt({8*self.o.vdist})")
        A("L_q0:")
        A(f"v_xor_b32 {X(15)}, {sTAG}, {X(11)}"); A(f"v_xor_b32 {X(9)}, {sTAG}, {X(13)}"); A(f"v_or_b32 {X(15)}, {X(15)}, {X(9)}")
        A(f"v_cmp_ne_u32 vcc, 0, {X(15)}")
        A("s_cbranch_vccz L_q0_d")
        A(f"s_cmp_eq_u32 {sBUD}, 0"); A("s_cbranch_scc1 L_q0_d"); A(f"s_sub_u32 {sBUD}, {sBUD}, 1")
        A(f"global_load_dwordx4 {XR(10,4)}, {X(14)}, {SA} sc1"); A("s_waitcnt vmcnt(0)")
        A("s_branch L_q0")
        A("L_q0_d:")
        A(f"v_mov_b32 {X(11)}, {X(12)}")
        A(f"v_lshlrev_b32 {X(9)}, 3, {LANE}"); A(f"v_add_u32 {X(9)}, {LDS_QL}, {X(9)}")
        A(f"ds_write_b64 {X(9)}, {XR(10,2)}")
        self.stamp(4)
        A("s_waitcnt lgkmcnt(0)")
        A("s_branch L_qlds")
        A("L_q1:")
        A(f"s_cmp_eq_u32 {sWAVE}, 0"); A("s_cbranch_scc0 L_q1b")
        self.gbase(SA, R_Q, 1)
        A(f"s_lshl_b32 s68, {sB}, 10"); A(f"s_lshl_b32 s78, {sHL}, 9"); A("s_add_u32 s68, s68, s78"); A(f"v_add_u32 {X(9)}, s68, {L16}")
        A(f"v_add_u32 {X(14)}, {LDS_QL}, {L16}")
        self.set_exec(0xFFFFFFFF, 0)
        A("L_q1p:")
        A(f"global_load_dwordx4 {XR(10,4)}, {X(9)}, {SA} sc1"); A("s_waitcnt vmcnt(0)")
        for s in self.maxops(X(15), [X(10), X(11), X(12), X(13)]): A(s)
        self.poll_tail(X(15), "L_q1p", "L_q1p_d", sleep=self.o.qsleep)
        A("L_q1p_d:")
        A(f"ds_write_b128 {X(14)}, {XR(10,4)}")
        A("s_mov_b64 exec, -1")
        A("s_waitcnt lgkmcnt(0)")
        A("L_q1b:")
        A("s_barrier")
        A("L_qlds:")
        for t in range(2): A(f"ds_read_b128 {TR(32+4*t,4)}, {qa} offset:{t*256}")
        A(f"v_add_u32 {X(13)}, {sM0B}, {L16}")
        A(f"s_waitcnt vmcnt({8*self.o.vdist})")

    def attention(self):
        A = self.A
        S = lambda tau, r: T(4 * tau + r)
        mk = [X(16 + k) for k in range(4)]
        A("s_waitcnt lgkmcnt(0)")
        m, m2 = X(14), X(15)
        va = X(13)
        Dq = lambda G: 40 + 4 * (G % 4)
        M1, M2, M3 = "s[48:49]", "s[50:51]", "s[52:53]"
        def c1(G): return f"v_cndmask_b32 {T(G)}, {T(Dq(G))}, {T(Dq(G)+1)}, {M1}"
        def c2(G): return f"v_cndmask_b32 {T(G)}, {T(G)}, {T(Dq(G)+2)}, {M2}"
        def c3(G): return f"v_cndmask_b32 {T(G)}, {T(G)}, {T(Dq(G)+3)}, {M3}"
        def d1(G): return f"v_add_f32_dpp {T(G)}, {T(G)}, {T(G)} quad_perm:[1,0,3,2] {DPP}"
        def d2(G): return f"v_add_f32_dpp {T(G)}, {T(G)}, {T(G)} quad_perm:[2,3,0,1] {DPP}"
        ok = lambda G: 0 <= G < 32
        for G in range(32 + 6):
            if ok(G): A(f"v_mfma_f32_16x16x32_bf16 {TR(Dq(G),4)}, a[{8*G}:{8*G+3}], {TR(32,4)}, 0")
            if ok(G - 2): A(c1(G - 2)); A(c2(G - 2))
            if ok(G): A(f"v_mfma_f32_16x16x32_bf16 {TR(Dq(G),4)}, a[{8*G+4}:{8*G+7}], {TR(36,4)}, {TR(Dq(G),4)}")
            if ok(G - 2): A(c3(G - 2))
            if ok(G - 3): A(d1(G - 3))
            if ok(G - 4): A(d2(G - 4))
            g5 = G - 5
            if ok(g5) and g5 % 2 == 1:
                if g5 == 1: A(f"v_max_f32 {m}, {T(0)}, {T(1)}")
                else: A(f"v_max3_f32 {m}, {m}, {T(g5-1)}, {T(g5)}")
        self.stamp(7)
        l = X(15); acc = [XR(0, 4), XR(4, 4)]
        Bs = [TR(32, 4), TR(36, 4)]; Bb = [32, 36]
        stg = [40, 48, 56]
        VD = self.o.vdist
        vV = X(8)
        CHK_AT = 4 - VD if VD <= 4 else 0
        CHK_TILE = CHK_AT + VD
        def younger(tile, at_tile):
            last_issued = min(at_tile + VD, 7)
            n = 8 * (last_issued - tile)
            if tile <= CHK_TILE and at_tile >= CHK_AT: n += 1
            return n
        def tile_issue(tau):
            t2 = tau + VD
            if t2 > 7: return
            lab = A.label("VI")
            A(f"s_cmp_eq_u32 {sLAYER}, 0"); A(f"s_cbranch_scc0 {lab}")
            self.ob = 0
            self.vtile(t2, 64, vV)
            if tau == CHK_AT:
                A(f"v_and_b32 {TMP}, 7, {LANE}"); A(f"v_lshlrev_b32 {TMP}, 5, {TMP}")
                A("s_mov_b64 exec, 0xff")
                A(f"global_load_dwordx2 {WBAR}, {TMP}, {sDBG} sc1")
                A("s_mov_b64 exec, -1")
            A(f"{lab}:")
        def lds_issue(q, at_tile):
            if q % 4 == 0: A(f"s_waitcnt vmcnt({younger(q // 4, at_tile)})")
            b = stg[q % 3]
            A(f"ds_read_b128 {TR(b,4)}, {va} offset:{q*2048}"); A(f"ds_read_b128 {TR(b+4,4)}, {va} offset:{q*2048+1024}")
        PF = 2
        def pre(q):
            tau, r = q // 4, q % 4
            s = S(tau, r); bb = Bb[q % 2]; pk = X(12) if q % 2 == 0 else X(9)
            return [f"v_sub_f32 {s}, {s}, {m}", f"v_exp_f32 {s}, {s}"], [f"v_cvt_pk_bf16_f32 {pk}, {s}, {s}", (f"v_add_f32 {l}, {l}, {s}" if q else f"v_mov_b32 {l}, {s}")] + [f"v_and_b32 {T(bb+k)}, {mk[k]}, {pk}" for k in range(4)]
        A(f"v_mov_b32 {m2}, {m}")
        tile_issue(0)
        A(f"v_permlane16_swap_b32 {m}, {m2}"); A(f"v_max_f32 {m}, {m}, {m2}")
        A(f"v_mov_b32 {m2}, {m}")
        for q in range(min(PF, NLDS)): lds_issue(q, 0)
        A(f"v_permlane32_swap_b32 {m}, {m2}"); A(f"v_max_f32 {m}, {m}, {m2}")
        a, b_ = pre(0)
        for s in a + b_: A(s)
        a, _ = pre(1)
        for s in a: A(s)
        for q in range(32):
            tau = q // 4
            if q % 4 == 0 and q > 0: tile_issue(tau)
            if q + PF < NLDS: lds_issue(q + PF, tau)
            if q < NLDS:
                A(f"s_waitcnt lgkmcnt({2 * min(PF, NLDS - 1 - q)})")
                b = stg[q % 3]; a0, a1 = TR(b, 4), TR(b + 4, 4)
            else:
                if q >= 28:
                    A(f"s_waitcnt vmcnt({(31 - q) * 2})")
                elif q == NLDS or q % 4 == 0:
                    A(f"s_waitcnt vmcnt({younger(tau, tau)})")
                mm = (q - NLDS) * 8; a0, a1 = VRR(mm, 4), VRR(mm + 4, 4)
            if q == 24:
                self.bar_check_finish()
                A(f"v_lshrrev_b32 {X(8)}, 4, {LANE}"); A(f"v_lshlrev_b32 {X(8)}, 7, {X(8)}"); A(f"v_and_b32 {TMP}, 15, {LANE}"); A(f"v_lshl_add_u32 {X(8)}, {TMP}, 4, {X(8)}")
                A(f"s_lshl_b32 s68, {sWAVE}, 10"); A(f"s_add_u32 s68, s68, {LDS_OP}"); A(f"v_add_u32 {X(8)}, s68, {X(8)}")
                A(f"s_lshl_b32 s68, {sWAVE}, 3"); A(f"s_add_u32 s68, s68, {LDS_MLP}"); A(f"v_mov_b32 {X(10)}, s68")
            A(f"v_mfma_f32_16x16x32_bf16 {acc[0]}, {a0}, {Bs[q%2]}, {acc[0] if q else '0'}")
            if q + 1 < 32:
                _, b_ = pre(q + 1)
                for s in b_[:2]: A(s)
            A(f"v_mfma_f32_16x16x32_bf16 {acc[1]}, {a1}, {Bs[q%2]}, {acc[1] if q else '0'}")
            if q + 1 < 32:
                for s in b_[2:]: A(s)
            if q + 2 < 32:
                a, _ = pre(q + 2)
                for s in a: A(s)
            if q == 30:
                l2 = X(12 if False else 9)
        self.stamp(8)
        self.dstamp(5, layer=0); self.dstamp(7, layer=1)
        l2 = X(9)
        A(f"v_mov_b32 {l2}, {l}"); A(f"v_permlane16_swap_b32 {l}, {l2}"); A(f"v_add_f32 {l}, {l}, {l2}")
        A(f"v_mov_b32 {l2}, {l}"); A(f"v_permlane32_swap_b32 {l}, {l2}"); A(f"v_add_f32 {l}, {l}, {l2}")
        self.set_exec(0x00FF00FF, 0x00FF00FF)
        A(f"ds_write_b128 {X(8)}, {XR(0,4)}"); A(f"ds_write_b128 {X(8)}, {XR(4,4)} offset:512")
        A("s_mov_b64 exec, 1")
        A(f"ds_write_b64 {X(10)}, {XR(14,2)}")
        A("s_mov_b64 exec, -1")
        A("s_waitcnt lgkmcnt(0)")
        A("s_barrier")
        self.stamp(9)

    def combine_publish(self):
        A = self.A
        A(f"v_add_u32 {X(8)}, {LDS_OP}, {L16}")
        for w in range(4): A(f"ds_read_b128 {TR(4*w,4)}, {X(8)} offset:{w*1024}")
        A(f"v_mov_b32 {X(9)}, {LDS_MLP}")
        A(f"ds_read_b128 {TR(16,4)}, {X(9)}"); A(f"ds_read_b128 {TR(20,4)}, {X(9)} offset:16")
        self.gbase(SA, R_O); self.gbase(SB, R_ML)
        a = X(10)
        A(f"v_lshrrev_b32 {a}, 3, {LANE}"); A(f"v_lshlrev_b32 {a}, 10, {a}")
        A(f"v_bfe_u32 {X(11)}, {LANE}, 1, 2"); A(f"v_lshl_add_u32 {a}, {X(11)}, 8, {a}")
        A(f"v_and_b32 {X(11)}, 1, {LANE}"); A(f"v_lshl_add_u32 {a}, {X(11)}, 3, {a}")
        A(f"s_lshl_b32 s68, {sB}, 3"); A(f"s_add_u32 s68, s68, {sSP}"); A("s_lshl_b32 s68, s68, 4"); A(f"s_lshl_b32 s78, {sHL}, 13"); A("s_add_u32 s68, s68, s78")
        A(f"v_add_u32 {a}, s68, {a}")
        A(f"s_lshl_b32 s68, {sHL}, 7"); A(f"s_lshl_b32 s78, {sB}, 6"); A("s_add_u32 s68, s68, s78"); A(f"s_lshl_b32 s78, {sSP}, 3"); A("s_add_u32 s68, s68, s78")
        A(f"v_mov_b32 {X(11)}, s68")
        M = T(24); f = [T(25 + w) for w in range(4)]; Lr = T(29)
        ms = [T(16), T(18), T(20), T(22)]; ls = [T(17), T(19), T(21), T(23)]
        A("s_waitcnt lgkmcnt(0)")
        A(f"v_max3_f32 {M}, {ms[0]}, {ms[1]}, {ms[2]}"); A(f"v_max_f32 {M}, {M}, {ms[3]}")
        for w in range(4): A(f"v_sub_f32 {f[w]}, {ms[w]}, {M}")
        for w in range(4): A(f"v_exp_f32 {f[w]}, {f[w]}")
        for r in range(4): A(f"v_mul_f32 {T(32+r)}, {f[0]}, {T(r)}")
        for w in range(1, 4):
            for r in range(4): A(f"v_fmac_f32 {T(32+r)}, {f[w]}, {T(4*w+r)}")
        A(f"v_cvt_pk_bf16_f32 {T(36)}, {T(32)}, {T(33)}"); A(f"v_cvt_pk_bf16_f32 {T(37)}, {T(34)}, {T(35)}")
        self.pub(f"global_store_dwordx2 {a}, {TR(36,2)}, {SA}")
        A(f"v_mul_f32 {T(39)}, {f[0]}, {ls[0]}")
        for w in range(1, 4): A(f"v_fmac_f32 {T(39)}, {f[w]}, {ls[w]}")
        A(f"v_mov_b32 {T(38)}, {M}")
        A("s_mov_b64 exec, 1")
        self.pub(f"global_store_dwordx2 {X(11)}, {TR(38,2)}, {SB}")
        A("s_mov_b64 exec, -1")

    def stage_wo(self):
        A = self.A
        self.gbase(SA, R_O); self.gbase(SC_, R_ML)
        A(f"s_lshl_b32 s68, {sWAVE}, 12"); A("s_add_u32 s70, s70, s68"); A("s_addc_u32 s71, s71, 0")
        a = X(16)
        A(f"v_lshrrev_b32 {a}, 5, {LANE}"); A(f"v_lshlrev_b32 {a}, 6, {a}")
        A(f"v_bfe_u32 {TMP}, {LANE}, 4, 1"); A(f"v_lshl_add_u32 {a}, {TMP}, 5, {a}")
        A(f"v_and_b32 {TMP}, 3, {LANE}"); A(f"v_lshl_add_u32 {a}, {TMP}, 3, {a}")
        A(f"s_lshr_b32 s68, {sWAVE}, 1"); A("s_lshl_b32 s68, s68, 7"); A(f"v_add_u32 {a}, s68, {a}")
        wa, ra = X(17), X(18)
        A(f"v_bfe_u32 {wa}, {LANE}, 4, 1"); A(f"v_lshlrev_b32 {wa}, 7, {wa}"); A(f"v_lshrrev_b32 {TMP}, 5, {LANE}"); A(f"v_lshl_add_u32 {wa}, {TMP}, 6, {wa}")
        A(f"v_and_b32 {TMP}, 15, {LANE}"); A(f"v_lshl_add_u32 {wa}, {TMP}, 2, {wa}")
        A(f"s_lshl_b32 s68, {sWAVE}, 9"); A(f"s_add_u32 s68, s68, {LDS_RED}"); A(f"v_add_u32 {wa}, s68, {wa}")
        A(f"v_lshrrev_b32 {ra}, 5, {LANE}"); A(f"v_lshlrev_b32 {ra}, 7, {ra}"); A(f"v_and_b32 {TMP}, 31, {LANE}"); A(f"v_lshl_add_u32 {ra}, {TMP}, 2, {ra}")
        A(f"s_and_b32 s68, {sWAVE}, 1"); A("s_lshl_b32 s68, s68, 8"); A(f"s_add_u32 s68, s68, {LDS_RED}"); A(f"v_add_u32 {ra}, s68, {ra}")
        A(f"s_cmp_ge_u32 {sWAVE}, 2"); A("s_cbranch_scc0 L_wo_nors")
        self.gbase(SD, R_X2, 0)
        A(f"s_cmp_eq_u32 {sLAYER}, 0"); A("s_cselect_b32 s64, s4, s64"); A("s_cselect_b32 s65, s5, s65")
        self.rs_setup()
        A(f"v_mov_b32 {X(13)}, {CS}")
        A(f"s_cmp_eq_u32 {sLAYER}, 0"); A("s_cbranch_scc1 L_wo_nors")
        A(f"global_load_ushort {X(13)}, {X(10)}, {SD} sc1")
        A("L_wo_nors:")
        mv, lv = T(16), T(17)
        D = [TR(20 + 4 * nt, 4) for nt in range(4)]
        chk, M, t1, e, w = T(36), T(37), T(38), T(39), T(40)
        A(f"v_mov_b32 {chk}, 0")
        self.fst(0, "wo")
        if self.o.fine == "wo": A("s_mov_b32 s99, 0")
        if self.o.gate:
            self.set_exec(0x000F000F, 0x000F000F)
            A("L_wog:")
            A(f"global_load_dwordx2 {TR(16,2)}, {a}, {SC_} sc1"); A("s_waitcnt vmcnt(0)")
            A(f"v_max_u32 {chk}, {mv}, {lv}")
            self.poll_tail(chk, "L_wog", "L_wog_d", sleep=self.o.gatesleep)
            A("L_wog_d:")
        A("L_wo:")
        if self.o.fine == "wo": A("s_add_u32 s99, s99, 1")
        self.fst(1, "wo")
        self.set_exec(0x000F000F, 0x000F000F)
        A(f"global_load_dwordx2 {TR(16,2)}, {a}, {SC_} sc1")
        A("s_mov_b64 exec, -1")
        for tt in range(4):
            A(f"global_load_dwordx4 {TR(4*tt,4)}, {L16}, {SA} offset:{tt*1024} sc1")
        A("s_waitcnt vmcnt(4)")
        self.set_exec(0x000F000F, 0x000F000F)
        A(f"v_max_u32 {chk}, {mv}, {lv}")
        A("s_mov_b64 exec, -1")
        A("s_waitcnt vmcnt(0)")
        self.fst(2, "wo")
        for s in self.maxops(t1, self.chk_regs(T, 0, 4) + [chk]): A(s)
        self.poll_tail(t1, "L_wo", "L_wo_d")
        A("L_wo_d:")
        ops = [f"v_mov_b32_dpp {t1}, {mv} quad_perm:[1,0,3,2] {DPP}", f"v_max_f32 {M}, {mv}, {t1}",
               f"v_mov_b32_dpp {t1}, {M} quad_perm:[2,3,0,1] {DPP}", f"v_max_f32 {M}, {M}, {t1}",
               f"v_mov_b32 {t1}, {M}", f"v_permlane16_swap_b32 {M}, {t1}", f"v_max_f32 {M}, {M}, {t1}",
               f"v_sub_f32 {e}, {mv}, {M}", f"v_exp_f32 {e}, {e}", f"v_mul_f32 {M}, {e}, {lv}",
               f"v_mov_b32_dpp {t1}, {M} quad_perm:[1,0,3,2] {DPP}", f"v_add_f32 {M}, {M}, {t1}",
               f"v_mov_b32_dpp {t1}, {M} quad_perm:[2,3,0,1] {DPP}", f"v_add_f32 {M}, {M}, {t1}",
               f"v_mov_b32 {t1}, {M}", f"v_permlane16_swap_b32 {M}, {t1}", f"v_add_f32 {M}, {M}, {t1}",
               f"v_rcp_f32 {M}, {M}", f"v_mul_f32 {w}, {e}, {M}"]
        for tt in range(4):
            for nt in range(4):
                A(f"v_mfma_f32_16x16x32_bf16 {D[nt]}, {TR(4*tt,4)}, {WR(4*(4*tt+nt),4)}, {'0' if tt == 0 else D[nt]}")
                if ops: A(ops.pop(0))
        for s in ops: A(s)
        acc = [T(41 + nt) for nt in range(4)]
        for r in range(4):
            for nt in range(4):
                op = "v_mul_f32_dpp" if r == 0 else "v_fmac_f32_dpp"
                A(f"{op} {acc[nt]}, {w}, {T(20+4*nt+r)} row_newbcast:{r} {DPP}")
        A(f"v_permlane16_swap_b32 {acc[0]}, {acc[1]}"); A(f"v_permlane16_swap_b32 {acc[2]}, {acc[3]}")
        A(f"v_add_f32 {acc[0]}, {acc[0]}, {acc[1]}"); A(f"v_add_f32 {acc[2]}, {acc[2]}, {acc[3]}")
        self.fst(3, "wo")
        A(f"ds_write_b32 {wa}, {acc[0]}"); A(f"ds_write_b32 {wa}, {acc[2]} offset:256")
        self.cbase(SA, 0, consumer=False)
        self.p_addr(X(9))
        A("s_waitcnt lgkmcnt(0)")
        A("s_barrier")
        self.fst(4, "wo")
        A(f"s_cmp_ge_u32 {sWAVE}, 2"); A("s_cbranch_scc1 L_wo_rs")
        for ww in range(4): A(f"ds_read_b32 {T(ww)}, {ra} offset:{ww*512}")
        A("s_waitcnt lgkmcnt(2)")
        A(f"v_add_f32 {T(0)}, {T(0)}, {T(1)}")
        A("s_waitcnt lgkmcnt(0)")
        A(f"v_add_f32 {T(2)}, {T(2)}, {T(3)}"); A(f"v_add_f32 {T(0)}, {T(0)}, {T(2)}")
        self.p_publish(SA, X(9), T(0))
        self.fst(5, "wo")
        self.stamp(11)
        A("s_branch L_next")
        A("L_wo_rs:")

    def p_addr(self, dst):
        A = self.A; sh = 10 if self.o.playout == 0 else 13
        A(f"v_lshrrev_b32 {dst}, 5, {LANE}"); A(f"v_lshlrev_b32 {dst}, {sh}, {dst}"); A(f"v_and_b32 {TMP}, 31, {LANE}"); A(f"v_lshl_add_u32 {dst}, {TMP}, 2, {dst}")
        A(f"s_and_b32 s68, {sWAVE}, 1"); A(f"s_lshl_b32 s68, s68, {sh+1}"); A(f"v_add_u32 {dst}, s68, {dst}")

    def rs_setup(self):
        A = self.A
        pa, xa, sa = X(8), X(10), X(11)
        A(f"v_lshrrev_b32 {X(12)}, 5, {LANE}"); A(f"s_and_b32 s68, {sWAVE}, 1"); A("s_lshl_b32 s68, s68, 1"); A(f"s_add_u32 s68, s68, {sS4}"); A(f"v_add_u32 {X(12)}, s68, {X(12)}")
        self.p_addr(pa)
        A(f"v_bfe_u32 {TMP}, {LANE}, 4, 1"); A(f"v_mul_u32_u24 {xa}, 896, {TMP}"); A(f"v_lshlrev_b32 {sa}, 8, {TMP}")
        A(f"v_lshl_add_u32 {xa}, {X(12)}, 5, {xa}"); A(f"v_lshl_add_u32 {sa}, {X(12)}, 3, {sa}")
        A(f"v_and_b32 {TMP}, 15, {LANE}"); A(f"v_lshl_add_u32 {xa}, {TMP}, 1, {xa}")
    def stage_rs(self):
        A = self.A
        pa, xa, sa = X(8), X(10), X(11)
        NS = self.o.rsets
        def issue(k):
            for g in range(8): A(f"global_load_dword {T(8*k+g)}, {pa}, {SA} offset:{self.p_poll_off(g)} sc1")
        for k in range(NS - 1): issue(k)
        A("L_rs:")
        for k in range(NS):
            issue((k + NS - 1) % NS)
            A(f"s_waitcnt vmcnt({8*(NS-1)})")
            for s in self.maxops(X(4), [T(8*k+g) for g in range(8)]): A(s)
            A(f"v_cmp_eq_u32 vcc, -1, {X(4)}")
            A(f"s_cbranch_vccz L_rs_ok{k}")
        A(f"s_cmp_eq_u32 {sBUD}, 0"); A("s_cbranch_scc1 L_rs_ok0"); A(f"s_sub_u32 {sBUD}, {sBUD}, 1")
        A("s_branch L_rs")
        for k in range(NS):
            A(f"L_rs_ok{k}:")
            b_ = 8 * k
            A(f"v_add_f32 {X(0)}, {T(b_)}, {T(b_+1)}"); A(f"v_add_f32 {X(1)}, {T(b_+2)}, {T(b_+3)}"); A(f"v_add_f32 {X(2)}, {T(b_+4)}, {T(b_+5)}"); A(f"v_add_f32 {X(3)}, {T(b_+6)}, {T(b_+7)}")
            if k != NS - 1: A("s_branch L_rs_d")
        A("L_rs_d:")
        A(f"v_cmp_eq_u32 vcc, 0xffff, {X(13)}")
        A("s_cbranch_vccz L_rsr_d")
        A("L_rsr:")
        A(f"global_load_ushort {X(13)}, {xa}, {SD} sc1"); A("s_waitcnt vmcnt(0)")
        A(f"v_cmp_eq_u32 vcc, 0xffff, {X(13)}")
        A("s_cbranch_vccz L_rsr_d")
        A(f"s_cmp_eq_u32 {sBUD}, 0"); A("s_cbranch_scc1 L_rsr_d"); A(f"s_sub_u32 {sBUD}, {sBUD}, 1")
        A("s_branch L_rsr")
        A("L_rsr_d:")
        A(f"v_add_f32 {X(0)}, {X(0)}, {X(1)}"); A(f"v_add_f32 {X(2)}, {X(2)}, {X(3)}"); A(f"v_lshlrev_b32 {X(6)}, 16, {X(13)}"); A(f"v_add_f32 {X(0)}, {X(0)}, {X(2)}")
        if self.o.round2:
            A(f"v_cvt_pk_bf16_f32 {X(0)}, {X(0)}, {X(0)}"); A(f"v_and_b32 {X(0)}, 0xffff0000, {X(0)}")
        A(f"v_add_f32 {X(0)}, {X(6)}, {X(0)}")
        if self.o.perturb:
            lab = A.label("PT")
            A("s_cmp_eq_u32 s78, 1"); A(f"s_cbranch_scc0 {lab}"); A(f"s_cmp_eq_u32 {sSIG}, 2"); A(f"s_cbranch_scc0 {lab}")
            A("s_mov_b64 exec, 1"); A(f"v_add_f32 {X(0)}, {f32(self.o.perturb)}, {X(0)}"); A("s_mov_b64 exec, -1")
            A(f"{lab}:")
        A(f"v_mov_b32_dpp {X(2)}, {X(0)} quad_perm:[1,0,3,2] {DPP}")
        A(f"v_cvt_pk_bf16_f32 {X(3)}, {X(0)}, {X(0)}")
        A(f"v_cvt_pk_bf16_f32 {X(1)}, {X(0)}, {X(2)}")
        A("s_cmp_eq_u32 s78, 1"); A("s_cbranch_scc1 L_final")
        self.set_exec(0x55555555, 0x55555555)
        self.pub(f"global_store_dword {xa}, {X(1)}, {SB}")
        A("s_mov_b64 exec, -1")
        A(f"v_and_b32 {X(2)}, 0xffff0000, {X(3)}")
        A(f"v_mul_f32 {X(3)}, {X(2)}, {X(2)}")
        for sh in (1, 2, 4, 8):
            for r in (X(2), X(3)): A(f"v_add_f32_dpp {r}, {r}, {r} row_shr:{sh} {DPP}")
        self.set_exec(0x80008000, 0x80008000)
        self.pub(f"global_store_dwordx2 {sa}, {XR(2,2)}, {SC_}")
        A("s_mov_b64 exec, -1")
        self.stamp(12)
        A("s_waitcnt vmcnt(0)")

    def stage_gu(self):
        A = self.A
        self.gbase(SC_, R_H)
        A(f"v_bfe_u32 {X(7)}, {LANE}, 4, 1"); A(f"v_mul_u32_u24 {X(7)}, 448, {X(7)}"); A(f"v_and_b32 {TMP}, 15, {LANE}"); A(f"v_lshl_add_u32 {X(7)}, {TMP}, 1, {X(7)}")
        A(f"s_lshl_b32 s68, {sSIG}, 4"); A(f"v_add_u32 {X(7)}, s68, {X(7)}")
        self.stage_ln(R_X1, R_ST1, None, 1.0, "L_gu", sleep=self.o.lnsleep)
        z = X(4)
        A(f"v_cvt_pk_bf16_f32 {z}, {z}, {z}"); A(f"v_and_b32 {z}, 0xffff0000, {z}")
        A(f"v_mov_b32_dpp {X(5)}, {z} row_ror:8 {DPP}")
        A(f"v_max_f32 {z}, 0, {z}"); A(f"v_mul_f32 {z}, {z}, {X(5)}")
        self.pack_pair(X(5), z, X(6))
        self.set_exec(0x00550055, 0)
        self.pub(f"global_store_dword {X(7)}, {X(5)}, {SC_}")
        A("s_mov_b64 exec, -1")
        self.fst(5)

    def dn_fetch(self):
        A = self.A
        A(f"s_cmp_eq_u32 {sWAVE}, 1"); A("s_cbranch_scc0 L_dn_b")
        self.gbase(SA, R_H)
        A(f"v_add_u32 {X(10)}, {LDS_RED}, {L16}")
        self.set_exec(0xFFFFFFFF, 0x00FFFFFF)
        A("L_dn:")
        A(f"global_load_dwordx4 {TR(0,4)}, {L16}, {SA} sc1"); A("s_waitcnt vmcnt(0)")
        for s in self.maxops(X(11), [T(0), T(1), T(2), T(3)]): A(s)
        self.poll_tail(X(11), "L_dn", "L_dn_d", sleep=self.o.lnsleep)
        A("L_dn_d:")
        A(f"ds_write_b128 {X(10)}, {TR(0,4)}")
        A("s_mov_b64 exec, -1")
        A("s_waitcnt lgkmcnt(0)")
        A("L_dn_b:")
        A("s_barrier")
    def stage_dn(self):
        A = self.A
        a = X(8)
        A(f"v_and_b32 {a}, 1, {LANE}"); A(f"v_mul_u32_u24 {a}, 448, {a}"); A(f"v_lshrrev_b32 {TMP}, 4, {LANE}"); A(f"v_lshl_add_u32 {a}, {TMP}, 4, {a}")
        A(f"v_add_u32 {a}, {LDS_RED}, {a}")
        self.cbase(SB, 1, consumer=False)
        self.p_addr(X(9))
        self.dn_fetch()
        A(f"s_cmp_ge_u32 {sWAVE}, 2"); A("s_cbranch_scc0 L_dn_nors")
        self.gbase(SD, R_X1)
        self.rs_setup()
        A(f"global_load_ushort {X(13)}, {X(10)}, {SD} sc1")
        A("s_branch L_dn_rs")
        A("L_dn_nors:")
        D = [XR(0, 4), XR(4, 4)]
        for t in range(7): A(f"ds_read_b128 {TR(4*t,4)}, {a} offset:{t*64}")
        for t in range(7):
            if t in (0, 3, 5): A(f"s_waitcnt lgkmcnt({ {0: 4, 3: 2, 5: 0}[t] })")
            for u in range(2):
                A(f"v_mfma_f32_16x16x32_bf16 {D[u]}, {TR(4*t,4)}, {WR(4*(2*t+u),4)}, {'0' if t == 0 else D[u]}")
        A(f"v_permlane16_swap_b32 {X(0)}, {X(1)}"); A(f"v_permlane16_swap_b32 {X(4)}, {X(5)}")
        A(f"v_permlane32_swap_b32 {X(0)}, {X(4)}")
        self.p_publish(SB, X(9), X(0))

    def stage_q2(self):
        A = self.A
        self.gbase(SC_, R_Q, 1)
        A(f"v_bfe_u32 {X(7)}, {LANE}, 4, 1"); A(f"v_lshlrev_b32 {X(7)}, 10, {X(7)}"); A(f"v_and_b32 {TMP}, 15, {LANE}"); A(f"v_lshl_add_u32 {X(7)}, {TMP}, 1, {X(7)}")
        A(f"s_lshl_b32 s68, {sSIG}, 5"); A(f"v_add_u32 {X(7)}, s68, {X(7)}")
        self.stage_ln(R_X2, R_ST2, 0, QSCALE, "L_qx", sleep=self.o.lnsleep)
        self.pack_pair(X(5), X(4), X(6))
        self.set_exec(0x55555555, 0)
        self.pub(f"global_store_dword {X(7)}, {X(5)}, {SC_}")
        A("s_mov_b64 exec, -1")

    def finish(self):
        A = self.A
        if not self.o.prof: return
        A("s_lshl_b32 s68, s2, 2"); A(f"s_add_u32 s68, s68, {sWAVE}"); A("s_lshl_b32 s68, s68, 7"); A(f"v_mov_b32 {X(0)}, s68")
        A("s_mov_b64 exec, 1")
        for k in range(20):
            A(f"v_mov_b32 {X(1)}, s{80+k}"); A(f"global_store_dword {X(0)}, {X(1)}, {sWS} offset:{4*k}")
        for k in range(9):
            A(f"v_mov_b32 {X(1)}, s{36+k}"); A(f"global_store_dword {X(0)}, {X(1)}, {sWS} offset:{80+4*k}")
        A(f"v_mov_b32 {X(1)}, {sMODE}"); A(f"global_store_dword {X(0)}, {X(1)}, {sWS} offset:116")
        A(f"v_mov_b32 {X(1)}, {sBUD}"); A(f"global_store_dword {X(0)}, {X(1)}, {sWS} offset:120")

    def build(self):
        A = self.A; o = self.o
        self.prologue()
        if o.prof:
            for k in range(9): A(f"s_mov_b32 s{36+k}, 0")
        self.stream()
        A("L_layer:")
        self.get_q()
        self.stamp(6)
        self.attention()
        A(f"s_cmp_eq_u32 {sWAVE}, 0"); A("s_cbranch_scc0 L_nocomb")
        self.combine_publish()
        self.stamp(10)
        A("L_nocomb:")
        A(f"s_cmp_eq_u32 {sROLE}, {ROLE_GU}"); A("s_cbranch_scc1 L_gu_s")
        A(f"s_cmp_eq_u32 {sROLE}, {ROLE_DN}"); A("s_cbranch_scc1 L_dn_s")
        A(f"s_cmp_eq_u32 {sROLE}, {ROLE_WQ}"); A("s_cbranch_scc1 L_wq_s")
        A(f"s_cmp_eq_u32 {sROLE}, {ROLE_WO}"); A("s_cbranch_scc0 L_next")
        self.stage_wo()
        self.cbase(SA, 0); self.gbase(SB, R_X1); self.gbase(SC_, R_ST1); A("s_mov_b32 s78, 0")
        A("L_rs_entry:")
        self.stage_rs()
        self.dstamp(6, layer=0)
        A("s_branch L_next")
        A("L_gu_s:")
        self.stage_gu()
        self.stamp(13)
        A("s_branch L_next")
        A("L_dn_s:")
        self.stage_dn()
        self.stamp(14)
        A("s_branch L_next")
        A("L_dn_rs:")
        self.cbase(SA, 1); self.gbase(SB, R_X2); self.gbase(SC_, R_ST2); A(f"s_mov_b32 s78, {sLAYER}")
        A("s_branch L_rs_entry")
        A("L_wq_s:")
        A(f"s_cmp_eq_u32 {sLAYER}, 1"); A("s_cbranch_scc1 L_fin")
        self.stage_q2()
        self.stamp(15)
        A("L_next:")
        A(f"s_cmp_eq_u32 {sLAYER}, 1"); A("s_cbranch_scc1 L_fin")
        A(f"s_mov_b32 {sLAYER}, 1")
        A("s_branch L_layer")
        A("L_final:")
        A(f"s_cmp_eq_u32 {sGI}, 0"); A("s_cbranch_scc0 L_fin")
        self.set_exec(0x55555555, 0x55555555)
        A(f"global_store_dword {X(10)}, {X(1)}, {sOUT}")
        A(f"s_cmp_eq_u32 {sSIG}, 2"); A("s_cbranch_scc0 L_noep")
        A("s_mov_b64 exec, 1")
        A(f"v_mov_b32 {X(2)}, {EOFF}"); A(f"v_mov_b32 {X(3)}, {sTAG}")
        A(f"global_store_dword {X(2)}, {X(3)}, {sWS}")
        A("L_noep:")
        A("s_mov_b64 exec, -1")
        A("L_fin:")
        self.dstamp(10)
        self.stamp(16)
        self.finish()
        A("L_end:")
        A("s_endpgm")
        lines, n = hazard.fix(A.L, verbose=o.verbose)
        A.L = lines
        return A

def main():
    ap = argparse.ArgumentParser()
    ap.add_argument("-o", default="k3.s")
    ap.add_argument("--prof", action="store_true")
    ap.add_argument("--slow", action="store_true")
    ap.add_argument("--nt", type=int, default=1)
    ap.add_argument("--wnt", type=int, default=1)
    ap.add_argument("--win", type=int, default=12)
    ap.add_argument("--winv", type=int, default=60)
    ap.add_argument("--budget", type=int, default=200000)
    ap.add_argument("--gate", type=int, default=0)
    ap.add_argument("--gatesleep", type=int, default=1)
    ap.add_argument("--qsleep", type=int, default=1)
    ap.add_argument("--trypoll", type=int, default=6)
    ap.add_argument("--k0", type=int, default=2)
    ap.add_argument("--prefetch", type=int, default=0)
    ap.add_argument("--rsets", type=int, default=1)
    ap.add_argument("--lnsleep", type=int, default=0)
    ap.add_argument("--playout", type=int, default=0)
    ap.add_argument("--exp", default="")
    ap.add_argument("--perturb", type=float, default=0.0)
    ap.add_argument("--vdist", type=int, default=3)
    ap.add_argument("--fullcheck", type=int, default=0)
    ap.add_argument("--round2", type=int, default=0)
    ap.add_argument("--stamps", default=None)
    ap.add_argument("--verbose", action="store_true")
    ap.add_argument("--dbgstamps", action="store_true")
    ap.add_argument("--fine", default="")
    o = ap.parse_args()
    g = Gen(o); A = g.build(); A.write(o.o)
    print("wrote", o.o, len(A.L), "lines")
main()
```

```python
import sys, argparse, struct
from asmlib import Asm, NAME
import hazard

GOFF = 0x100000; LSTRIDE = 0x8000
R_Q = 0x0000; R_ML = 0x0800; R_X1 = 0x0A00; R_ST1 = 0x1100; R_H = 0x1300; R_X2 = 0x1800; R_ST2 = 0x1F00; R_O = 0x4000
COFF = GOFF + 0x80000
EOFF = 0x0F0000
QTOFF = 0x0F8000
TAGC = 0x9E3779B9
NLDS = 19
VW = NLDS * 2048
LDS_OP = 4 * VW; LDS_MLP = LDS_OP + 4096; LDS_QL = LDS_MLP + 64; LDS_FLAG = LDS_QL + 512; LDS_RED = LDS_FLAG + 64
assert LDS_RED + 2048 <= 163840
LOG2E = 1.4426950408889634
QSCALE = LOG2E / 16.0
ROLE_WQ, ROLE_WO, ROLE_GU, ROLE_DN, ROLE_NONE = 0, 1, 2, 3, 4

def f32(x): return "0x%08x" % struct.unpack("<I", struct.pack("<f", x))[0]
def X(n): assert 0 <= n < 20; return f"v{4+n}"
def T(n): assert 0 <= n < 64; return f"v{24+n}"
def W(n): assert 0 <= n < 64; return f"v{88+n}"
def VR(n): assert 0 <= n < 104; return f"v{152+n}"
def rng(f, a, n):
    s = f(a); k = int(s[1:]); assert n == 1 or k % 2 == 0, (s, n); return f"{s[0]}[{k}:{k+n-1}]"
def XR(a, n): return rng(X, a, n)
def TR(a, n): return rng(T, a, n)
def WR(a, n): return rng(W, a, n)
def VRR(a, n): return rng(VR, a, n)
LANE = "v0"; CS = "v1"; L16 = "v2"; TMP = "v3"
sM0B = "s3"
sXIN = "s[4:5]"
sOUT = "s[16:17]"; sDBG = "s[18:19]"; sWS = "s[20:21]"; sG = "s[22:23]"; sC = "s[24:25]"
sWAVE = "s26"; sGI = "s27"; sJ = "s28"; sHL = "s29"; sB = "s30"; sSP = "s31"
sMODE = "s32"; sBUD = "s33"; sLAYER = "s34"; sTILE = "s35"
sTAG = "s46"; sROLE = "s6"; sSIG = "s7"; sS4 = "s47"
sSEL = "s[60:61]"
sMA = "s[54:55]"
SA = "s[70:71]"; SB = "s[72:73]"; SC_ = "s[74:75]"; SD = "s[64:65]"
WBAR = "v[14:15]"; WBAR0 = "v14"; WBAR1 = "v15"
DPP = "row_mask:0xf bank_mask:0xf"

class Gen:
    def __init__(self, opt):
        self.o = opt; self.A = Asm(); self.ob = 0
    def stamp(self, k):
        if not self.o.prof: return
        if self.o.stamps is not None and k not in [int(x) for x in self.o.stamps.split(",")]: return
        A = self.A
        A("s_memrealtime s[76:77]"); A("s_waitcnt lgkmcnt(0)")
        if 6 <= k <= 14:
            A(f"s_cmp_eq_u32 {sLAYER}, 0"); A(f"s_cselect_b32 s{80+k}, s76, s{80+k}"); A(f"s_cselect_b32 s{30+k}, s{30+k}, s76")
        else:
            A(f"s_mov_b32 s{80+k}, s76")
    def dstamp(self, word, neg=False, layer=None):
        if not self.o.dbgstamps: return
        A = self.A
        lab = A.label("DS")
        A("s_cmp_eq_u32 s2, 176"); A(f"s_cbranch_scc0 {lab}"); A(f"s_cmp_eq_u32 {sWAVE}, 0"); A(f"s_cbranch_scc0 {lab}")
        if layer is not None:
            A(f"s_cmp_eq_u32 {sLAYER}, {layer}"); A(f"s_cbranch_scc0 {lab}")
        A("s_memrealtime s[76:77]"); A("s_waitcnt lgkmcnt(0)")
        A(f"v_mov_b32 v86, s76"); A(f"v_mov_b32 v87, {4*word}")
        A("s_mov_b64 s[78:79], exec"); A("s_mov_b64 exec, 1")
        A(f"global_store_dword v87, v86, {sDBG}")
        A("s_mov_b64 exec, s[78:79]")
        A(f"{lab}:")
    def fst(self, k, which="ln"):
        if self.o.fine != which: return
        A = self.A
        A("s_memtime s[76:77]"); A("s_waitcnt lgkmcnt(0)"); A(f"s_mov_b32 s{90+k}, s76")
    def gbase(self, dst, off, layer=None):
        A = self.A; d = int(dst[2:dst.index(":")])
        if layer is None:
            A(f"s_mul_i32 s68, {sLAYER}, {LSTRIDE}"); A(f"s_add_u32 s68, s68, {off}")
            A(f"s_add_u32 s{d}, s22, s68")
        else:
            A(f"s_add_u32 s{d}, s22, {off + layer*LSTRIDE}")
        A(f"s_addc_u32 s{d+1}, s23, 0")
    def cbase(self, dst, kind, consumer=True):
        A = self.A; d = int(dst[2:dst.index(":")]); L = self.o.playout
        A(f"s_lshl_b32 s68, {sLAYER}, 19"); A(f"s_lshl_b32 s69, {sS4}, {10 if L == 0 else 13}"); A("s_add_u32 s68, s68, s69")
        if consumer:
            sh = {0: 15, 1: 7, 2: 10}[L]; extra = {0: 0, 1: 4096, 2: 0}[L]
        else:
            sh = {0: 7, 1: 10, 2: 7}[L]; extra = {0: 0, 1: 0, 2: 4096}[L]
        if consumer and self.o.ncopies < 8: A(f"s_and_b32 s69, {sGI}, {self.o.ncopies - 1}"); A(f"s_lshl_b32 s69, s69, {sh}")
        else: A(f"s_lshl_b32 s69, {sGI}, {sh}")
        A("s_add_u32 s68, s68, s69"); A(f"s_add_u32 s68, s68, {kind*0x40000 + extra}")
        A(f"s_add_u32 s{d}, s24, s68"); A(f"s_addc_u32 s{d+1}, s25, 0")
    def p_store_addr(self, dst):
        self.p_addr(dst)
    def p_publish(self, base, vaddr, val, t4):
        A = self.A; d = int(base[2:base.index(":")]); N = self.o.ncopies
        for c in range(N):
            A(f"global_store_dword {vaddr}, {val}, {base} sc1")
            if c != N - 1: A(f"s_add_u32 s{d}, s{d}, 0x8000"); A(f"s_addc_u32 s{d+1}, s{d+1}, 0")
    def p_poll_off(self, g):
        return {0: g * 128, 1: g * 1024 - 4096, 2: g * 128}[self.o.playout]
    def maxops(self, dst, regs, first=True):
        out = []; regs = list(regs)
        if first:
            if len(regs) >= 3: out.append(f"v_max3_u32 {dst}, {regs[0]}, {regs[1]}, {regs[2]}"); regs = regs[3:]
            elif len(regs) == 2: out.append(f"v_max_u32 {dst}, {regs[0]}, {regs[1]}"); regs = []
            else: out.append(f"v_mov_b32 {dst}, {regs[0]}"); regs = []
        while len(regs) >= 2:
            out.append(f"v_max3_u32 {dst}, {dst}, {regs[0]}, {regs[1]}"); regs = regs[2:]
        if regs: out.append(f"v_max_u32 {dst}, {dst}, {regs[0]}")
        return out
    def chk_regs(self, f, base, nload):
        if self.o.fullcheck: return [f(base + k) for k in range(4 * nload)]
        return [f(base + 4 * k) for k in range(nload)]
    def poll_tail(self, chk, loop, done, sleep=0):
        A = self.A
        A(f"v_cmp_eq_u32 vcc, -1, {chk}")
        A(f"s_cbranch_vccz {done}")
        A(f"s_cmp_eq_u32 {sBUD}, 0"); A(f"s_cbranch_scc1 {done}")
        A(f"s_sub_u32 {sBUD}, {sBUD}, 1")
        if sleep: A(f"s_sleep {sleep}")
        A(f"s_branch {loop}")
    def gate(self, base, vaddr, off, dst, lab):
        if not self.o.gate: return
        A = self.A
        A(f"{lab}:")
        A(f"global_load_dword {dst}, {vaddr}, {base} offset:{off} sc1"); A("s_waitcnt vmcnt(0)")
        self.poll_tail(dst, lab, lab + "_d", sleep=self.o.gatesleep)
        A(f"{lab}_d:")
    def pub(self, instr):
        A = self.A
        l1 = A.label("PUBF"); l2 = A.label("PUBD")
        A(f"s_cmp_eq_u32 {sMODE}, 1"); A(f"s_cbranch_scc1 {l1}")
        A(instr + " sc1"); A(f"s_branch {l2}")
        A(f"{l1}:"); A(instr); A(f"{l2}:")
    def set_exec(self, lo, hi):
        A = self.A
        if lo == 0xFFFFFFFF and hi == 0xFFFFFFFF: A("s_mov_b64 exec, -1"); return
        A(f"s_mov_b32 exec_lo, {hex(lo)}"); A(f"s_mov_b32 exec_hi, {hex(hi)}")
    def ln_addr(self, dst):
        A = self.A
        A(f"v_and_b32 {dst}, 1, {LANE}"); A(f"v_mul_u32_u24 {dst}, 896, {dst}")
        A(f"v_lshrrev_b32 {TMP}, 4, {LANE}"); A(f"v_lshl_add_u32 {dst}, {TMP}, 4, {dst}")
    def xst_addr(self, dst):
        A = self.A
        A(f"v_bfe_u32 {TMP}, {LANE}, 4, 1"); A(f"v_mul_u32_u24 {dst}, 896, {TMP}")
        A(f"v_and_b32 {TMP}, 15, {LANE}"); A(f"v_lshl_add_u32 {dst}, {TMP}, 1, {dst}")
        A(f"s_lshl_b32 s68, {sSIG}, 5"); A(f"v_add_u32 {dst}, s68, {dst}")
    def pack_pair(self, dst, val, tmp):
        A = self.A
        A(f"v_mov_b32_dpp {tmp}, {val} quad_perm:[1,0,3,2] {DPP}")
        A(f"v_cvt_pk_bf16_f32 {dst}, {val}, {tmp}")

    def prologue(self):
        A = self.A; o = self.o
        wnt = " nt" if o.wnt else ""
        A(f"""
        s_cmp_ge_u32 s2, 256
        s_cbranch_scc1 L_end
        {"s_memrealtime s[100:101]" if o.dbgstamps else ""}
        s_load_dwordx16 s[36:51], s[0:1], 0
        s_load_dwordx8 s[52:59], s[0:1], 64
        v_lshrrev_b32 v1, 6, v0
        v_and_b32 v0, 63, v0
        s_and_b32 {sGI}, s2, 7
        v_readfirstlane_b32 {sWAVE}, v1
        s_lshr_b32 {sJ}, s2, 3
        s_lshr_b32 s68, {sJ}, 3
        s_and_b32 {sSP}, {sJ}, 7
        s_and_b32 {sHL}, s68, 1
        s_lshr_b32 {sB}, s68, 1
        s_mov_b32 {sBUD}, {o.budget}
        s_mov_b32 {sLAYER}, 0
        s_mov_b32 {sMODE}, 0
        s_mov_b32 s60, 0xffff0000
        s_mov_b32 s61, 0xffff0000
        v_lshlrev_b32 {L16}, 4, {LANE}
        v_mov_b32 {CS}, 0
        s_lshl_b32 s68, {sGI}, 1
        s_add_u32 s68, s68, {sHL}
        s_lshl_b32 s69, {sB}, 4
        s_add_u32 s68, s68, s69
        s_lshl_b32 {sTILE}, s68, 21
        s_lshl_b32 s68, {sSP}, 15
        s_add_u32 {sTILE}, {sTILE}, s68
        s_lshl_b32 s68, {sWAVE}, 13
        s_add_u32 {sTILE}, {sTILE}, s68
        s_mul_i32 {sM0B}, {sWAVE}, {VW}
        """)
        A(f"s_mov_b32 {sROLE}, {ROLE_WQ}"); A(f"s_mov_b32 s62, {sJ}")
        for (lim, role) in ((8, ROLE_WO), (15, ROLE_GU), (22, ROLE_DN), (29, ROLE_NONE)):
            A(f"s_cmp_ge_u32 {sJ}, {lim}"); A(f"s_cselect_b32 {sROLE}, {role}, {sROLE}"); A(f"s_sub_u32 s68, {sJ}, {lim}")
            A(f"s_cmp_ge_u32 {sJ}, {lim}"); A("s_cselect_b32 s62, s68, s62")
        A(f"s_lshl_b32 {sSIG}, s62, 2"); A(f"s_add_u32 {sSIG}, {sSIG}, {sWAVE}")
        A("s_waitcnt lgkmcnt(0)")
        self.stamp(0)
        if o.prof:
            for k in range(1, 20): A(f"s_mov_b32 s{80+k}, 0")
        A(f"""
        s_load_dword {sTAG}, s[58:59], {EOFF}
        s_sub_u32 {sS4}, {sSIG}, {sWAVE}
        s_mov_b32 s8, s38
        s_mov_b32 s9, s39
        s_mov_b32 s10, 0x4000000
        s_mov_b32 s11, 0x00020000
        s_mov_b32 s12, s40
        s_mov_b32 s13, s41
        s_mov_b32 s14, 0x4000000
        s_mov_b32 s15, 0x00020000
        s_mov_b32 s4, s36
        s_mov_b32 s5, s37
        s_mov_b32 s16, s54
        s_mov_b32 s17, s55
        s_mov_b32 s18, s56
        s_mov_b32 s19, s57
        s_mov_b32 s20, s58
        s_mov_b32 s21, s59
        s_lshl_b32 s68, {sGI}, 16
        s_add_u32 s68, s68, {GOFF}
        s_add_u32 s22, s58, s68
        s_addc_u32 s23, s59, 0
        s_add_u32 s24, s58, {COFF}
        s_addc_u32 s25, s59, 0
        s_mov_b64 s[70:71], s[58:59]
        s_mov_b64 s[72:73], s[58:59]
        s_mov_b64 s[74:75], s[58:59]
        """)
        if o.dbgstamps:
            A("s_cmp_eq_u32 s2, 176"); A("s_cbranch_scc0 L_ds0"); A(f"s_cmp_eq_u32 {sWAVE}, 0"); A("s_cbranch_scc0 L_ds0")
            A("v_mov_b32 v86, s100"); A("v_mov_b32 v87, 8"); A("s_mov_b64 exec, 1")
            A(f"global_store_dword v87, v86, {sDBG}"); A("s_mov_b64 exec, -1")
            A("L_ds0:")
            self.dstamp(3)
        self.ld_setup()
        self.ob = 0
        self.ktile(0, 64)
        if o.prefetch: self.prefetch_weights()
        for tau in range(1, o.k0): self.ktile(tau, 64)
        if 8 * o.k0 + (14 if o.prefetch else 0) > 16: A("s_waitcnt vmcnt(16)")
        row8, c, off = X(2), X(3), X(4)
        A(f"v_lshrrev_b32 {row8}, 3, {LANE}"); A(f"v_and_b32 {c}, 7, {LANE}")
        A(f"s_cmp_eq_u32 {sROLE}, {ROLE_WO}"); A("s_cbranch_scc1 L_w1")
        A(f"s_cmp_eq_u32 {sROLE}, {ROLE_GU}"); A("s_cbranch_scc1 L_w2")
        A(f"s_cmp_eq_u32 {sROLE}, {ROLE_DN}"); A("s_cbranch_scc1 L_w3")
        A(f"s_cmp_eq_u32 {sROLE}, {ROLE_WQ}"); A("s_cbranch_scc1 L_w0")
        A(f"v_mov_b32 {off}, 0"); A("s_mov_b32 s63, 0"); A("s_mov_b32 s66, 0"); A("s_mov_b32 s67, 0")
        A("s_mov_b32 s64, s42"); A("s_mov_b32 s65, s43"); A("s_mov_b32 s78, s42"); A("s_mov_b32 s79, s43")
        A("s_branch L_wdone")
        A("L_w0:")
        A(f"s_mul_i32 s68, {sWAVE}, 112"); A(f"v_add_u32 {X(5)}, s68, {row8}"); A(f"v_lshlrev_b32 {off}, 13, {X(5)}")
        A(f"v_lshl_add_u32 {off}, {c}, 4, {off}"); A(f"s_lshl_b32 s68, {sGI}, 10"); A("s_lshl_b32 s69, s62, 7"); A("s_add_u32 s68, s68, s69"); A(f"v_add_u32 {off}, s68, {off}")
        A("s_mov_b32 s63, 14"); A(f"s_mov_b32 s66, {8*8192}"); A(f"s_mul_i32 s67, {sWAVE}, 14336")
        A("s_mov_b32 s64, s42"); A("s_mov_b32 s65, s43"); A("s_mov_b32 s78, s42"); A("s_mov_b32 s79, s43")
        self.ln_addr(X(8))
        self.set_exec(0x00030003, 0x00030003)
        for t in range(14):
            A(f"global_load_dwordx4 {TR(4*t,4)}, {X(8)}, {sXIN} offset:{t*64}")
        A("s_mov_b64 exec, -1")
        for k in range(8): A(f"v_mov_b32 {T(56+k)}, 0")
        self.set_exec(0xFFFFFFFF, 0x00FFFFFF)
        A(f"global_load_dwordx4 {TR(56,4)}, {L16}, {sXIN}"); A(f"global_load_dwordx4 {TR(60,4)}, {L16}, {sXIN} offset:896")
        A("s_mov_b64 exec, -1")
        A("s_branch L_wdone")
        A("L_w1:")
        A(f"v_and_b32 {X(5)}, 3, {row8}"); A(f"v_lshlrev_b32 {X(5)}, 3, {X(5)}"); A(f"v_lshrrev_b32 {X(6)}, 2, {row8}"); A(f"v_add_u32 {X(5)}, {X(5)}, {X(6)}")
        A(f"s_lshl_b32 s68, {sGI}, 9"); A(f"s_lshl_b32 s69, {sWAVE}, 7"); A("s_add_u32 s68, s68, s69"); A(f"v_add_u32 {X(5)}, s68, {X(5)}")
        A(f"v_mul_u32_u24 {off}, 896, {X(5)}"); A(f"v_lshl_add_u32 {off}, {c}, 4, {off}"); A("s_lshl_b32 s68, s62, 7"); A(f"v_add_u32 {off}, s68, {off}")
        A(f"v_lshrrev_b32 {X(12)}, 5, {LANE}"); A(f"s_and_b32 s68, {sWAVE}, 1"); A("s_lshl_b32 s68, s68, 1"); A(f"s_add_u32 s68, s68, {sS4}"); A(f"v_add_u32 {X(12)}, s68, {X(12)}")
        A(f"v_bfe_u32 {TMP}, {LANE}, 4, 1"); A(f"v_mul_u32_u24 {X(10)}, 896, {TMP}"); A(f"v_lshl_add_u32 {X(10)}, {X(12)}, 5, {X(10)}")
        A(f"v_and_b32 {TMP}, 15, {LANE}"); A(f"v_lshl_add_u32 {X(10)}, {TMP}, 1, {X(10)}")
        A(f"global_load_ushort {CS}, {X(10)}, {sXIN}")
        A("s_mov_b32 s63, 16"); A("s_mov_b32 s66, 0"); A(f"s_mov_b32 s67, {sM0B}")
        A("s_mov_b32 s64, s44"); A("s_mov_b32 s65, s45"); A("s_mov_b32 s78, s44"); A("s_mov_b32 s79, s45")
        A("s_branch L_wdone")
        A("L_w2:")
        A(f"s_mul_i32 s68, {sWAVE}, 112"); A(f"v_add_u32 {X(5)}, s68, {row8}"); A(f"v_mul_u32_u24 {off}, 3584, {X(5)}")
        A(f"v_and_b32 {X(6)}, 3, {c}"); A(f"v_lshl_add_u32 {off}, {X(6)}, 4, {off}")
        A(f"s_mul_i32 s68, {sGI}, 448"); A("s_lshl_b32 s69, s62, 6"); A("s_add_u32 s68, s68, s69"); A(f"v_add_u32 {off}, s68, {off}")
        A("s_mov_b32 s63, 14"); A(f"s_mov_b32 s66, {8*3584}"); A(f"s_mul_i32 s67, {sWAVE}, 14336")
        A("s_mov_b32 s64, s48"); A("s_mov_b32 s65, s49"); A("s_mov_b32 s78, s50"); A("s_mov_b32 s79, s51")
        A("s_branch L_wdone")
        A("L_w3:")
        A(f"s_mul_i32 s68, {sGI}, 224"); A(f"s_mul_i32 s69, {sWAVE}, 56"); A("s_add_u32 s68, s68, s69"); A(f"v_add_u32 {X(5)}, s68, {row8}")
        A(f"v_mul_u32_u24 {off}, 896, {X(5)}"); A(f"v_lshl_add_u32 {off}, {c}, 4, {off}"); A("s_lshl_b32 s68, s62, 7"); A(f"v_add_u32 {off}, s68, {off}")
        A("s_mov_b32 s63, 7"); A(f"s_mov_b32 s66, {8*896}"); A(f"s_mul_i32 s67, {sWAVE}, 7168")
        A("s_mov_b32 s64, s52"); A("s_mov_b32 s65, s53"); A("s_mov_b32 s78, s52"); A("s_mov_b32 s79, s53")
        A("L_wdone:")
        A(f"v_cmp_le_u32 vcc, 4, {c}")
        A(f"v_mov_b32 {X(0)}, s64"); A(f"v_mov_b32 {X(5)}, s78"); A(f"v_cndmask_b32 {X(0)}, {X(0)}, {X(5)}, vcc")
        A(f"v_mov_b32 {X(1)}, s65"); A(f"v_mov_b32 {X(5)}, s79"); A(f"v_cndmask_b32 {X(1)}, {X(1)}, {X(5)}, vcc")
        A(f"v_add_co_u32 {X(0)}, vcc, {X(0)}, {off}"); A(f"v_addc_co_u32 {X(1)}, vcc, 0, {X(1)}, vcc")
        A("s_mov_b32 s68, s67"); A("s_mov_b32 s69, 0")
        if "now" in self.o.exp: A("s_mov_b32 s63, 0")
        if "nogu" in self.o.exp:
            A(f"s_cmp_eq_u32 {sROLE}, {ROLE_GU}"); A("s_cselect_b32 s63, 0, s63")
        A("s_cmp_eq_u32 s63, 0"); A("s_cbranch_scc1 L_wld_done")
        A("L_wld:")
        A("s_mov_b32 m0, s68")
        A("s_add_u32 s68, s68, 1024")
        A(f"global_load_lds_dwordx4 {XR(0,2)}, off{wnt}")
        A("s_add_u32 s69, s69, 1"); A("s_and_b32 s62, s69, 3"); A("s_cmp_eq_u32 s62, 0"); A(f"s_mov_b32 s76, {26*896}"); A(f"s_cselect_b32 s62, s76, {2*896}")
        A(f"s_cmp_eq_u32 {sROLE}, {ROLE_WO}"); A("s_cselect_b32 s62, s62, s66")
        A(f"v_add_co_u32 {X(0)}, vcc, s62, {X(0)}"); A(f"v_addc_co_u32 {X(1)}, vcc, 0, {X(1)}, vcc")
        A("s_cmp_lt_u32 s69, s63"); A("s_cbranch_scc1 L_wld")
        A("L_wld_done:")
        A("s_mov_b32 s48, 0x22222222"); A("s_mov_b32 s49, 0x22222222"); A("s_mov_b32 s50, 0x44444444"); A("s_mov_b32 s51, 0x44444444")
        A("s_mov_b32 s52, 0x88888888"); A("s_mov_b32 s53, 0x88888888")
        A("s_mov_b32 s54, 0x00030003"); A("s_mov_b32 s55, 0x00030003")
        A("s_mov_b32 s56, 0x000c000c"); A("s_mov_b32 s57, 0x000c000c"); A("s_mov_b32 s58, 0x00300030"); A("s_mov_b32 s59, 0x00300030")
        A("s_mov_b32 s62, 0x00c000c0"); A("s_mov_b32 s63, 0x00c000c0")
        A(f"s_cmp_eq_u32 {sWAVE}, 3"); A("s_cbranch_scc0 L_noclr")
        for k in range(4): A(f"v_mov_b32 {X(12+k)}, -1")
        A(f"s_lshl_b32 s68, {sJ}, 11"); A(f"v_add_u32 {X(8)}, s68, {L16}")
        A(f"global_store_dwordx4 {X(8)}, {XR(12,4)}, {sG} sc1"); A(f"global_store_dwordx4 {X(8)}, {XR(12,4)}, {sG} offset:1024 sc1")
        A(f"s_lshl_b32 s68, s2, 12"); A(f"v_add_u32 {X(9)}, s68, {L16}")
        for k in range(4): A(f"global_store_dwordx4 {X(9)}, {XR(12,4)}, {sC} offset:{k*1024} sc1")
        A("L_noclr:")

    def prefetch_weights(self):
        A = self.A
        f = {0: "", 1: "", 2: " nt"}[self.o.prefetch]
        u = "s78"
        A(f"s_lshl_b32 {u}, {sJ}, 2"); A(f"s_add_u32 {u}, {u}, {sWAVE}")
        d = [192]
        def ld(addr, base, off=0):
            A(f"global_load_dwordx4 a[{d[0]}:{d[0]+3}], {addr}, {base}" + (f" offset:{off}" if off else "") + f); d[0] += 4
        A(f"s_cmp_lt_u32 {u}, 112"); A("s_cbranch_scc0 L_pf1")
        A(f"s_lshl_b32 s68, {u}, 15"); A(f"s_lshl_b32 s69, {sGI}, 10"); A("s_add_u32 s68, s68, s69"); A(f"v_add_u32 {X(10)}, s68, {L16}")
        for k in range(4):
            ld(X(10), "s[42:43]")
            if k != 3: A(f"v_add_u32 {X(10)}, 8192, {X(10)}")
        A(f"v_lshrrev_b32 {X(11)}, 5, {LANE}"); A(f"v_mul_u32_u24 {X(11)}, 3584, {X(11)}"); A(f"v_and_b32 {X(12)}, 31, {LANE}"); A(f"v_lshl_add_u32 {X(11)}, {X(12)}, 4, {X(11)}")
        A(f"s_mul_i32 s68, {u}, {4*3584}"); A(f"s_mul_i32 s69, {sGI}, 448"); A("s_add_u32 s68, s68, s69"); A(f"v_add_u32 {X(11)}, s68, {X(11)}")
        A(f"v_add_u32 {X(12)}, 7168, {X(11)}")
        self.set_exec(0x0FFFFFFF, 0x0FFFFFFF)
        for base in ("s[48:49]", "s[50:51]"):
            ld(X(11), base); ld(X(12), base)
        A("s_mov_b64 exec, -1")
        A("L_pf1:")
        d[0] = 224
        A(f"s_mul_i32 s68, {sGI}, 458752"); A(f"s_mul_i32 s69, {u}, 3584"); A("s_add_u32 s68, s68, s69"); A(f"v_add_u32 {X(10)}, s68, {L16}")
        for k in range(3): ld(X(10), "s[44:45]", k * 1024)
        self.set_exec(0xFFFFFFFF, 0)
        ld(X(10), "s[44:45]", 3072)
        A("s_mov_b64 exec, -1")
        A(f"s_mul_i32 s68, {sGI}, 200704"); A(f"s_mul_i32 s69, {u}, 1568"); A("s_add_u32 s68, s68, s69"); A(f"v_add_u32 {X(10)}, s68, {L16}")
        ld(X(10), "s[52:53]")
        self.set_exec(0xFFFFFFFF, 0x3)
        ld(X(10), "s[52:53]", 1024)
        A("s_mov_b64 exec, -1")

    def tr_reads(self):
        A = self.A
        a = X(8); r, c, g4 = X(10), X(9), TMP
        A(f"v_and_b32 {c}, 15, {LANE}"); A(f"v_lshrrev_b32 {r}, 2, {c}"); A(f"v_and_b32 {c}, 3, {c}")
        A(f"v_lshrrev_b32 {a}, 4, {LANE}"); A(f"v_lshlrev_b32 {a}, 3, {a}"); A(f"v_add_u32 {a}, {a}, {r}")
        A(f"v_lshlrev_b32 {a}, 7, {a}")
        A(f"s_cmp_eq_u32 {sROLE}, {ROLE_WO}"); A("s_cbranch_scc1 L_tr_wo")
        A(f"s_cmp_eq_u32 {sROLE}, {ROLE_GU}"); A("s_cbranch_scc1 L_tr_gu")
        A(f"s_cmp_eq_u32 {sROLE}, {ROLE_DN}"); A("s_cbranch_scc1 L_tr_dn")
        A(f"v_lshl_add_u32 {a}, {c}, 3, {a}"); A(f"s_lshl_b32 s68, {sWAVE}, 5"); A(f"v_add_u32 {a}, s68, {a}")
        A("s_branch L_tr_n")
        A("L_tr_gu:")
        A(f"v_and_b32 {r}, 1, {c}"); A(f"v_lshl_add_u32 {a}, {r}, 3, {a}"); A(f"v_lshrrev_b32 {r}, 1, {c}"); A(f"v_lshl_add_u32 {a}, {r}, 6, {a}")
        A(f"s_lshl_b32 s68, {sWAVE}, 4"); A(f"v_add_u32 {a}, s68, {a}")
        A("L_tr_n:")
        for t in range(14):
            A(f"ds_read_b64_tr_b16 {WR(4*t,2)}, {a} offset:{t*4096}")
            A(f"ds_read_b64_tr_b16 {WR(4*t+2,2)}, {a} offset:{t*4096+512}")
            if t % 4 == 3: A("s_waitcnt lgkmcnt(0)")
        A("s_branch L_tr_d")
        A("L_tr_dn:")
        A(f"v_lshl_add_u32 {a}, {c}, 3, {a}"); A(f"s_and_b32 s68, {sWAVE}, 1"); A("s_lshl_b32 s68, s68, 6"); A(f"v_add_u32 {a}, s68, {a}")
        for t in range(7):
            for u in range(2):
                k = 4 * (2 * t + u)
                A(f"ds_read_b64_tr_b16 {WR(k,2)}, {a} offset:{t*4096+u*32}")
                A(f"ds_read_b64_tr_b16 {WR(k+2,2)}, {a} offset:{t*4096+u*32+512}")
            if t % 2 == 1: A("s_waitcnt lgkmcnt(0)")
        A("s_branch L_tr_d")
        A("L_tr_wo:")
        A(f"v_lshl_add_u32 {a}, {c}, 3, {a}"); A(f"v_add_u32 {a}, {sM0B}, {a}")
        for tt in range(4):
            for nt in range(4):
                k = 4 * (4 * tt + nt)
                A(f"ds_read_b64_tr_b16 {WR(k,2)}, {a} offset:{tt*4096+nt*32}")
                A(f"ds_read_b64_tr_b16 {WR(k+2,2)}, {a} offset:{tt*4096+nt*32+512}")
            A("s_waitcnt lgkmcnt(0)")
        A("L_tr_d:")
        A("s_waitcnt lgkmcnt(0)")
        A(f"s_add_u32 {sTAG}, {sTAG}, {hex(TAGC)}")
    def colsum(self):
        A = self.A
        for k in range(4): A(f"v_mov_b32 {X(4+k)}, 0x3f803f80")
        for t in range(14):
            A(f"v_mfma_f32_16x16x32_bf16 {XR(0,4)}, {XR(4,4)}, {WR(4*t,4)}, {'0' if t == 0 else XR(0,4)}")
        A(f"v_mov_b32 {CS}, {X(0)}")

    def ln_scalars(self, s1, s2, scale):
        ops = [f"v_mul_f32 {s1}, {f32(1/448)}, {s1}", f"v_mul_f32 {s2}, {f32(1/448)}, {s2}",
               f"v_fma_f32 {s2}, -{s1}, {s1}, {s2}", f"v_max_f32 {s2}, 0, {s2}", f"v_add_f32 {s2}, {f32(1e-5)}, {s2}", f"v_rsq_f32 {s2}, {s2}"]
        if scale != 1.0: ops.append(f"v_mul_f32 {s2}, {f32(scale)}, {s2}")
        return ops
    def ln_finish(self, mu, rs):
        A = self.A
        A(f"v_permlane16_swap_b32 {X(0)}, {X(1)}")
        A(f"v_fma_f32 {X(4)}, -{mu}, {CS}, {X(0)}")
        A(f"v_mul_f32 {X(4)}, {X(4)}, {rs}")

    def stage_ln(self, rx, rst, layer, scale, lab, sleep=0, pre=0):
        A = self.A
        LX = LDS_RED; LS = LDS_OP
        xa, sa = X(8), X(9)
        self.ln_addr(xa); A(f"v_add_u32 {xa}, {LX}, {xa}")
        A(f"v_bfe_u32 {sa}, {LANE}, 4, 1"); A(f"v_lshlrev_b32 {sa}, 8, {sa}"); A(f"v_lshrrev_b32 {TMP}, 5, {LANE}"); A(f"v_lshl_add_u32 {sa}, {TMP}, 7, {sa}")
        A(f"v_and_b32 {TMP}, 15, {LANE}"); A(f"v_lshl_add_u32 {sa}, {TMP}, 3, {sa}")
        A(f"s_cmp_eq_u32 {sWAVE}, 1"); A(f"s_cbranch_scc0 {lab}_b")
        self.gbase(SA, rx, layer); self.gbase(SB, rst, layer)
        for k in range(4, 10): A(f"v_mov_b32 {T(k)}, 0")
        A(f"v_add_u32 {X(10)}, {LX}, {L16}"); A(f"v_add_u32 {X(11)}, {LDS_RED + 1792 - 1792 + 0}, {L16}")
        A(f"v_add_u32 {X(12)}, {LS}, {sa}")
        self.fst(1)
        for _ in range(pre // 120): A("s_sleep 120")
        if pre % 120: A(f"s_sleep {pre % 120}")
        A(f"{lab}:")
        if self.o.fine == "ln": A("s_add_u32 s99, s99, 1")
        self.fst(2)
        A(f"global_load_dwordx4 {TR(0,4)}, {L16}, {SA} sc1")
        self.set_exec(0xFFFFFFFF, 0x0000FFFF)
        A(f"global_load_dwordx4 {TR(4,4)}, {L16}, {SA} offset:1024 sc1")
        self.set_exec(0xFFFFFFFF, 0x0FFF0FFF)
        A(f"global_load_dwordx2 {TR(8,2)}, {sa}, {SB} sc1")
        A("s_mov_b64 exec, -1")
        A("s_waitcnt vmcnt(0)")
        self.fst(3)
        for s in self.maxops(X(13), [T(k) for k in range(10)]): A(s)
        self.poll_tail(X(13), lab, lab + "_d", sleep=sleep)
        A(f"{lab}_d:")
        A(f"ds_write_b128 {X(10)}, {TR(0,4)}")
        A(f"ds_write_b64 {X(12)}, {TR(8,2)}")
        self.set_exec(0xFFFFFFFF, 0x0000FFFF)
        A(f"ds_write_b128 {X(10)}, {TR(4,4)} offset:1024")
        A("s_mov_b64 exec, -1")
        A("s_waitcnt lgkmcnt(0)")
        A(f"{lab}_b:")
        A("s_barrier")
        D = XR(0, 4); s1, s2, t1, t2 = T(58), T(59), T(60), T(61)
        A(f"v_add_u32 {sa}, {LS}, {sa}")
        A(f"ds_read_b64 {TR(56,2)}, {sa}")
        for t in range(14): A(f"ds_read_b128 {TR(4*t,4)}, {xa} offset:{t*64}")
        red = [f"v_add_f32_dpp {s1}, {T(56)}, {T(56)} row_ror:8 {DPP}", f"v_add_f32_dpp {s2}, {T(57)}, {T(57)} row_ror:8 {DPP}"]
        for sh in (4, 2, 1):
            red += [f"v_add_f32_dpp {s1}, {s1}, {s1} row_ror:{sh} {DPP}", f"v_add_f32_dpp {s2}, {s2}, {s2} row_ror:{sh} {DPP}"]
        red += [f"v_mov_b32 {t1}, {s1}", f"v_mov_b32 {t2}, {s2}", f"v_permlane32_swap_b32 {s1}, {t1}", f"v_permlane32_swap_b32 {s2}, {t2}",
                f"v_add_f32 {s1}, {s1}, {t1}", f"v_add_f32 {s2}, {s2}, {t2}"]
        red += self.ln_scalars(s1, s2, scale)
        for t in range(14):
            if t in (0, 4, 8): A(f"s_waitcnt lgkmcnt({max(13 - t - 3, 0)})")
            if t == 12: A("s_waitcnt lgkmcnt(0)")
            A(f"v_mfma_f32_16x16x32_bf16 {D}, {TR(4*t,4)}, {WR(4*t,4)}, {'0' if t == 0 else D}")
            n = 2 if t % 2 == 0 else 1
            while n and red: A(red.pop(0)); n -= 1
        for s in red: A(s)
        self.fst(4)
        self.ln_finish(s1, s2)

    def ld_setup(self):
        A = self.A
        vK, vV = X(18), X(19)
        A(f"v_and_b32 {X(8)}, 15, {LANE}"); A(f"v_lshrrev_b32 {X(9)}, 4, {LANE}")
        A(f"v_and_b32 {vK}, 3, {LANE}"); A(f"v_lshlrev_b32 {vK}, 4, {vK}"); A(f"v_lshl_add_u32 {vK}, {X(9)}, 6, {vK}")
        A(f"v_bfe_u32 {TMP}, {LANE}, 2, 2"); A(f"v_lshl_add_u32 {vK}, {TMP}, 11, {vK}")
        A(f"v_lshlrev_b32 {vV}, 11, {X(9)}"); A(f"v_lshl_add_u32 {vV}, {X(8)}, 4, {vV}")
    def throttle(self, win):
        if self.ob + 1 > win:
            self.A(f"s_waitcnt vmcnt({win - 4})"); self.ob = win - 4
        self.ob += 1
    def ktile(self, tau, win):
        A = self.A; f = " nt" if self.o.nt else ""
        A(f"s_add_u32 s68, {sTILE}, {tau*262144}")
        for t in range(8):
            n = tau * 8 + t
            self.throttle(win)
            A(f"buffer_load_dwordx4 a[{4*n}:{4*n+3}], {X(18)}, s[8:11], s68 offen offset:{(t//2)*512 + (t%2)*256}{f}")
    def vtile(self, tau, win, va=None):
        A = self.A; f = " nt" if self.o.nt else ""
        va = va or X(19)
        A(f"s_add_u32 s68, {sTILE}, {tau*262144}")
        for t in range(8):
            n = tau * 8 + t
            imm = (t // 2) * 512 + (t % 2) * 256
            self.throttle(win)
            if n < 2 * NLDS:
                A(f"s_add_u32 m0, {sM0B}, {n*1024 - imm}")
                A(f"buffer_load_dwordx4 {va}, s[12:15], s68 offen offset:{imm}{f} lds")
            else:
                m = n - 2 * NLDS
                A(f"buffer_load_dwordx4 {VRR(4*m,4)}, {va}, s[12:15], s68 offen offset:{imm}{f}")
    def arrive(self):
        A = self.A
        A("s_getreg_b32 s68, hwreg(HW_REG_XCC_ID, 0, 4)"); A("s_and_b32 s68, s68, 7"); A("s_mul_i32 s68, s68, 6")
        A("s_lshl_b64 s[78:79], 1, s68"); A("s_or_b32 s79, s79, 0x01000000")
        A(f"v_mov_b32 {X(10)}, s78"); A(f"v_mov_b32 {X(11)}, s79")
        A(f"s_lshl_b32 s69, {sGI}, 5"); A(f"v_mov_b32 {X(9)}, s69")
        A("s_mov_b64 exec, 1")
        A(f"global_atomic_add_x2 {X(9)}, {XR(10,2)}, {sDBG} sc1")
        A("s_mov_b64 exec, -1")
    def early_q(self):
        A = self.A
        self.colsum()
        s1a, s2a, s1b, s2b = X(12), X(13), X(14), X(15)
        for (base, s1, s2) in ((56, s1a, s2a), (60, s1b, s2b)):
            A(f"v_mov_b32 {s1}, 0"); A(f"v_mov_b32 {s2}, 0")
            for k in range(4):
                A(f"v_lshlrev_b32 {X(8)}, 16, {T(base+k)}"); A(f"v_and_b32 {X(9)}, 0xffff0000, {T(base+k)}")
                A(f"v_add_f32 {s1}, {s1}, {X(8)}"); A(f"v_fmac_f32 {s2}, {X(8)}, {X(8)}")
                A(f"v_add_f32 {s1}, {s1}, {X(9)}"); A(f"v_fmac_f32 {s2}, {X(9)}, {X(9)}")
        for sh in (8, 4, 2, 1):
            for r in (s1a, s2a, s1b, s2b): A(f"v_add_f32_dpp {r}, {r}, {r} row_ror:{sh} {DPP}")
        for swap in ("v_permlane16_swap_b32", "v_permlane32_swap_b32"):
            for r in (s1a, s2a, s1b, s2b):
                A(f"v_mov_b32 {X(8)}, {r}"); A(f"{swap} {r}, {X(8)}"); A(f"v_add_f32 {r}, {r}, {X(8)}")
        A(f"v_cndmask_b32 {s1a}, {s1a}, {s1b}, {sSEL}"); A(f"v_cndmask_b32 {s2a}, {s2a}, {s2b}, {sSEL}")
        for s in self.ln_scalars(s1a, s2a, QSCALE): A(s)
        D = XR(0, 4)
        for t in range(14):
            A(f"v_mfma_f32_16x16x32_bf16 {D}, {TR(4*t,4)}, {WR(4*t,4)}, {'0' if t == 0 else D}")
        self.ln_finish(s1a, s2a)
        self.pack_pair(X(4), X(4), X(6))
        A(f"v_mov_b32 {X(5)}, {sTAG}")
        A(f"v_bfe_u32 {X(7)}, {LANE}, 4, 1"); A(f"v_lshlrev_b32 {X(7)}, 11, {X(7)}"); A(f"v_and_b32 {X(8)}, 15, {LANE}"); A(f"v_lshl_add_u32 {X(7)}, {X(8)}, 2, {X(7)}")
        A(f"s_lshl_b32 s68, {sSIG}, 6"); A(f"v_add_u32 {X(7)}, s68, {X(7)}")
        A(f"s_lshl_b32 s68, {sGI}, 12"); A(f"s_add_u32 s68, s68, {QTOFF}"); A(f"s_add_u32 s70, s20, s68"); A("s_addc_u32 s71, s21, 0")
        self.set_exec(0x55555555, 0)
        A(f"global_store_dwordx2 {X(7)}, {XR(4,2)}, {SA} sc1")
        A("s_mov_b64 exec, -1")

    def stream(self):
        A = self.A; win = self.o.win
        k0 = self.o.k0
        self.ob = 0
        self.ktile(k0, 64)
        A("s_waitcnt vmcnt(8) lgkmcnt(0)")
        self.stamp(1)
        A("s_barrier")
        A(f"s_cmp_eq_u32 {sWAVE}, 3"); A("s_cbranch_scc0 L_noarr")
        self.arrive()
        A("L_noarr:")
        self.ob = 0
        self.ktile(k0 + 1, 64)
        self.tr_reads()
        A("s_barrier")
        self.ktile(k0 + 2, 64)
        A(f"s_cmp_eq_u32 {sROLE}, {ROLE_GU}"); A("s_cbranch_scc0 L_nocs")
        self.colsum()
        A("L_nocs:")
        A(f"s_cmp_eq_u32 {sROLE}, {ROLE_WQ}"); A("s_cbranch_scc0 L_noeq")
        self.early_q()
        A("L_noeq:")
        self.stamp(2)
        self.ob = 8 * 3 + 2
        tp = k0 + 3
        for tau in range(tp, 8): self.ktile(tau, win)
        A(f"s_lshl_b32 s68, {sGI}, 12"); A(f"s_add_u32 s68, s68, {QTOFF}"); A(f"s_add_u32 s70, s20, s68"); A("s_addc_u32 s71, s21, 0")
        A(f"s_lshl_b32 s68, {sB}, 11"); A(f"s_lshl_b32 s78, {sHL}, 10"); A("s_add_u32 s68, s68, s78"); A(f"v_add_u32 {X(14)}, s68, {L16}")
        A(f"global_load_dwordx4 {XR(10,4)}, {X(14)}, {SA} sc1")
        for tau in range(self.o.vdist): self.vtile(tau, 64)
        self.stamp(5)
        self.dstamp(4)

    def bar_check_finish(self):
        A = self.A
        A(f"s_cmp_eq_u32 {sLAYER}, 0"); A("s_cbranch_scc0 L_gb_done")
        A("s_mov_b64 exec, 0xff")
        A("L_gb:")
        A(f"v_lshrrev_b32 {TMP}, 24, {WBAR1}"); A(f"v_cmp_ne_u32 vcc, 32, {TMP}")
        A("s_cbranch_vccz L_gb_d")
        A(f"s_cmp_eq_u32 {sBUD}, 0"); A("s_cbranch_scc1 L_gb_d"); A(f"s_sub_u32 {sBUD}, {sBUD}, 1"); A("s_sleep 4")
        A(f"v_and_b32 {TMP}, 7, {LANE}"); A(f"v_lshlrev_b32 {TMP}, 5, {TMP}")
        A(f"global_load_dwordx2 {WBAR}, {TMP}, {sDBG} sc1"); A("s_waitcnt vmcnt(0)")
        A("s_branch L_gb")
        A("L_gb_d:")
        A("s_mov_b64 exec, -1")
        A("s_getreg_b32 s68, hwreg(HW_REG_XCC_ID, 0, 4)"); A("s_and_b32 s68, s68, 7"); A("s_mul_i32 s68, s68, 6")
        A("s_lshl_b64 s[78:79], 32, s68"); A("s_or_b32 s79, s79, 0x20000000")
        A(f"v_readlane_b32 s68, {WBAR0}, {sGI}"); A(f"v_readlane_b32 s69, {WBAR1}, {sGI}")
        A("s_cmp_eq_u64 s[68:69], s[78:79]"); A(f"s_cselect_b32 {sMODE}, 1, 0")
        if self.o.slow: A(f"s_mov_b32 {sMODE}, 0")
        A("L_gb_done:")

    def att_setup(self):
        A = self.A
        mk = [X(16 + k) for k in range(4)]
        A(f"v_and_b32 {TMP}, 1, {LANE}"); A(f"v_lshlrev_b32 {TMP}, 4, {TMP}"); A(f"v_mov_b32 {X(9)}, 0xffff"); A(f"v_lshlrev_b32 {X(9)}, {TMP}, {X(9)}")
        for k, pr in enumerate((sMA, "s[56:57]", "s[58:59]", "s[62:63]")):
            A(f"v_cndmask_b32 {mk[k]}, 0, {X(9)}, {pr}")
        A(f"v_lshrrev_b32 {X(8)}, 4, {LANE}"); A(f"v_lshlrev_b32 {X(8)}, 11, {X(8)}"); A(f"v_and_b32 {TMP}, 15, {LANE}"); A(f"v_lshl_add_u32 {X(8)}, {TMP}, 4, {X(8)}")

    def get_q(self):
        A = self.A
        self.att_setup()
        qa = T(62)
        A(f"v_lshrrev_b32 {qa}, 4, {LANE}"); A(f"v_lshlrev_b32 {qa}, 6, {qa}"); A(f"v_and_b32 {TMP}, 3, {LANE}"); A(f"v_lshl_add_u32 {qa}, {TMP}, 4, {qa}")
        A(f"v_add_u32 {qa}, {LDS_QL}, {qa}")
        A(f"s_cmp_eq_u32 {sLAYER}, 0"); A("s_cbranch_scc0 L_q1")
        A(f"s_waitcnt vmcnt({8*self.o.vdist})")
        A("L_q0:")
        A(f"v_xor_b32 {X(15)}, {sTAG}, {X(11)}"); A(f"v_xor_b32 {X(9)}, {sTAG}, {X(13)}"); A(f"v_or_b32 {X(15)}, {X(15)}, {X(9)}")
        A(f"v_cmp_ne_u32 vcc, 0, {X(15)}")
        A("s_cbranch_vccz L_q0_d")
        A(f"s_cmp_eq_u32 {sBUD}, 0"); A("s_cbranch_scc1 L_q0_d"); A(f"s_sub_u32 {sBUD}, {sBUD}, 1")
        A(f"global_load_dwordx4 {XR(10,4)}, {X(14)}, {SA} sc1"); A("s_waitcnt vmcnt(0)")
        A("s_branch L_q0")
        A("L_q0_d:")
        A(f"v_mov_b32 {X(11)}, {X(12)}")
        A(f"v_lshlrev_b32 {X(9)}, 3, {LANE}"); A(f"v_add_u32 {X(9)}, {LDS_QL}, {X(9)}")
        A(f"ds_write_b64 {X(9)}, {XR(10,2)}")
        self.stamp(4)
        A("s_waitcnt lgkmcnt(0)")
        A("s_branch L_qlds")
        A("L_q1:")
        A(f"s_cmp_eq_u32 {sWAVE}, 0"); A("s_cbranch_scc0 L_q1b")
        self.gbase(SA, R_Q, 1)
        A(f"s_lshl_b32 s68, {sB}, 10"); A(f"s_lshl_b32 s78, {sHL}, 9"); A("s_add_u32 s68, s68, s78"); A(f"v_add_u32 {X(9)}, s68, {L16}")
        A(f"v_add_u32 {X(14)}, {LDS_QL}, {L16}")
        for _ in range(self.o.qpre // 120): A("s_sleep 120")
        if self.o.qpre % 120: A(f"s_sleep {self.o.qpre % 120}")
        self.set_exec(0xFFFFFFFF, 0)
        A("L_q1p:")
        A(f"global_load_dwordx4 {XR(10,4)}, {X(9)}, {SA} sc1"); A("s_waitcnt vmcnt(0)")
        for s in self.maxops(X(15), [X(10), X(11), X(12), X(13)]): A(s)
        self.poll_tail(X(15), "L_q1p", "L_q1p_d", sleep=self.o.qsleep)
        A("L_q1p_d:")
        A(f"ds_write_b128 {X(14)}, {XR(10,4)}")
        A("s_mov_b64 exec, -1")
        A("s_waitcnt lgkmcnt(0)")
        A("L_q1b:")
        A("s_barrier")
        A("L_qlds:")
        for t in range(2): A(f"ds_read_b128 {TR(32+4*t,4)}, {qa} offset:{t*256}")
        A(f"v_add_u32 {X(13)}, {sM0B}, {L16}")
        A(f"s_waitcnt vmcnt({8*self.o.vdist})")

    def attention(self):
        A = self.A
        S = lambda tau, r: T(4 * tau + r)
        mk = [X(16 + k) for k in range(4)]
        A("s_waitcnt lgkmcnt(0)")
        m, m2 = X(14), X(15)
        va = X(13)
        Dq = lambda G: 40 + 4 * (G % 4)
        M1, M2, M3 = "s[48:49]", "s[50:51]", "s[52:53]"
        def c1(G): return f"v_cndmask_b32 {T(G)}, {T(Dq(G))}, {T(Dq(G)+1)}, {M1}"
        def c2(G): return f"v_cndmask_b32 {T(G)}, {T(G)}, {T(Dq(G)+2)}, {M2}"
        def c3(G): return f"v_cndmask_b32 {T(G)}, {T(G)}, {T(Dq(G)+3)}, {M3}"
        def d1(G): return f"v_add_f32_dpp {T(G)}, {T(G)}, {T(G)} quad_perm:[1,0,3,2] {DPP}"
        def d2(G): return f"v_add_f32_dpp {T(G)}, {T(G)}, {T(G)} quad_perm:[2,3,0,1] {DPP}"
        ok = lambda G: 0 <= G < 32
        for G in range(32 + 6):
            if ok(G): A(f"v_mfma_f32_16x16x32_bf16 {TR(Dq(G),4)}, a[{8*G}:{8*G+3}], {TR(32,4)}, 0")
            if ok(G - 2): A(c1(G - 2)); A(c2(G - 2))
            if ok(G): A(f"v_mfma_f32_16x16x32_bf16 {TR(Dq(G),4)}, a[{8*G+4}:{8*G+7}], {TR(36,4)}, {TR(Dq(G),4)}")
            if ok(G - 2): A(c3(G - 2))
            if ok(G - 3): A(d1(G - 3))
            if ok(G - 4): A(d2(G - 4))
            g5 = G - 5
            if ok(g5) and g5 % 2 == 1:
                if g5 == 1: A(f"v_max_f32 {m}, {T(0)}, {T(1)}")
                else: A(f"v_max3_f32 {m}, {m}, {T(g5-1)}, {T(g5)}")
        self.stamp(7)
        l = X(15); acc = [XR(0, 4), XR(4, 4)]
        Bs = [TR(32, 4), TR(36, 4)]; Bb = [32, 36]
        stg = [40, 48, 56]
        VD = self.o.vdist
        vV = X(8)
        CHK_AT = 4 - VD if VD <= 4 else 0
        CHK_TILE = CHK_AT + VD
        def younger(tile, at_tile):
            last_issued = min(at_tile + VD, 7)
            n = 8 * (last_issued - tile)
            if tile <= CHK_TILE and at_tile >= CHK_AT: n += 1
            return n
        def tile_issue(tau):
            t2 = tau + VD
            if t2 > 7: return
            lab = A.label("VI")
            A(f"s_cmp_eq_u32 {sLAYER}, 0"); A(f"s_cbranch_scc0 {lab}")
            self.ob = 0
            self.vtile(t2, 64, vV)
            if tau == CHK_AT:
                A(f"v_and_b32 {TMP}, 7, {LANE}"); A(f"v_lshlrev_b32 {TMP}, 5, {TMP}")
                A("s_mov_b64 exec, 0xff")
                A(f"global_load_dwordx2 {WBAR}, {TMP}, {sDBG} sc1")
                A("s_mov_b64 exec, -1")
            A(f"{lab}:")
        def lds_issue(q, at_tile):
            if q % 4 == 0: A(f"s_waitcnt vmcnt({younger(q // 4, at_tile)})")
            b = stg[q % 3]
            A(f"ds_read_b128 {TR(b,4)}, {va} offset:{q*2048}"); A(f"ds_read_b128 {TR(b+4,4)}, {va} offset:{q*2048+1024}")
        PF = 2
        def pre(q):
            tau, r = q // 4, q % 4
            s = S(tau, r); bb = Bb[q % 2]; pk = X(12) if q % 2 == 0 else X(9)
            return [f"v_sub_f32 {s}, {s}, {m}", f"v_exp_f32 {s}, {s}"], [f"v_cvt_pk_bf16_f32 {pk}, {s}, {s}", (f"v_add_f32 {l}, {l}, {s}" if q else f"v_mov_b32 {l}, {s}")] + [f"v_and_b32 {T(bb+k)}, {mk[k]}, {pk}" for k in range(4)]
        A(f"v_mov_b32 {m2}, {m}")
        tile_issue(0)
        A(f"v_permlane16_swap_b32 {m}, {m2}"); A(f"v_max_f32 {m}, {m}, {m2}")
        A(f"v_mov_b32 {m2}, {m}")
        for q in range(min(PF, NLDS)): lds_issue(q, 0)
        A(f"v_permlane32_swap_b32 {m}, {m2}"); A(f"v_max_f32 {m}, {m}, {m2}")
        a, b_ = pre(0)
        for s in a + b_: A(s)
        a, _ = pre(1)
        for s in a: A(s)
        for q in range(32):
            tau = q // 4
            if q % 4 == 0 and q > 0: tile_issue(tau)
            if q + PF < NLDS: lds_issue(q + PF, tau)
            if q < NLDS:
                A(f"s_waitcnt lgkmcnt({2 * min(PF, NLDS - 1 - q)})")
                b = stg[q % 3]; a0, a1 = TR(b, 4), TR(b + 4, 4)
            else:
                if q >= 28:
                    A(f"s_waitcnt vmcnt({(31 - q) * 2})")
                elif q == NLDS or q % 4 == 0:
                    A(f"s_waitcnt vmcnt({younger(tau, tau)})")
                mm = (q - NLDS) * 8; a0, a1 = VRR(mm, 4), VRR(mm + 4, 4)
            if q == 24:
                self.bar_check_finish()
                A(f"v_lshrrev_b32 {X(8)}, 4, {LANE}"); A(f"v_lshlrev_b32 {X(8)}, 7, {X(8)}"); A(f"v_and_b32 {TMP}, 15, {LANE}"); A(f"v_lshl_add_u32 {X(8)}, {TMP}, 4, {X(8)}")
                A(f"s_lshl_b32 s68, {sWAVE}, 10"); A(f"s_add_u32 s68, s68, {LDS_OP}"); A(f"v_add_u32 {X(8)}, s68, {X(8)}")
                A(f"s_lshl_b32 s68, {sWAVE}, 3"); A(f"s_add_u32 s68, s68, {LDS_MLP}"); A(f"v_mov_b32 {X(10)}, s68")
            A(f"v_mfma_f32_16x16x32_bf16 {acc[0]}, {a0}, {Bs[q%2]}, {acc[0] if q else '0'}")
            if q + 1 < 32:
                _, b_ = pre(q + 1)
                for s in b_[:2]: A(s)
            A(f"v_mfma_f32_16x16x32_bf16 {acc[1]}, {a1}, {Bs[q%2]}, {acc[1] if q else '0'}")
            if q + 1 < 32:
                for s in b_[2:]: A(s)
            if q + 2 < 32:
                a, _ = pre(q + 2)
                for s in a: A(s)
            if q == 30:
                l2 = X(12 if False else 9)
        self.stamp(8)
        self.dstamp(5, layer=0); self.dstamp(7, layer=1)
        l2 = X(9)
        A(f"v_mov_b32 {l2}, {l}"); A(f"v_permlane16_swap_b32 {l}, {l2}"); A(f"v_add_f32 {l}, {l}, {l2}")
        A(f"v_mov_b32 {l2}, {l}"); A(f"v_permlane32_swap_b32 {l}, {l2}"); A(f"v_add_f32 {l}, {l}, {l2}")
        self.set_exec(0x00FF00FF, 0x00FF00FF)
        A(f"ds_write_b128 {X(8)}, {XR(0,4)}"); A(f"ds_write_b128 {X(8)}, {XR(4,4)} offset:512")
        A("s_mov_b64 exec, 1")
        A(f"ds_write_b64 {X(10)}, {XR(14,2)}")
        A("s_mov_b64 exec, -1")
        A("s_waitcnt lgkmcnt(0)")
        A("s_barrier")
        self.stamp(9)

    def combine_publish(self):
        A = self.A
        A(f"v_add_u32 {X(8)}, {LDS_OP}, {L16}")
        for w in range(4): A(f"ds_read_b128 {TR(4*w,4)}, {X(8)} offset:{w*1024}")
        A(f"v_mov_b32 {X(9)}, {LDS_MLP}")
        A(f"ds_read_b128 {TR(16,4)}, {X(9)}"); A(f"ds_read_b128 {TR(20,4)}, {X(9)} offset:16")
        self.gbase(SA, R_O); self.gbase(SB, R_ML)
        a = X(10)
        A(f"v_lshrrev_b32 {a}, 3, {LANE}"); A(f"v_lshlrev_b32 {a}, 10, {a}")
        A(f"v_bfe_u32 {X(11)}, {LANE}, 1, 2"); A(f"v_lshl_add_u32 {a}, {X(11)}, 8, {a}")
        A(f"v_and_b32 {X(11)}, 1, {LANE}"); A(f"v_lshl_add_u32 {a}, {X(11)}, 3, {a}")
        A(f"s_lshl_b32 s68, {sB}, 3"); A(f"s_add_u32 s68, s68, {sSP}"); A("s_lshl_b32 s68, s68, 4"); A(f"s_lshl_b32 s78, {sHL}, 13"); A("s_add_u32 s68, s68, s78")
        A(f"v_add_u32 {a}, s68, {a}")
        A(f"s_lshl_b32 s68, {sHL}, 7"); A(f"s_lshl_b32 s78, {sB}, 6"); A("s_add_u32 s68, s68, s78"); A(f"s_lshl_b32 s78, {sSP}, 3"); A("s_add_u32 s68, s68, s78")
        A(f"v_mov_b32 {X(11)}, s68")
        M = T(24); f = [T(25 + w) for w in range(4)]; Lr = T(29)
        ms = [T(16), T(18), T(20), T(22)]; ls = [T(17), T(19), T(21), T(23)]
        A("s_waitcnt lgkmcnt(0)")
        A(f"v_max3_f32 {M}, {ms[0]}, {ms[1]}, {ms[2]}"); A(f"v_max_f32 {M}, {M}, {ms[3]}")
        for w in range(4): A(f"v_sub_f32 {f[w]}, {ms[w]}, {M}")
        for w in range(4): A(f"v_exp_f32 {f[w]}, {f[w]}")
        for r in range(4): A(f"v_mul_f32 {T(32+r)}, {f[0]}, {T(r)}")
        for w in range(1, 4):
            for r in range(4): A(f"v_fmac_f32 {T(32+r)}, {f[w]}, {T(4*w+r)}")
        A(f"v_cvt_pk_bf16_f32 {T(36)}, {T(32)}, {T(33)}"); A(f"v_cvt_pk_bf16_f32 {T(37)}, {T(34)}, {T(35)}")
        self.pub(f"global_store_dwordx2 {a}, {TR(36,2)}, {SA}")
        A(f"v_mul_f32 {T(39)}, {f[0]}, {ls[0]}")
        for w in range(1, 4): A(f"v_fmac_f32 {T(39)}, {f[w]}, {ls[w]}")
        A(f"v_mov_b32 {T(38)}, {M}")
        A("s_mov_b64 exec, 1")
        self.pub(f"global_store_dwordx2 {X(11)}, {TR(38,2)}, {SB}")
        A("s_mov_b64 exec, -1")

    def stage_wo(self):
        A = self.A
        self.gbase(SA, R_O); self.gbase(SC_, R_ML)
        A(f"s_lshl_b32 s68, {sWAVE}, 12"); A("s_add_u32 s70, s70, s68"); A("s_addc_u32 s71, s71, 0")
        a = X(16)
        A(f"v_lshrrev_b32 {a}, 5, {LANE}"); A(f"v_lshlrev_b32 {a}, 6, {a}")
        A(f"v_bfe_u32 {TMP}, {LANE}, 4, 1"); A(f"v_lshl_add_u32 {a}, {TMP}, 5, {a}")
        A(f"v_and_b32 {TMP}, 3, {LANE}"); A(f"v_lshl_add_u32 {a}, {TMP}, 3, {a}")
        A(f"s_lshr_b32 s68, {sWAVE}, 1"); A("s_lshl_b32 s68, s68, 7"); A(f"v_add_u32 {a}, s68, {a}")
        wa, ra = X(17), X(18)
        A(f"v_bfe_u32 {wa}, {LANE}, 4, 1"); A(f"v_lshlrev_b32 {wa}, 7, {wa}"); A(f"v_lshrrev_b32 {TMP}, 5, {LANE}"); A(f"v_lshl_add_u32 {wa}, {TMP}, 6, {wa}")
        A(f"v_and_b32 {TMP}, 15, {LANE}"); A(f"v_lshl_add_u32 {wa}, {TMP}, 2, {wa}")
        A(f"s_lshl_b32 s68, {sWAVE}, 9"); A(f"s_add_u32 s68, s68, {LDS_RED}"); A(f"v_add_u32 {wa}, s68, {wa}")
        A(f"v_lshrrev_b32 {ra}, 5, {LANE}"); A(f"v_lshlrev_b32 {ra}, 7, {ra}"); A(f"v_and_b32 {TMP}, 31, {LANE}"); A(f"v_lshl_add_u32 {ra}, {TMP}, 2, {ra}")
        A(f"s_and_b32 s68, {sWAVE}, 1"); A("s_lshl_b32 s68, s68, 8"); A(f"s_add_u32 s68, s68, {LDS_RED}"); A(f"v_add_u32 {ra}, s68, {ra}")
        A(f"s_cmp_ge_u32 {sWAVE}, 2"); A("s_cbranch_scc0 L_wo_nors")
        self.gbase(SD, R_X2, 0)
        A(f"s_cmp_eq_u32 {sLAYER}, 0"); A("s_cselect_b32 s64, s4, s64"); A("s_cselect_b32 s65, s5, s65")
        self.rs_setup()
        A(f"v_mov_b32 {X(13)}, {CS}")
        A(f"s_cmp_eq_u32 {sLAYER}, 0"); A("s_cbranch_scc1 L_wo_nors")
        A(f"global_load_ushort {X(13)}, {X(10)}, {SD} sc1")
        A("L_wo_nors:")
        mv, lv = T(16), T(17)
        D = [TR(20 + 4 * nt, 4) for nt in range(4)]
        chk, M, t1, e, w = T(36), T(37), T(38), T(39), T(40)
        A(f"v_mov_b32 {chk}, 0")
        self.fst(0, "wo")
        if self.o.fine == "wo": A("s_mov_b32 s99, 0")
        if self.o.gate:
            self.set_exec(0x000F000F, 0x000F000F)
            A("L_wog:")
            A(f"global_load_dwordx2 {TR(16,2)}, {a}, {SC_} sc1"); A("s_waitcnt vmcnt(0)")
            A(f"v_max_u32 {chk}, {mv}, {lv}")
            self.poll_tail(chk, "L_wog", "L_wog_d", sleep=self.o.gatesleep)
            A("L_wog_d:")
        if self.o.wopre:
            A(f"s_cmp_eq_u32 {sWAVE}, 0"); A("s_cbranch_scc1 L_wo"); A(f"s_sleep {self.o.wopre}")
        A("L_wo:")
        if self.o.fine == "wo": A("s_add_u32 s99, s99, 1")
        self.fst(1, "wo")
        self.set_exec(0x000F000F, 0x000F000F)
        A(f"global_load_dwordx2 {TR(16,2)}, {a}, {SC_} sc1")
        A("s_mov_b64 exec, -1")
        for tt in range(4):
            A(f"global_load_dwordx4 {TR(4*tt,4)}, {L16}, {SA} offset:{tt*1024} sc1")
        A("s_waitcnt vmcnt(4)")
        self.set_exec(0x000F000F, 0x000F000F)
        A(f"v_max_u32 {chk}, {mv}, {lv}")
        A("s_mov_b64 exec, -1")
        A("s_waitcnt vmcnt(0)")
        self.fst(2, "wo")
        for s in self.maxops(t1, self.chk_regs(T, 0, 4) + [chk]): A(s)
        self.poll_tail(t1, "L_wo", "L_wo_d")
        A("L_wo_d:")
        ops = [f"v_mov_b32_dpp {t1}, {mv} quad_perm:[1,0,3,2] {DPP}", f"v_max_f32 {M}, {mv}, {t1}",
               f"v_mov_b32_dpp {t1}, {M} quad_perm:[2,3,0,1] {DPP}", f"v_max_f32 {M}, {M}, {t1}",
               f"v_mov_b32 {t1}, {M}", f"v_permlane16_swap_b32 {M}, {t1}", f"v_max_f32 {M}, {M}, {t1}",
               f"v_sub_f32 {e}, {mv}, {M}", f"v_exp_f32 {e}, {e}", f"v_mul_f32 {M}, {e}, {lv}",
               f"v_mov_b32_dpp {t1}, {M} quad_perm:[1,0,3,2] {DPP}", f"v_add_f32 {M}, {M}, {t1}",
               f"v_mov_b32_dpp {t1}, {M} quad_perm:[2,3,0,1] {DPP}", f"v_add_f32 {M}, {M}, {t1}",
               f"v_mov_b32 {t1}, {M}", f"v_permlane16_swap_b32 {M}, {t1}", f"v_add_f32 {M}, {M}, {t1}",
               f"v_rcp_f32 {M}, {M}", f"v_mul_f32 {w}, {e}, {M}"]
        for tt in range(4):
            for nt in range(4):
                A(f"v_mfma_f32_16x16x32_bf16 {D[nt]}, {TR(4*tt,4)}, {WR(4*(4*tt+nt),4)}, {'0' if tt == 0 else D[nt]}")
                if ops: A(ops.pop(0))
        for s in ops: A(s)
        acc = [T(41 + nt) for nt in range(4)]
        for r in range(4):
            for nt in range(4):
                op = "v_mul_f32_dpp" if r == 0 else "v_fmac_f32_dpp"
                A(f"{op} {acc[nt]}, {w}, {T(20+4*nt+r)} row_newbcast:{r} {DPP}")
        A(f"v_permlane16_swap_b32 {acc[0]}, {acc[1]}"); A(f"v_permlane16_swap_b32 {acc[2]}, {acc[3]}")
        A(f"v_add_f32 {acc[0]}, {acc[0]}, {acc[1]}"); A(f"v_add_f32 {acc[2]}, {acc[2]}, {acc[3]}")
        self.fst(3, "wo")
        A(f"ds_write_b32 {wa}, {acc[0]}"); A(f"ds_write_b32 {wa}, {acc[2]} offset:256")
        self.cbase(SA, 0, consumer=False)
        self.p_store_addr(X(9))
        A("s_waitcnt lgkmcnt(0)")
        A("s_barrier")
        self.fst(4, "wo")
        A(f"s_cmp_ge_u32 {sWAVE}, 2"); A("s_cbranch_scc1 L_wo_rs")
        for ww in range(4): A(f"ds_read_b32 {T(ww)}, {ra} offset:{ww*512}")
        A("s_waitcnt lgkmcnt(2)")
        A(f"v_add_f32 {T(0)}, {T(0)}, {T(1)}")
        A("s_waitcnt lgkmcnt(0)")
        A(f"v_add_f32 {T(2)}, {T(2)}, {T(3)}"); A(f"v_add_f32 {T(0)}, {T(0)}, {T(2)}")
        self.p_publish(SA, X(9), T(0), 4)
        self.fst(5, "wo")
        self.stamp(11)
        A("s_branch L_next")
        A("L_wo_rs:")

    def p_addr(self, dst):
        A = self.A; sh = 10 if self.o.playout == 0 else 13
        A(f"v_lshrrev_b32 {dst}, 5, {LANE}"); A(f"v_lshlrev_b32 {dst}, {sh}, {dst}"); A(f"v_and_b32 {TMP}, 31, {LANE}"); A(f"v_lshl_add_u32 {dst}, {TMP}, 2, {dst}")
        A(f"s_and_b32 s68, {sWAVE}, 1"); A(f"s_lshl_b32 s68, s68, {sh+1}"); A(f"v_add_u32 {dst}, s68, {dst}")

    def rs_setup(self):
        A = self.A
        pa, xa, sa = X(8), X(10), X(11)
        A(f"v_lshrrev_b32 {X(12)}, 5, {LANE}"); A(f"s_and_b32 s68, {sWAVE}, 1"); A("s_lshl_b32 s68, s68, 1"); A(f"s_add_u32 s68, s68, {sS4}"); A(f"v_add_u32 {X(12)}, s68, {X(12)}")
        self.p_addr(pa)
        A(f"v_bfe_u32 {TMP}, {LANE}, 4, 1"); A(f"v_mul_u32_u24 {xa}, 896, {TMP}"); A(f"v_lshlrev_b32 {sa}, 8, {TMP}")
        A(f"v_lshl_add_u32 {xa}, {X(12)}, 5, {xa}"); A(f"v_lshl_add_u32 {sa}, {X(12)}, 3, {sa}")
        A(f"v_and_b32 {TMP}, 15, {LANE}"); A(f"v_lshl_add_u32 {xa}, {TMP}, 1, {xa}")
    def stage_rs(self):
        A = self.A
        pa, xa, sa = X(8), X(10), X(11)
        NS = self.o.rsets
        def issue(k):
            for g in range(8): A(f"global_load_dword {T(8*k+g)}, {pa}, {SA} offset:{self.p_poll_off(g)} sc1")
        for k in range(NS - 1): issue(k)
        A("L_rs:")
        for k in range(NS):
            issue((k + NS - 1) % NS)
            A(f"s_waitcnt vmcnt({8*(NS-1)})")
            for s in self.maxops(X(4), [T(8*k+g) for g in range(8)]): A(s)
            A(f"v_cmp_eq_u32 vcc, -1, {X(4)}")
            A(f"s_cbranch_vccz L_rs_ok{k}")
        A(f"s_cmp_eq_u32 {sBUD}, 0"); A("s_cbranch_scc1 L_rs_ok0"); A(f"s_sub_u32 {sBUD}, {sBUD}, 1")
        if self.o.rssleep: A(f"s_sleep {self.o.rssleep}")
        A("s_branch L_rs")
        for k in range(NS):
            A(f"L_rs_ok{k}:")
            b_ = 8 * k
            A(f"v_add_f32 {X(0)}, {T(b_)}, {T(b_+1)}"); A(f"v_add_f32 {X(1)}, {T(b_+2)}, {T(b_+3)}"); A(f"v_add_f32 {X(2)}, {T(b_+4)}, {T(b_+5)}"); A(f"v_add_f32 {X(3)}, {T(b_+6)}, {T(b_+7)}")
            if k != NS - 1: A("s_branch L_rs_d")
        A("L_rs_d:")
        A(f"v_cmp_eq_u32 vcc, 0xffff, {X(13)}")
        A("s_cbranch_vccz L_rsr_d")
        A("L_rsr:")
        A(f"global_load_ushort {X(13)}, {xa}, {SD} sc1"); A("s_waitcnt vmcnt(0)")
        A(f"v_cmp_eq_u32 vcc, 0xffff, {X(13)}")
        A("s_cbranch_vccz L_rsr_d")
        A(f"s_cmp_eq_u32 {sBUD}, 0"); A("s_cbranch_scc1 L_rsr_d"); A(f"s_sub_u32 {sBUD}, {sBUD}, 1")
        A("s_branch L_rsr")
        A("L_rsr_d:")
        A(f"v_add_f32 {X(0)}, {X(0)}, {X(1)}"); A(f"v_add_f32 {X(2)}, {X(2)}, {X(3)}"); A(f"v_lshlrev_b32 {X(6)}, 16, {X(13)}"); A(f"v_add_f32 {X(0)}, {X(0)}, {X(2)}")
        if self.o.round2:
            A(f"v_cvt_pk_bf16_f32 {X(0)}, {X(0)}, {X(0)}"); A(f"v_and_b32 {X(0)}, 0xffff0000, {X(0)}")
        A(f"v_add_f32 {X(0)}, {X(6)}, {X(0)}")
        if self.o.perturb:
            lab = A.label("PT")
            A("s_cmp_eq_u32 s78, 1"); A(f"s_cbranch_scc0 {lab}"); A(f"s_cmp_eq_u32 {sSIG}, 2"); A(f"s_cbranch_scc0 {lab}")
            A("s_mov_b64 exec, 1"); A(f"v_add_f32 {X(0)}, {f32(self.o.perturb)}, {X(0)}"); A("s_mov_b64 exec, -1")
            A(f"{lab}:")
        A(f"v_mov_b32_dpp {X(2)}, {X(0)} quad_perm:[1,0,3,2] {DPP}")
        A(f"v_cvt_pk_bf16_f32 {X(3)}, {X(0)}, {X(0)}")
        A(f"v_cvt_pk_bf16_f32 {X(1)}, {X(0)}, {X(2)}")
        A("s_cmp_eq_u32 s78, 1"); A("s_cbranch_scc1 L_final")
        self.set_exec(0x55555555, 0x55555555)
        self.pub(f"global_store_dword {xa}, {X(1)}, {SB}")
        A("s_mov_b64 exec, -1")
        A(f"v_and_b32 {X(2)}, 0xffff0000, {X(3)}")
        A(f"v_mul_f32 {X(3)}, {X(2)}, {X(2)}")
        for sh in (1, 2, 4, 8):
            for r in (X(2), X(3)): A(f"v_add_f32_dpp {r}, {r}, {r} row_shr:{sh} {DPP}")
        self.set_exec(0x80008000, 0x80008000)
        self.pub(f"global_store_dwordx2 {sa}, {XR(2,2)}, {SC_}")
        A("s_mov_b64 exec, -1")
        self.stamp(12)
        A("s_waitcnt vmcnt(0)")

    def stage_gu(self):
        A = self.A
        self.gbase(SC_, R_H)
        A(f"v_bfe_u32 {X(7)}, {LANE}, 4, 1"); A(f"v_mul_u32_u24 {X(7)}, 448, {X(7)}"); A(f"v_and_b32 {TMP}, 15, {LANE}"); A(f"v_lshl_add_u32 {X(7)}, {TMP}, 1, {X(7)}")
        A(f"s_lshl_b32 s68, {sSIG}, 4"); A(f"v_add_u32 {X(7)}, s68, {X(7)}")
        self.stage_ln(R_X1, R_ST1, None, 1.0, "L_gu", sleep=self.o.lnsleep, pre=self.o.gupre)
        z = X(4)
        A(f"v_cvt_pk_bf16_f32 {z}, {z}, {z}"); A(f"v_and_b32 {z}, 0xffff0000, {z}")
        A(f"v_mov_b32_dpp {X(5)}, {z} row_ror:8 {DPP}")
        A(f"v_max_f32 {z}, 0, {z}"); A(f"v_mul_f32 {z}, {z}, {X(5)}")
        self.pack_pair(X(5), z, X(6))
        self.set_exec(0x00550055, 0)
        self.pub(f"global_store_dword {X(7)}, {X(5)}, {SC_}")
        A("s_mov_b64 exec, -1")
        self.fst(5)

    def dn_fetch(self):
        A = self.A
        A(f"s_cmp_eq_u32 {sWAVE}, 1"); A("s_cbranch_scc0 L_dn_b")
        self.gbase(SA, R_H)
        A(f"v_add_u32 {X(10)}, {LDS_RED}, {L16}")
        if self.o.dnpre: A(f"s_sleep {self.o.dnpre}")
        self.set_exec(0xFFFFFFFF, 0x00FFFFFF)
        A("L_dn:")
        A(f"global_load_dwordx4 {TR(0,4)}, {L16}, {SA} sc1"); A("s_waitcnt vmcnt(0)")
        for s in self.maxops(X(11), [T(0), T(1), T(2), T(3)]): A(s)
        self.poll_tail(X(11), "L_dn", "L_dn_d", sleep=self.o.lnsleep)
        A("L_dn_d:")
        A(f"ds_write_b128 {X(10)}, {TR(0,4)}")
        A("s_mov_b64 exec, -1")
        A("s_waitcnt lgkmcnt(0)")
        A("L_dn_b:")
        A("s_barrier")
    def stage_dn(self):
        A = self.A
        a = X(8)
        A(f"v_and_b32 {a}, 1, {LANE}"); A(f"v_mul_u32_u24 {a}, 448, {a}"); A(f"v_lshrrev_b32 {TMP}, 4, {LANE}"); A(f"v_lshl_add_u32 {a}, {TMP}, 4, {a}")
        A(f"v_add_u32 {a}, {LDS_RED}, {a}")
        self.cbase(SB, 1, consumer=False)
        self.p_store_addr(X(9))
        self.dn_fetch()
        A(f"s_cmp_ge_u32 {sWAVE}, 2"); A("s_cbranch_scc0 L_dn_nors")
        self.gbase(SD, R_X1)
        self.rs_setup()
        A(f"global_load_ushort {X(13)}, {X(10)}, {SD} sc1")
        A("s_branch L_dn_rs")
        A("L_dn_nors:")
        D = [XR(0, 4), XR(4, 4)]
        for t in range(7): A(f"ds_read_b128 {TR(4*t,4)}, {a} offset:{t*64}")
        for t in range(7):
            if t in (0, 3, 5): A(f"s_waitcnt lgkmcnt({ {0: 4, 3: 2, 5: 0}[t] })")
            for u in range(2):
                A(f"v_mfma_f32_16x16x32_bf16 {D[u]}, {TR(4*t,4)}, {WR(4*(2*t+u),4)}, {'0' if t == 0 else D[u]}")
        A(f"v_permlane16_swap_b32 {X(0)}, {X(1)}"); A(f"v_permlane16_swap_b32 {X(4)}, {X(5)}")
        A(f"v_permlane32_swap_b32 {X(0)}, {X(4)}")
        self.p_publish(SB, X(9), X(0), 0)

    def stage_q2(self):
        A = self.A
        self.gbase(SC_, R_Q, 1)
        A(f"v_bfe_u32 {X(7)}, {LANE}, 4, 1"); A(f"v_lshlrev_b32 {X(7)}, 10, {X(7)}"); A(f"v_and_b32 {TMP}, 15, {LANE}"); A(f"v_lshl_add_u32 {X(7)}, {TMP}, 1, {X(7)}")
        A(f"s_lshl_b32 s68, {sSIG}, 5"); A(f"v_add_u32 {X(7)}, s68, {X(7)}")
        self.stage_ln(R_X2, R_ST2, 0, QSCALE, "L_qx", sleep=self.o.lnsleep, pre=self.o.wqpre)
        self.pack_pair(X(5), X(4), X(6))
        self.set_exec(0x55555555, 0)
        self.pub(f"global_store_dword {X(7)}, {X(5)}, {SC_}")
        A("s_mov_b64 exec, -1")

    def finish(self):
        A = self.A
        if not self.o.prof: return
        A("s_lshl_b32 s68, s2, 2"); A(f"s_add_u32 s68, s68, {sWAVE}"); A("s_lshl_b32 s68, s68, 7"); A(f"v_mov_b32 {X(0)}, s68")
        A("s_mov_b64 exec, 1")
        for k in range(20):
            A(f"v_mov_b32 {X(1)}, s{80+k}"); A(f"global_store_dword {X(0)}, {X(1)}, {sWS} offset:{4*k}")
        for k in range(9):
            A(f"v_mov_b32 {X(1)}, s{36+k}"); A(f"global_store_dword {X(0)}, {X(1)}, {sWS} offset:{80+4*k}")
        A(f"v_mov_b32 {X(1)}, {sMODE}"); A(f"global_store_dword {X(0)}, {X(1)}, {sWS} offset:116")
        A(f"v_mov_b32 {X(1)}, {sBUD}"); A(f"global_store_dword {X(0)}, {X(1)}, {sWS} offset:120")

    def build(self):
        A = self.A; o = self.o
        self.prologue()
        if o.prof:
            for k in range(9): A(f"s_mov_b32 s{36+k}, 0")
        self.stream()
        A("L_layer:")
        self.get_q()
        self.stamp(6)
        self.attention()
        A(f"s_cmp_eq_u32 {sWAVE}, 0"); A("s_cbranch_scc0 L_nocomb")
        self.combine_publish()
        self.stamp(10)
        A("L_nocomb:")
        A(f"s_cmp_eq_u32 {sROLE}, {ROLE_GU}"); A("s_cbranch_scc1 L_gu_s")
        A(f"s_cmp_eq_u32 {sROLE}, {ROLE_DN}"); A("s_cbranch_scc1 L_dn_s")
        A(f"s_cmp_eq_u32 {sROLE}, {ROLE_WQ}"); A("s_cbranch_scc1 L_wq_s")
        A(f"s_cmp_eq_u32 {sROLE}, {ROLE_WO}"); A("s_cbranch_scc0 L_next")
        self.stage_wo()
        self.cbase(SA, 0); self.gbase(SB, R_X1); self.gbase(SC_, R_ST1); A("s_mov_b32 s78, 0")
        if o.rspre1: A(f"s_sleep {o.rspre1}")
        A("L_rs_entry:")
        self.stage_rs()
        self.dstamp(6, layer=0)
        A("s_branch L_next")
        A("L_gu_s:")
        self.stage_gu()
        self.stamp(13)
        A("s_branch L_next")
        A("L_dn_s:")
        self.stage_dn()
        self.stamp(14)
        A("s_branch L_next")
        A("L_dn_rs:")
        self.cbase(SA, 1); self.gbase(SB, R_X2); self.gbase(SC_, R_ST2); A(f"s_mov_b32 s78, {sLAYER}")
        if o.rspre2: A(f"s_sleep {o.rspre2}")
        A("s_branch L_rs_entry")
        A("L_wq_s:")
        A(f"s_cmp_eq_u32 {sLAYER}, 1"); A("s_cbranch_scc1 L_fin")
        self.stage_q2()
        self.stamp(15)
        A("L_next:")
        A(f"s_cmp_eq_u32 {sLAYER}, 1"); A("s_cbranch_scc1 L_fin")
        A(f"s_mov_b32 {sLAYER}, 1")
        A("s_branch L_layer")
        A("L_final:")
        A(f"s_cmp_eq_u32 {sGI}, 0"); A("s_cbranch_scc0 L_fin")
        self.set_exec(0x55555555, 0x55555555)
        A(f"global_store_dword {X(10)}, {X(1)}, {sOUT}")
        A(f"s_cmp_eq_u32 {sSIG}, 2"); A("s_cbranch_scc0 L_noep")
        A("s_mov_b64 exec, 1")
        A(f"v_mov_b32 {X(2)}, {EOFF}"); A(f"v_mov_b32 {X(3)}, {sTAG}")
        A(f"global_store_dword {X(2)}, {X(3)}, {sWS}")
        A("L_noep:")
        A("s_mov_b64 exec, -1")
        A("L_fin:")
        self.dstamp(10)
        self.stamp(16)
        self.finish()
        A("L_end:")
        A("s_endpgm")
        lines, n = hazard.fix(A.L, verbose=o.verbose)
        A.L = lines
        return A

def main():
    ap = argparse.ArgumentParser()
    ap.add_argument("-o", default="k3.s")
    ap.add_argument("--prof", action="store_true")
    ap.add_argument("--slow", action="store_true")
    ap.add_argument("--nt", type=int, default=1)
    ap.add_argument("--wnt", type=int, default=1)
    ap.add_argument("--win", type=int, default=12)
    ap.add_argument("--winv", type=int, default=60)
    ap.add_argument("--budget", type=int, default=200000)
    ap.add_argument("--gate", type=int, default=0)
    ap.add_argument("--gatesleep", type=int, default=1)
    ap.add_argument("--qsleep", type=int, default=1)
    ap.add_argument("--trypoll", type=int, default=6)
    ap.add_argument("--k0", type=int, default=1)
    ap.add_argument("--prefetch", type=int, default=0)
    ap.add_argument("--rsets", type=int, default=1)
    ap.add_argument("--lnsleep", type=int, default=0)
    ap.add_argument("--playout", type=int, default=0)
    ap.add_argument("--ncopies", type=int, default=8)
    ap.add_argument("--rspre1", type=int, default=10)
    ap.add_argument("--rspre2", type=int, default=12)
    ap.add_argument("--rssleep", type=int, default=0)
    ap.add_argument("--wopre", type=int, default=0)
    ap.add_argument("--gupre", type=int, default=0)
    ap.add_argument("--wqpre", type=int, default=0)
    ap.add_argument("--dnpre", type=int, default=0)
    ap.add_argument("--qpre", type=int, default=0)
    ap.add_argument("--exp", default="")
    ap.add_argument("--perturb", type=float, default=0.0)
    ap.add_argument("--vdist", type=int, default=3)
    ap.add_argument("--fullcheck", type=int, default=0)
    ap.add_argument("--round2", type=int, default=0)
    ap.add_argument("--stamps", default=None)
    ap.add_argument("--verbose", action="store_true")
    ap.add_argument("--dbgstamps", action="store_true")
    ap.add_argument("--fine", default="")
    o = ap.parse_args()
    g = Gen(o); A = g.build(); A.write(o.o)
    print("wrote", o.o, len(A.L), "lines")
main()
```

```python
import sys, argparse, struct
from asmlib import Asm, NAME
import hazard

GOFF = 0x100000; LSTRIDE = 0x8000
R_Q = 0x0000; R_ML = 0x0800; R_X1 = 0x0A00; R_ST1 = 0x1100; R_H = 0x1300; R_X2 = 0x1800; R_ST2 = 0x1F00; R_O = 0x4000
COFF = GOFF + 0x80000
EOFF = 0x0F0000
QTOFF = 0x0F8000
TAGC = 0x9E3779B9
NLDS = 19
VW = NLDS * 2048
LDS_OP = 4 * VW; LDS_MLP = LDS_OP + 4096; LDS_QL = LDS_MLP + 64; LDS_FLAG = LDS_QL + 512; LDS_RED = LDS_FLAG + 64
assert LDS_RED + 2048 <= 163840
LOG2E = 1.4426950408889634
QSCALE = LOG2E / 16.0
ROLE_WQ, ROLE_WO, ROLE_GU, ROLE_DN, ROLE_NONE = 0, 1, 2, 3, 4

def f32(x): return "0x%08x" % struct.unpack("<I", struct.pack("<f", x))[0]
def X(n): assert 0 <= n < 20; return f"v{4+n}"
def T(n): assert 0 <= n < 64; return f"v{24+n}"
def W(n): assert 0 <= n < 64; return f"v{88+n}"
def VR(n): assert 0 <= n < 104; return f"v{152+n}"
def rng(f, a, n):
    s = f(a); k = int(s[1:]); assert n == 1 or k % 2 == 0, (s, n); return f"{s[0]}[{k}:{k+n-1}]"
def XR(a, n): return rng(X, a, n)
def TR(a, n): return rng(T, a, n)
def WR(a, n): return rng(W, a, n)
def VRR(a, n): return rng(VR, a, n)
LANE = "v0"; CS = "v1"; L16 = "v2"; TMP = "v3"
sM0B = "s3"
sXIN = "s[4:5]"
sOUT = "s[16:17]"; sDBG = "s[18:19]"; sWS = "s[20:21]"; sG = "s[22:23]"; sC = "s[24:25]"
sWAVE = "s26"; sGI = "s27"; sJ = "s28"; sHL = "s29"; sB = "s30"; sSP = "s31"
sMODE = "s32"; sBUD = "s33"; sLAYER = "s34"; sTILE = "s35"
sTAG = "s46"; sROLE = "s6"; sSIG = "s7"; sS4 = "s47"
sSEL = "s[60:61]"
sMA = "s[54:55]"
SA = "s[70:71]"; SB = "s[72:73]"; SC_ = "s[74:75]"; SD = "s[64:65]"
WBAR = "v[14:15]"; WBAR0 = "v14"; WBAR1 = "v15"
DPP = "row_mask:0xf bank_mask:0xf"

class Gen:
    def __init__(self, opt):
        self.o = opt; self.A = Asm(); self.ob = 0; self.tail_code = []
    def stamp(self, k):
        if not self.o.prof: return
        if self.o.stamps is not None and k not in [int(x) for x in self.o.stamps.split(",")]: return
        A = self.A
        A("s_memrealtime s[76:77]"); A("s_waitcnt lgkmcnt(0)")
        if 6 <= k <= 14:
            A(f"s_cmp_eq_u32 {sLAYER}, 0"); A(f"s_cselect_b32 s{80+k}, s76, s{80+k}"); A(f"s_cselect_b32 s{30+k}, s{30+k}, s76")
        else:
            A(f"s_mov_b32 s{80+k}, s76")
    def dstamp(self, word, neg=False, layer=None):
        if not self.o.dbgstamps: return
        A = self.A
        lab = A.label("DS")
        A("s_cmp_eq_u32 s2, 176"); A(f"s_cbranch_scc0 {lab}"); A(f"s_cmp_eq_u32 {sWAVE}, 0"); A(f"s_cbranch_scc0 {lab}")
        if layer is not None:
            A(f"s_cmp_eq_u32 {sLAYER}, {layer}"); A(f"s_cbranch_scc0 {lab}")
        A("s_memrealtime s[76:77]"); A("s_waitcnt lgkmcnt(0)")
        A(f"v_mov_b32 v86, s76"); A(f"v_mov_b32 v87, {4*word}")
        A("s_mov_b64 s[78:79], exec"); A("s_mov_b64 exec, 1")
        A(f"global_store_dword v87, v86, {sDBG}")
        A("s_mov_b64 exec, s[78:79]")
        A(f"{lab}:")
    def fst(self, k, which="ln"):
        if self.o.fine != which: return
        A = self.A
        A("s_memtime s[76:77]"); A("s_waitcnt lgkmcnt(0)"); A(f"s_mov_b32 s{90+k}, s76")
    def gbase(self, dst, off, layer=None):
        A = self.A; d = int(dst[2:dst.index(":")])
        if layer is None:
            A(f"s_mul_i32 s68, {sLAYER}, {LSTRIDE}"); A(f"s_add_u32 s68, s68, {off}")
            A(f"s_add_u32 s{d}, s22, s68")
        else:
            A(f"s_add_u32 s{d}, s22, {off + layer*LSTRIDE}")
        A(f"s_addc_u32 s{d+1}, s23, 0")
    def cbase(self, dst, kind, consumer=True):
        A = self.A; d = int(dst[2:dst.index(":")]); L = self.o.playout
        A(f"s_lshl_b32 s68, {sLAYER}, 19"); A(f"s_lshl_b32 s69, {sS4}, {10 if L == 0 else 13}"); A("s_add_u32 s68, s68, s69")
        if consumer:
            sh = {0: 15, 1: 7, 2: 10}[L]; extra = {0: 0, 1: 4096, 2: 0}[L]
        else:
            sh = {0: 7, 1: 10, 2: 7}[L]; extra = {0: 0, 1: 0, 2: 4096}[L]
        if consumer and self.o.ncopies < 8: A(f"s_and_b32 s69, {sGI}, {self.o.ncopies - 1}"); A(f"s_lshl_b32 s69, s69, {sh}")
        else: A(f"s_lshl_b32 s69, {sGI}, {sh}")
        A("s_add_u32 s68, s68, s69"); A(f"s_add_u32 s68, s68, {kind*0x40000 + extra}")
        A(f"s_add_u32 s{d}, s24, s68"); A(f"s_addc_u32 s{d+1}, s25, 0")
    def p_store_addr(self, dst):
        self.p_addr(dst)
    def p_publish(self, base, vaddr, val, t4):
        A = self.A; d = int(base[2:base.index(":")]); N = self.o.ncopies
        for c in range(N):
            A(f"global_store_dword {vaddr}, {val}, {base} sc1")
            if c != N - 1: A(f"s_add_u32 s{d}, s{d}, 0x8000"); A(f"s_addc_u32 s{d+1}, s{d+1}, 0")
    def p_poll_off(self, g):
        return {0: g * 128, 1: g * 1024 - 4096, 2: g * 128}[self.o.playout]
    def maxops(self, dst, regs, first=True):
        out = []; regs = list(regs)
        if first:
            if len(regs) >= 3: out.append(f"v_max3_u32 {dst}, {regs[0]}, {regs[1]}, {regs[2]}"); regs = regs[3:]
            elif len(regs) == 2: out.append(f"v_max_u32 {dst}, {regs[0]}, {regs[1]}"); regs = []
            else: out.append(f"v_mov_b32 {dst}, {regs[0]}"); regs = []
        while len(regs) >= 2:
            out.append(f"v_max3_u32 {dst}, {dst}, {regs[0]}, {regs[1]}"); regs = regs[2:]
        if regs: out.append(f"v_max_u32 {dst}, {dst}, {regs[0]}")
        return out
    def chk_regs(self, f, base, nload):
        if self.o.fullcheck: return [f(base + k) for k in range(4 * nload)]
        return [f(base + 4 * k) for k in range(nload)]
    def poll_tail(self, chk, loop, done, sleep=0):
        A = self.A
        A(f"v_cmp_eq_u32 vcc, -1, {chk}")
        A(f"s_cbranch_vccz {done}")
        A(f"s_cmp_eq_u32 {sBUD}, 0"); A(f"s_cbranch_scc1 {done}")
        A(f"s_sub_u32 {sBUD}, {sBUD}, 1")
        if sleep: A(f"s_sleep {sleep}")
        A(f"s_branch {loop}")
    def gate(self, base, vaddr, off, dst, lab):
        if not self.o.gate: return
        A = self.A
        A(f"{lab}:")
        A(f"global_load_dword {dst}, {vaddr}, {base} offset:{off} sc1"); A("s_waitcnt vmcnt(0)")
        self.poll_tail(dst, lab, lab + "_d", sleep=self.o.gatesleep)
        A(f"{lab}_d:")
    def pub(self, instr):
        A = self.A
        l1 = A.label("PUBS"); l2 = A.label("PUBD")
        A(f"s_cmp_eq_u32 {sMODE}, 1"); A(f"s_cbranch_scc0 {l1}")
        A(instr); A(f"{l2}:")
        self.tail_code += [f"{l1}:", instr + " sc1", f"s_branch {l2}"]
    def set_exec(self, lo, hi):
        A = self.A
        if lo == 0xFFFFFFFF and hi == 0xFFFFFFFF: A("s_mov_b64 exec, -1"); return
        A(f"s_mov_b32 exec_lo, {hex(lo)}"); A(f"s_mov_b32 exec_hi, {hex(hi)}")
    def ln_addr(self, dst):
        A = self.A
        A(f"v_and_b32 {dst}, 1, {LANE}"); A(f"v_mul_u32_u24 {dst}, 896, {dst}")
        A(f"v_lshrrev_b32 {TMP}, 4, {LANE}"); A(f"v_lshl_add_u32 {dst}, {TMP}, 4, {dst}")
    def xst_addr(self, dst):
        A = self.A
        A(f"v_bfe_u32 {TMP}, {LANE}, 4, 1"); A(f"v_mul_u32_u24 {dst}, 896, {TMP}")
        A(f"v_and_b32 {TMP}, 15, {LANE}"); A(f"v_lshl_add_u32 {dst}, {TMP}, 1, {dst}")
        A(f"s_lshl_b32 s68, {sSIG}, 5"); A(f"v_add_u32 {dst}, s68, {dst}")
    def pack_pair(self, dst, val, tmp):
        A = self.A
        A(f"v_mov_b32_dpp {tmp}, {val} quad_perm:[1,0,3,2] {DPP}")
        A(f"v_cvt_pk_bf16_f32 {dst}, {val}, {tmp}")

    def prologue(self):
        A = self.A; o = self.o
        wnt = " nt" if o.wnt else ""
        A(f"""
        s_cmp_ge_u32 s2, 256
        s_cbranch_scc1 L_end
        {"s_memrealtime s[100:101]" if o.dbgstamps else ""}
        s_load_dwordx16 s[36:51], s[0:1], 0
        s_load_dwordx8 s[52:59], s[0:1], 64
        v_lshrrev_b32 v1, 6, v0
        v_and_b32 v0, 63, v0
        s_and_b32 {sGI}, s2, 7
        v_readfirstlane_b32 {sWAVE}, v1
        s_lshr_b32 {sJ}, s2, 3
        s_lshr_b32 s68, {sJ}, 3
        s_and_b32 {sSP}, {sJ}, 7
        s_and_b32 {sHL}, s68, 1
        s_lshr_b32 {sB}, s68, 1
        s_mov_b32 {sBUD}, {o.budget}
        s_mov_b32 {sLAYER}, 0
        s_mov_b32 {sMODE}, 0
        s_mov_b32 s60, 0xffff0000
        s_mov_b32 s61, 0xffff0000
        v_lshlrev_b32 {L16}, 4, {LANE}
        v_mov_b32 {CS}, 0
        s_lshl_b32 s68, {sGI}, 1
        s_add_u32 s68, s68, {sHL}
        s_lshl_b32 s69, {sB}, 4
        s_add_u32 s68, s68, s69
        s_lshl_b32 {sTILE}, s68, 21
        s_lshl_b32 s68, {sSP}, 15
        s_add_u32 {sTILE}, {sTILE}, s68
        s_lshl_b32 s68, {sWAVE}, 13
        s_add_u32 {sTILE}, {sTILE}, s68
        s_mul_i32 {sM0B}, {sWAVE}, {VW}
        """)
        A(f"s_mov_b32 {sROLE}, {ROLE_WQ}"); A(f"s_mov_b32 s62, {sJ}")
        for (lim, role) in ((8, ROLE_WO), (15, ROLE_GU), (22, ROLE_DN), (29, ROLE_NONE)):
            A(f"s_cmp_ge_u32 {sJ}, {lim}"); A(f"s_cselect_b32 {sROLE}, {role}, {sROLE}"); A(f"s_sub_u32 s68, {sJ}, {lim}")
            A(f"s_cmp_ge_u32 {sJ}, {lim}"); A("s_cselect_b32 s62, s68, s62")
        A(f"s_lshl_b32 {sSIG}, s62, 2"); A(f"s_add_u32 {sSIG}, {sSIG}, {sWAVE}")
        self.ld_setup()
        A("s_waitcnt lgkmcnt(0)")
        A("s_mov_b32 s8, s38"); A("s_mov_b32 s9, s39"); A("s_mov_b32 s10, 0x4000000"); A("s_mov_b32 s11, 0x00020000")
        self.ob = 0
        self.ktile(0, 64)
        self.stamp(0)
        if o.prof:
            for k in range(1, 20): A(f"s_mov_b32 s{80+k}, 0")
        A(f"""
        s_load_dword {sTAG}, s[58:59], {EOFF}
        s_sub_u32 {sS4}, {sSIG}, {sWAVE}
        s_mov_b32 s12, s40
        s_mov_b32 s13, s41
        s_mov_b32 s14, 0x4000000
        s_mov_b32 s15, 0x00020000
        s_mov_b32 s4, s36
        s_mov_b32 s5, s37
        s_mov_b32 s16, s54
        s_mov_b32 s17, s55
        s_mov_b32 s18, s56
        s_mov_b32 s19, s57
        s_mov_b32 s20, s58
        s_mov_b32 s21, s59
        s_lshl_b32 s68, {sGI}, 16
        s_add_u32 s68, s68, {GOFF}
        s_add_u32 s22, s58, s68
        s_addc_u32 s23, s59, 0
        s_add_u32 s24, s58, {COFF}
        s_addc_u32 s25, s59, 0
        s_mov_b64 s[70:71], s[58:59]
        s_mov_b64 s[72:73], s[58:59]
        s_mov_b64 s[74:75], s[58:59]
        """)
        if o.dbgstamps:
            A("s_cmp_eq_u32 s2, 176"); A("s_cbranch_scc0 L_ds0"); A(f"s_cmp_eq_u32 {sWAVE}, 0"); A("s_cbranch_scc0 L_ds0")
            A("v_mov_b32 v86, s100"); A("v_mov_b32 v87, 8"); A("s_mov_b64 exec, 1")
            A(f"global_store_dword v87, v86, {sDBG}"); A("s_mov_b64 exec, -1")
            A("L_ds0:")
            self.dstamp(3)
        if o.prefetch: self.prefetch_weights()
        for tau in range(1, o.k0): self.ktile(tau, 64)
        if 8 * o.k0 + (14 if o.prefetch else 0) > 16: A("s_waitcnt vmcnt(16)")
        row8, c, off = X(2), X(3), X(4)
        A(f"v_lshrrev_b32 {row8}, 3, {LANE}"); A(f"v_and_b32 {c}, 7, {LANE}")
        A(f"s_cmp_eq_u32 {sROLE}, {ROLE_WO}"); A("s_cbranch_scc1 L_w1")
        A(f"s_cmp_eq_u32 {sROLE}, {ROLE_GU}"); A("s_cbranch_scc1 L_w2")
        A(f"s_cmp_eq_u32 {sROLE}, {ROLE_DN}"); A("s_cbranch_scc1 L_w3")
        A(f"s_cmp_eq_u32 {sROLE}, {ROLE_WQ}"); A("s_cbranch_scc1 L_w0")
        A(f"v_mov_b32 {off}, 0"); A("s_mov_b32 s63, 0"); A("s_mov_b32 s66, 0"); A("s_mov_b32 s67, 0")
        A("s_mov_b32 s64, s42"); A("s_mov_b32 s65, s43"); A("s_mov_b32 s78, s42"); A("s_mov_b32 s79, s43")
        A("s_branch L_wdone")
        A("L_w0:")
        A(f"s_mul_i32 s68, {sWAVE}, 112"); A(f"v_add_u32 {X(5)}, s68, {row8}"); A(f"v_lshlrev_b32 {off}, 13, {X(5)}")
        A(f"v_lshl_add_u32 {off}, {c}, 4, {off}"); A(f"s_lshl_b32 s68, {sGI}, 10"); A("s_lshl_b32 s69, s62, 7"); A("s_add_u32 s68, s68, s69"); A(f"v_add_u32 {off}, s68, {off}")
        A("s_mov_b32 s63, 14"); A(f"s_mov_b32 s66, {8*8192}"); A(f"s_mul_i32 s67, {sWAVE}, 14336")
        A("s_mov_b32 s64, s42"); A("s_mov_b32 s65, s43"); A("s_mov_b32 s78, s42"); A("s_mov_b32 s79, s43")
        self.ln_addr(X(8))
        self.set_exec(0x00030003, 0x00030003)
        for t in range(14):
            A(f"global_load_dwordx4 {TR(4*t,4)}, {X(8)}, {sXIN} offset:{t*64}")
        A("s_mov_b64 exec, -1")
        for k in range(8): A(f"v_mov_b32 {T(56+k)}, 0")
        self.set_exec(0xFFFFFFFF, 0x00FFFFFF)
        A(f"global_load_dwordx4 {TR(56,4)}, {L16}, {sXIN}"); A(f"global_load_dwordx4 {TR(60,4)}, {L16}, {sXIN} offset:896")
        A("s_mov_b64 exec, -1")
        A("s_branch L_wdone")
        A("L_w1:")
        A(f"v_and_b32 {X(5)}, 3, {row8}"); A(f"v_lshlrev_b32 {X(5)}, 3, {X(5)}"); A(f"v_lshrrev_b32 {X(6)}, 2, {row8}"); A(f"v_add_u32 {X(5)}, {X(5)}, {X(6)}")
        A(f"s_lshl_b32 s68, {sGI}, 9"); A(f"s_lshl_b32 s69, {sWAVE}, 7"); A("s_add_u32 s68, s68, s69"); A(f"v_add_u32 {X(5)}, s68, {X(5)}")
        A(f"v_mul_u32_u24 {off}, 896, {X(5)}"); A(f"v_lshl_add_u32 {off}, {c}, 4, {off}"); A("s_lshl_b32 s68, s62, 7"); A(f"v_add_u32 {off}, s68, {off}")
        A(f"v_lshrrev_b32 {X(12)}, 5, {LANE}"); A(f"s_and_b32 s68, {sWAVE}, 1"); A("s_lshl_b32 s68, s68, 1"); A(f"s_add_u32 s68, s68, {sS4}"); A(f"v_add_u32 {X(12)}, s68, {X(12)}")
        A(f"v_bfe_u32 {TMP}, {LANE}, 4, 1"); A(f"v_mul_u32_u24 {X(10)}, 896, {TMP}"); A(f"v_lshl_add_u32 {X(10)}, {X(12)}, 5, {X(10)}")
        A(f"v_and_b32 {TMP}, 15, {LANE}"); A(f"v_lshl_add_u32 {X(10)}, {TMP}, 1, {X(10)}")
        A(f"global_load_ushort {CS}, {X(10)}, {sXIN}")
        A("s_mov_b32 s63, 16"); A("s_mov_b32 s66, 0"); A(f"s_mov_b32 s67, {sM0B}")
        A("s_mov_b32 s64, s44"); A("s_mov_b32 s65, s45"); A("s_mov_b32 s78, s44"); A("s_mov_b32 s79, s45")
        A("s_branch L_wdone")
        A("L_w2:")
        A(f"s_mul_i32 s68, {sWAVE}, 112"); A(f"v_add_u32 {X(5)}, s68, {row8}"); A(f"v_mul_u32_u24 {off}, 3584, {X(5)}")
        A(f"v_and_b32 {X(6)}, 3, {c}"); A(f"v_lshl_add_u32 {off}, {X(6)}, 4, {off}")
        A(f"s_mul_i32 s68, {sGI}, 448"); A("s_lshl_b32 s69, s62, 6"); A("s_add_u32 s68, s68, s69"); A(f"v_add_u32 {off}, s68, {off}")
        A("s_mov_b32 s63, 14"); A(f"s_mov_b32 s66, {8*3584}"); A(f"s_mul_i32 s67, {sWAVE}, 14336")
        A("s_mov_b32 s64, s48"); A("s_mov_b32 s65, s49"); A("s_mov_b32 s78, s50"); A("s_mov_b32 s79, s51")
        A("s_branch L_wdone")
        A("L_w3:")
        A(f"s_mul_i32 s68, {sGI}, 224"); A(f"s_mul_i32 s69, {sWAVE}, 56"); A("s_add_u32 s68, s68, s69"); A(f"v_add_u32 {X(5)}, s68, {row8}")
        A(f"v_mul_u32_u24 {off}, 896, {X(5)}"); A(f"v_lshl_add_u32 {off}, {c}, 4, {off}"); A("s_lshl_b32 s68, s62, 7"); A(f"v_add_u32 {off}, s68, {off}")
        A("s_mov_b32 s63, 7"); A(f"s_mov_b32 s66, {8*896}"); A(f"s_mul_i32 s67, {sWAVE}, 7168")
        A("s_mov_b32 s64, s52"); A("s_mov_b32 s65, s53"); A("s_mov_b32 s78, s52"); A("s_mov_b32 s79, s53")
        A("L_wdone:")
        A(f"v_cmp_le_u32 vcc, 4, {c}")
        A(f"v_mov_b32 {X(0)}, s64"); A(f"v_mov_b32 {X(5)}, s78"); A(f"v_cndmask_b32 {X(0)}, {X(0)}, {X(5)}, vcc")
        A(f"v_mov_b32 {X(1)}, s65"); A(f"v_mov_b32 {X(5)}, s79"); A(f"v_cndmask_b32 {X(1)}, {X(1)}, {X(5)}, vcc")
        A(f"v_add_co_u32 {X(0)}, vcc, {X(0)}, {off}"); A(f"v_addc_co_u32 {X(1)}, vcc, 0, {X(1)}, vcc")
        A("s_mov_b32 s68, s67"); A("s_mov_b32 s69, 0")
        if "now" in self.o.exp: A("s_mov_b32 s63, 0")
        if "nogu" in self.o.exp:
            A(f"s_cmp_eq_u32 {sROLE}, {ROLE_GU}"); A("s_cselect_b32 s63, 0, s63")
        A("s_cmp_eq_u32 s63, 0"); A("s_cbranch_scc1 L_wld_done")
        A("L_wld:")
        A("s_mov_b32 m0, s68")
        A("s_add_u32 s68, s68, 1024")
        A(f"global_load_lds_dwordx4 {XR(0,2)}, off{wnt}")
        A("s_add_u32 s69, s69, 1"); A("s_and_b32 s62, s69, 3"); A("s_cmp_eq_u32 s62, 0"); A(f"s_mov_b32 s76, {26*896}"); A(f"s_cselect_b32 s62, s76, {2*896}")
        A(f"s_cmp_eq_u32 {sROLE}, {ROLE_WO}"); A("s_cselect_b32 s62, s62, s66")
        A(f"v_add_co_u32 {X(0)}, vcc, s62, {X(0)}"); A(f"v_addc_co_u32 {X(1)}, vcc, 0, {X(1)}, vcc")
        A("s_cmp_lt_u32 s69, s63"); A("s_cbranch_scc1 L_wld")
        A("L_wld_done:")
        A("s_mov_b32 s48, 0x22222222"); A("s_mov_b32 s49, 0x22222222"); A("s_mov_b32 s50, 0x44444444"); A("s_mov_b32 s51, 0x44444444")
        A("s_mov_b32 s52, 0x88888888"); A("s_mov_b32 s53, 0x88888888")
        A("s_mov_b32 s54, 0x03030303"); A("s_mov_b32 s55, 0x03030303")
        A("s_mov_b32 s56, 0x0c0c0c0c"); A("s_mov_b32 s57, 0x0c0c0c0c"); A("s_mov_b32 s58, 0x30303030"); A("s_mov_b32 s59, 0x30303030")
        A("s_mov_b32 s62, 0xc0c0c0c0"); A("s_mov_b32 s63, 0xc0c0c0c0")
        A(f"s_cmp_eq_u32 {sWAVE}, 3"); A("s_cbranch_scc0 L_noclr")
        for k in range(4): A(f"v_mov_b32 {X(12+k)}, -1")
        A(f"s_lshl_b32 s68, {sJ}, 11"); A(f"v_add_u32 {X(8)}, s68, {L16}")
        A(f"global_store_dwordx4 {X(8)}, {XR(12,4)}, {sG} sc1"); A(f"global_store_dwordx4 {X(8)}, {XR(12,4)}, {sG} offset:1024 sc1")
        A(f"s_lshl_b32 s68, s2, 12"); A(f"v_add_u32 {X(9)}, s68, {L16}")
        for k in range(4): A(f"global_store_dwordx4 {X(9)}, {XR(12,4)}, {sC} offset:{k*1024} sc1")
        A("L_noclr:")

    def prefetch_weights(self):
        A = self.A
        f = {0: "", 1: "", 2: " nt"}[self.o.prefetch]
        u = "s78"
        A(f"s_lshl_b32 {u}, {sJ}, 2"); A(f"s_add_u32 {u}, {u}, {sWAVE}")
        d = [192]
        def ld(addr, base, off=0):
            A(f"global_load_dwordx4 a[{d[0]}:{d[0]+3}], {addr}, {base}" + (f" offset:{off}" if off else "") + f); d[0] += 4
        A(f"s_cmp_lt_u32 {u}, 112"); A("s_cbranch_scc0 L_pf1")
        A(f"s_lshl_b32 s68, {u}, 15"); A(f"s_lshl_b32 s69, {sGI}, 10"); A("s_add_u32 s68, s68, s69"); A(f"v_add_u32 {X(10)}, s68, {L16}")
        for k in range(4):
            ld(X(10), "s[42:43]")
            if k != 3: A(f"v_add_u32 {X(10)}, 8192, {X(10)}")
        A(f"v_lshrrev_b32 {X(11)}, 5, {LANE}"); A(f"v_mul_u32_u24 {X(11)}, 3584, {X(11)}"); A(f"v_and_b32 {X(12)}, 31, {LANE}"); A(f"v_lshl_add_u32 {X(11)}, {X(12)}, 4, {X(11)}")
        A(f"s_mul_i32 s68, {u}, {4*3584}"); A(f"s_mul_i32 s69, {sGI}, 448"); A("s_add_u32 s68, s68, s69"); A(f"v_add_u32 {X(11)}, s68, {X(11)}")
        A(f"v_add_u32 {X(12)}, 7168, {X(11)}")
        self.set_exec(0x0FFFFFFF, 0x0FFFFFFF)
        for base in ("s[48:49]", "s[50:51]"):
            ld(X(11), base); ld(X(12), base)
        A("s_mov_b64 exec, -1")
        A("L_pf1:")
        d[0] = 224
        A(f"s_mul_i32 s68, {sGI}, 458752"); A(f"s_mul_i32 s69, {u}, 3584"); A("s_add_u32 s68, s68, s69"); A(f"v_add_u32 {X(10)}, s68, {L16}")
        for k in range(3): ld(X(10), "s[44:45]", k * 1024)
        self.set_exec(0xFFFFFFFF, 0)
        ld(X(10), "s[44:45]", 3072)
        A("s_mov_b64 exec, -1")
        A(f"s_mul_i32 s68, {sGI}, 200704"); A(f"s_mul_i32 s69, {u}, 1568"); A("s_add_u32 s68, s68, s69"); A(f"v_add_u32 {X(10)}, s68, {L16}")
        ld(X(10), "s[52:53]")
        self.set_exec(0xFFFFFFFF, 0x3)
        ld(X(10), "s[52:53]", 1024)
        A("s_mov_b64 exec, -1")

    def tr_reads(self):
        A = self.A
        a = X(8); r, c, g4 = X(10), X(9), TMP
        A(f"v_and_b32 {c}, 15, {LANE}"); A(f"v_lshrrev_b32 {r}, 2, {c}"); A(f"v_and_b32 {c}, 3, {c}")
        A(f"v_lshrrev_b32 {a}, 4, {LANE}"); A(f"v_lshlrev_b32 {a}, 3, {a}"); A(f"v_add_u32 {a}, {a}, {r}")
        A(f"v_lshlrev_b32 {a}, 7, {a}")
        A(f"s_cmp_eq_u32 {sROLE}, {ROLE_WO}"); A("s_cbranch_scc1 L_tr_wo")
        A(f"s_cmp_eq_u32 {sROLE}, {ROLE_GU}"); A("s_cbranch_scc1 L_tr_gu")
        A(f"s_cmp_eq_u32 {sROLE}, {ROLE_DN}"); A("s_cbranch_scc1 L_tr_dn")
        A(f"v_lshl_add_u32 {a}, {c}, 3, {a}"); A(f"s_lshl_b32 s68, {sWAVE}, 5"); A(f"v_add_u32 {a}, s68, {a}")
        A("s_branch L_tr_n")
        A("L_tr_gu:")
        A(f"v_and_b32 {r}, 1, {c}"); A(f"v_lshl_add_u32 {a}, {r}, 3, {a}"); A(f"v_lshrrev_b32 {r}, 1, {c}"); A(f"v_lshl_add_u32 {a}, {r}, 6, {a}")
        A(f"s_lshl_b32 s68, {sWAVE}, 4"); A(f"v_add_u32 {a}, s68, {a}")
        A("L_tr_n:")
        for t in range(14):
            A(f"ds_read_b64_tr_b16 {WR(4*t,2)}, {a} offset:{t*4096}")
            A(f"ds_read_b64_tr_b16 {WR(4*t+2,2)}, {a} offset:{t*4096+512}")
            if t % 4 == 3: A("s_waitcnt lgkmcnt(0)")
        A("s_branch L_tr_d")
        A("L_tr_dn:")
        A(f"v_lshl_add_u32 {a}, {c}, 3, {a}"); A(f"s_and_b32 s68, {sWAVE}, 1"); A("s_lshl_b32 s68, s68, 6"); A(f"v_add_u32 {a}, s68, {a}")
        for t in range(7):
            for u in range(2):
                k = 4 * (2 * t + u)
                A(f"ds_read_b64_tr_b16 {WR(k,2)}, {a} offset:{t*4096+u*32}")
                A(f"ds_read_b64_tr_b16 {WR(k+2,2)}, {a} offset:{t*4096+u*32+512}")
            if t % 2 == 1: A("s_waitcnt lgkmcnt(0)")
        A("s_branch L_tr_d")
        A("L_tr_wo:")
        A(f"v_lshl_add_u32 {a}, {c}, 3, {a}"); A(f"v_add_u32 {a}, {sM0B}, {a}")
        for tt in range(4):
            for nt in range(4):
                k = 4 * (4 * tt + nt)
                A(f"ds_read_b64_tr_b16 {WR(k,2)}, {a} offset:{tt*4096+nt*32}")
                A(f"ds_read_b64_tr_b16 {WR(k+2,2)}, {a} offset:{tt*4096+nt*32+512}")
            A("s_waitcnt lgkmcnt(0)")
        A("L_tr_d:")
        A("s_waitcnt lgkmcnt(0)")
        A(f"s_add_u32 {sTAG}, {sTAG}, {hex(TAGC)}")
    def colsum(self):
        A = self.A
        for k in range(4): A(f"v_mov_b32 {X(4+k)}, 0x3f803f80")
        for t in range(14):
            A(f"v_mfma_f32_16x16x32_bf16 {XR(0,4)}, {XR(4,4)}, {WR(4*t,4)}, {'0' if t == 0 else XR(0,4)}")
        A(f"v_mov_b32 {CS}, {X(0)}")

    def ln_scalars(self, s1, s2, scale):
        ops = [f"v_mul_f32 {s1}, {f32(1/448)}, {s1}", f"v_mul_f32 {s2}, {f32(1/448)}, {s2}",
               f"v_fma_f32 {s2}, -{s1}, {s1}, {s2}", f"v_max_f32 {s2}, 0, {s2}", f"v_add_f32 {s2}, {f32(1e-5)}, {s2}", f"v_rsq_f32 {s2}, {s2}"]
        if scale != 1.0: ops.append(f"v_mul_f32 {s2}, {f32(scale)}, {s2}")
        return ops
    def ln_finish(self, mu, rs):
        A = self.A
        A(f"v_permlane16_swap_b32 {X(0)}, {X(1)}")
        A(f"v_fma_f32 {X(4)}, -{mu}, {CS}, {X(0)}")
        A(f"v_mul_f32 {X(4)}, {X(4)}, {rs}")

    def stage_ln(self, rx, rst, layer, scale, lab, sleep=0, pre=0):
        A = self.A
        LX = LDS_RED; LS = LDS_OP
        xa, sa = X(8), X(9)
        self.ln_addr(xa); A(f"v_add_u32 {xa}, {LX}, {xa}")
        A(f"v_bfe_u32 {sa}, {LANE}, 4, 1"); A(f"v_lshlrev_b32 {sa}, 8, {sa}"); A(f"v_lshrrev_b32 {TMP}, 5, {LANE}"); A(f"v_lshl_add_u32 {sa}, {TMP}, 7, {sa}")
        A(f"v_and_b32 {TMP}, 15, {LANE}"); A(f"v_lshl_add_u32 {sa}, {TMP}, 3, {sa}")
        A(f"s_cmp_eq_u32 {sWAVE}, 1"); A(f"s_cbranch_scc0 {lab}_b")
        self.gbase(SA, rx, layer); self.gbase(SB, rst, layer)
        sets = [(TR(60, 4), XR(16, 4), TR(58, 2), [T(60), T(61), T(62), T(63), X(16), X(17), X(18), X(19), T(58), T(59)]),
                (WR(56, 4), WR(60, 4), XR(14, 2), [W(56), W(57), W(58), W(59), W(60), W(61), W(62), W(63), X(14), X(15)])]
        NS = self.o.lnsets
        for k in range(NS):
            for r in sets[k][3][4:]: A(f"v_mov_b32 {r}, 0")
        A(f"v_add_u32 {X(10)}, {LX}, {L16}")
        A(f"v_add_u32 {X(12)}, {LS}, {sa}")
        for _ in range(pre // 120): A("s_sleep 120")
        if pre % 120: A(f"s_sleep {pre % 120}")
        def issue(k):
            A(f"global_load_dwordx4 {sets[k][0]}, {L16}, {SA} sc1")
            self.set_exec(0xFFFFFFFF, 0x0000FFFF)
            A(f"global_load_dwordx4 {sets[k][1]}, {L16}, {SA} offset:1024 sc1")
            self.set_exec(0xFFFFFFFF, 0x0FFF0FFF)
            A(f"global_load_dwordx2 {sets[k][2]}, {sa}, {SB} sc1")
            A("s_mov_b64 exec, -1")
        for k in range(NS - 1): issue(k)
        A(f"{lab}:")
        for k in range(NS):
            issue((k + NS - 1) % NS)
            A(f"s_waitcnt vmcnt({3*(NS-1)})")
            for s in self.maxops(X(13), sets[k][3]): A(s)
            A(f"v_cmp_eq_u32 vcc, -1, {X(13)}")
            A(f"s_cbranch_vccz {lab}_ok{k}")
        A(f"s_cmp_eq_u32 {sBUD}, 0"); A(f"s_cbranch_scc1 {lab}_ok0"); A(f"s_sub_u32 {sBUD}, {sBUD}, 1")
        if sleep: A(f"s_sleep {sleep}")
        A(f"s_branch {lab}")
        for k in reversed(range(NS)):
            A(f"{lab}_ok{k}:")
            A(f"ds_write_b128 {X(10)}, {sets[k][0]}")
            A(f"ds_write_b64 {X(12)}, {sets[k][2]}")
            self.set_exec(0xFFFFFFFF, 0x0000FFFF)
            A(f"ds_write_b128 {X(10)}, {sets[k][1]} offset:1024")
            A("s_mov_b64 exec, -1")
            if k != 0: A(f"s_branch {lab}_w")
        A(f"{lab}_w:")
        A("s_waitcnt lgkmcnt(0)")
        A(f"{lab}_b:")
        A("s_barrier")
        D = XR(0, 4); s1, s2, t1, t2 = X(5), X(6), X(10), X(11)
        A(f"v_add_u32 {sa}, {LS}, {sa}")
        A(f"ds_read_b64 {TR(56,2)}, {sa}")
        for t in range(14): A(f"ds_read_b128 {TR(4*t,4)}, {xa} offset:{t*64}")
        red = [f"v_add_f32_dpp {s1}, {T(56)}, {T(56)} row_ror:8 {DPP}", f"v_add_f32_dpp {s2}, {T(57)}, {T(57)} row_ror:8 {DPP}"]
        for sh in (4, 2, 1):
            red += [f"v_add_f32_dpp {s1}, {s1}, {s1} row_ror:{sh} {DPP}", f"v_add_f32_dpp {s2}, {s2}, {s2} row_ror:{sh} {DPP}"]
        red += [f"v_mov_b32 {t1}, {s1}", f"v_mov_b32 {t2}, {s2}", f"v_permlane32_swap_b32 {s1}, {t1}", f"v_permlane32_swap_b32 {s2}, {t2}",
                f"v_add_f32 {s1}, {s1}, {t1}", f"v_add_f32 {s2}, {s2}, {t2}"]
        red += self.ln_scalars(s1, s2, scale)
        for t in range(14):
            if t in (0, 4, 8): A(f"s_waitcnt lgkmcnt({max(13 - t - 3, 0)})")
            if t == 12: A("s_waitcnt lgkmcnt(0)")
            A(f"v_mfma_f32_16x16x32_bf16 {D}, {TR(4*t,4)}, {WR(4*t,4)}, {'0' if t == 0 else D}")
            n = 2 if t % 2 == 0 else 1
            while n and red: A(red.pop(0)); n -= 1
        for s in red: A(s)
        self.fst(4)
        self.ln_finish(s1, s2)

    def ld_setup(self):
        A = self.A
        vK, vV = X(18), X(19)
        A(f"v_and_b32 {X(8)}, 15, {LANE}"); A(f"v_lshrrev_b32 {X(9)}, 4, {LANE}")
        A(f"v_and_b32 {vK}, 3, {LANE}"); A(f"v_lshlrev_b32 {vK}, 4, {vK}"); A(f"v_lshl_add_u32 {vK}, {X(9)}, 6, {vK}")
        A(f"v_bfe_u32 {TMP}, {LANE}, 2, 2"); A(f"v_lshl_add_u32 {vK}, {TMP}, 11, {vK}")
        A(f"v_lshlrev_b32 {vV}, 11, {X(9)}"); A(f"v_lshl_add_u32 {vV}, {X(8)}, 4, {vV}")
    def throttle(self, win):
        if self.ob + 1 > win:
            self.A(f"s_waitcnt vmcnt({win - 4})"); self.ob = win - 4
        self.ob += 1
    def ktile(self, tau, win):
        A = self.A; f = " nt" if self.o.nt else ""
        A(f"s_add_u32 s68, {sTILE}, {tau*262144}")
        for t in range(8):
            n = tau * 8 + t
            self.throttle(win)
            A(f"buffer_load_dwordx4 a[{4*n}:{4*n+3}], {X(19) if 'kv' in self.o.exp else X(18)}, s[8:11], s68 offen offset:{(t//2)*512 + (t%2)*256}{f}")
    def vtile(self, tau, win, va=None):
        A = self.A; f = " nt" if self.o.nt else ""
        va = va or X(19)
        A(f"s_add_u32 s68, {sTILE}, {tau*262144}")
        for t in range(8):
            n = tau * 8 + t
            imm = (t // 2) * 512 + (t % 2) * 256
            self.throttle(win)
            if n < 2 * NLDS:
                A(f"s_add_u32 m0, {sM0B}, {n*1024 - imm}")
                A(f"buffer_load_dwordx4 {va}, s[12:15], s68 offen offset:{imm}{f} lds")
            else:
                m = n - 2 * NLDS
                A(f"buffer_load_dwordx4 {VRR(4*m,4)}, {va}, s[12:15], s68 offen offset:{imm}{f}")
    def arrive(self):
        A = self.A
        A("s_getreg_b32 s68, hwreg(HW_REG_XCC_ID, 0, 4)"); A("s_and_b32 s68, s68, 7"); A("s_mul_i32 s68, s68, 6")
        A("s_lshl_b64 s[78:79], 1, s68"); A("s_or_b32 s79, s79, 0x01000000")
        A(f"v_mov_b32 {X(10)}, s78"); A(f"v_mov_b32 {X(11)}, s79")
        A(f"s_lshl_b32 s69, {sGI}, 5"); A(f"v_mov_b32 {X(9)}, s69")
        A("s_mov_b64 exec, 1")
        A(f"global_atomic_add_x2 {X(9)}, {XR(10,2)}, {sDBG} sc1")
        A("s_mov_b64 exec, -1")
    def early_q(self):
        A = self.A
        self.colsum()
        s1a, s2a, s1b, s2b = X(12), X(13), X(14), X(15)
        for (base, s1, s2) in ((56, s1a, s2a), (60, s1b, s2b)):
            A(f"v_mov_b32 {s1}, 0"); A(f"v_mov_b32 {s2}, 0")
            for k in range(4):
                A(f"v_lshlrev_b32 {X(8)}, 16, {T(base+k)}"); A(f"v_and_b32 {X(9)}, 0xffff0000, {T(base+k)}")
                A(f"v_add_f32 {s1}, {s1}, {X(8)}"); A(f"v_fmac_f32 {s2}, {X(8)}, {X(8)}")
                A(f"v_add_f32 {s1}, {s1}, {X(9)}"); A(f"v_fmac_f32 {s2}, {X(9)}, {X(9)}")
        for sh in (8, 4, 2, 1):
            for r in (s1a, s2a, s1b, s2b): A(f"v_add_f32_dpp {r}, {r}, {r} row_ror:{sh} {DPP}")
        for swap in ("v_permlane16_swap_b32", "v_permlane32_swap_b32"):
            for r in (s1a, s2a, s1b, s2b):
                A(f"v_mov_b32 {X(8)}, {r}"); A(f"{swap} {r}, {X(8)}"); A(f"v_add_f32 {r}, {r}, {X(8)}")
        A(f"v_cndmask_b32 {s1a}, {s1a}, {s1b}, {sSEL}"); A(f"v_cndmask_b32 {s2a}, {s2a}, {s2b}, {sSEL}")
        for s in self.ln_scalars(s1a, s2a, QSCALE): A(s)
    def early_q2(self):
        A = self.A
        s1a, s2a = X(12), X(13)
        D = XR(0, 4)
        for t in range(14):
            A(f"v_mfma_f32_16x16x32_bf16 {D}, {TR(4*t,4)}, {WR(4*t,4)}, {'0' if t == 0 else D}")
        self.ln_finish(s1a, s2a)
        self.pack_pair(X(4), X(4), X(6))
        A(f"v_mov_b32 {X(5)}, {sTAG}")
        A(f"v_bfe_u32 {X(7)}, {LANE}, 4, 1"); A(f"v_lshlrev_b32 {X(7)}, 11, {X(7)}"); A(f"v_and_b32 {X(8)}, 15, {LANE}"); A(f"v_lshl_add_u32 {X(7)}, {X(8)}, 2, {X(7)}")
        A(f"s_lshl_b32 s68, {sSIG}, 6"); A(f"v_add_u32 {X(7)}, s68, {X(7)}")
        A(f"s_lshl_b32 s68, {sGI}, 12"); A(f"s_add_u32 s68, s68, {QTOFF}"); A(f"s_add_u32 s70, s20, s68"); A("s_addc_u32 s71, s21, 0")
        self.set_exec(0x55555555, 0)
        A(f"global_store_dwordx2 {X(7)}, {XR(4,2)}, {SA} sc1")
        A("s_mov_b64 exec, -1")

    def stream(self):
        A = self.A; win = self.o.win
        k0 = self.o.k0
        self.ob = 0
        self.ktile(k0, 64)
        A("s_waitcnt vmcnt(8) lgkmcnt(0)")
        self.stamp(1)
        A("s_barrier")
        A(f"s_cmp_eq_u32 {sWAVE}, 3"); A("s_cbranch_scc0 L_noarr")
        self.arrive()
        A("L_noarr:")
        self.ob = 0
        self.ktile(k0 + 1, 64)
        self.tr_reads()
        A("s_barrier")
        self.ktile(k0 + 2, 64)
        A(f"s_cmp_eq_u32 {sROLE}, {ROLE_GU}"); A("s_cbranch_scc0 L_nocs")
        self.colsum()
        A("L_nocs:")
        A(f"s_cmp_eq_u32 {sROLE}, {ROLE_WQ}"); A("s_cbranch_scc0 L_noeq")
        self.early_q()
        A("L_noeq:")
        nx = k0 + 3
        if self.o.esplit:
            self.ktile(nx, 64); nx += 1
        A(f"s_cmp_eq_u32 {sROLE}, {ROLE_WQ}"); A("s_cbranch_scc0 L_noeq2")
        self.early_q2()
        A("L_noeq2:")
        self.stamp(2)
        self.ob = 8 * (nx - k0) + 2
        tp = nx
        for tau in range(tp, 8): self.ktile(tau, win)
        A(f"s_lshl_b32 s68, {sGI}, 12"); A(f"s_add_u32 s68, s68, {QTOFF}"); A(f"s_add_u32 s70, s20, s68"); A("s_addc_u32 s71, s21, 0")
        A(f"s_lshl_b32 s68, {sB}, 11"); A(f"s_lshl_b32 s78, {sHL}, 10"); A("s_add_u32 s68, s68, s78"); A(f"v_add_u32 {X(14)}, s68, {L16}")
        A(f"global_load_dwordx4 {XR(10,4)}, {X(14)}, {SA} sc1")
        for tau in range(self.o.vdist): self.vtile(tau, 64)
        self.stamp(5)
        self.dstamp(4)

    def bar_check_finish(self):
        A = self.A
        A(f"s_cmp_eq_u32 {sLAYER}, 0"); A("s_cbranch_scc0 L_gb_done")
        A("s_mov_b64 exec, 0xff")
        A("L_gb:")
        A(f"v_lshrrev_b32 {TMP}, 24, {WBAR1}"); A(f"v_cmp_ne_u32 vcc, 32, {TMP}")
        A("s_cbranch_vccz L_gb_d")
        A(f"s_cmp_eq_u32 {sBUD}, 0"); A("s_cbranch_scc1 L_gb_d"); A(f"s_sub_u32 {sBUD}, {sBUD}, 1"); A("s_sleep 4")
        A(f"v_and_b32 {TMP}, 7, {LANE}"); A(f"v_lshlrev_b32 {TMP}, 5, {TMP}")
        A(f"global_load_dwordx2 {WBAR}, {TMP}, {sDBG} sc1"); A("s_waitcnt vmcnt(0)")
        A("s_branch L_gb")
        A("L_gb_d:")
        A("s_mov_b64 exec, -1")
        A("s_getreg_b32 s68, hwreg(HW_REG_XCC_ID, 0, 4)"); A("s_and_b32 s68, s68, 7"); A("s_mul_i32 s68, s68, 6")
        A("s_lshl_b64 s[78:79], 32, s68"); A("s_or_b32 s79, s79, 0x20000000")
        A(f"v_readlane_b32 s68, {WBAR0}, {sGI}"); A(f"v_readlane_b32 s69, {WBAR1}, {sGI}")
        A("s_cmp_eq_u64 s[68:69], s[78:79]"); A(f"s_cselect_b32 {sMODE}, 1, 0")
        if self.o.slow: A(f"s_mov_b32 {sMODE}, 0")
        A("L_gb_done:")

    def att_setup(self):
        A = self.A
        mk = [X(16 + k) for k in range(4)]
        A(f"v_and_b32 {TMP}, 1, {LANE}"); A(f"v_lshlrev_b32 {TMP}, 4, {TMP}"); A(f"v_mov_b32 {X(9)}, 0xffff"); A(f"v_lshlrev_b32 {X(9)}, {TMP}, {X(9)}")
        for k, pr in enumerate((sMA, "s[56:57]", "s[58:59]", "s[62:63]")):
            A(f"v_cndmask_b32 {mk[k]}, 0, {X(9)}, {pr}")
        A(f"v_lshrrev_b32 {X(8)}, 4, {LANE}"); A(f"v_lshlrev_b32 {X(8)}, 11, {X(8)}"); A(f"v_and_b32 {TMP}, 15, {LANE}"); A(f"v_lshl_add_u32 {X(8)}, {TMP}, 4, {X(8)}")
        for k in range(16): A(f"v_mov_b32 {T(16+k)}, 0")

    def get_q(self):
        A = self.A
        self.att_setup()
        qa = T(62)
        A(f"v_lshrrev_b32 {qa}, 4, {LANE}"); A(f"v_lshlrev_b32 {qa}, 6, {qa}"); A(f"v_and_b32 {TMP}, 3, {LANE}"); A(f"v_lshl_add_u32 {qa}, {TMP}, 4, {qa}")
        A(f"v_add_u32 {qa}, {LDS_QL}, {qa}")
        A(f"s_cmp_eq_u32 {sLAYER}, 0"); A("s_cbranch_scc0 L_q1")
        A(f"s_waitcnt vmcnt({8*self.o.vdist})")
        A("L_q0:")
        A(f"v_xor_b32 {X(15)}, {sTAG}, {X(11)}"); A(f"v_xor_b32 {X(9)}, {sTAG}, {X(13)}"); A(f"v_or_b32 {X(15)}, {X(15)}, {X(9)}")
        A(f"v_cmp_ne_u32 vcc, 0, {X(15)}")
        A("s_cbranch_vccz L_q0_d")
        A(f"s_cmp_eq_u32 {sBUD}, 0"); A("s_cbranch_scc1 L_q0_d"); A(f"s_sub_u32 {sBUD}, {sBUD}, 1")
        A(f"global_load_dwordx4 {XR(10,4)}, {X(14)}, {SA} sc1"); A("s_waitcnt vmcnt(0)")
        A("s_branch L_q0")
        A("L_q0_d:")
        A(f"v_mov_b32 {X(11)}, {X(12)}")
        A(f"v_lshlrev_b32 {X(9)}, 3, {LANE}"); A(f"v_add_u32 {X(9)}, {LDS_QL}, {X(9)}")
        A(f"ds_write_b64 {X(9)}, {XR(10,2)}")
        self.stamp(4)
        A("s_waitcnt lgkmcnt(0)")
        A("s_branch L_qlds")
        A("L_q1:")
        A(f"s_cmp_eq_u32 {sWAVE}, 0"); A("s_cbranch_scc0 L_q1b")
        self.gbase(SA, R_Q, 1)
        A(f"s_lshl_b32 s68, {sB}, 10"); A(f"s_lshl_b32 s78, {sHL}, 9"); A("s_add_u32 s68, s68, s78"); A(f"v_add_u32 {X(9)}, s68, {L16}")
        A(f"v_add_u32 {X(14)}, {LDS_QL}, {L16}")
        for _ in range(self.o.qpre // 120): A("s_sleep 120")
        if self.o.qpre % 120: A(f"s_sleep {self.o.qpre % 120}")
        self.set_exec(0xFFFFFFFF, 0)
        NS = self.o.qsets
        qs = [(TR(0, 4), [T(0), T(1), T(2), T(3)]), (TR(4, 4), [T(4), T(5), T(6), T(7)])]
        for k in range(NS - 1): A(f"global_load_dwordx4 {qs[k][0]}, {X(9)}, {SA} sc1")
        A("L_q1p:")
        for k in range(NS):
            A(f"global_load_dwordx4 {qs[(k + NS - 1) % NS][0]}, {X(9)}, {SA} sc1")
            A(f"s_waitcnt vmcnt({NS-1})")
            for s in self.maxops(X(15), qs[k][1]): A(s)
            A(f"v_cmp_eq_u32 vcc, -1, {X(15)}")
            A(f"s_cbranch_vccz L_q1_ok{k}")
        A(f"s_cmp_eq_u32 {sBUD}, 0"); A("s_cbranch_scc1 L_q1_ok0"); A(f"s_sub_u32 {sBUD}, {sBUD}, 1")
        if self.o.qsleep: A(f"s_sleep {self.o.qsleep}")
        A("s_branch L_q1p")
        for k in reversed(range(NS)):
            A(f"L_q1_ok{k}:")
            A(f"ds_write_b128 {X(14)}, {qs[k][0]}")
            if k != 0: A("s_branch L_q1_w")
        A("L_q1_w:")
        A("s_mov_b64 exec, -1")
        A("s_waitcnt lgkmcnt(0)")
        A("L_q1b:")
        A("s_barrier")
        A("s_waitcnt vmcnt(0)")
        A("L_qlds:")
        self.set_exec(0x00FF00FF, 0x00FF00FF)
        for t in range(2): A(f"ds_read_b128 {TR(16+4*t,4)}, {qa} offset:{t*256}")
        self.set_exec(0xFF00FF00, 0xFF00FF00)
        for t in range(2): A(f"ds_read_b128 {TR(24+4*t,4)}, {qa} offset:{t*256}")
        A("s_mov_b64 exec, -1")
        A(f"v_add_u32 {X(13)}, {sM0B}, {L16}")
        A(f"s_waitcnt vmcnt({8*self.o.vdist})")

    def attention(self):
        A = self.A
        mk = [X(16 + k) for k in range(4)]
        A("s_waitcnt lgkmcnt(0)")
        self.fst(0, "att")
        m, m2 = X(14), X(15)
        va = X(13)
        Dq = lambda P: 40 + 4 * (P % 4)
        M1, M2, M3 = "s[48:49]", "s[50:51]", "s[52:53]"
        S = lambda P: T(P)
        QL = [TR(16, 4), TR(20, 4)]; QH = [TR(24, 4), TR(28, 4)]
        def c1(P): return f"v_cndmask_b32 {S(P)}, {T(Dq(P))}, {T(Dq(P)+1)}, {M1}"
        def c2(P): return f"v_cndmask_b32 {S(P)}, {S(P)}, {T(Dq(P)+2)}, {M2}"
        def c3(P): return f"v_cndmask_b32 {S(P)}, {S(P)}, {T(Dq(P)+3)}, {M3}"
        def d1(P): return f"v_add_f32_dpp {S(P)}, {S(P)}, {S(P)} quad_perm:[1,0,3,2] {DPP}"
        def d2(P): return f"v_add_f32_dpp {S(P)}, {S(P)}, {S(P)} quad_perm:[2,3,0,1] {DPP}"
        ok = lambda P: 0 <= P < 16
        for P in range(16 + 4):
            D = TR(Dq(P), 4); G = 2 * P
            if ok(P): A(f"v_mfma_f32_16x16x32_bf16 {D}, a[{8*G}:{8*G+3}], {QL[0]}, 0")
            if ok(P - 2): A(c1(P - 2))
            if ok(P - 3): A(d1(P - 3))
            if ok(P): A(f"v_mfma_f32_16x16x32_bf16 {D}, a[{8*G+4}:{8*G+7}], {QL[1]}, {D}")
            if ok(P - 2): A(c2(P - 2))
            if ok(P): A(f"v_mfma_f32_16x16x32_bf16 {D}, a[{8*G+8}:{8*G+11}], {QH[0]}, {D}")
            if ok(P - 2): A(c3(P - 2))
            if ok(P - 3): A(d2(P - 3))
            if ok(P): A(f"v_mfma_f32_16x16x32_bf16 {D}, a[{8*G+12}:{8*G+15}], {QH[1]}, {D}")
            g4 = P - 4
            if ok(g4) and g4 % 2 == 1:
                if g4 == 1: A(f"v_max_f32 {m}, {S(0)}, {S(1)}")
                else: A(f"v_max3_f32 {m}, {m}, {S(g4-1)}, {S(g4)}")
        self.stamp(7)
        self.fst(1, "att")
        l = X(15)
        acc = [[XR(0, 4), XR(4, 4)], [TR(16, 4), TR(20, 4)]]
        Bs = [TR(32, 4), TR(36, 4)]; Bb = [32, 36]
        stg = [24, 40, 48, 56]
        VD = self.o.vdist
        vV = X(8)
        CHK_AT = 4 - VD if VD <= 4 else 0
        CHK_TILE = CHK_AT + VD
        def younger(tile, at_tile):
            last_issued = min(at_tile + VD, 7)
            n = 8 * (last_issued - tile)
            if tile <= CHK_TILE and at_tile >= CHK_AT: n += 1
            return n
        def tile_issue(tau):
            t2 = tau + VD
            if t2 > 7: return
            lab = A.label("VI")
            A(f"s_cmp_eq_u32 {sLAYER}, 0"); A(f"s_cbranch_scc0 {lab}")
            self.ob = 0
            self.vtile(t2, 64, vV)
            if tau == CHK_AT:
                A(f"v_and_b32 {TMP}, 7, {LANE}"); A(f"v_lshlrev_b32 {TMP}, 5, {TMP}")
                A("s_mov_b64 exec, 0xff")
                A(f"global_load_dwordx2 {WBAR}, {TMP}, {sDBG} sc1")
                A("s_mov_b64 exec, -1")
            A(f"{lab}:")
        DIST = 3
        lds_fifo = []
        def lds_issue(q, at_tile):
            if q % 4 == 0: A(f"s_waitcnt vmcnt({younger(q // 4, at_tile)})")
            b = stg[q % 4]
            A(f"ds_read_b128 {TR(b,4)}, {va} offset:{q*2048}"); A(f"ds_read_b128 {TR(b+4,4)}, {va} offset:{q*2048+1024}")
            lds_fifo.append(q)
        def pre(P):
            s = S(P); bb = Bb[P % 2]; pk = X(12) if P % 2 == 0 else X(9)
            return [f"v_sub_f32 {s}, {s}, {m}", f"v_exp_f32 {s}, {s}"], [f"v_cvt_pk_bf16_f32 {pk}, {s}, {s}", (f"v_add_f32 {l}, {l}, {s}" if P else f"v_mov_b32 {l}, {s}")] + [f"v_and_b32 {T(bb+k)}, {mk[k]}, {pk}" for k in range(4)]
        A(f"v_max_f32_dpp {m}, {m}, {m} row_ror:8 {DPP}")
        tile_issue(0)
        A(f"v_mov_b32 {m2}, {m}")
        for q in range(DIST): lds_issue(q, 0)
        A(f"v_permlane16_swap_b32 {m}, {m2}"); A(f"v_max_f32 {m}, {m}, {m2}")
        A(f"v_mov_b32 {m2}, {m}"); A(f"v_permlane32_swap_b32 {m}, {m2}"); A(f"v_max_f32 {m}, {m}, {m2}")
        a, b_ = pre(0)
        for s in a + b_: A(s)
        a, _ = pre(1)
        for s in a: A(s)
        def src(q):
            if q < NLDS:
                b = stg[q % 4]; return TR(b, 4), TR(b + 4, 4)
            mm = (q - NLDS) * 8; return VRR(mm, 4), VRR(mm + 4, 4)
        def before_group(q):
            tau = q // 4
            if q % 4 == 0 and q > 0: tile_issue(tau)
            if q + DIST < NLDS: lds_issue(q + DIST, tau)
            if q < NLDS:
                after = len(lds_fifo) - 1 - lds_fifo.index(q)
                A(f"s_waitcnt lgkmcnt({2 * after})")
            else:
                if q >= 28: A(f"s_waitcnt vmcnt({(31 - q) * 2})")
                elif q == NLDS or q % 4 == 0: A(f"s_waitcnt vmcnt({younger(tau, tau)})")
            if q == 24:
                self.bar_check_finish()
                A(f"v_lshrrev_b32 {X(8)}, 4, {LANE}"); A(f"v_lshlrev_b32 {X(8)}, 7, {X(8)}"); A(f"v_and_b32 {TMP}, 15, {LANE}"); A(f"v_lshl_add_u32 {X(8)}, {TMP}, 4, {X(8)}")
                A(f"s_lshl_b32 s68, {sWAVE}, 10"); A(f"s_add_u32 s68, s68, {LDS_OP}"); A(f"v_add_u32 {X(8)}, s68, {X(8)}")
                A(f"s_lshl_b32 s68, {sWAVE}, 3"); A(f"s_add_u32 s68, s68, {LDS_MLP}"); A(f"v_mov_b32 {X(10)}, s68")
        for P in range(16):
            B = Bs[P % 2]
            nb = pre(P + 1)[1] if P + 1 < 16 else []
            na = pre(P + 2)[0] if P + 2 < 16 else []
            if 2 * P == 18 or (2 * P == NLDS + 1 - 2): pass
            if 2 * P >= NLDS and 2 * P - 2 < NLDS: self.fst(2, "att")
            qe, qo = 2 * P, 2 * P + 1
            before_group(qe)
            a0, a1 = src(qe)
            A(f"v_mfma_f32_16x16x32_bf16 {acc[0][0]}, {a0}, {B}, {acc[0][0] if P else '0'}")
            for s_ in nb[:2]: A(s_)
            A(f"v_mfma_f32_16x16x32_bf16 {acc[0][1]}, {a1}, {B}, {acc[0][1] if P else '0'}")
            for s_ in nb[2:4]: A(s_)
            before_group(qo)
            a0, a1 = src(qo)
            A(f"v_mfma_f32_16x16x32_bf16 {acc[1][0]}, {a0}, {B}, {acc[1][0] if P else '0'}")
            for s_ in nb[4:6]: A(s_)
            A(f"v_mfma_f32_16x16x32_bf16 {acc[1][1]}, {a1}, {B}, {acc[1][1] if P else '0'}")
            for s_ in na: A(s_)
        self.fst(3, "att")
        self.stamp(8)
        self.dstamp(5, layer=0); self.dstamp(7, layer=1)
        l2 = X(9)
        A(f"v_add_f32_dpp {l}, {l}, {l} row_ror:8 {DPP}")
        A(f"v_mov_b32 {l2}, {l}"); A(f"v_permlane16_swap_b32 {l}, {l2}"); A(f"v_add_f32 {l}, {l}, {l2}")
        A(f"v_mov_b32 {l2}, {l}"); A(f"v_permlane32_swap_b32 {l}, {l2}"); A(f"v_add_f32 {l}, {l}, {l2}")
        for k in range(8): A(f"v_add_f32_dpp {X(k)}, {T(16+k)}, {X(k)} row_ror:8 {DPP}")
        self.set_exec(0x00FF00FF, 0x00FF00FF)
        A(f"ds_write_b128 {X(8)}, {XR(0,4)}"); A(f"ds_write_b128 {X(8)}, {XR(4,4)} offset:512")
        A("s_mov_b64 exec, 1")
        A(f"ds_write_b64 {X(10)}, {XR(14,2)}")
        A("s_mov_b64 exec, -1")
        A("s_waitcnt lgkmcnt(0)")
        A("s_barrier")
        self.fst(4, "att")
        self.stamp(9)

    def combine_publish(self):
        A = self.A
        A(f"v_add_u32 {X(8)}, {LDS_OP}, {L16}")
        for w in range(4): A(f"ds_read_b128 {TR(4*w,4)}, {X(8)} offset:{w*1024}")
        A(f"v_mov_b32 {X(9)}, {LDS_MLP}")
        A(f"ds_read_b128 {TR(16,4)}, {X(9)}"); A(f"ds_read_b128 {TR(20,4)}, {X(9)} offset:16")
        self.gbase(SA, R_O); self.gbase(SB, R_ML)
        a = X(10)
        A(f"v_lshrrev_b32 {a}, 3, {LANE}"); A(f"v_lshlrev_b32 {a}, 10, {a}")
        A(f"v_bfe_u32 {X(11)}, {LANE}, 1, 2"); A(f"v_lshl_add_u32 {a}, {X(11)}, 8, {a}")
        A(f"v_and_b32 {X(11)}, 1, {LANE}"); A(f"v_lshl_add_u32 {a}, {X(11)}, 3, {a}")
        A(f"s_lshl_b32 s68, {sB}, 3"); A(f"s_add_u32 s68, s68, {sSP}"); A("s_lshl_b32 s68, s68, 4"); A(f"s_lshl_b32 s78, {sHL}, 13"); A("s_add_u32 s68, s68, s78")
        A(f"v_add_u32 {a}, s68, {a}")
        A(f"s_lshl_b32 s68, {sHL}, 7"); A(f"s_lshl_b32 s78, {sB}, 6"); A("s_add_u32 s68, s68, s78"); A(f"s_lshl_b32 s78, {sSP}, 3"); A("s_add_u32 s68, s68, s78")
        A(f"v_mov_b32 {X(11)}, s68")
        M = T(24); f = [T(25 + w) for w in range(4)]; Lr = T(29)
        ms = [T(16), T(18), T(20), T(22)]; ls = [T(17), T(19), T(21), T(23)]
        A("s_waitcnt lgkmcnt(0)")
        A(f"v_max3_f32 {M}, {ms[0]}, {ms[1]}, {ms[2]}"); A(f"v_max_f32 {M}, {M}, {ms[3]}")
        for w in range(4): A(f"v_sub_f32 {f[w]}, {ms[w]}, {M}")
        for w in range(4): A(f"v_exp_f32 {f[w]}, {f[w]}")
        for r in range(4): A(f"v_mul_f32 {T(32+r)}, {f[0]}, {T(r)}")
        for w in range(1, 4):
            for r in range(4): A(f"v_fmac_f32 {T(32+r)}, {f[w]}, {T(4*w+r)}")
        A(f"v_cvt_pk_bf16_f32 {T(36)}, {T(32)}, {T(33)}"); A(f"v_cvt_pk_bf16_f32 {T(37)}, {T(34)}, {T(35)}")
        self.pub(f"global_store_dwordx2 {a}, {TR(36,2)}, {SA}")
        A(f"v_mul_f32 {T(39)}, {f[0]}, {ls[0]}")
        for w in range(1, 4): A(f"v_fmac_f32 {T(39)}, {f[w]}, {ls[w]}")
        A(f"v_mov_b32 {T(38)}, {M}")
        A("s_mov_b64 exec, 1")
        self.pub(f"global_store_dwordx2 {X(11)}, {TR(38,2)}, {SB}")
        A("s_mov_b64 exec, -1")

    def stage_wo(self):
        A = self.A
        self.gbase(SA, R_O); self.gbase(SC_, R_ML)
        A(f"s_lshl_b32 s68, {sWAVE}, 12"); A("s_add_u32 s70, s70, s68"); A("s_addc_u32 s71, s71, 0")
        a = X(16)
        A(f"v_lshrrev_b32 {a}, 5, {LANE}"); A(f"v_lshlrev_b32 {a}, 6, {a}")
        A(f"v_bfe_u32 {TMP}, {LANE}, 4, 1"); A(f"v_lshl_add_u32 {a}, {TMP}, 5, {a}")
        A(f"v_and_b32 {TMP}, 3, {LANE}"); A(f"v_lshl_add_u32 {a}, {TMP}, 3, {a}")
        A(f"s_lshr_b32 s68, {sWAVE}, 1"); A("s_lshl_b32 s68, s68, 7"); A(f"v_add_u32 {a}, s68, {a}")
        wa, ra = X(17), X(18)
        A(f"v_bfe_u32 {wa}, {LANE}, 4, 1"); A(f"v_lshlrev_b32 {wa}, 7, {wa}"); A(f"v_lshrrev_b32 {TMP}, 5, {LANE}"); A(f"v_lshl_add_u32 {wa}, {TMP}, 6, {wa}")
        A(f"v_and_b32 {TMP}, 15, {LANE}"); A(f"v_lshl_add_u32 {wa}, {TMP}, 2, {wa}")
        A(f"s_lshl_b32 s68, {sWAVE}, 9"); A(f"s_add_u32 s68, s68, {LDS_RED}"); A(f"v_add_u32 {wa}, s68, {wa}")
        A(f"v_lshrrev_b32 {ra}, 5, {LANE}"); A(f"v_lshlrev_b32 {ra}, 7, {ra}"); A(f"v_and_b32 {TMP}, 31, {LANE}"); A(f"v_lshl_add_u32 {ra}, {TMP}, 2, {ra}")
        A(f"s_and_b32 s68, {sWAVE}, 1"); A("s_lshl_b32 s68, s68, 8"); A(f"s_add_u32 s68, s68, {LDS_RED}"); A(f"v_add_u32 {ra}, s68, {ra}")
        A(f"s_cmp_ge_u32 {sWAVE}, 2"); A("s_cbranch_scc0 L_wo_nors")
        self.gbase(SD, R_X2, 0)
        A(f"s_cmp_eq_u32 {sLAYER}, 0"); A("s_cselect_b32 s64, s4, s64"); A("s_cselect_b32 s65, s5, s65")
        self.rs_setup()
        A(f"v_mov_b32 {X(13)}, {CS}")
        A(f"s_cmp_eq_u32 {sLAYER}, 0"); A("s_cbranch_scc1 L_wo_nors")
        A(f"global_load_ushort {X(13)}, {X(10)}, {SD} sc1")
        A("L_wo_nors:")
        self.cbase(SB, 0, consumer=False)
        self.p_store_addr(X(9))
        mv, lv = T(16), T(17)
        D = [TR(20 + 4 * nt, 4) for nt in range(4)]
        chk, M, t1, e, w = T(36), T(37), T(38), T(39), T(40)
        A(f"v_mov_b32 {chk}, 0")
        self.fst(0, "wo")
        if self.o.fine == "wo": A("s_mov_b32 s99, 0")
        if self.o.gate:
            self.set_exec(0x000F000F, 0x000F000F)
            A("L_wog:")
            A(f"global_load_dwordx2 {TR(16,2)}, {a}, {SC_} sc1"); A("s_waitcnt vmcnt(0)")
            A(f"v_max_u32 {chk}, {mv}, {lv}")
            self.poll_tail(chk, "L_wog", "L_wog_d", sleep=self.o.gatesleep)
            A("L_wog_d:")
        if self.o.wopre:
            A(f"s_cmp_eq_u32 {sWAVE}, 0"); A("s_cbranch_scc1 L_wo"); A(f"s_sleep {self.o.wopre}")
        A("L_wo:")
        if self.o.fine == "wo": A("s_add_u32 s99, s99, 1")
        self.fst(1, "wo")
        self.set_exec(0x000F000F, 0x000F000F)
        A(f"global_load_dwordx2 {TR(16,2)}, {a}, {SC_} sc1")
        A("s_mov_b64 exec, -1")
        for tt in range(4):
            A(f"global_load_dwordx4 {TR(4*tt,4)}, {L16}, {SA} offset:{tt*1024} sc1")
        A("s_waitcnt vmcnt(4)")
        self.set_exec(0x000F000F, 0x000F000F)
        A(f"v_max_u32 {chk}, {mv}, {lv}")
        A("s_mov_b64 exec, -1")
        A("s_waitcnt vmcnt(0)")
        self.fst(2, "wo")
        for s in self.maxops(t1, self.chk_regs(T, 0, 4) + [chk]): A(s)
        self.poll_tail(t1, "L_wo", "L_wo_d")
        A("L_wo_d:")
        ops = [f"v_mov_b32_dpp {t1}, {mv} quad_perm:[1,0,3,2] {DPP}", f"v_max_f32 {M}, {mv}, {t1}",
               f"v_mov_b32_dpp {t1}, {M} quad_perm:[2,3,0,1] {DPP}", f"v_max_f32 {M}, {M}, {t1}",
               f"v_mov_b32 {t1}, {M}", f"v_permlane16_swap_b32 {M}, {t1}", f"v_max_f32 {M}, {M}, {t1}",
               f"v_sub_f32 {e}, {mv}, {M}", f"v_exp_f32 {e}, {e}", f"v_mul_f32 {M}, {e}, {lv}",
               f"v_mov_b32_dpp {t1}, {M} quad_perm:[1,0,3,2] {DPP}", f"v_add_f32 {M}, {M}, {t1}",
               f"v_mov_b32_dpp {t1}, {M} quad_perm:[2,3,0,1] {DPP}", f"v_add_f32 {M}, {M}, {t1}",
               f"v_mov_b32 {t1}, {M}", f"v_permlane16_swap_b32 {M}, {t1}", f"v_add_f32 {M}, {M}, {t1}",
               f"v_rcp_f32 {M}, {M}", f"v_mul_f32 {w}, {e}, {M}"]
        for tt in range(4):
            for nt in range(4):
                A(f"v_mfma_f32_16x16x32_bf16 {D[nt]}, {TR(4*tt,4)}, {WR(4*(4*tt+nt),4)}, {'0' if tt == 0 else D[nt]}")
                if ops: A(ops.pop(0))
        for s in ops: A(s)
        acc = [T(41 + nt) for nt in range(4)]
        for r in range(4):
            for nt in range(4):
                op = "v_mul_f32_dpp" if r == 0 else "v_fmac_f32_dpp"
                A(f"{op} {acc[nt]}, {w}, {T(20+4*nt+r)} row_newbcast:{r} {DPP}")
        A(f"v_permlane16_swap_b32 {acc[0]}, {acc[1]}"); A(f"v_permlane16_swap_b32 {acc[2]}, {acc[3]}")
        A(f"v_add_f32 {acc[0]}, {acc[0]}, {acc[1]}"); A(f"v_add_f32 {acc[2]}, {acc[2]}, {acc[3]}")
        self.fst(3, "wo")
        A(f"ds_write_b32 {wa}, {acc[0]}"); A(f"ds_write_b32 {wa}, {acc[2]} offset:256")
        A("s_waitcnt lgkmcnt(0)")
        A("s_barrier")
        self.fst(4, "wo")
        A(f"s_cmp_ge_u32 {sWAVE}, 2"); A("s_cbranch_scc1 L_wo_rs")
        for ww in range(4): A(f"ds_read_b32 {T(ww)}, {ra} offset:{ww*512}")
        A("s_waitcnt lgkmcnt(2)")
        A(f"v_add_f32 {T(0)}, {T(0)}, {T(1)}")
        A("s_waitcnt lgkmcnt(0)")
        A(f"v_add_f32 {T(2)}, {T(2)}, {T(3)}"); A(f"v_add_f32 {T(0)}, {T(0)}, {T(2)}")
        self.p_publish(SB, X(9), T(0), 4)
        self.fst(5, "wo")
        self.stamp(11)
        A("s_branch L_next")
        A("L_wo_rs:")

    def p_addr(self, dst):
        A = self.A; sh = 10 if self.o.playout == 0 else 13
        A(f"v_lshrrev_b32 {dst}, 5, {LANE}"); A(f"v_lshlrev_b32 {dst}, {sh}, {dst}"); A(f"v_and_b32 {TMP}, 31, {LANE}"); A(f"v_lshl_add_u32 {dst}, {TMP}, 2, {dst}")
        A(f"s_and_b32 s68, {sWAVE}, 1"); A(f"s_lshl_b32 s68, s68, {sh+1}"); A(f"v_add_u32 {dst}, s68, {dst}")

    def rs_setup(self):
        A = self.A
        pa, xa, sa = X(8), X(10), X(11)
        A(f"v_lshrrev_b32 {X(12)}, 5, {LANE}"); A(f"s_and_b32 s68, {sWAVE}, 1"); A("s_lshl_b32 s68, s68, 1"); A(f"s_add_u32 s68, s68, {sS4}"); A(f"v_add_u32 {X(12)}, s68, {X(12)}")
        self.p_addr(pa)
        A(f"v_bfe_u32 {TMP}, {LANE}, 4, 1"); A(f"v_mul_u32_u24 {xa}, 896, {TMP}"); A(f"v_lshlrev_b32 {sa}, 8, {TMP}")
        A(f"v_lshl_add_u32 {xa}, {X(12)}, 5, {xa}"); A(f"v_lshl_add_u32 {sa}, {X(12)}, 3, {sa}")
        A(f"v_and_b32 {TMP}, 15, {LANE}"); A(f"v_lshl_add_u32 {xa}, {TMP}, 1, {xa}")
    def stage_rs(self):
        A = self.A
        pa, xa, sa = X(8), X(10), X(11)
        NS = self.o.rsets
        def issue(k):
            for g in range(8): A(f"global_load_dword {T(8*k+g)}, {pa}, {SA} offset:{self.p_poll_off(g)} sc1")
        for k in range(NS - 1): issue(k)
        A("L_rs:")
        for k in range(NS):
            issue((k + NS - 1) % NS)
            A(f"s_waitcnt vmcnt({8*(NS-1)})")
            for s in self.maxops(X(4), [T(8*k+g) for g in range(8)]): A(s)
            A(f"v_cmp_eq_u32 vcc, -1, {X(4)}")
            A(f"s_cbranch_vccz L_rs_ok{k}")
        A(f"s_cmp_eq_u32 {sBUD}, 0"); A("s_cbranch_scc1 L_rs_ok0"); A(f"s_sub_u32 {sBUD}, {sBUD}, 1")
        if self.o.rssleep: A(f"s_sleep {self.o.rssleep}")
        A("s_branch L_rs")
        for k in range(NS):
            A(f"L_rs_ok{k}:")
            b_ = 8 * k
            A(f"v_add_f32 {X(0)}, {T(b_)}, {T(b_+1)}"); A(f"v_add_f32 {X(1)}, {T(b_+2)}, {T(b_+3)}"); A(f"v_add_f32 {X(2)}, {T(b_+4)}, {T(b_+5)}"); A(f"v_add_f32 {X(3)}, {T(b_+6)}, {T(b_+7)}")
            if k != NS - 1: A("s_branch L_rs_d")
        A("L_rs_d:")
        A(f"v_cmp_eq_u32 vcc, 0xffff, {X(13)}")
        A("s_cbranch_vccz L_rsr_d")
        A("L_rsr:")
        A(f"global_load_ushort {X(13)}, {xa}, {SD} sc1"); A("s_waitcnt vmcnt(0)")
        A(f"v_cmp_eq_u32 vcc, 0xffff, {X(13)}")
        A("s_cbranch_vccz L_rsr_d")
        A(f"s_cmp_eq_u32 {sBUD}, 0"); A("s_cbranch_scc1 L_rsr_d"); A(f"s_sub_u32 {sBUD}, {sBUD}, 1")
        A("s_branch L_rsr")
        A("L_rsr_d:")
        A(f"v_add_f32 {X(0)}, {X(0)}, {X(1)}"); A(f"v_add_f32 {X(2)}, {X(2)}, {X(3)}"); A(f"v_lshlrev_b32 {X(6)}, 16, {X(13)}"); A(f"v_add_f32 {X(0)}, {X(0)}, {X(2)}")
        if self.o.round2:
            A(f"v_cvt_pk_bf16_f32 {X(0)}, {X(0)}, {X(0)}"); A(f"v_and_b32 {X(0)}, 0xffff0000, {X(0)}")
        A(f"v_add_f32 {X(0)}, {X(6)}, {X(0)}")
        if self.o.perturb:
            lab = A.label("PT")
            A("s_cmp_eq_u32 s78, 1"); A(f"s_cbranch_scc0 {lab}"); A(f"s_cmp_eq_u32 {sSIG}, 2"); A(f"s_cbranch_scc0 {lab}")
            A("s_mov_b64 exec, 1"); A(f"v_add_f32 {X(0)}, {f32(self.o.perturb)}, {X(0)}"); A("s_mov_b64 exec, -1")
            A(f"{lab}:")
        A(f"v_mov_b32_dpp {X(2)}, {X(0)} quad_perm:[1,0,3,2] {DPP}")
        A(f"v_cvt_pk_bf16_f32 {X(3)}, {X(0)}, {X(0)}")
        A(f"v_cvt_pk_bf16_f32 {X(1)}, {X(0)}, {X(2)}")
        A("s_cmp_eq_u32 s78, 1"); A("s_cbranch_scc1 L_final")
        self.set_exec(0x55555555, 0x55555555)
        self.pub(f"global_store_dword {xa}, {X(1)}, {SB}")
        A("s_mov_b64 exec, -1")
        A(f"v_and_b32 {X(2)}, 0xffff0000, {X(3)}")
        A(f"v_mul_f32 {X(3)}, {X(2)}, {X(2)}")
        for sh in (1, 2, 4, 8):
            for r in (X(2), X(3)): A(f"v_add_f32_dpp {r}, {r}, {r} row_shr:{sh} {DPP}")
        self.set_exec(0x80008000, 0x80008000)
        self.pub(f"global_store_dwordx2 {sa}, {XR(2,2)}, {SC_}")
        A("s_mov_b64 exec, -1")
        self.stamp(12)
        A("s_waitcnt vmcnt(0)")

    def stage_gu(self):
        A = self.A
        self.gbase(SC_, R_H)
        A(f"v_bfe_u32 {X(7)}, {LANE}, 4, 1"); A(f"v_mul_u32_u24 {X(7)}, 448, {X(7)}"); A(f"v_and_b32 {TMP}, 15, {LANE}"); A(f"v_lshl_add_u32 {X(7)}, {TMP}, 1, {X(7)}")
        A(f"s_lshl_b32 s68, {sSIG}, 4"); A(f"v_add_u32 {X(7)}, s68, {X(7)}")
        self.stage_ln(R_X1, R_ST1, None, 1.0, "L_gu", sleep=self.o.lnsleep, pre=self.o.gupre)
        z = X(4)
        A(f"v_cvt_pk_bf16_f32 {z}, {z}, {z}"); A(f"v_and_b32 {z}, 0xffff0000, {z}")
        A(f"v_mov_b32_dpp {X(5)}, {z} row_ror:8 {DPP}")
        A(f"v_max_f32 {z}, 0, {z}"); A(f"v_mul_f32 {z}, {z}, {X(5)}")
        self.pack_pair(X(5), z, X(6))
        self.set_exec(0x00550055, 0)
        self.pub(f"global_store_dword {X(7)}, {X(5)}, {SC_}")
        A("s_mov_b64 exec, -1")
        self.fst(5)
        self.stamp(13)
        A("s_waitcnt vmcnt(0)")

    def dn_fetch(self):
        A = self.A
        A(f"s_cmp_eq_u32 {sWAVE}, 1"); A("s_cbranch_scc0 L_dn_b")
        self.gbase(SA, R_H)
        A(f"v_add_u32 {X(10)}, {LDS_RED}, {L16}")
        if self.o.dnpre: A(f"s_sleep {self.o.dnpre}")
        self.set_exec(0xFFFFFFFF, 0x00FFFFFF)
        NS = self.o.lnsets
        base = [56, 60]
        for k in range(NS - 1): A(f"global_load_dwordx4 {TR(base[k],4)}, {L16}, {SA} sc1")
        A("L_dn:")
        for k in range(NS):
            A(f"global_load_dwordx4 {TR(base[(k + NS - 1) % NS],4)}, {L16}, {SA} sc1")
            A(f"s_waitcnt vmcnt({NS-1})")
            for s in self.maxops(X(11), [T(base[k] + i) for i in range(4)]): A(s)
            A(f"v_cmp_eq_u32 vcc, -1, {X(11)}")
            A(f"s_cbranch_vccz L_dn_ok{k}")
        A(f"s_cmp_eq_u32 {sBUD}, 0"); A("s_cbranch_scc1 L_dn_ok0"); A(f"s_sub_u32 {sBUD}, {sBUD}, 1")
        A("s_branch L_dn")
        for k in reversed(range(NS)):
            A(f"L_dn_ok{k}:")
            A(f"ds_write_b128 {X(10)}, {TR(base[k],4)}")
            if k != 0: A("s_branch L_dn_w")
        A("L_dn_w:")
        A("s_mov_b64 exec, -1")
        A("s_waitcnt lgkmcnt(0)")
        A("L_dn_b:")
        A("s_barrier")
    def stage_dn(self):
        A = self.A
        a = X(8)
        A(f"v_and_b32 {a}, 1, {LANE}"); A(f"v_mul_u32_u24 {a}, 448, {a}"); A(f"v_lshrrev_b32 {TMP}, 4, {LANE}"); A(f"v_lshl_add_u32 {a}, {TMP}, 4, {a}")
        A(f"v_add_u32 {a}, {LDS_RED}, {a}")
        self.cbase(SB, 1, consumer=False)
        self.p_store_addr(X(9))
        self.dn_fetch()
        A(f"s_cmp_ge_u32 {sWAVE}, 2"); A("s_cbranch_scc0 L_dn_nors")
        self.gbase(SD, R_X1)
        self.rs_setup()
        A(f"global_load_ushort {X(13)}, {X(10)}, {SD} sc1")
        A("s_branch L_dn_rs")
        A("L_dn_nors:")
        D = [XR(0, 4), XR(4, 4)]
        for t in range(7): A(f"ds_read_b128 {TR(4*t,4)}, {a} offset:{t*64}")
        for t in range(7):
            if t in (0, 3, 5): A(f"s_waitcnt lgkmcnt({ {0: 4, 3: 2, 5: 0}[t] })")
            for u in range(2):
                A(f"v_mfma_f32_16x16x32_bf16 {D[u]}, {TR(4*t,4)}, {WR(4*(2*t+u),4)}, {'0' if t == 0 else D[u]}")
        A(f"v_permlane16_swap_b32 {X(0)}, {X(1)}"); A(f"v_permlane16_swap_b32 {X(4)}, {X(5)}")
        A(f"v_permlane32_swap_b32 {X(0)}, {X(4)}")
        self.p_publish(SB, X(9), X(0), 0)
        self.stamp(14)
        A("s_waitcnt vmcnt(0)")

    def stage_q2(self):
        A = self.A
        self.gbase(SC_, R_Q, 1)
        A(f"v_bfe_u32 {X(7)}, {LANE}, 4, 1"); A(f"v_lshlrev_b32 {X(7)}, 10, {X(7)}"); A(f"v_and_b32 {TMP}, 15, {LANE}"); A(f"v_lshl_add_u32 {X(7)}, {TMP}, 1, {X(7)}")
        A(f"s_lshl_b32 s68, {sSIG}, 5"); A(f"v_add_u32 {X(7)}, s68, {X(7)}")
        self.stage_ln(R_X2, R_ST2, 0, QSCALE, "L_qx", sleep=self.o.lnsleep, pre=self.o.wqpre)
        self.pack_pair(X(5), X(4), X(6))
        self.set_exec(0x55555555, 0)
        self.pub(f"global_store_dword {X(7)}, {X(5)}, {SC_}")
        A("s_mov_b64 exec, -1")
        self.stamp(15)
        A("s_waitcnt vmcnt(0)")

    def finish(self):
        A = self.A
        if not self.o.prof: return
        A("s_lshl_b32 s68, s2, 2"); A(f"s_add_u32 s68, s68, {sWAVE}"); A("s_lshl_b32 s68, s68, 7"); A(f"v_mov_b32 {X(0)}, s68")
        A("s_mov_b64 exec, 1")
        for k in range(20):
            A(f"v_mov_b32 {X(1)}, s{80+k}"); A(f"global_store_dword {X(0)}, {X(1)}, {sWS} offset:{4*k}")
        for k in range(9):
            A(f"v_mov_b32 {X(1)}, s{36+k}"); A(f"global_store_dword {X(0)}, {X(1)}, {sWS} offset:{80+4*k}")
        A(f"v_mov_b32 {X(1)}, {sMODE}"); A(f"global_store_dword {X(0)}, {X(1)}, {sWS} offset:116")
        A(f"v_mov_b32 {X(1)}, {sBUD}"); A(f"global_store_dword {X(0)}, {X(1)}, {sWS} offset:120")

    def build(self):
        A = self.A; o = self.o
        self.prologue()
        if o.prof:
            for k in range(9): A(f"s_mov_b32 s{36+k}, 0")
        self.stream()
        A("L_layer:")
        self.get_q()
        self.stamp(6)
        self.attention()
        A(f"s_cmp_eq_u32 {sWAVE}, 0"); A("s_cbranch_scc0 L_nocomb")
        self.combine_publish()
        self.stamp(10)
        A("L_nocomb:")
        A(f"s_cmp_eq_u32 {sROLE}, {ROLE_GU}"); A("s_cbranch_scc1 L_gu_s")
        A(f"s_cmp_eq_u32 {sROLE}, {ROLE_DN}"); A("s_cbranch_scc1 L_dn_s")
        A(f"s_cmp_eq_u32 {sROLE}, {ROLE_WQ}"); A("s_cbranch_scc1 L_wq_s")
        A(f"s_cmp_eq_u32 {sROLE}, {ROLE_WO}"); A("s_cbranch_scc0 L_next")
        self.stage_wo()
        self.cbase(SA, 0); self.gbase(SB, R_X1); self.gbase(SC_, R_ST1); A("s_mov_b32 s78, 0")
        if o.rspre1: A(f"s_sleep {o.rspre1}")
        A("L_rs_entry:")
        self.stage_rs()
        self.dstamp(6, layer=0)
        A("s_branch L_next")
        A("L_gu_s:")
        self.stage_gu()
        A("s_branch L_next")
        A("L_dn_s:")
        self.stage_dn()
        A("s_branch L_next")
        A("L_dn_rs:")
        self.cbase(SA, 1); self.gbase(SB, R_X2); self.gbase(SC_, R_ST2); A(f"s_mov_b32 s78, {sLAYER}")
        if o.rspre2: A(f"s_sleep {o.rspre2}")
        A("s_branch L_rs_entry")
        A("L_wq_s:")
        A(f"s_cmp_eq_u32 {sLAYER}, 1"); A("s_cbranch_scc1 L_fin")
        self.stage_q2()
        A("L_next:")
        A(f"s_cmp_eq_u32 {sLAYER}, 1"); A("s_cbranch_scc1 L_fin")
        A(f"s_mov_b32 {sLAYER}, 1")
        A("s_branch L_layer")
        A("L_final:")
        A(f"s_cmp_eq_u32 {sGI}, 0"); A("s_cbranch_scc0 L_fin")
        self.set_exec(0x55555555, 0x55555555)
        A(f"global_store_dword {X(10)}, {X(1)}, {sOUT}")
        A(f"s_cmp_eq_u32 {sSIG}, 2"); A("s_cbranch_scc0 L_noep")
        A("s_mov_b64 exec, 1")
        A(f"v_mov_b32 {X(2)}, {EOFF}"); A(f"v_mov_b32 {X(3)}, {sTAG}")
        A(f"global_store_dword {X(2)}, {X(3)}, {sWS}")
        A("L_noep:")
        A("s_mov_b64 exec, -1")
        A("L_fin:")
        self.dstamp(10)
        self.stamp(16)
        self.finish()
        A("L_end:")
        A("s_endpgm")
        for t in self.tail_code: A(t)
        lines, n = hazard.fix(A.L, verbose=o.verbose)
        A.L = lines
        return A

def main():
    ap = argparse.ArgumentParser()
    ap.add_argument("-o", default="k3.s")
    ap.add_argument("--prof", action="store_true")
    ap.add_argument("--slow", action="store_true")
    ap.add_argument("--nt", type=int, default=1)
    ap.add_argument("--wnt", type=int, default=1)
    ap.add_argument("--win", type=int, default=12)
    ap.add_argument("--winv", type=int, default=60)
    ap.add_argument("--budget", type=int, default=200000)
    ap.add_argument("--gate", type=int, default=0)
    ap.add_argument("--gatesleep", type=int, default=1)
    ap.add_argument("--qsleep", type=int, default=1)
    ap.add_argument("--trypoll", type=int, default=6)
    ap.add_argument("--k0", type=int, default=1)
    ap.add_argument("--prefetch", type=int, default=0)
    ap.add_argument("--rsets", type=int, default=1)
    ap.add_argument("--lnsleep", type=int, default=0)
    ap.add_argument("--playout", type=int, default=0)
    ap.add_argument("--ncopies", type=int, default=8)
    ap.add_argument("--rspre1", type=int, default=10)
    ap.add_argument("--rspre2", type=int, default=12)
    ap.add_argument("--rssleep", type=int, default=0)
    ap.add_argument("--wopre", type=int, default=0)
    ap.add_argument("--gupre", type=int, default=0)
    ap.add_argument("--wqpre", type=int, default=0)
    ap.add_argument("--dnpre", type=int, default=0)
    ap.add_argument("--qpre", type=int, default=0)
    ap.add_argument("--lnsets", type=int, default=2)
    ap.add_argument("--esplit", type=int, default=1)
    ap.add_argument("--qsets", type=int, default=2)
    ap.add_argument("--pf4", type=int, default=1)
    ap.add_argument("--exp", default="")
    ap.add_argument("--perturb", type=float, default=0.0)
    ap.add_argument("--vdist", type=int, default=3)
    ap.add_argument("--fullcheck", type=int, default=0)
    ap.add_argument("--round2", type=int, default=0)
    ap.add_argument("--stamps", default=None)
    ap.add_argument("--verbose", action="store_true")
    ap.add_argument("--dbgstamps", action="store_true")
    ap.add_argument("--fine", default="")
    o = ap.parse_args()
    g = Gen(o); A = g.build(); A.write(o.o)
    print("wrote", o.o, len(A.L), "lines")
main()
```

```python
import sys, argparse, struct
from asmlib import Asm, NAME
import hazard

GOFF = 0x100000; LSTRIDE = 0x8000
R_Q = 0x0000; R_ML = 0x0800; R_X1 = 0x0A00; R_ST1 = 0x1100; R_H = 0x1300; R_X2 = 0x1800; R_ST2 = 0x1F00; R_O = 0x4000
COFF = GOFF + 0x80000
EOFF = 0x0F0000
QTOFF = 0x0F8000
TAGC = 0x9E3779B9
NLDS = 19
VW = NLDS * 2048
LDS_OP = 4 * VW; LDS_MLP = LDS_OP + 4096; LDS_QL = LDS_MLP + 64; LDS_FLAG = LDS_QL + 512; LDS_RED = LDS_FLAG + 64
assert LDS_RED + 2048 <= 163840
LOG2E = 1.4426950408889634
QSCALE = LOG2E / 16.0
ROLE_WQ, ROLE_WO, ROLE_GU, ROLE_DN, ROLE_NONE = 0, 1, 2, 3, 4

def f32(x): return "0x%08x" % struct.unpack("<I", struct.pack("<f", x))[0]
def X(n): assert 0 <= n < 20; return f"v{4+n}"
def T(n): assert 0 <= n < 64; return f"v{24+n}"
def W(n): assert 0 <= n < 64; return f"v{88+n}"
def VR(n): assert 0 <= n < 104; return f"v{152+n}"
def rng(f, a, n):
    s = f(a); k = int(s[1:]); assert n == 1 or k % 2 == 0, (s, n); return f"{s[0]}[{k}:{k+n-1}]"
def XR(a, n): return rng(X, a, n)
def TR(a, n): return rng(T, a, n)
def WR(a, n): return rng(W, a, n)
def VRR(a, n): return rng(VR, a, n)
LANE = "v0"; CS = "v1"; L16 = "v2"; TMP = "v3"
sM0B = "s3"
sXIN = "s[4:5]"
sOUT = "s[16:17]"; sDBG = "s[18:19]"; sWS = "s[20:21]"; sG = "s[22:23]"; sC = "s[24:25]"
sWAVE = "s26"; sGI = "s27"; sJ = "s28"; sHL = "s29"; sB = "s30"; sSP = "s31"
sMODE = "s32"; sBUD = "s33"; sLAYER = "s34"; sTILE = "s35"
sADV = "s101"; sTAG = "s46"; sROLE = "s6"; sSIG = "s7"; sS4 = "s47"
sSEL = "s[60:61]"
sMA = "s[54:55]"
SA = "s[70:71]"; SB = "s[72:73]"; SC_ = "s[74:75]"; SD = "s[64:65]"
WBAR = "v[14:15]"; WBAR0 = "v14"; WBAR1 = "v15"
DPP = "row_mask:0xf bank_mask:0xf"

class Gen:
    def __init__(self, opt):
        self.o = opt; self.A = Asm(); self.ob = 0; self.tail_code = []
    def stamp(self, k):
        if not self.o.prof: return
        if self.o.stamps is not None and k not in [int(x) for x in self.o.stamps.split(",")]: return
        A = self.A
        A("s_memrealtime s[76:77]"); A("s_waitcnt lgkmcnt(0)")
        if 6 <= k <= 14:
            A(f"s_cmp_eq_u32 {sLAYER}, 0"); A(f"s_cselect_b32 s{80+k}, s76, s{80+k}"); A(f"s_cselect_b32 s{30+k}, s{30+k}, s76")
        else:
            A(f"s_mov_b32 s{80+k}, s76")
    def dstamp(self, word, neg=False, layer=None):
        if not self.o.dbgstamps: return
        A = self.A
        lab = A.label("DS")
        A("s_cmp_eq_u32 s2, 176"); A(f"s_cbranch_scc0 {lab}"); A(f"s_cmp_eq_u32 {sWAVE}, 0"); A(f"s_cbranch_scc0 {lab}")
        if layer is not None:
            A(f"s_cmp_eq_u32 {sLAYER}, {layer}"); A(f"s_cbranch_scc0 {lab}")
        A("s_memrealtime s[76:77]"); A("s_waitcnt lgkmcnt(0)")
        A(f"v_mov_b32 v86, s76"); A(f"v_mov_b32 v87, {4*word}")
        A("s_mov_b64 s[78:79], exec"); A("s_mov_b64 exec, 1")
        A(f"global_store_dword v87, v86, {sDBG}")
        A("s_mov_b64 exec, s[78:79]")
        A(f"{lab}:")
    def fst(self, k, which="ln"):
        if self.o.fine != which: return
        A = self.A
        A("s_memtime s[76:77]"); A("s_waitcnt lgkmcnt(0)"); A(f"s_mov_b32 s{90+k}, s76")
    def gbase(self, dst, off, layer=None):
        A = self.A; d = int(dst[2:dst.index(":")])
        if layer is None:
            A(f"s_mul_i32 s68, {sLAYER}, {LSTRIDE}"); A(f"s_add_u32 s68, s68, {off}")
            A(f"s_add_u32 s{d}, s22, s68")
        else:
            A(f"s_add_u32 s{d}, s22, {off + layer*LSTRIDE}")
        A(f"s_addc_u32 s{d+1}, s23, 0")
    def cbase(self, dst, kind, consumer=True):
        A = self.A; d = int(dst[2:dst.index(":")]); L = self.o.playout
        A(f"s_lshl_b32 s68, {sLAYER}, 19"); A(f"s_lshl_b32 s69, {sS4}, {10 if L == 0 else 13}"); A("s_add_u32 s68, s68, s69")
        if consumer:
            sh = {0: 15, 1: 7, 2: 10}[L]; extra = {0: 0, 1: 4096, 2: 0}[L]
        else:
            sh = {0: 7, 1: 10, 2: 7}[L]; extra = {0: 0, 1: 0, 2: 4096}[L]
        if consumer and self.o.ncopies < 8: A(f"s_and_b32 s69, {sGI}, {self.o.ncopies - 1}"); A(f"s_lshl_b32 s69, s69, {sh}")
        else: A(f"s_lshl_b32 s69, {sGI}, {sh}")
        A("s_add_u32 s68, s68, s69"); A(f"s_add_u32 s68, s68, {kind*0x40000 + extra}")
        A(f"s_add_u32 s{d}, s24, s68"); A(f"s_addc_u32 s{d+1}, s25, 0")
    def p_store_addr(self, dst):
        self.p_addr(dst)
    def p_publish(self, base, vaddr, val, t4):
        A = self.A; d = int(base[2:base.index(":")]); N = self.o.ncopies
        for c in range(N):
            A(f"global_store_dword {vaddr}, {val}, {base} sc1")
            if c != N - 1: A(f"s_add_u32 s{d}, s{d}, 0x8000"); A(f"s_addc_u32 s{d+1}, s{d+1}, 0")
    def p_poll_off(self, g):
        return {0: g * 128, 1: g * 1024 - 4096, 2: g * 128}[self.o.playout]
    def maxops(self, dst, regs, first=True):
        out = []; regs = list(regs)
        if first:
            if len(regs) >= 3: out.append(f"v_max3_u32 {dst}, {regs[0]}, {regs[1]}, {regs[2]}"); regs = regs[3:]
            elif len(regs) == 2: out.append(f"v_max_u32 {dst}, {regs[0]}, {regs[1]}"); regs = []
            else: out.append(f"v_mov_b32 {dst}, {regs[0]}"); regs = []
        while len(regs) >= 2:
            out.append(f"v_max3_u32 {dst}, {dst}, {regs[0]}, {regs[1]}"); regs = regs[2:]
        if regs: out.append(f"v_max_u32 {dst}, {dst}, {regs[0]}")
        return out
    def chk_regs(self, f, base, nload):
        if self.o.fullcheck: return [f(base + k) for k in range(4 * nload)]
        return [f(base + 4 * k) for k in range(nload)]
    def poll_tail(self, chk, loop, done, sleep=0):
        A = self.A
        A(f"v_cmp_eq_u32 vcc, -1, {chk}")
        A(f"s_cbranch_vccz {done}")
        A(f"s_cmp_eq_u32 {sBUD}, 0"); A(f"s_cbranch_scc1 {done}")
        A(f"s_sub_u32 {sBUD}, {sBUD}, 1")
        if sleep: A(f"s_sleep {sleep}")
        A(f"s_branch {loop}")
    def gate(self, base, vaddr, off, dst, lab):
        if not self.o.gate: return
        A = self.A
        A(f"{lab}:")
        A(f"global_load_dword {dst}, {vaddr}, {base} offset:{off} sc1"); A("s_waitcnt vmcnt(0)")
        self.poll_tail(dst, lab, lab + "_d", sleep=self.o.gatesleep)
        A(f"{lab}_d:")
    def pub(self, instr):
        A = self.A
        l1 = A.label("PUBS"); l2 = A.label("PUBD")
        A(f"s_cmp_eq_u32 {sMODE}, 1"); A(f"s_cbranch_scc0 {l1}")
        A(instr); A(f"{l2}:")
        self.tail_code += [f"{l1}:", instr + " sc1", f"s_branch {l2}"]
    def set_exec(self, lo, hi):
        A = self.A
        if lo == 0xFFFFFFFF and hi == 0xFFFFFFFF: A("s_mov_b64 exec, -1"); return
        A(f"s_mov_b32 exec_lo, {hex(lo)}"); A(f"s_mov_b32 exec_hi, {hex(hi)}")
    def ln_addr(self, dst):
        A = self.A
        A(f"v_and_b32 {dst}, 1, {LANE}"); A(f"v_mul_u32_u24 {dst}, 896, {dst}")
        A(f"v_lshrrev_b32 {TMP}, 4, {LANE}"); A(f"v_lshl_add_u32 {dst}, {TMP}, 4, {dst}")
    def xst_addr(self, dst):
        A = self.A
        A(f"v_bfe_u32 {TMP}, {LANE}, 4, 1"); A(f"v_mul_u32_u24 {dst}, 896, {TMP}")
        A(f"v_and_b32 {TMP}, 15, {LANE}"); A(f"v_lshl_add_u32 {dst}, {TMP}, 1, {dst}")
        A(f"s_lshl_b32 s68, {sSIG}, 5"); A(f"v_add_u32 {dst}, s68, {dst}")
    def pack_pair(self, dst, val, tmp):
        A = self.A
        A(f"v_mov_b32_dpp {tmp}, {val} quad_perm:[1,0,3,2] {DPP}")
        A(f"v_cvt_pk_bf16_f32 {dst}, {val}, {tmp}")

    def prologue(self):
        A = self.A; o = self.o
        wnt = " nt" if o.wnt else ""
        A(f"""
        s_cmp_ge_u32 s2, 256
        s_cbranch_scc1 L_end
        {"s_memrealtime s[100:101]" if o.dbgstamps else ""}
        s_load_dwordx2 s[8:9], s[0:1], 8
        s_load_dwordx16 s[36:51], s[0:1], 0
        s_load_dwordx8 s[52:59], s[0:1], 64
        v_lshrrev_b32 v1, 6, v0
        v_and_b32 v0, 63, v0
        s_and_b32 {sGI}, s2, 7
        v_readfirstlane_b32 {sWAVE}, v1
        s_lshr_b32 {sJ}, s2, 3
        s_lshr_b32 s68, {sJ}, 3
        s_and_b32 {sSP}, {sJ}, 7
        s_and_b32 {sHL}, s68, 1
        s_lshr_b32 {sB}, s68, 1
        s_lshl_b32 s68, {sGI}, 1
        s_add_u32 s68, s68, {sHL}
        s_lshl_b32 s69, {sB}, 4
        s_add_u32 s68, s68, s69
        s_lshl_b32 {sTILE}, s68, 21
        s_lshl_b32 s68, {sSP}, 15
        s_add_u32 {sTILE}, {sTILE}, s68
        s_lshl_b32 s68, {sWAVE}, 13
        s_add_u32 {sTILE}, {sTILE}, s68
        s_mov_b32 s10, 0x4000000
        s_mov_b32 s11, 0x00020000
        """)
        vK = X(18)
        A(f"v_lshrrev_b32 {X(9)}, 4, {LANE}")
        A(f"v_and_b32 {vK}, 3, {LANE}"); A(f"v_lshlrev_b32 {vK}, 4, {vK}"); A(f"v_lshl_add_u32 {vK}, {X(9)}, 6, {vK}")
        A(f"v_bfe_u32 {TMP}, {LANE}, 2, 2"); A(f"v_lshl_add_u32 {vK}, {TMP}, 11, {vK}")
        A("s_waitcnt lgkmcnt(0)")
        self.ob = 0
        self.ktile(0, 64)
        A(f"""
        s_mov_b32 {sBUD}, {o.budget}
        s_mov_b32 {sLAYER}, 0
        s_mov_b32 {sMODE}, 0
        s_mov_b32 s60, 0xffff0000
        s_mov_b32 s61, 0xffff0000
        v_lshlrev_b32 {L16}, 4, {LANE}
        v_mov_b32 {CS}, 0
        s_mul_i32 {sM0B}, {sWAVE}, {VW}
        """)
        A(f"v_and_b32 {X(8)}, 15, {LANE}"); A(f"v_lshlrev_b32 {X(19)}, 11, {X(9)}"); A(f"v_lshl_add_u32 {X(19)}, {X(8)}, 4, {X(19)}")
        A(f"s_mov_b32 {sROLE}, {ROLE_WQ}"); A(f"s_mov_b32 s62, {sJ}")
        for (lim, role) in ((8, ROLE_WO), (15, ROLE_GU), (22, ROLE_DN), (29, ROLE_NONE)):
            A(f"s_cmp_ge_u32 {sJ}, {lim}"); A(f"s_cselect_b32 {sROLE}, {role}, {sROLE}"); A(f"s_sub_u32 s68, {sJ}, {lim}")
            A(f"s_cmp_ge_u32 {sJ}, {lim}"); A("s_cselect_b32 s62, s68, s62")
        A(f"s_lshl_b32 {sSIG}, s62, 2"); A(f"s_add_u32 {sSIG}, {sSIG}, {sWAVE}")
        self.stamp(0)
        if o.prof:
            for k in range(1, 20): A(f"s_mov_b32 s{80+k}, 0")
        A(f"""
        s_load_dword {sTAG}, s[58:59], {EOFF}
        s_sub_u32 {sS4}, {sSIG}, {sWAVE}
        s_mov_b32 s12, s40
        s_mov_b32 s13, s41
        s_mov_b32 s14, 0x4000000
        s_mov_b32 s15, 0x00020000
        s_mov_b32 s4, s36
        s_mov_b32 s5, s37
        s_mov_b32 s16, s54
        s_mov_b32 s17, s55
        s_mov_b32 s18, s56
        s_mov_b32 s19, s57
        s_mov_b32 s20, s58
        s_mov_b32 s21, s59
        s_lshl_b32 s68, {sGI}, 16
        s_add_u32 s68, s68, {GOFF}
        s_add_u32 s22, s58, s68
        s_addc_u32 s23, s59, 0
        s_add_u32 s24, s58, {COFF}
        s_addc_u32 s25, s59, 0
        s_mov_b64 s[70:71], s[58:59]
        s_mov_b64 s[72:73], s[58:59]
        s_mov_b64 s[74:75], s[58:59]
        """)
        if o.dbgstamps:
            A("s_cmp_eq_u32 s2, 176"); A("s_cbranch_scc0 L_ds0"); A(f"s_cmp_eq_u32 {sWAVE}, 0"); A("s_cbranch_scc0 L_ds0")
            A("v_mov_b32 v86, s100"); A("v_mov_b32 v87, 8"); A("s_mov_b64 exec, 1")
            A(f"global_store_dword v87, v86, {sDBG}"); A("s_mov_b64 exec, -1")
            A("L_ds0:")
            self.dstamp(3)
        if o.prefetch: self.prefetch_weights()
        if o.gupf:
            assert o.k0 == 1
            A(f"s_cmp_ge_u32 {sROLE}, {ROLE_DN}"); A("s_cbranch_scc0 L_nogupf")
            self.prefetch_gu()
            A("L_nogupf:")
            A(f"s_cmp_eq_u32 {sROLE}, {ROLE_GU}"); A(f"s_cselect_b32 {sADV}, 1, 0")
            if o.wqpf:
                A(f"s_cmp_eq_u32 {sROLE}, {ROLE_WQ}"); A(f"s_cselect_b32 {sADV}, 1, {sADV}")
                A(f"s_cmp_eq_u32 {sROLE}, {ROLE_GU}"); A("s_cbranch_scc0 L_nowqpf")
                self.prefetch_wq()
                A("L_nowqpf:")
            A(f"s_cmp_eq_u32 {sADV}, 1"); A("s_cbranch_scc0 L_nogu12")
            for tau in range(1, 1 + o.gudelay): self.ktile(tau, 64)
            A("s_waitcnt vmcnt(24)")
            A("L_nogu12:")
        for tau in range(1, o.k0): self.ktile(tau, 64)
        if 8 * o.k0 + (14 if o.prefetch else 0) > 16: A("s_waitcnt vmcnt(16)")
        row8, c, off = X(2), X(3), X(4)
        A(f"v_lshrrev_b32 {row8}, 3, {LANE}"); A(f"v_and_b32 {c}, 7, {LANE}")
        A(f"s_cmp_eq_u32 {sROLE}, {ROLE_WO}"); A("s_cbranch_scc1 L_w1")
        A(f"s_cmp_eq_u32 {sROLE}, {ROLE_GU}"); A("s_cbranch_scc1 L_w2")
        A(f"s_cmp_eq_u32 {sROLE}, {ROLE_DN}"); A("s_cbranch_scc1 L_w3")
        A(f"s_cmp_eq_u32 {sROLE}, {ROLE_WQ}"); A("s_cbranch_scc1 L_w0")
        A(f"v_mov_b32 {off}, 0"); A("s_mov_b32 s63, 0"); A("s_mov_b32 s66, 0"); A("s_mov_b32 s67, 0")
        A("s_mov_b32 s64, s42"); A("s_mov_b32 s65, s43"); A("s_mov_b32 s78, s42"); A("s_mov_b32 s79, s43")
        A("s_branch L_wdone")
        A("L_w0:")
        A(f"s_mul_i32 s68, {sWAVE}, 112"); A(f"v_add_u32 {X(5)}, s68, {row8}"); A(f"v_lshlrev_b32 {off}, 13, {X(5)}")
        A(f"v_lshl_add_u32 {off}, {c}, 4, {off}"); A(f"s_lshl_b32 s68, {sGI}, 10"); A("s_lshl_b32 s69, s62, 7"); A("s_add_u32 s68, s68, s69"); A(f"v_add_u32 {off}, s68, {off}")
        A("s_mov_b32 s63, 14"); A(f"s_mov_b32 s66, {8*8192}"); A(f"s_mul_i32 s67, {sWAVE}, 14336")
        A("s_mov_b32 s64, s42"); A("s_mov_b32 s65, s43"); A("s_mov_b32 s78, s42"); A("s_mov_b32 s79, s43")
        self.ln_addr(X(8))
        self.set_exec(0x00030003, 0x00030003)
        for t in range(14):
            A(f"global_load_dwordx4 {TR(4*t,4)}, {X(8)}, {sXIN} offset:{t*64}")
        A("s_mov_b64 exec, -1")
        for k in range(8): A(f"v_mov_b32 {T(56+k)}, 0")
        self.set_exec(0xFFFFFFFF, 0x00FFFFFF)
        A(f"global_load_dwordx4 {TR(56,4)}, {L16}, {sXIN}"); A(f"global_load_dwordx4 {TR(60,4)}, {L16}, {sXIN} offset:896")
        A("s_mov_b64 exec, -1")
        A("s_branch L_wdone")
        A("L_w1:")
        A(f"v_and_b32 {X(5)}, 3, {row8}"); A(f"v_lshlrev_b32 {X(5)}, 3, {X(5)}"); A(f"v_lshrrev_b32 {X(6)}, 2, {row8}"); A(f"v_add_u32 {X(5)}, {X(5)}, {X(6)}")
        A(f"s_lshl_b32 s68, {sGI}, 9"); A(f"s_lshl_b32 s69, {sWAVE}, 7"); A("s_add_u32 s68, s68, s69"); A(f"v_add_u32 {X(5)}, s68, {X(5)}")
        A(f"v_mul_u32_u24 {off}, 896, {X(5)}"); A(f"v_lshl_add_u32 {off}, {c}, 4, {off}"); A("s_lshl_b32 s68, s62, 7"); A(f"v_add_u32 {off}, s68, {off}")
        A(f"v_lshrrev_b32 {X(12)}, 5, {LANE}"); A(f"s_and_b32 s68, {sWAVE}, 1"); A("s_lshl_b32 s68, s68, 1"); A(f"s_add_u32 s68, s68, {sS4}"); A(f"v_add_u32 {X(12)}, s68, {X(12)}")
        A(f"v_bfe_u32 {TMP}, {LANE}, 4, 1"); A(f"v_mul_u32_u24 {X(10)}, 896, {TMP}"); A(f"v_lshl_add_u32 {X(10)}, {X(12)}, 5, {X(10)}")
        A(f"v_and_b32 {TMP}, 15, {LANE}"); A(f"v_lshl_add_u32 {X(10)}, {TMP}, 1, {X(10)}")
        A(f"global_load_ushort {CS}, {X(10)}, {sXIN}")
        A("s_mov_b32 s63, 16"); A("s_mov_b32 s66, 0"); A(f"s_mov_b32 s67, {sM0B}")
        A("s_mov_b32 s64, s44"); A("s_mov_b32 s65, s45"); A("s_mov_b32 s78, s44"); A("s_mov_b32 s79, s45")
        A("s_branch L_wdone")
        A("L_w2:")
        A(f"s_mul_i32 s68, {sWAVE}, 112"); A(f"v_add_u32 {X(5)}, s68, {row8}"); A(f"v_mul_u32_u24 {off}, 3584, {X(5)}")
        A(f"v_and_b32 {X(6)}, 3, {c}"); A(f"v_lshl_add_u32 {off}, {X(6)}, 4, {off}")
        A(f"s_mul_i32 s68, {sGI}, 448"); A("s_lshl_b32 s69, s62, 6"); A("s_add_u32 s68, s68, s69"); A(f"v_add_u32 {off}, s68, {off}")
        A("s_mov_b32 s63, 14"); A(f"s_mov_b32 s66, {8*3584}"); A(f"s_mul_i32 s67, {sWAVE}, 14336")
        A("s_mov_b32 s64, s48"); A("s_mov_b32 s65, s49"); A("s_mov_b32 s78, s50"); A("s_mov_b32 s79, s51")
        A("s_branch L_wdone")
        A("L_w3:")
        A(f"s_mul_i32 s68, {sGI}, 224"); A(f"s_mul_i32 s69, {sWAVE}, 56"); A("s_add_u32 s68, s68, s69"); A(f"v_add_u32 {X(5)}, s68, {row8}")
        A(f"v_mul_u32_u24 {off}, 896, {X(5)}"); A(f"v_lshl_add_u32 {off}, {c}, 4, {off}"); A("s_lshl_b32 s68, s62, 7"); A(f"v_add_u32 {off}, s68, {off}")
        A("s_mov_b32 s63, 7"); A(f"s_mov_b32 s66, {8*896}"); A(f"s_mul_i32 s67, {sWAVE}, 7168")
        A("s_mov_b32 s64, s52"); A("s_mov_b32 s65, s53"); A("s_mov_b32 s78, s52"); A("s_mov_b32 s79, s53")
        A("L_wdone:")
        A(f"v_cmp_le_u32 vcc, 4, {c}")
        A(f"v_mov_b32 {X(0)}, s64"); A(f"v_mov_b32 {X(5)}, s78"); A(f"v_cndmask_b32 {X(0)}, {X(0)}, {X(5)}, vcc")
        A(f"v_mov_b32 {X(1)}, s65"); A(f"v_mov_b32 {X(5)}, s79"); A(f"v_cndmask_b32 {X(1)}, {X(1)}, {X(5)}, vcc")
        A(f"v_add_co_u32 {X(0)}, vcc, {X(0)}, {off}"); A(f"v_addc_co_u32 {X(1)}, vcc, 0, {X(1)}, vcc")
        A("s_mov_b32 s68, s67"); A("s_mov_b32 s69, 0")
        if "now" in self.o.exp: A("s_mov_b32 s63, 0")
        if "nogu" in self.o.exp:
            A(f"s_cmp_eq_u32 {sROLE}, {ROLE_GU}"); A("s_cselect_b32 s63, 0, s63")
        A("s_cmp_eq_u32 s63, 0"); A("s_cbranch_scc1 L_wld_done")
        A("L_wld:")
        A("s_mov_b32 m0, s68")
        A("s_add_u32 s68, s68, 1024")
        A(f"global_load_lds_dwordx4 {XR(0,2)}, off{wnt}")
        A("s_add_u32 s69, s69, 1"); A("s_and_b32 s62, s69, 3"); A("s_cmp_eq_u32 s62, 0"); A(f"s_mov_b32 s76, {26*896}"); A(f"s_cselect_b32 s62, s76, {2*896}")
        A(f"s_cmp_eq_u32 {sROLE}, {ROLE_WO}"); A("s_cselect_b32 s62, s62, s66")
        A(f"v_add_co_u32 {X(0)}, vcc, s62, {X(0)}"); A(f"v_addc_co_u32 {X(1)}, vcc, 0, {X(1)}, vcc")
        A("s_cmp_lt_u32 s69, s63"); A("s_cbranch_scc1 L_wld")
        A("L_wld_done:")
        A("s_mov_b32 s48, 0x22222222"); A("s_mov_b32 s49, 0x22222222"); A("s_mov_b32 s50, 0x44444444"); A("s_mov_b32 s51, 0x44444444")
        A("s_mov_b32 s52, 0x88888888"); A("s_mov_b32 s53, 0x88888888")
        A("s_mov_b32 s54, 0x03030303"); A("s_mov_b32 s55, 0x03030303")
        A("s_mov_b32 s56, 0x0c0c0c0c"); A("s_mov_b32 s57, 0x0c0c0c0c"); A("s_mov_b32 s58, 0x30303030"); A("s_mov_b32 s59, 0x30303030")
        A("s_mov_b32 s62, 0xc0c0c0c0"); A("s_mov_b32 s63, 0xc0c0c0c0")
        A(f"s_cmp_eq_u32 {sWAVE}, 3"); A("s_cbranch_scc0 L_noclr")
        for k in range(4): A(f"v_mov_b32 {X(12+k)}, -1")
        A(f"s_lshl_b32 s68, {sJ}, 11"); A(f"v_add_u32 {X(8)}, s68, {L16}")
        A(f"global_store_dwordx4 {X(8)}, {XR(12,4)}, {sG} sc1"); A(f"global_store_dwordx4 {X(8)}, {XR(12,4)}, {sG} offset:1024 sc1")
        A(f"s_lshl_b32 s68, s2, 12"); A(f"v_add_u32 {X(9)}, s68, {L16}")
        for k in range(4): A(f"global_store_dwordx4 {X(9)}, {XR(12,4)}, {sC} offset:{k*1024} sc1")
        A("L_noclr:")

    def prefetch_gu(self):
        A = self.A
        f = " nt" if self.o.gupf == 2 else ""
        A(f"s_sub_u32 s78, {sJ}, 22"); A("s_lshl_b32 s78, s78, 2"); A(f"s_add_u32 s78, s78, {sWAVE}")
        A(f"v_lshrrev_b32 {X(11)}, 5, {LANE}"); A(f"v_mul_u32_u24 {X(11)}, 3584, {X(11)}"); A(f"v_and_b32 {X(12)}, 31, {LANE}"); A(f"v_lshl_add_u32 {X(11)}, {X(12)}, 4, {X(11)}")
        A(f"s_mul_i32 s68, s78, {12*3584}"); A(f"s_mul_i32 s69, {sGI}, 448"); A("s_add_u32 s68, s68, s69"); A(f"v_add_u32 {X(11)}, s68, {X(11)}")
        self.set_exec(0x0FFFFFFF, 0x0FFFFFFF)
        d = 192
        for (lo, hi) in (("s48", "s49"), ("s50", "s51")):
            A(f"s_mov_b32 s72, {lo}"); A(f"s_mov_b32 s73, {hi}"); A(f"s_mov_b32 s74, {448*3584}"); A("s_mov_b32 s75, 0x00020000")
            for k in range(6):
                A(f"s_mov_b32 s69, {k*7168}")
                A(f"buffer_load_dwordx4 a[{d}:{d+3}], {X(11)}, s[72:75], s69 offen{f}"); d += 4
        A("s_mov_b64 exec, -1")
        A("s_mov_b64 s[72:73], s[58:59]"); A("s_mov_b64 s[74:75], s[58:59]")

    def prefetch_wq(self):
        A = self.A
        A(f"s_lshl_b32 s68, {sSIG}, 17"); A(f"s_lshl_b32 s69, {sGI}, 10"); A("s_add_u32 s68, s68, s69"); A(f"v_add_u32 {X(11)}, s68, {L16}")
        for k in range(16):
            A(f"global_load_dwordx4 a[{192+4*k}:{195+4*k}], {X(11)}, s[42:43]")
            if k != 15: A(f"v_add_u32 {X(11)}, 8192, {X(11)}")

    def kpos(self, p, win):
        A = self.A; o = self.o
        if not o.gupf:
            self.ktile(p, win); return
        l1 = A.label("KG"); l2 = A.label("KD")
        ob0 = self.ob
        A(f"s_cmp_eq_u32 {sADV}, 1"); A(f"s_cbranch_scc1 {l1}")
        self.ktile(p, win)
        ob1 = self.ob
        A(f"s_branch {l2}"); A(f"{l1}:")
        self.ob = ob0
        if p + o.gudelay <= 7: self.ktile(p + o.gudelay, win)
        A(f"{l2}:")
        self.ob = max(ob1, self.ob)

    def prefetch_weights(self):
        A = self.A
        f = {0: "", 1: "", 2: " nt"}[self.o.prefetch]
        u = "s78"
        A(f"s_lshl_b32 {u}, {sJ}, 2"); A(f"s_add_u32 {u}, {u}, {sWAVE}")
        d = [192]
        def ld(addr, base, off=0):
            A(f"global_load_dwordx4 a[{d[0]}:{d[0]+3}], {addr}, {base}" + (f" offset:{off}" if off else "") + f); d[0] += 4
        A(f"s_cmp_lt_u32 {u}, 112"); A("s_cbranch_scc0 L_pf1")
        A(f"s_lshl_b32 s68, {u}, 15"); A(f"s_lshl_b32 s69, {sGI}, 10"); A("s_add_u32 s68, s68, s69"); A(f"v_add_u32 {X(10)}, s68, {L16}")
        for k in range(4):
            ld(X(10), "s[42:43]")
            if k != 3: A(f"v_add_u32 {X(10)}, 8192, {X(10)}")
        A(f"v_lshrrev_b32 {X(11)}, 5, {LANE}"); A(f"v_mul_u32_u24 {X(11)}, 3584, {X(11)}"); A(f"v_and_b32 {X(12)}, 31, {LANE}"); A(f"v_lshl_add_u32 {X(11)}, {X(12)}, 4, {X(11)}")
        A(f"s_mul_i32 s68, {u}, {4*3584}"); A(f"s_mul_i32 s69, {sGI}, 448"); A("s_add_u32 s68, s68, s69"); A(f"v_add_u32 {X(11)}, s68, {X(11)}")
        A(f"v_add_u32 {X(12)}, 7168, {X(11)}")
        self.set_exec(0x0FFFFFFF, 0x0FFFFFFF)
        for base in ("s[48:49]", "s[50:51]"):
            ld(X(11), base); ld(X(12), base)
        A("s_mov_b64 exec, -1")
        A("L_pf1:")
        d[0] = 224
        A(f"s_mul_i32 s68, {sGI}, 458752"); A(f"s_mul_i32 s69, {u}, 3584"); A("s_add_u32 s68, s68, s69"); A(f"v_add_u32 {X(10)}, s68, {L16}")
        for k in range(3): ld(X(10), "s[44:45]", k * 1024)
        self.set_exec(0xFFFFFFFF, 0)
        ld(X(10), "s[44:45]", 3072)
        A("s_mov_b64 exec, -1")
        A(f"s_mul_i32 s68, {sGI}, 200704"); A(f"s_mul_i32 s69, {u}, 1568"); A("s_add_u32 s68, s68, s69"); A(f"v_add_u32 {X(10)}, s68, {L16}")
        ld(X(10), "s[52:53]")
        self.set_exec(0xFFFFFFFF, 0x3)
        ld(X(10), "s[52:53]", 1024)
        A("s_mov_b64 exec, -1")

    def tr_reads(self):
        A = self.A
        a = X(8); r, c, g4 = X(10), X(9), TMP
        A(f"v_and_b32 {c}, 15, {LANE}"); A(f"v_lshrrev_b32 {r}, 2, {c}"); A(f"v_and_b32 {c}, 3, {c}")
        A(f"v_lshrrev_b32 {a}, 4, {LANE}"); A(f"v_lshlrev_b32 {a}, 3, {a}"); A(f"v_add_u32 {a}, {a}, {r}")
        A(f"v_lshlrev_b32 {a}, 7, {a}")
        A(f"s_cmp_eq_u32 {sROLE}, {ROLE_WO}"); A("s_cbranch_scc1 L_tr_wo")
        A(f"s_cmp_eq_u32 {sROLE}, {ROLE_GU}"); A("s_cbranch_scc1 L_tr_gu")
        A(f"s_cmp_eq_u32 {sROLE}, {ROLE_DN}"); A("s_cbranch_scc1 L_tr_dn")
        A(f"v_lshl_add_u32 {a}, {c}, 3, {a}"); A(f"s_lshl_b32 s68, {sWAVE}, 5"); A(f"v_add_u32 {a}, s68, {a}")
        A("s_branch L_tr_n")
        A("L_tr_gu:")
        A(f"v_and_b32 {r}, 1, {c}"); A(f"v_lshl_add_u32 {a}, {r}, 3, {a}"); A(f"v_lshrrev_b32 {r}, 1, {c}"); A(f"v_lshl_add_u32 {a}, {r}, 6, {a}")
        A(f"s_lshl_b32 s68, {sWAVE}, 4"); A(f"v_add_u32 {a}, s68, {a}")
        A("L_tr_n:")
        for t in range(14):
            A(f"ds_read_b64_tr_b16 {WR(4*t,2)}, {a} offset:{t*4096}")
            A(f"ds_read_b64_tr_b16 {WR(4*t+2,2)}, {a} offset:{t*4096+512}")
            if t % 4 == 3: A("s_waitcnt lgkmcnt(0)")
        A("s_branch L_tr_d")
        A("L_tr_dn:")
        A(f"v_lshl_add_u32 {a}, {c}, 3, {a}"); A(f"s_and_b32 s68, {sWAVE}, 1"); A("s_lshl_b32 s68, s68, 6"); A(f"v_add_u32 {a}, s68, {a}")
        for t in range(7):
            for u in range(2):
                k = 4 * (2 * t + u)
                A(f"ds_read_b64_tr_b16 {WR(k,2)}, {a} offset:{t*4096+u*32}")
                A(f"ds_read_b64_tr_b16 {WR(k+2,2)}, {a} offset:{t*4096+u*32+512}")
            if t % 2 == 1: A("s_waitcnt lgkmcnt(0)")
        A("s_branch L_tr_d")
        A("L_tr_wo:")
        A(f"v_lshl_add_u32 {a}, {c}, 3, {a}"); A(f"v_add_u32 {a}, {sM0B}, {a}")
        for tt in range(4):
            for nt in range(4):
                k = 4 * (4 * tt + nt)
                A(f"ds_read_b64_tr_b16 {WR(k,2)}, {a} offset:{tt*4096+nt*32}")
                A(f"ds_read_b64_tr_b16 {WR(k+2,2)}, {a} offset:{tt*4096+nt*32+512}")
            A("s_waitcnt lgkmcnt(0)")
        A("L_tr_d:")
        A("s_waitcnt lgkmcnt(0)")
        A(f"s_add_u32 {sTAG}, {sTAG}, {hex(TAGC)}")
    def colsum(self):
        A = self.A
        for k in range(4): A(f"v_mov_b32 {X(4+k)}, 0x3f803f80")
        for t in range(14):
            A(f"v_mfma_f32_16x16x32_bf16 {XR(0,4)}, {XR(4,4)}, {WR(4*t,4)}, {'0' if t == 0 else XR(0,4)}")
        A(f"v_mov_b32 {CS}, {X(0)}")

    def ln_scalars(self, s1, s2, scale):
        ops = [f"v_mul_f32 {s1}, {f32(1/448)}, {s1}", f"v_mul_f32 {s2}, {f32(1/448)}, {s2}",
               f"v_fma_f32 {s2}, -{s1}, {s1}, {s2}", f"v_max_f32 {s2}, 0, {s2}", f"v_add_f32 {s2}, {f32(1e-5)}, {s2}", f"v_rsq_f32 {s2}, {s2}"]
        if scale != 1.0: ops.append(f"v_mul_f32 {s2}, {f32(scale)}, {s2}")
        return ops
    def ln_finish(self, mu, rs):
        A = self.A
        A(f"v_permlane16_swap_b32 {X(0)}, {X(1)}")
        A(f"v_fma_f32 {X(4)}, -{mu}, {CS}, {X(0)}")
        A(f"v_mul_f32 {X(4)}, {X(4)}, {rs}")

    def stage_ln(self, rx, rst, layer, scale, lab, sleep=0, pre=0):
        A = self.A
        LX = LDS_RED; LS = LDS_OP
        xa, sa = X(8), X(9)
        self.ln_addr(xa); A(f"v_add_u32 {xa}, {LX}, {xa}")
        A(f"v_bfe_u32 {sa}, {LANE}, 4, 1"); A(f"v_lshlrev_b32 {sa}, 8, {sa}"); A(f"v_lshrrev_b32 {TMP}, 5, {LANE}"); A(f"v_lshl_add_u32 {sa}, {TMP}, 7, {sa}")
        A(f"v_and_b32 {TMP}, 15, {LANE}"); A(f"v_lshl_add_u32 {sa}, {TMP}, 3, {sa}")
        A(f"s_cmp_eq_u32 {sWAVE}, 1"); A(f"s_cbranch_scc0 {lab}_b")
        self.gbase(SA, rx, layer); self.gbase(SB, rst, layer)
        sets = [(TR(60, 4), XR(16, 4), TR(58, 2), [T(60), T(61), T(62), T(63), X(16), X(17), X(18), X(19), T(58), T(59)]),
                (WR(56, 4), WR(60, 4), XR(14, 2), [W(56), W(57), W(58), W(59), W(60), W(61), W(62), W(63), X(14), X(15)])]
        NS = self.o.lnsets
        for k in range(NS):
            for r in sets[k][3][4:]: A(f"v_mov_b32 {r}, 0")
        A(f"v_add_u32 {X(10)}, {LX}, {L16}")
        A(f"v_add_u32 {X(12)}, {LS}, {sa}")
        for _ in range(pre // 120): A("s_sleep 120")
        if pre % 120: A(f"s_sleep {pre % 120}")
        def issue(k):
            A(f"global_load_dwordx4 {sets[k][0]}, {L16}, {SA} sc1")
            self.set_exec(0xFFFFFFFF, 0x0000FFFF)
            A(f"global_load_dwordx4 {sets[k][1]}, {L16}, {SA} offset:1024 sc1")
            self.set_exec(0xFFFFFFFF, 0x0FFF0FFF)
            A(f"global_load_dwordx2 {sets[k][2]}, {sa}, {SB} sc1")
            A("s_mov_b64 exec, -1")
        for k in range(NS - 1): issue(k)
        A(f"{lab}:")
        for k in range(NS):
            issue((k + NS - 1) % NS)
            A(f"s_waitcnt vmcnt({3*(NS-1)})")
            for s in self.maxops(X(13), sets[k][3]): A(s)
            A(f"v_cmp_eq_u32 vcc, -1, {X(13)}")
            A(f"s_cbranch_vccz {lab}_ok{k}")
        A(f"s_cmp_eq_u32 {sBUD}, 0"); A(f"s_cbranch_scc1 {lab}_ok0"); A(f"s_sub_u32 {sBUD}, {sBUD}, 1")
        if sleep: A(f"s_sleep {sleep}")
        A(f"s_branch {lab}")
        for k in reversed(range(NS)):
            A(f"{lab}_ok{k}:")
            A(f"ds_write_b128 {X(10)}, {sets[k][0]}")
            A(f"ds_write_b64 {X(12)}, {sets[k][2]}")
            self.set_exec(0xFFFFFFFF, 0x0000FFFF)
            A(f"ds_write_b128 {X(10)}, {sets[k][1]} offset:1024")
            A("s_mov_b64 exec, -1")
            if k != 0: A(f"s_branch {lab}_w")
        A(f"{lab}_w:")
        A("s_waitcnt lgkmcnt(0)")
        A(f"{lab}_b:")
        A("s_barrier")
        D = XR(0, 4); s1, s2, t1, t2 = X(5), X(6), X(10), X(11)
        A(f"v_add_u32 {sa}, {LS}, {sa}")
        A(f"ds_read_b64 {TR(56,2)}, {sa}")
        for t in range(14): A(f"ds_read_b128 {TR(4*t,4)}, {xa} offset:{t*64}")
        red = [f"v_add_f32_dpp {s1}, {T(56)}, {T(56)} row_ror:8 {DPP}", f"v_add_f32_dpp {s2}, {T(57)}, {T(57)} row_ror:8 {DPP}"]
        for sh in (4, 2, 1):
            red += [f"v_add_f32_dpp {s1}, {s1}, {s1} row_ror:{sh} {DPP}", f"v_add_f32_dpp {s2}, {s2}, {s2} row_ror:{sh} {DPP}"]
        red += [f"v_mov_b32 {t1}, {s1}", f"v_mov_b32 {t2}, {s2}", f"v_permlane32_swap_b32 {s1}, {t1}", f"v_permlane32_swap_b32 {s2}, {t2}",
                f"v_add_f32 {s1}, {s1}, {t1}", f"v_add_f32 {s2}, {s2}, {t2}"]
        red += self.ln_scalars(s1, s2, scale)
        for t in range(14):
            if t in (0, 4, 8): A(f"s_waitcnt lgkmcnt({max(13 - t - 3, 0)})")
            if t == 12: A("s_waitcnt lgkmcnt(0)")
            A(f"v_mfma_f32_16x16x32_bf16 {D}, {TR(4*t,4)}, {WR(4*t,4)}, {'0' if t == 0 else D}")
            n = 2 if t % 2 == 0 else 1
            while n and red: A(red.pop(0)); n -= 1
        for s in red: A(s)
        self.fst(4)
        self.ln_finish(s1, s2)

    def ld_setup(self):
        A = self.A
        vK, vV = X(18), X(19)
        A(f"v_and_b32 {X(8)}, 15, {LANE}"); A(f"v_lshrrev_b32 {X(9)}, 4, {LANE}")
        A(f"v_and_b32 {vK}, 3, {LANE}"); A(f"v_lshlrev_b32 {vK}, 4, {vK}"); A(f"v_lshl_add_u32 {vK}, {X(9)}, 6, {vK}")
        A(f"v_bfe_u32 {TMP}, {LANE}, 2, 2"); A(f"v_lshl_add_u32 {vK}, {TMP}, 11, {vK}")
        A(f"v_lshlrev_b32 {vV}, 11, {X(9)}"); A(f"v_lshl_add_u32 {vV}, {X(8)}, 4, {vV}")
    def throttle(self, win):
        st = self.o.wstep
        if self.ob + 1 > win:
            self.A(f"s_waitcnt vmcnt({win - st})"); self.ob = win - st
        self.ob += 1
    def ktile(self, tau, win):
        A = self.A; f = " nt" if self.o.nt else ""
        A(f"s_add_u32 s68, {sTILE}, {tau*262144}")
        for t in range(8):
            n = tau * 8 + t
            self.throttle(win)
            A(f"buffer_load_dwordx4 a[{4*n}:{4*n+3}], {X(19) if 'kv' in self.o.exp else X(18)}, s[8:11], s68 offen offset:{(t//2)*512 + (t%2)*256}{f}")
    def vtile(self, tau, win, va=None):
        A = self.A; f = " nt" if self.o.nt else ""
        va = va or X(19)
        A(f"s_add_u32 s68, {sTILE}, {tau*262144}")
        for t in range(8):
            n = tau * 8 + t
            imm = (t // 2) * 512 + (t % 2) * 256
            self.throttle(win)
            if n < 2 * NLDS:
                A(f"s_add_u32 m0, {sM0B}, {n*1024 - imm}")
                A(f"buffer_load_dwordx4 {va}, s[12:15], s68 offen offset:{imm}{f} lds")
            else:
                m = n - 2 * NLDS
                A(f"buffer_load_dwordx4 {VRR(4*m,4)}, {va}, s[12:15], s68 offen offset:{imm}{f}")
    def arrive(self):
        A = self.A
        A("s_getreg_b32 s68, hwreg(HW_REG_XCC_ID, 0, 4)"); A("s_and_b32 s68, s68, 7"); A("s_mul_i32 s68, s68, 6")
        A("s_lshl_b64 s[78:79], 1, s68"); A("s_or_b32 s79, s79, 0x01000000")
        A(f"v_mov_b32 {X(10)}, s78"); A(f"v_mov_b32 {X(11)}, s79")
        A(f"s_lshl_b32 s69, {sGI}, 5"); A(f"v_mov_b32 {X(9)}, s69")
        A("s_mov_b64 exec, 1")
        A(f"global_atomic_add_x2 {X(9)}, {XR(10,2)}, {sDBG} sc1")
        A("s_mov_b64 exec, -1")
    def early_q(self):
        A = self.A
        self.colsum()
        s1a, s2a, s1b, s2b = X(12), X(13), X(14), X(15)
        for (base, s1, s2) in ((56, s1a, s2a), (60, s1b, s2b)):
            A(f"v_mov_b32 {s1}, 0"); A(f"v_mov_b32 {s2}, 0")
            for k in range(4):
                A(f"v_lshlrev_b32 {X(8)}, 16, {T(base+k)}"); A(f"v_and_b32 {X(9)}, 0xffff0000, {T(base+k)}")
                A(f"v_add_f32 {s1}, {s1}, {X(8)}"); A(f"v_fmac_f32 {s2}, {X(8)}, {X(8)}")
                A(f"v_add_f32 {s1}, {s1}, {X(9)}"); A(f"v_fmac_f32 {s2}, {X(9)}, {X(9)}")
        for sh in (8, 4, 2, 1):
            for r in (s1a, s2a, s1b, s2b): A(f"v_add_f32_dpp {r}, {r}, {r} row_ror:{sh} {DPP}")
        for swap in ("v_permlane16_swap_b32", "v_permlane32_swap_b32"):
            for r in (s1a, s2a, s1b, s2b):
                A(f"v_mov_b32 {X(8)}, {r}"); A(f"{swap} {r}, {X(8)}"); A(f"v_add_f32 {r}, {r}, {X(8)}")
        A(f"v_cndmask_b32 {s1a}, {s1a}, {s1b}, {sSEL}"); A(f"v_cndmask_b32 {s2a}, {s2a}, {s2b}, {sSEL}")
        for s in self.ln_scalars(s1a, s2a, QSCALE): A(s)
    def early_q2(self):
        A = self.A
        s1a, s2a = X(12), X(13)
        D = XR(0, 4)
        for t in range(14):
            A(f"v_mfma_f32_16x16x32_bf16 {D}, {TR(4*t,4)}, {WR(4*t,4)}, {'0' if t == 0 else D}")
        self.ln_finish(s1a, s2a)
        self.pack_pair(X(4), X(4), X(6))
        A(f"v_mov_b32 {X(5)}, {sTAG}")
        A(f"v_bfe_u32 {X(7)}, {LANE}, 4, 1"); A(f"v_lshlrev_b32 {X(7)}, 11, {X(7)}"); A(f"v_and_b32 {X(8)}, 15, {LANE}"); A(f"v_lshl_add_u32 {X(7)}, {X(8)}, 2, {X(7)}")
        A(f"s_lshl_b32 s68, {sSIG}, 6"); A(f"v_add_u32 {X(7)}, s68, {X(7)}")
        A(f"s_lshl_b32 s68, {sGI}, 12"); A(f"s_add_u32 s68, s68, {QTOFF}"); A(f"s_add_u32 s70, s20, s68"); A("s_addc_u32 s71, s21, 0")
        self.set_exec(0x55555555, 0)
        A(f"global_store_dwordx2 {X(7)}, {XR(4,2)}, {SA} sc1")
        A("s_mov_b64 exec, -1")

    def stream(self):
        A = self.A; win = self.o.win
        k0 = self.o.k0
        self.ob = 0
        self.kpos(k0, 64)
        A("s_waitcnt vmcnt(8) lgkmcnt(0)")
        self.stamp(1)
        A("s_barrier")
        A(f"s_cmp_eq_u32 {sWAVE}, 3"); A("s_cbranch_scc0 L_noarr")
        self.arrive()
        A("L_noarr:")
        self.ob = 0
        self.kpos(k0 + 1, 64)
        self.tr_reads()
        A("s_barrier")
        self.kpos(k0 + 2, 64)
        A(f"s_cmp_eq_u32 {sROLE}, {ROLE_GU}"); A("s_cbranch_scc0 L_nocs")
        self.colsum()
        A("L_nocs:")
        A(f"s_cmp_eq_u32 {sROLE}, {ROLE_WQ}"); A("s_cbranch_scc0 L_noeq")
        self.early_q()
        A("L_noeq:")
        nx = k0 + 3
        if self.o.esplit:
            self.kpos(nx, 64); nx += 1
        A(f"s_cmp_eq_u32 {sROLE}, {ROLE_WQ}"); A("s_cbranch_scc0 L_noeq2")
        self.early_q2()
        A("L_noeq2:")
        self.stamp(2)
        self.ob = 8 * (nx - k0) + 2
        tp = nx
        for tau in range(tp, 8): self.kpos(tau, win)
        A(f"s_lshl_b32 s68, {sGI}, 12"); A(f"s_add_u32 s68, s68, {QTOFF}"); A(f"s_add_u32 s70, s20, s68"); A("s_addc_u32 s71, s21, 0")
        A(f"s_lshl_b32 s68, {sB}, 11"); A(f"s_lshl_b32 s78, {sHL}, 10"); A("s_add_u32 s68, s68, s78"); A(f"v_add_u32 {X(14)}, s68, {L16}")
        A(f"global_load_dwordx4 {XR(10,4)}, {X(14)}, {SA} sc1")
        for tau in range(self.o.vdist): self.vtile(tau, 64)
        self.stamp(5)
        self.dstamp(4)

    def bar_check_finish(self):
        A = self.A
        A(f"s_cmp_eq_u32 {sLAYER}, 0"); A("s_cbranch_scc0 L_gb_done")
        A("s_mov_b64 exec, 0xff")
        A("L_gb:")
        A(f"v_lshrrev_b32 {TMP}, 24, {WBAR1}"); A(f"v_cmp_ne_u32 vcc, 32, {TMP}")
        A("s_cbranch_vccz L_gb_d")
        A(f"s_cmp_eq_u32 {sBUD}, 0"); A("s_cbranch_scc1 L_gb_d"); A(f"s_sub_u32 {sBUD}, {sBUD}, 1"); A("s_sleep 4")
        A(f"v_and_b32 {TMP}, 7, {LANE}"); A(f"v_lshlrev_b32 {TMP}, 5, {TMP}")
        A(f"global_load_dwordx2 {WBAR}, {TMP}, {sDBG} sc1"); A("s_waitcnt vmcnt(0)")
        A("s_branch L_gb")
        A("L_gb_d:")
        A("s_mov_b64 exec, -1")
        A("s_getreg_b32 s68, hwreg(HW_REG_XCC_ID, 0, 4)"); A("s_and_b32 s68, s68, 7"); A("s_mul_i32 s68, s68, 6")
        A("s_lshl_b64 s[78:79], 32, s68"); A("s_or_b32 s79, s79, 0x20000000")
        A(f"v_readlane_b32 s68, {WBAR0}, {sGI}"); A(f"v_readlane_b32 s69, {WBAR1}, {sGI}")
        A("s_cmp_eq_u64 s[68:69], s[78:79]"); A(f"s_cselect_b32 {sMODE}, 1, 0")
        if self.o.slow: A(f"s_mov_b32 {sMODE}, 0")
        A("L_gb_done:")

    def att_setup(self):
        A = self.A
        mk = [X(16 + k) for k in range(4)]
        A(f"v_and_b32 {TMP}, 1, {LANE}"); A(f"v_lshlrev_b32 {TMP}, 4, {TMP}"); A(f"v_mov_b32 {X(9)}, 0xffff"); A(f"v_lshlrev_b32 {X(9)}, {TMP}, {X(9)}")
        for k, pr in enumerate((sMA, "s[56:57]", "s[58:59]", "s[62:63]")):
            A(f"v_cndmask_b32 {mk[k]}, 0, {X(9)}, {pr}")
        A(f"v_lshrrev_b32 {X(8)}, 4, {LANE}"); A(f"v_lshlrev_b32 {X(8)}, 11, {X(8)}"); A(f"v_and_b32 {TMP}, 15, {LANE}"); A(f"v_lshl_add_u32 {X(8)}, {TMP}, 4, {X(8)}")
        for k in range(16): A(f"v_mov_b32 {T(16+k)}, 0")

    def get_q(self):
        A = self.A
        self.att_setup()
        qa = T(62)
        A(f"v_lshrrev_b32 {qa}, 4, {LANE}"); A(f"v_lshlrev_b32 {qa}, 6, {qa}"); A(f"v_and_b32 {TMP}, 3, {LANE}"); A(f"v_lshl_add_u32 {qa}, {TMP}, 4, {qa}")
        A(f"v_add_u32 {qa}, {LDS_QL}, {qa}")
        A(f"s_cmp_eq_u32 {sLAYER}, 0"); A("s_cbranch_scc0 L_q1")
        A(f"s_waitcnt vmcnt({8*self.o.vdist})")
        A("L_q0:")
        A(f"v_xor_b32 {X(15)}, {sTAG}, {X(11)}"); A(f"v_xor_b32 {X(9)}, {sTAG}, {X(13)}"); A(f"v_or_b32 {X(15)}, {X(15)}, {X(9)}")
        A(f"v_cmp_ne_u32 vcc, 0, {X(15)}")
        A("s_cbranch_vccz L_q0_d")
        A(f"s_cmp_eq_u32 {sBUD}, 0"); A("s_cbranch_scc1 L_q0_d"); A(f"s_sub_u32 {sBUD}, {sBUD}, 1")
        A(f"global_load_dwordx4 {XR(10,4)}, {X(14)}, {SA} sc1"); A("s_waitcnt vmcnt(0)")
        A("s_branch L_q0")
        A("L_q0_d:")
        A(f"v_mov_b32 {X(11)}, {X(12)}")
        A(f"v_lshlrev_b32 {X(9)}, 3, {LANE}"); A(f"v_add_u32 {X(9)}, {LDS_QL}, {X(9)}")
        A(f"ds_write_b64 {X(9)}, {XR(10,2)}")
        self.stamp(4)
        A("s_waitcnt lgkmcnt(0)")
        A("s_branch L_qlds")
        A("L_q1:")
        A(f"s_cmp_eq_u32 {sWAVE}, 0"); A("s_cbranch_scc0 L_q1b")
        self.gbase(SA, R_Q, 1)
        A(f"s_lshl_b32 s68, {sB}, 10"); A(f"s_lshl_b32 s78, {sHL}, 9"); A("s_add_u32 s68, s68, s78"); A(f"v_add_u32 {X(9)}, s68, {L16}")
        A(f"v_add_u32 {X(14)}, {LDS_QL}, {L16}")
        for _ in range(self.o.qpre // 120): A("s_sleep 120")
        if self.o.qpre % 120: A(f"s_sleep {self.o.qpre % 120}")
        self.set_exec(0xFFFFFFFF, 0)
        NS = self.o.qsets
        qs = [(TR(0, 4), [T(0), T(1), T(2), T(3)]), (TR(4, 4), [T(4), T(5), T(6), T(7)])]
        for k in range(NS - 1): A(f"global_load_dwordx4 {qs[k][0]}, {X(9)}, {SA} sc1")
        A("L_q1p:")
        for k in range(NS):
            A(f"global_load_dwordx4 {qs[(k + NS - 1) % NS][0]}, {X(9)}, {SA} sc1")
            A(f"s_waitcnt vmcnt({NS-1})")
            for s in self.maxops(X(15), qs[k][1]): A(s)
            A(f"v_cmp_eq_u32 vcc, -1, {X(15)}")
            A(f"s_cbranch_vccz L_q1_ok{k}")
        A(f"s_cmp_eq_u32 {sBUD}, 0"); A("s_cbranch_scc1 L_q1_ok0"); A(f"s_sub_u32 {sBUD}, {sBUD}, 1")
        if self.o.qsleep: A(f"s_sleep {self.o.qsleep}")
        A("s_branch L_q1p")
        for k in reversed(range(NS)):
            A(f"L_q1_ok{k}:")
            A(f"ds_write_b128 {X(14)}, {qs[k][0]}")
            if k != 0: A("s_branch L_q1_w")
        A("L_q1_w:")
        A("s_mov_b64 exec, -1")
        A("s_waitcnt lgkmcnt(0)")
        A("L_q1b:")
        A("s_barrier")
        A("s_waitcnt vmcnt(0)")
        A("L_qlds:")
        self.set_exec(0x00FF00FF, 0x00FF00FF)
        for t in range(2): A(f"ds_read_b128 {TR(16+4*t,4)}, {qa} offset:{t*256}")
        self.set_exec(0xFF00FF00, 0xFF00FF00)
        for t in range(2): A(f"ds_read_b128 {TR(24+4*t,4)}, {qa} offset:{t*256}")
        A("s_mov_b64 exec, -1")
        A(f"v_add_u32 {X(13)}, {sM0B}, {L16}")
        A(f"s_waitcnt vmcnt({8*self.o.vdist})")

    def attention(self):
        A = self.A
        mk = [X(16 + k) for k in range(4)]
        A("s_waitcnt lgkmcnt(0)")
        self.fst(0, "att")
        m, m2 = X(14), X(15)
        va = X(13)
        Dq = lambda P: 40 + 4 * (P % 4)
        M1, M2, M3 = "s[48:49]", "s[50:51]", "s[52:53]"
        S = lambda P: T(P)
        QL = [TR(16, 4), TR(20, 4)]; QH = [TR(24, 4), TR(28, 4)]
        def c1(P): return f"v_cndmask_b32 {S(P)}, {T(Dq(P))}, {T(Dq(P)+1)}, {M1}"
        def c2(P): return f"v_cndmask_b32 {S(P)}, {S(P)}, {T(Dq(P)+2)}, {M2}"
        def c3(P): return f"v_cndmask_b32 {S(P)}, {S(P)}, {T(Dq(P)+3)}, {M3}"
        def d1(P): return f"v_add_f32_dpp {S(P)}, {S(P)}, {S(P)} quad_perm:[1,0,3,2] {DPP}"
        def d2(P): return f"v_add_f32_dpp {S(P)}, {S(P)}, {S(P)} quad_perm:[2,3,0,1] {DPP}"
        ok = lambda P: 0 <= P < 16
        for P in range(16 + 4):
            D = TR(Dq(P), 4); G = 2 * P
            if ok(P): A(f"v_mfma_f32_16x16x32_bf16 {D}, a[{8*G}:{8*G+3}], {QL[0]}, 0")
            if ok(P - 2): A(c1(P - 2))
            if ok(P - 3): A(d1(P - 3))
            if ok(P): A(f"v_mfma_f32_16x16x32_bf16 {D}, a[{8*G+4}:{8*G+7}], {QL[1]}, {D}")
            if ok(P - 2): A(c2(P - 2))
            if ok(P): A(f"v_mfma_f32_16x16x32_bf16 {D}, a[{8*G+8}:{8*G+11}], {QH[0]}, {D}")
            if ok(P - 2): A(c3(P - 2))
            if ok(P - 3): A(d2(P - 3))
            if ok(P): A(f"v_mfma_f32_16x16x32_bf16 {D}, a[{8*G+12}:{8*G+15}], {QH[1]}, {D}")
            g4 = P - 4
            if ok(g4) and g4 % 2 == 1:
                if g4 == 1: A(f"v_max_f32 {m}, {S(0)}, {S(1)}")
                else: A(f"v_max3_f32 {m}, {m}, {S(g4-1)}, {S(g4)}")
        self.stamp(7)
        self.fst(1, "att")
        l = X(15)
        acc = [[XR(0, 4), XR(4, 4)], [TR(16, 4), TR(20, 4)]]
        Bs = [TR(32, 4), TR(36, 4)]; Bb = [32, 36]
        stg = [24, 40, 48, 56]
        VD = self.o.vdist
        vV = X(8)
        CHK_AT = 4 - VD if VD <= 4 else 0
        CHK_TILE = CHK_AT + VD
        def younger(tile, at_tile):
            last_issued = min(at_tile + VD, 7)
            n = 8 * (last_issued - tile)
            if tile <= CHK_TILE and at_tile >= CHK_AT: n += 1
            return n
        def tile_issue(tau):
            t2 = tau + VD
            if t2 > 7: return
            lab = A.label("VI")
            A(f"s_cmp_eq_u32 {sLAYER}, 0"); A(f"s_cbranch_scc0 {lab}")
            self.ob = 0
            self.vtile(t2, 64, vV)
            if tau == CHK_AT:
                A(f"v_and_b32 {TMP}, 7, {LANE}"); A(f"v_lshlrev_b32 {TMP}, 5, {TMP}")
                A("s_mov_b64 exec, 0xff")
                A(f"global_load_dwordx2 {WBAR}, {TMP}, {sDBG} sc1")
                A("s_mov_b64 exec, -1")
            A(f"{lab}:")
        DIST = 3
        lds_fifo = []
        def lds_issue(q, at_tile):
            if q % 4 == 0: A(f"s_waitcnt vmcnt({younger(q // 4, at_tile)})")
            b = stg[q % 4]
            A(f"ds_read_b128 {TR(b,4)}, {va} offset:{q*2048}"); A(f"ds_read_b128 {TR(b+4,4)}, {va} offset:{q*2048+1024}")
            lds_fifo.append(q)
        def pre(P):
            s = S(P); bb = Bb[P % 2]; pk = X(12) if P % 2 == 0 else X(9)
            return [f"v_sub_f32 {s}, {s}, {m}", f"v_exp_f32 {s}, {s}"], [f"v_cvt_pk_bf16_f32 {pk}, {s}, {s}", (f"v_add_f32 {l}, {l}, {s}" if P else f"v_mov_b32 {l}, {s}")] + [f"v_and_b32 {T(bb+k)}, {mk[k]}, {pk}" for k in range(4)]
        A(f"v_max_f32_dpp {m}, {m}, {m} row_ror:8 {DPP}")
        tile_issue(0)
        A(f"v_mov_b32 {m2}, {m}")
        for q in range(DIST): lds_issue(q, 0)
        A(f"v_permlane16_swap_b32 {m}, {m2}"); A(f"v_max_f32 {m}, {m}, {m2}")
        A(f"v_mov_b32 {m2}, {m}"); A(f"v_permlane32_swap_b32 {m}, {m2}"); A(f"v_max_f32 {m}, {m}, {m2}")
        a, b_ = pre(0)
        for s in a + b_: A(s)
        a, _ = pre(1)
        for s in a: A(s)
        def src(q):
            if q < NLDS:
                b = stg[q % 4]; return TR(b, 4), TR(b + 4, 4)
            mm = (q - NLDS) * 8; return VRR(mm, 4), VRR(mm + 4, 4)
        def before_group(q):
            tau = q // 4
            if q % 4 == 0 and q > 0: tile_issue(tau)
            if q + DIST < NLDS: lds_issue(q + DIST, tau)
            if q < NLDS:
                after = len(lds_fifo) - 1 - lds_fifo.index(q)
                A(f"s_waitcnt lgkmcnt({2 * after})")
            else:
                if q >= 28: A(f"s_waitcnt vmcnt({(31 - q) * 2})")
                elif q == NLDS or q % 4 == 0: A(f"s_waitcnt vmcnt({younger(tau, tau)})")
            if q == 24:
                self.bar_check_finish()
                A(f"v_lshrrev_b32 {X(8)}, 4, {LANE}"); A(f"v_lshlrev_b32 {X(8)}, 7, {X(8)}"); A(f"v_and_b32 {TMP}, 15, {LANE}"); A(f"v_lshl_add_u32 {X(8)}, {TMP}, 4, {X(8)}")
                A(f"s_lshl_b32 s68, {sWAVE}, 10"); A(f"s_add_u32 s68, s68, {LDS_OP}"); A(f"v_add_u32 {X(8)}, s68, {X(8)}")
                A(f"s_lshl_b32 s68, {sWAVE}, 3"); A(f"s_add_u32 s68, s68, {LDS_MLP}"); A(f"v_mov_b32 {X(10)}, s68")
        for P in range(16):
            B = Bs[P % 2]
            nb = pre(P + 1)[1] if P + 1 < 16 else []
            na = pre(P + 2)[0] if P + 2 < 16 else []
            if 2 * P == 18 or (2 * P == NLDS + 1 - 2): pass
            if 2 * P >= NLDS and 2 * P - 2 < NLDS: self.fst(2, "att")
            qe, qo = 2 * P, 2 * P + 1
            before_group(qe)
            a0, a1 = src(qe)
            A(f"v_mfma_f32_16x16x32_bf16 {acc[0][0]}, {a0}, {B}, {acc[0][0] if P else '0'}")
            for s_ in nb[:2]: A(s_)
            A(f"v_mfma_f32_16x16x32_bf16 {acc[0][1]}, {a1}, {B}, {acc[0][1] if P else '0'}")
            for s_ in nb[2:4]: A(s_)
            before_group(qo)
            a0, a1 = src(qo)
            A(f"v_mfma_f32_16x16x32_bf16 {acc[1][0]}, {a0}, {B}, {acc[1][0] if P else '0'}")
            for s_ in nb[4:6]: A(s_)
            A(f"v_mfma_f32_16x16x32_bf16 {acc[1][1]}, {a1}, {B}, {acc[1][1] if P else '0'}")
            for s_ in na: A(s_)
        self.fst(3, "att")
        self.stamp(8)
        self.dstamp(5, layer=0); self.dstamp(7, layer=1)
        l2 = X(9)
        A(f"v_add_f32_dpp {l}, {l}, {l} row_ror:8 {DPP}")
        A(f"v_mov_b32 {l2}, {l}"); A(f"v_permlane16_swap_b32 {l}, {l2}"); A(f"v_add_f32 {l}, {l}, {l2}")
        A(f"v_mov_b32 {l2}, {l}"); A(f"v_permlane32_swap_b32 {l}, {l2}"); A(f"v_add_f32 {l}, {l}, {l2}")
        for k in range(8): A(f"v_add_f32_dpp {X(k)}, {T(16+k)}, {X(k)} row_ror:8 {DPP}")
        self.set_exec(0x00FF00FF, 0x00FF00FF)
        A(f"ds_write_b128 {X(8)}, {XR(0,4)}"); A(f"ds_write_b128 {X(8)}, {XR(4,4)} offset:512")
        A("s_mov_b64 exec, 1")
        A(f"ds_write_b64 {X(10)}, {XR(14,2)}")
        A("s_mov_b64 exec, -1")
        A("s_waitcnt lgkmcnt(0)")
        A("s_barrier")
        self.fst(4, "att")
        self.stamp(9)

    def combine_publish(self):
        A = self.A
        A(f"v_add_u32 {X(8)}, {LDS_OP}, {L16}")
        for w in range(4): A(f"ds_read_b128 {TR(4*w,4)}, {X(8)} offset:{w*1024}")
        A(f"v_mov_b32 {X(9)}, {LDS_MLP}")
        A(f"ds_read_b128 {TR(16,4)}, {X(9)}"); A(f"ds_read_b128 {TR(20,4)}, {X(9)} offset:16")
        self.gbase(SA, R_O); self.gbase(SB, R_ML)
        a = X(10)
        A(f"v_lshrrev_b32 {a}, 3, {LANE}"); A(f"v_lshlrev_b32 {a}, 10, {a}")
        A(f"v_bfe_u32 {X(11)}, {LANE}, 1, 2"); A(f"v_lshl_add_u32 {a}, {X(11)}, 8, {a}")
        A(f"v_and_b32 {X(11)}, 1, {LANE}"); A(f"v_lshl_add_u32 {a}, {X(11)}, 3, {a}")
        A(f"s_lshl_b32 s68, {sB}, 3"); A(f"s_add_u32 s68, s68, {sSP}"); A("s_lshl_b32 s68, s68, 4"); A(f"s_lshl_b32 s78, {sHL}, 13"); A("s_add_u32 s68, s68, s78")
        A(f"v_add_u32 {a}, s68, {a}")
        A(f"s_lshl_b32 s68, {sHL}, 7"); A(f"s_lshl_b32 s78, {sB}, 6"); A("s_add_u32 s68, s68, s78"); A(f"s_lshl_b32 s78, {sSP}, 3"); A("s_add_u32 s68, s68, s78")
        A(f"v_mov_b32 {X(11)}, s68")
        M = T(24); f = [T(25 + w) for w in range(4)]; Lr = T(29)
        ms = [T(16), T(18), T(20), T(22)]; ls = [T(17), T(19), T(21), T(23)]
        A("s_waitcnt lgkmcnt(0)")
        A(f"v_max3_f32 {M}, {ms[0]}, {ms[1]}, {ms[2]}"); A(f"v_max_f32 {M}, {M}, {ms[3]}")
        for w in range(4): A(f"v_sub_f32 {f[w]}, {ms[w]}, {M}")
        for w in range(4): A(f"v_exp_f32 {f[w]}, {f[w]}")
        for r in range(4): A(f"v_mul_f32 {T(32+r)}, {f[0]}, {T(r)}")
        for w in range(1, 4):
            for r in range(4): A(f"v_fmac_f32 {T(32+r)}, {f[w]}, {T(4*w+r)}")
        A(f"v_cvt_pk_bf16_f32 {T(36)}, {T(32)}, {T(33)}"); A(f"v_cvt_pk_bf16_f32 {T(37)}, {T(34)}, {T(35)}")
        self.pub(f"global_store_dwordx2 {a}, {TR(36,2)}, {SA}")
        A(f"v_mul_f32 {T(39)}, {f[0]}, {ls[0]}")
        for w in range(1, 4): A(f"v_fmac_f32 {T(39)}, {f[w]}, {ls[w]}")
        A(f"v_mov_b32 {T(38)}, {M}")
        A("s_mov_b64 exec, 1")
        self.pub(f"global_store_dwordx2 {X(11)}, {TR(38,2)}, {SB}")
        A("s_mov_b64 exec, -1")

    def stage_wo(self):
        A = self.A
        self.gbase(SA, R_O); self.gbase(SC_, R_ML)
        A(f"s_lshl_b32 s68, {sWAVE}, 12"); A("s_add_u32 s70, s70, s68"); A("s_addc_u32 s71, s71, 0")
        a = X(16)
        A(f"v_lshrrev_b32 {a}, 5, {LANE}"); A(f"v_lshlrev_b32 {a}, 6, {a}")
        A(f"v_bfe_u32 {TMP}, {LANE}, 4, 1"); A(f"v_lshl_add_u32 {a}, {TMP}, 5, {a}")
        A(f"v_and_b32 {TMP}, 3, {LANE}"); A(f"v_lshl_add_u32 {a}, {TMP}, 3, {a}")
        A(f"s_lshr_b32 s68, {sWAVE}, 1"); A("s_lshl_b32 s68, s68, 7"); A(f"v_add_u32 {a}, s68, {a}")
        wa, ra = X(17), X(18)
        A(f"v_bfe_u32 {wa}, {LANE}, 4, 1"); A(f"v_lshlrev_b32 {wa}, 7, {wa}"); A(f"v_lshrrev_b32 {TMP}, 5, {LANE}"); A(f"v_lshl_add_u32 {wa}, {TMP}, 6, {wa}")
        A(f"v_and_b32 {TMP}, 15, {LANE}"); A(f"v_lshl_add_u32 {wa}, {TMP}, 2, {wa}")
        A(f"s_lshl_b32 s68, {sWAVE}, 9"); A(f"s_add_u32 s68, s68, {LDS_RED}"); A(f"v_add_u32 {wa}, s68, {wa}")
        A(f"v_lshrrev_b32 {ra}, 5, {LANE}"); A(f"v_lshlrev_b32 {ra}, 7, {ra}"); A(f"v_and_b32 {TMP}, 31, {LANE}"); A(f"v_lshl_add_u32 {ra}, {TMP}, 2, {ra}")
        A(f"s_and_b32 s68, {sWAVE}, 1"); A("s_lshl_b32 s68, s68, 8"); A(f"s_add_u32 s68, s68, {LDS_RED}"); A(f"v_add_u32 {ra}, s68, {ra}")
        A(f"s_cmp_ge_u32 {sWAVE}, 2"); A("s_cbranch_scc0 L_wo_nors")
        self.gbase(SD, R_X2, 0)
        A(f"s_cmp_eq_u32 {sLAYER}, 0"); A("s_cselect_b32 s64, s4, s64"); A("s_cselect_b32 s65, s5, s65")
        self.rs_setup()
        A(f"v_mov_b32 {X(13)}, {CS}")
        A(f"s_cmp_eq_u32 {sLAYER}, 0"); A("s_cbranch_scc1 L_wo_nors")
        A(f"global_load_ushort {X(13)}, {X(10)}, {SD} sc1")
        A("L_wo_nors:")
        self.cbase(SB, 0, consumer=False)
        self.p_store_addr(X(9))
        mv, lv = T(16), T(17)
        D = [TR(20 + 4 * nt, 4) for nt in range(4)]
        chk, M, t1, e, w = T(36), T(37), T(38), T(39), T(40)
        A(f"v_mov_b32 {chk}, 0")
        self.fst(0, "wo")
        if self.o.fine == "wo": A("s_mov_b32 s99, 0")
        if self.o.gate:
            self.set_exec(0x000F000F, 0x000F000F)
            A("L_wog:")
            A(f"global_load_dwordx2 {TR(16,2)}, {a}, {SC_} sc1"); A("s_waitcnt vmcnt(0)")
            A(f"v_max_u32 {chk}, {mv}, {lv}")
            self.poll_tail(chk, "L_wog", "L_wog_d", sleep=self.o.gatesleep)
            A("L_wog_d:")
        if self.o.wopre:
            A(f"s_cmp_eq_u32 {sWAVE}, 0"); A("s_cbranch_scc1 L_wo"); A(f"s_sleep {self.o.wopre}")
        A("L_wo:")
        if self.o.fine == "wo": A("s_add_u32 s99, s99, 1")
        self.fst(1, "wo")
        self.set_exec(0x000F000F, 0x000F000F)
        A(f"global_load_dwordx2 {TR(16,2)}, {a}, {SC_} sc1")
        A("s_mov_b64 exec, -1")
        for tt in range(4):
            A(f"global_load_dwordx4 {TR(4*tt,4)}, {L16}, {SA} offset:{tt*1024} sc1")
        A("s_waitcnt vmcnt(4)")
        self.set_exec(0x000F000F, 0x000F000F)
        A(f"v_max_u32 {chk}, {mv}, {lv}")
        A("s_mov_b64 exec, -1")
        A("s_waitcnt vmcnt(0)")
        self.fst(2, "wo")
        for s in self.maxops(t1, self.chk_regs(T, 0, 4) + [chk]): A(s)
        self.poll_tail(t1, "L_wo", "L_wo_d")
        A("L_wo_d:")
        ops = [f"v_mov_b32_dpp {t1}, {mv} quad_perm:[1,0,3,2] {DPP}", f"v_max_f32 {M}, {mv}, {t1}",
               f"v_mov_b32_dpp {t1}, {M} quad_perm:[2,3,0,1] {DPP}", f"v_max_f32 {M}, {M}, {t1}",
               f"v_mov_b32 {t1}, {M}", f"v_permlane16_swap_b32 {M}, {t1}", f"v_max_f32 {M}, {M}, {t1}",
               f"v_sub_f32 {e}, {mv}, {M}", f"v_exp_f32 {e}, {e}", f"v_mul_f32 {M}, {e}, {lv}",
               f"v_mov_b32_dpp {t1}, {M} quad_perm:[1,0,3,2] {DPP}", f"v_add_f32 {M}, {M}, {t1}",
               f"v_mov_b32_dpp {t1}, {M} quad_perm:[2,3,0,1] {DPP}", f"v_add_f32 {M}, {M}, {t1}",
               f"v_mov_b32 {t1}, {M}", f"v_permlane16_swap_b32 {M}, {t1}", f"v_add_f32 {M}, {M}, {t1}",
               f"v_rcp_f32 {M}, {M}", f"v_mul_f32 {w}, {e}, {M}"]
        for tt in range(4):
            for nt in range(4):
                A(f"v_mfma_f32_16x16x32_bf16 {D[nt]}, {TR(4*tt,4)}, {WR(4*(4*tt+nt),4)}, {'0' if tt == 0 else D[nt]}")
                if ops: A(ops.pop(0))
        for s in ops: A(s)
        acc = [T(41 + nt) for nt in range(4)]
        for r in range(4):
            for nt in range(4):
                op = "v_mul_f32_dpp" if r == 0 else "v_fmac_f32_dpp"
                A(f"{op} {acc[nt]}, {w}, {T(20+4*nt+r)} row_newbcast:{r} {DPP}")
        A(f"v_permlane16_swap_b32 {acc[0]}, {acc[1]}"); A(f"v_permlane16_swap_b32 {acc[2]}, {acc[3]}")
        A(f"v_add_f32 {acc[0]}, {acc[0]}, {acc[1]}"); A(f"v_add_f32 {acc[2]}, {acc[2]}, {acc[3]}")
        self.fst(3, "wo")
        A(f"ds_write_b32 {wa}, {acc[0]}"); A(f"ds_write_b32 {wa}, {acc[2]} offset:256")
        A("s_waitcnt lgkmcnt(0)")
        A("s_barrier")
        self.fst(4, "wo")
        A(f"s_cmp_ge_u32 {sWAVE}, 2"); A("s_cbranch_scc1 L_wo_rs")
        for ww in range(4): A(f"ds_read_b32 {T(ww)}, {ra} offset:{ww*512}")
        A("s_waitcnt lgkmcnt(2)")
        A(f"v_add_f32 {T(0)}, {T(0)}, {T(1)}")
        A("s_waitcnt lgkmcnt(0)")
        A(f"v_add_f32 {T(2)}, {T(2)}, {T(3)}"); A(f"v_add_f32 {T(0)}, {T(0)}, {T(2)}")
        self.p_publish(SB, X(9), T(0), 4)
        self.fst(5, "wo")
        self.stamp(11)
        A("s_branch L_next")
        A("L_wo_rs:")

    def p_addr(self, dst):
        A = self.A; sh = 10 if self.o.playout == 0 else 13
        A(f"v_lshrrev_b32 {dst}, 5, {LANE}"); A(f"v_lshlrev_b32 {dst}, {sh}, {dst}"); A(f"v_and_b32 {TMP}, 31, {LANE}"); A(f"v_lshl_add_u32 {dst}, {TMP}, 2, {dst}")
        A(f"s_and_b32 s68, {sWAVE}, 1"); A(f"s_lshl_b32 s68, s68, {sh+1}"); A(f"v_add_u32 {dst}, s68, {dst}")

    def rs_setup(self):
        A = self.A
        pa, xa, sa = X(8), X(10), X(11)
        A(f"v_lshrrev_b32 {X(12)}, 5, {LANE}"); A(f"s_and_b32 s68, {sWAVE}, 1"); A("s_lshl_b32 s68, s68, 1"); A(f"s_add_u32 s68, s68, {sS4}"); A(f"v_add_u32 {X(12)}, s68, {X(12)}")
        self.p_addr(pa)
        A(f"v_bfe_u32 {TMP}, {LANE}, 4, 1"); A(f"v_mul_u32_u24 {xa}, 896, {TMP}"); A(f"v_lshlrev_b32 {sa}, 8, {TMP}")
        A(f"v_lshl_add_u32 {xa}, {X(12)}, 5, {xa}"); A(f"v_lshl_add_u32 {sa}, {X(12)}, 3, {sa}")
        A(f"v_and_b32 {TMP}, 15, {LANE}"); A(f"v_lshl_add_u32 {xa}, {TMP}, 1, {xa}")
    def stage_rs(self):
        A = self.A
        pa, xa, sa = X(8), X(10), X(11)
        NS = self.o.rsets
        def issue(k):
            for g in range(8): A(f"global_load_dword {T(8*k+g)}, {pa}, {SA} offset:{self.p_poll_off(g)} sc1")
        for k in range(NS - 1): issue(k)
        A("L_rs:")
        for k in range(NS):
            issue((k + NS - 1) % NS)
            A(f"s_waitcnt vmcnt({8*(NS-1)})")
            for s in self.maxops(X(4), [T(8*k+g) for g in range(8)]): A(s)
            A(f"v_cmp_eq_u32 vcc, -1, {X(4)}")
            A(f"s_cbranch_vccz L_rs_ok{k}")
        A(f"s_cmp_eq_u32 {sBUD}, 0"); A("s_cbranch_scc1 L_rs_ok0"); A(f"s_sub_u32 {sBUD}, {sBUD}, 1")
        if self.o.rssleep: A(f"s_sleep {self.o.rssleep}")
        A("s_branch L_rs")
        for k in range(NS):
            A(f"L_rs_ok{k}:")
            b_ = 8 * k
            A(f"v_add_f32 {X(0)}, {T(b_)}, {T(b_+1)}"); A(f"v_add_f32 {X(1)}, {T(b_+2)}, {T(b_+3)}"); A(f"v_add_f32 {X(2)}, {T(b_+4)}, {T(b_+5)}"); A(f"v_add_f32 {X(3)}, {T(b_+6)}, {T(b_+7)}")
            if k != NS - 1: A("s_branch L_rs_d")
        A("L_rs_d:")
        A(f"v_cmp_eq_u32 vcc, 0xffff, {X(13)}")
        A("s_cbranch_vccz L_rsr_d")
        A("L_rsr:")
        A(f"global_load_ushort {X(13)}, {xa}, {SD} sc1"); A("s_waitcnt vmcnt(0)")
        A(f"v_cmp_eq_u32 vcc, 0xffff, {X(13)}")
        A("s_cbranch_vccz L_rsr_d")
        A(f"s_cmp_eq_u32 {sBUD}, 0"); A("s_cbranch_scc1 L_rsr_d"); A(f"s_sub_u32 {sBUD}, {sBUD}, 1")
        A("s_branch L_rsr")
        A("L_rsr_d:")
        A(f"v_add_f32 {X(0)}, {X(0)}, {X(1)}"); A(f"v_add_f32 {X(2)}, {X(2)}, {X(3)}"); A(f"v_lshlrev_b32 {X(6)}, 16, {X(13)}"); A(f"v_add_f32 {X(0)}, {X(0)}, {X(2)}")
        if self.o.round2:
            A(f"v_cvt_pk_bf16_f32 {X(0)}, {X(0)}, {X(0)}"); A(f"v_and_b32 {X(0)}, 0xffff0000, {X(0)}")
        A(f"v_add_f32 {X(0)}, {X(6)}, {X(0)}")
        if self.o.perturb:
            lab = A.label("PT")
            A("s_cmp_eq_u32 s78, 1"); A(f"s_cbranch_scc0 {lab}"); A(f"s_cmp_eq_u32 {sSIG}, 2"); A(f"s_cbranch_scc0 {lab}")
            A("s_mov_b64 exec, 1"); A(f"v_add_f32 {X(0)}, {f32(self.o.perturb)}, {X(0)}"); A("s_mov_b64 exec, -1")
            A(f"{lab}:")
        A(f"v_mov_b32_dpp {X(2)}, {X(0)} quad_perm:[1,0,3,2] {DPP}")
        A(f"v_cvt_pk_bf16_f32 {X(3)}, {X(0)}, {X(0)}")
        A(f"v_cvt_pk_bf16_f32 {X(1)}, {X(0)}, {X(2)}")
        A("s_cmp_eq_u32 s78, 1"); A("s_cbranch_scc1 L_final")
        self.set_exec(0x55555555, 0x55555555)
        self.pub(f"global_store_dword {xa}, {X(1)}, {SB}")
        A("s_mov_b64 exec, -1")
        A(f"v_and_b32 {X(2)}, 0xffff0000, {X(3)}")
        A(f"v_mul_f32 {X(3)}, {X(2)}, {X(2)}")
        for sh in (1, 2, 4, 8):
            for r in (X(2), X(3)): A(f"v_add_f32_dpp {r}, {r}, {r} row_shr:{sh} {DPP}")
        self.set_exec(0x80008000, 0x80008000)
        self.pub(f"global_store_dwordx2 {sa}, {XR(2,2)}, {SC_}")
        A("s_mov_b64 exec, -1")
        self.stamp(12)
        A("s_waitcnt vmcnt(0)")

    def stage_gu(self):
        A = self.A
        self.gbase(SC_, R_H)
        A(f"v_bfe_u32 {X(7)}, {LANE}, 4, 1"); A(f"v_mul_u32_u24 {X(7)}, 448, {X(7)}"); A(f"v_and_b32 {TMP}, 15, {LANE}"); A(f"v_lshl_add_u32 {X(7)}, {TMP}, 1, {X(7)}")
        A(f"s_lshl_b32 s68, {sSIG}, 4"); A(f"v_add_u32 {X(7)}, s68, {X(7)}")
        self.stage_ln(R_X1, R_ST1, None, 1.0, "L_gu", sleep=self.o.lnsleep, pre=self.o.gupre)
        z = X(4)
        A(f"v_cvt_pk_bf16_f32 {z}, {z}, {z}"); A(f"v_and_b32 {z}, 0xffff0000, {z}")
        A(f"v_mov_b32_dpp {X(5)}, {z} row_ror:8 {DPP}")
        A(f"v_max_f32 {z}, 0, {z}"); A(f"v_mul_f32 {z}, {z}, {X(5)}")
        self.pack_pair(X(5), z, X(6))
        self.set_exec(0x00550055, 0)
        self.pub(f"global_store_dword {X(7)}, {X(5)}, {SC_}")
        A("s_mov_b64 exec, -1")
        self.fst(5)
        self.stamp(13)
        A("s_waitcnt vmcnt(0)")

    def dn_fetch(self):
        A = self.A
        A(f"s_cmp_eq_u32 {sWAVE}, 1"); A("s_cbranch_scc0 L_dn_b")
        self.gbase(SA, R_H)
        A(f"v_add_u32 {X(10)}, {LDS_RED}, {L16}")
        if self.o.dnpre: A(f"s_sleep {self.o.dnpre}")
        self.set_exec(0xFFFFFFFF, 0x00FFFFFF)
        NS = self.o.lnsets
        base = [56, 60]
        for k in range(NS - 1): A(f"global_load_dwordx4 {TR(base[k],4)}, {L16}, {SA} sc1")
        A("L_dn:")
        for k in range(NS):
            A(f"global_load_dwordx4 {TR(base[(k + NS - 1) % NS],4)}, {L16}, {SA} sc1")
            A(f"s_waitcnt vmcnt({NS-1})")
            for s in self.maxops(X(11), [T(base[k] + i) for i in range(4)]): A(s)
            A(f"v_cmp_eq_u32 vcc, -1, {X(11)}")
            A(f"s_cbranch_vccz L_dn_ok{k}")
        A(f"s_cmp_eq_u32 {sBUD}, 0"); A("s_cbranch_scc1 L_dn_ok0"); A(f"s_sub_u32 {sBUD}, {sBUD}, 1")
        A("s_branch L_dn")
        for k in reversed(range(NS)):
            A(f"L_dn_ok{k}:")
            A(f"ds_write_b128 {X(10)}, {TR(base[k],4)}")
            if k != 0: A("s_branch L_dn_w")
        A("L_dn_w:")
        A("s_mov_b64 exec, -1")
        A("s_waitcnt lgkmcnt(0)")
        A("L_dn_b:")
        A("s_barrier")
    def stage_dn(self):
        A = self.A
        a = X(8)
        A(f"v_and_b32 {a}, 1, {LANE}"); A(f"v_mul_u32_u24 {a}, 448, {a}"); A(f"v_lshrrev_b32 {TMP}, 4, {LANE}"); A(f"v_lshl_add_u32 {a}, {TMP}, 4, {a}")
        A(f"v_add_u32 {a}, {LDS_RED}, {a}")
        self.cbase(SB, 1, consumer=False)
        self.p_store_addr(X(9))
        self.dn_fetch()
        A(f"s_cmp_ge_u32 {sWAVE}, 2"); A("s_cbranch_scc0 L_dn_nors")
        self.gbase(SD, R_X1)
        self.rs_setup()
        A(f"global_load_ushort {X(13)}, {X(10)}, {SD} sc1")
        A("s_branch L_dn_rs")
        A("L_dn_nors:")
        D = [XR(0, 4), XR(4, 4)]
        for t in range(7): A(f"ds_read_b128 {TR(4*t,4)}, {a} offset:{t*64}")
        for t in range(7):
            if t in (0, 3, 5): A(f"s_waitcnt lgkmcnt({ {0: 4, 3: 2, 5: 0}[t] })")
            for u in range(2):
                A(f"v_mfma_f32_16x16x32_bf16 {D[u]}, {TR(4*t,4)}, {WR(4*(2*t+u),4)}, {'0' if t == 0 else D[u]}")
        A(f"v_permlane16_swap_b32 {X(0)}, {X(1)}"); A(f"v_permlane16_swap_b32 {X(4)}, {X(5)}")
        A(f"v_permlane32_swap_b32 {X(0)}, {X(4)}")
        self.p_publish(SB, X(9), X(0), 0)
        self.stamp(14)
        A("s_waitcnt vmcnt(0)")

    def stage_q2(self):
        A = self.A
        self.gbase(SC_, R_Q, 1)
        A(f"v_bfe_u32 {X(7)}, {LANE}, 4, 1"); A(f"v_lshlrev_b32 {X(7)}, 10, {X(7)}"); A(f"v_and_b32 {TMP}, 15, {LANE}"); A(f"v_lshl_add_u32 {X(7)}, {TMP}, 1, {X(7)}")
        A(f"s_lshl_b32 s68, {sSIG}, 5"); A(f"v_add_u32 {X(7)}, s68, {X(7)}")
        self.stage_ln(R_X2, R_ST2, 0, QSCALE, "L_qx", sleep=self.o.lnsleep, pre=self.o.wqpre)
        self.pack_pair(X(5), X(4), X(6))
        self.set_exec(0x55555555, 0)
        self.pub(f"global_store_dword {X(7)}, {X(5)}, {SC_}")
        A("s_mov_b64 exec, -1")
        self.stamp(15)
        A("s_waitcnt vmcnt(0)")

    def finish(self):
        A = self.A
        if not self.o.prof: return
        A("s_lshl_b32 s68, s2, 2"); A(f"s_add_u32 s68, s68, {sWAVE}"); A("s_lshl_b32 s68, s68, 7"); A(f"v_mov_b32 {X(0)}, s68")
        A("s_mov_b64 exec, 1")
        for k in range(20):
            A(f"v_mov_b32 {X(1)}, s{80+k}"); A(f"global_store_dword {X(0)}, {X(1)}, {sWS} offset:{4*k}")
        for k in range(9):
            A(f"v_mov_b32 {X(1)}, s{36+k}"); A(f"global_store_dword {X(0)}, {X(1)}, {sWS} offset:{80+4*k}")
        A(f"v_mov_b32 {X(1)}, {sMODE}"); A(f"global_store_dword {X(0)}, {X(1)}, {sWS} offset:116")
        A(f"v_mov_b32 {X(1)}, {sBUD}"); A(f"global_store_dword {X(0)}, {X(1)}, {sWS} offset:120")

    def build(self):
        A = self.A; o = self.o
        self.prologue()
        if o.prof:
            for k in range(9): A(f"s_mov_b32 s{36+k}, 0")
        self.stream()
        A("L_layer:")
        self.get_q()
        self.stamp(6)
        self.attention()
        A(f"s_cmp_eq_u32 {sWAVE}, 0"); A("s_cbranch_scc0 L_nocomb")
        self.combine_publish()
        self.stamp(10)
        A("L_nocomb:")
        A(f"s_cmp_eq_u32 {sROLE}, {ROLE_GU}"); A("s_cbranch_scc1 L_gu_s")
        A(f"s_cmp_eq_u32 {sROLE}, {ROLE_DN}"); A("s_cbranch_scc1 L_dn_s")
        A(f"s_cmp_eq_u32 {sROLE}, {ROLE_WQ}"); A("s_cbranch_scc1 L_wq_s")
        A(f"s_cmp_eq_u32 {sROLE}, {ROLE_WO}"); A("s_cbranch_scc0 L_next")
        self.stage_wo()
        self.cbase(SA, 0); self.gbase(SB, R_X1); self.gbase(SC_, R_ST1); A("s_mov_b32 s78, 0")
        if o.rspre1: A(f"s_sleep {o.rspre1}")
        A("L_rs_entry:")
        self.stage_rs()
        self.dstamp(6, layer=0)
        A("s_branch L_next")
        A("L_gu_s:")
        self.stage_gu()
        A("s_branch L_next")
        A("L_dn_s:")
        self.stage_dn()
        A("s_branch L_next")
        A("L_dn_rs:")
        self.cbase(SA, 1); self.gbase(SB, R_X2); self.gbase(SC_, R_ST2); A(f"s_mov_b32 s78, {sLAYER}")
        if o.rspre2: A(f"s_sleep {o.rspre2}")
        A("s_branch L_rs_entry")
        A("L_wq_s:")
        A(f"s_cmp_eq_u32 {sLAYER}, 1"); A("s_cbranch_scc1 L_fin")
        self.stage_q2()
        A("L_next:")
        A(f"s_cmp_eq_u32 {sLAYER}, 1"); A("s_cbranch_scc1 L_fin")
        A(f"s_mov_b32 {sLAYER}, 1")
        A("s_branch L_layer")
        A("L_final:")
        A(f"s_cmp_eq_u32 {sGI}, 0"); A("s_cbranch_scc0 L_fin")
        self.set_exec(0x55555555, 0x55555555)
        A(f"global_store_dword {X(10)}, {X(1)}, {sOUT}")
        A(f"s_cmp_eq_u32 {sSIG}, 2"); A("s_cbranch_scc0 L_noep")
        A("s_mov_b64 exec, 1")
        A(f"v_mov_b32 {X(2)}, {EOFF}"); A(f"v_mov_b32 {X(3)}, {sTAG}")
        A(f"global_store_dword {X(2)}, {X(3)}, {sWS}")
        A("L_noep:")
        A("s_mov_b64 exec, -1")
        A("L_fin:")
        self.dstamp(10)
        self.stamp(16)
        self.finish()
        A("L_end:")
        A("s_endpgm")
        for t in self.tail_code: A(t)
        lines, n = hazard.fix(A.L, verbose=o.verbose)
        A.L = lines
        return A

def main():
    ap = argparse.ArgumentParser()
    ap.add_argument("-o", default="k3.s")
    ap.add_argument("--prof", action="store_true")
    ap.add_argument("--slow", action="store_true")
    ap.add_argument("--nt", type=int, default=1)
    ap.add_argument("--wnt", type=int, default=1)
    ap.add_argument("--win", type=int, default=12)
    ap.add_argument("--winv", type=int, default=60)
    ap.add_argument("--budget", type=int, default=200000)
    ap.add_argument("--gate", type=int, default=0)
    ap.add_argument("--gatesleep", type=int, default=1)
    ap.add_argument("--qsleep", type=int, default=1)
    ap.add_argument("--trypoll", type=int, default=6)
    ap.add_argument("--k0", type=int, default=1)
    ap.add_argument("--prefetch", type=int, default=0)
    ap.add_argument("--rsets", type=int, default=1)
    ap.add_argument("--lnsleep", type=int, default=0)
    ap.add_argument("--playout", type=int, default=0)
    ap.add_argument("--ncopies", type=int, default=8)
    ap.add_argument("--rspre1", type=int, default=10)
    ap.add_argument("--rspre2", type=int, default=12)
    ap.add_argument("--rssleep", type=int, default=0)
    ap.add_argument("--wopre", type=int, default=0)
    ap.add_argument("--gupre", type=int, default=0)
    ap.add_argument("--wqpre", type=int, default=0)
    ap.add_argument("--dnpre", type=int, default=0)
    ap.add_argument("--qpre", type=int, default=0)
    ap.add_argument("--lnsets", type=int, default=2)
    ap.add_argument("--gupf", type=int, default=1)
    ap.add_argument("--gudelay", type=int, default=3)
    ap.add_argument("--wqpf", type=int, default=0)
    ap.add_argument("--wstep", type=int, default=4)
    ap.add_argument("--esplit", type=int, default=1)
    ap.add_argument("--qsets", type=int, default=2)
    ap.add_argument("--pf4", type=int, default=1)
    ap.add_argument("--exp", default="")
    ap.add_argument("--perturb", type=float, default=0.0)
    ap.add_argument("--vdist", type=int, default=3)
    ap.add_argument("--fullcheck", type=int, default=0)
    ap.add_argument("--round2", type=int, default=0)
    ap.add_argument("--stamps", default=None)
    ap.add_argument("--verbose", action="store_true")
    ap.add_argument("--dbgstamps", action="store_true")
    ap.add_argument("--fine", default="")
    o = ap.parse_args()
    g = Gen(o); A = g.build(); A.write(o.o)
    print("wrote", o.o, len(A.L), "lines")
main()
```

```python
import sys, argparse, struct
from asmlib import Asm, NAME
import hazard

GOFF = 0x100000; LSTRIDE = 0x8000
R_Q = 0x0000; R_ML = 0x0800; R_X1 = 0x0A00; R_ST1 = 0x1100; R_H = 0x1300; R_X2 = 0x1800; R_ST2 = 0x1F00; R_O = 0x4000
COFF = GOFF + 0x80000
EOFF = 0x0F0000
QTOFF = 0x0F8000
TAGC = 0x9E3779B9
NLDS = 19
VW = NLDS * 2048
LDS_OP = 4 * VW; LDS_MLP = LDS_OP + 4096; LDS_QL = LDS_MLP + 64; LDS_FLAG = LDS_QL + 512; LDS_RED = LDS_FLAG + 64
assert LDS_RED + 2048 <= 163840
LOG2E = 1.4426950408889634
QSCALE = LOG2E / 16.0
ROLE_WQ, ROLE_WO, ROLE_GU, ROLE_DN, ROLE_NONE = 0, 1, 2, 3, 4

def f32(x): return "0x%08x" % struct.unpack("<I", struct.pack("<f", x))[0]
def X(n): assert 0 <= n < 20; return f"v{4+n}"
def T(n): assert 0 <= n < 64; return f"v{24+n}"
def W(n): assert 0 <= n < 64; return f"v{88+n}"
def VR(n): assert 0 <= n < 104; return f"v{152+n}"
def rng(f, a, n):
    s = f(a); k = int(s[1:]); assert n == 1 or k % 2 == 0, (s, n); return f"{s[0]}[{k}:{k+n-1}]"
def XR(a, n): return rng(X, a, n)
def TR(a, n): return rng(T, a, n)
def WR(a, n): return rng(W, a, n)
def VRR(a, n): return rng(VR, a, n)
LANE = "v0"; CS = "v1"; L16 = "v2"; TMP = "v3"
sM0B = "s3"
sXIN = "s[4:5]"
sOUT = "s[16:17]"; sDBG = "s[18:19]"; sWS = "s[20:21]"; sG = "s[22:23]"; sC = "s[24:25]"
sWAVE = "s26"; sGI = "s27"; sJ = "s28"; sHL = "s29"; sB = "s30"; sSP = "s31"
sMODE = "s32"; sBUD = "s33"; sLAYER = "s34"; sTILE = "s35"
sADV = "s101"; sTAG = "s46"; sROLE = "s6"; sSIG = "s7"; sS4 = "s47"
sSEL = "s[60:61]"
sMA = "s[54:55]"
SA = "s[70:71]"; SB = "s[72:73]"; SC_ = "s[74:75]"; SD = "s[64:65]"
WBAR = "v[14:15]"; WBAR0 = "v14"; WBAR1 = "v15"
DPP = "row_mask:0xf bank_mask:0xf"

class Gen:
    def __init__(self, opt):
        self.o = opt; self.A = Asm(); self.ob = 0; self.tail_code = []
    def stamp(self, k):
        if not self.o.prof: return
        if self.o.stamps is not None and k not in [int(x) for x in self.o.stamps.split(",")]: return
        A = self.A
        A("s_memrealtime s[76:77]"); A("s_waitcnt lgkmcnt(0)")
        if 6 <= k <= 14:
            A(f"s_cmp_eq_u32 {sLAYER}, 0"); A(f"s_cselect_b32 s{80+k}, s76, s{80+k}"); A(f"s_cselect_b32 s{30+k}, s{30+k}, s76")
        else:
            A(f"s_mov_b32 s{80+k}, s76")
    def dstamp(self, word, neg=False, layer=None):
        if not self.o.dbgstamps: return
        A = self.A
        lab = A.label("DS")
        A("s_cmp_eq_u32 s2, 176"); A(f"s_cbranch_scc0 {lab}"); A(f"s_cmp_eq_u32 {sWAVE}, 0"); A(f"s_cbranch_scc0 {lab}")
        if layer is not None:
            A(f"s_cmp_eq_u32 {sLAYER}, {layer}"); A(f"s_cbranch_scc0 {lab}")
        A("s_memrealtime s[76:77]"); A("s_waitcnt lgkmcnt(0)")
        A(f"v_mov_b32 v86, s76"); A(f"v_mov_b32 v87, {4*word}")
        A("s_mov_b64 s[78:79], exec"); A("s_mov_b64 exec, 1")
        A(f"global_store_dword v87, v86, {sDBG}")
        A("s_mov_b64 exec, s[78:79]")
        A(f"{lab}:")
    def fst(self, k, which="ln"):
        if self.o.fine != which: return
        A = self.A
        A("s_memtime s[76:77]"); A("s_waitcnt lgkmcnt(0)"); A(f"s_mov_b32 s{90+k}, s76")
    def gbase(self, dst, off, layer=None):
        A = self.A; d = int(dst[2:dst.index(":")])
        if layer is None:
            A(f"s_mul_i32 s68, {sLAYER}, {LSTRIDE}"); A(f"s_add_u32 s68, s68, {off}")
            A(f"s_add_u32 s{d}, s22, s68")
        else:
            A(f"s_add_u32 s{d}, s22, {off + layer*LSTRIDE}")
        A(f"s_addc_u32 s{d+1}, s23, 0")
    def cbase(self, dst, kind, consumer=True):
        A = self.A; d = int(dst[2:dst.index(":")]); L = self.o.playout
        A(f"s_lshl_b32 s68, {sLAYER}, 19"); A(f"s_lshl_b32 s69, {sS4}, {10 if L == 0 else 13}"); A("s_add_u32 s68, s68, s69")
        if consumer:
            sh = {0: 15, 1: 7, 2: 10}[L]; extra = {0: 0, 1: 4096, 2: 0}[L]
        else:
            sh = {0: 7, 1: 10, 2: 7}[L]; extra = {0: 0, 1: 0, 2: 4096}[L]
        if consumer and self.o.ncopies < 8: A(f"s_and_b32 s69, {sGI}, {self.o.ncopies - 1}"); A(f"s_lshl_b32 s69, s69, {sh}")
        else: A(f"s_lshl_b32 s69, {sGI}, {sh}")
        A("s_add_u32 s68, s68, s69"); A(f"s_add_u32 s68, s68, {kind*0x40000 + extra}")
        A(f"s_add_u32 s{d}, s24, s68"); A(f"s_addc_u32 s{d+1}, s25, 0")
    def p_store_addr(self, dst):
        self.p_addr(dst)
    def p_publish(self, base, vaddr, val, t4):
        A = self.A; d = int(base[2:base.index(":")]); N = self.o.ncopies
        for c in range(N):
            A(f"global_store_dword {vaddr}, {val}, {base} sc1")
            if c != N - 1: A(f"s_add_u32 s{d}, s{d}, 0x8000"); A(f"s_addc_u32 s{d+1}, s{d+1}, 0")
    def p_poll_off(self, g):
        return {0: g * 128, 1: g * 1024 - 4096, 2: g * 128}[self.o.playout]
    def maxops(self, dst, regs, first=True):
        out = []; regs = list(regs)
        if first:
            if len(regs) >= 3: out.append(f"v_max3_u32 {dst}, {regs[0]}, {regs[1]}, {regs[2]}"); regs = regs[3:]
            elif len(regs) == 2: out.append(f"v_max_u32 {dst}, {regs[0]}, {regs[1]}"); regs = []
            else: out.append(f"v_mov_b32 {dst}, {regs[0]}"); regs = []
        while len(regs) >= 2:
            out.append(f"v_max3_u32 {dst}, {dst}, {regs[0]}, {regs[1]}"); regs = regs[2:]
        if regs: out.append(f"v_max_u32 {dst}, {dst}, {regs[0]}")
        return out
    def chk_regs(self, f, base, nload):
        if self.o.fullcheck: return [f(base + k) for k in range(4 * nload)]
        return [f(base + 4 * k) for k in range(nload)]
    def poll_tail(self, chk, loop, done, sleep=0):
        A = self.A
        A(f"v_cmp_eq_u32 vcc, -1, {chk}")
        A(f"s_cbranch_vccz {done}")
        A(f"s_cmp_eq_u32 {sBUD}, 0"); A(f"s_cbranch_scc1 {done}")
        A(f"s_sub_u32 {sBUD}, {sBUD}, 1")
        if sleep: A(f"s_sleep {sleep}")
        A(f"s_branch {loop}")
    def gate(self, base, vaddr, off, dst, lab):
        if not self.o.gate: return
        A = self.A
        A(f"{lab}:")
        A(f"global_load_dword {dst}, {vaddr}, {base} offset:{off} sc1"); A("s_waitcnt vmcnt(0)")
        self.poll_tail(dst, lab, lab + "_d", sleep=self.o.gatesleep)
        A(f"{lab}_d:")
    def pub(self, instr):
        A = self.A
        l1 = A.label("PUBS"); l2 = A.label("PUBD")
        A(f"s_cmp_eq_u32 {sMODE}, 1"); A(f"s_cbranch_scc0 {l1}")
        A(instr); A(f"{l2}:")
        self.tail_code += [f"{l1}:", instr + " sc1", f"s_branch {l2}"]
    def set_exec(self, lo, hi):
        A = self.A
        if lo == 0xFFFFFFFF and hi == 0xFFFFFFFF: A("s_mov_b64 exec, -1"); return
        A(f"s_mov_b32 exec_lo, {hex(lo)}"); A(f"s_mov_b32 exec_hi, {hex(hi)}")
    def ln_addr(self, dst):
        A = self.A
        A(f"v_and_b32 {dst}, 1, {LANE}"); A(f"v_mul_u32_u24 {dst}, 896, {dst}")
        A(f"v_lshrrev_b32 {TMP}, 4, {LANE}"); A(f"v_lshl_add_u32 {dst}, {TMP}, 4, {dst}")
    def xst_addr(self, dst):
        A = self.A
        A(f"v_bfe_u32 {TMP}, {LANE}, 4, 1"); A(f"v_mul_u32_u24 {dst}, 896, {TMP}")
        A(f"v_and_b32 {TMP}, 15, {LANE}"); A(f"v_lshl_add_u32 {dst}, {TMP}, 1, {dst}")
        A(f"s_lshl_b32 s68, {sSIG}, 5"); A(f"v_add_u32 {dst}, s68, {dst}")
    def pack_pair(self, dst, val, tmp):
        A = self.A
        A(f"v_mov_b32_dpp {tmp}, {val} quad_perm:[1,0,3,2] {DPP}")
        A(f"v_cvt_pk_bf16_f32 {dst}, {val}, {tmp}")

    def prologue(self):
        A = self.A; o = self.o
        wnt = " nt" if o.wnt else ""
        A(f"""
        s_cmp_ge_u32 s2, 256
        s_cbranch_scc1 L_end
        {"s_memrealtime s[100:101]" if o.dbgstamps else ""}
        s_load_dwordx2 s[8:9], s[0:1], 8
        s_load_dwordx16 s[36:51], s[0:1], 0
        s_load_dwordx8 s[52:59], s[0:1], 64
        v_lshrrev_b32 v1, 6, v0
        v_and_b32 v0, 63, v0
        s_and_b32 {sGI}, s2, 7
        v_readfirstlane_b32 {sWAVE}, v1
        s_lshr_b32 {sJ}, s2, 3
        s_lshr_b32 s68, {sJ}, 3
        s_and_b32 {sSP}, {sJ}, 7
        s_and_b32 {sHL}, s68, 1
        s_lshr_b32 {sB}, s68, 1
        s_lshl_b32 s68, {sGI}, 1
        s_add_u32 s68, s68, {sHL}
        s_lshl_b32 s69, {sB}, 4
        s_add_u32 s68, s68, s69
        s_lshl_b32 {sTILE}, s68, 21
        s_lshl_b32 s68, {sSP}, 15
        s_add_u32 {sTILE}, {sTILE}, s68
        s_lshl_b32 s68, {sWAVE}, 13
        s_add_u32 {sTILE}, {sTILE}, s68
        s_mov_b32 s10, 0x4000000
        s_mov_b32 s11, 0x00020000
        """)
        vK = X(18)
        A(f"v_lshrrev_b32 {X(9)}, 4, {LANE}")
        A(f"v_and_b32 {vK}, 3, {LANE}"); A(f"v_lshlrev_b32 {vK}, 4, {vK}"); A(f"v_lshl_add_u32 {vK}, {X(9)}, 6, {vK}")
        A(f"v_bfe_u32 {TMP}, {LANE}, 2, 2"); A(f"v_lshl_add_u32 {vK}, {TMP}, 11, {vK}")
        A("s_waitcnt lgkmcnt(0)")
        self.ob = 0
        self.ktile(0, 64)
        A(f"""
        s_mov_b32 {sBUD}, {o.budget}
        s_mov_b32 {sLAYER}, 0
        s_mov_b32 {sMODE}, 0
        s_mov_b32 s60, 0xffff0000
        s_mov_b32 s61, 0xffff0000
        v_lshlrev_b32 {L16}, 4, {LANE}
        v_mov_b32 {CS}, 0
        s_mul_i32 {sM0B}, {sWAVE}, {VW}
        """)
        A(f"v_and_b32 {X(8)}, 15, {LANE}"); A(f"v_lshlrev_b32 {X(19)}, 11, {X(9)}"); A(f"v_lshl_add_u32 {X(19)}, {X(8)}, 4, {X(19)}")
        A(f"s_mov_b32 {sROLE}, {ROLE_WQ}"); A(f"s_mov_b32 s62, {sJ}")
        for (lim, role) in ((8, ROLE_WO), (15, ROLE_GU), (22, ROLE_DN), (29, ROLE_NONE)):
            A(f"s_cmp_ge_u32 {sJ}, {lim}"); A(f"s_cselect_b32 {sROLE}, {role}, {sROLE}"); A(f"s_sub_u32 s68, {sJ}, {lim}")
            A(f"s_cmp_ge_u32 {sJ}, {lim}"); A("s_cselect_b32 s62, s68, s62")
        A(f"s_lshl_b32 {sSIG}, s62, 2"); A(f"s_add_u32 {sSIG}, {sSIG}, {sWAVE}")
        self.stamp(0)
        if o.prof:
            for k in range(1, 20): A(f"s_mov_b32 s{80+k}, 0")
        A(f"""
        s_load_dword {sTAG}, s[58:59], {EOFF}
        s_sub_u32 {sS4}, {sSIG}, {sWAVE}
        s_mov_b32 s12, s40
        s_mov_b32 s13, s41
        s_mov_b32 s14, 0x4000000
        s_mov_b32 s15, 0x00020000
        s_mov_b32 s4, s36
        s_mov_b32 s5, s37
        s_mov_b32 s16, s54
        s_mov_b32 s17, s55
        s_mov_b32 s18, s56
        s_mov_b32 s19, s57
        s_mov_b32 s20, s58
        s_mov_b32 s21, s59
        s_lshl_b32 s68, {sGI}, 16
        s_add_u32 s68, s68, {GOFF}
        s_add_u32 s22, s58, s68
        s_addc_u32 s23, s59, 0
        s_add_u32 s24, s58, {COFF}
        s_addc_u32 s25, s59, 0
        s_mov_b64 s[70:71], s[58:59]
        s_mov_b64 s[72:73], s[58:59]
        s_mov_b64 s[74:75], s[58:59]
        """)
        if o.dbgstamps:
            A("s_cmp_eq_u32 s2, 176"); A("s_cbranch_scc0 L_ds0"); A(f"s_cmp_eq_u32 {sWAVE}, 0"); A("s_cbranch_scc0 L_ds0")
            A("v_mov_b32 v86, s100"); A("v_mov_b32 v87, 8"); A("s_mov_b64 exec, 1")
            A(f"global_store_dword v87, v86, {sDBG}"); A("s_mov_b64 exec, -1")
            A("L_ds0:")
            self.dstamp(3)
        if o.prefetch: self.prefetch_weights()
        if o.gupf:
            assert o.k0 == 1
            A(f"s_cmp_ge_u32 {sROLE}, {ROLE_DN}"); A("s_cbranch_scc0 L_nogupf")
            self.prefetch_gu()
            A("L_nogupf:")
            A(f"s_cmp_eq_u32 {sROLE}, {ROLE_GU}"); A(f"s_cselect_b32 {sADV}, 1, 0")
            if o.wqpf:
                A(f"s_cmp_eq_u32 {sROLE}, {ROLE_WQ}"); A(f"s_cselect_b32 {sADV}, 1, {sADV}")
                A(f"s_cmp_eq_u32 {sROLE}, {ROLE_GU}"); A("s_cbranch_scc0 L_nowqpf")
                self.prefetch_wq()
                A("L_nowqpf:")
            A(f"s_cmp_eq_u32 {sADV}, 1"); A("s_cbranch_scc0 L_nogu12")
            for tau in range(1, 1 + o.gudelay): self.ktile(tau, 64)
            A("s_waitcnt vmcnt(24)")
            A("L_nogu12:")
        for tau in range(1, o.k0): self.ktile(tau, 64)
        if 8 * o.k0 + (14 if o.prefetch else 0) > 16: A("s_waitcnt vmcnt(16)")
        row8, c, off = X(2), X(3), X(4)
        A(f"v_lshrrev_b32 {row8}, 3, {LANE}"); A(f"v_and_b32 {c}, 7, {LANE}")
        A(f"s_cmp_eq_u32 {sROLE}, {ROLE_WO}"); A("s_cbranch_scc1 L_w1")
        A(f"s_cmp_eq_u32 {sROLE}, {ROLE_GU}"); A("s_cbranch_scc1 L_w2")
        A(f"s_cmp_eq_u32 {sROLE}, {ROLE_DN}"); A("s_cbranch_scc1 L_w3")
        A(f"s_cmp_eq_u32 {sROLE}, {ROLE_WQ}"); A("s_cbranch_scc1 L_w0")
        A(f"v_mov_b32 {off}, 0"); A("s_mov_b32 s63, 0"); A("s_mov_b32 s66, 0"); A("s_mov_b32 s67, 0")
        A("s_mov_b32 s64, s42"); A("s_mov_b32 s65, s43"); A("s_mov_b32 s78, s42"); A("s_mov_b32 s79, s43")
        A("s_branch L_wdone")
        A("L_w0:")
        A(f"s_mul_i32 s68, {sWAVE}, 112"); A(f"v_add_u32 {X(5)}, s68, {row8}"); A(f"v_lshlrev_b32 {off}, 13, {X(5)}")
        A(f"v_lshl_add_u32 {off}, {c}, 4, {off}"); A(f"s_lshl_b32 s68, {sGI}, 10"); A("s_lshl_b32 s69, s62, 7"); A("s_add_u32 s68, s68, s69"); A(f"v_add_u32 {off}, s68, {off}")
        A("s_mov_b32 s63, 14"); A(f"s_mov_b32 s66, {8*8192}"); A(f"s_mul_i32 s67, {sWAVE}, 14336")
        A("s_mov_b32 s64, s42"); A("s_mov_b32 s65, s43"); A("s_mov_b32 s78, s42"); A("s_mov_b32 s79, s43")
        A(f"s_cmp_eq_u32 {sWAVE}, 0"); A("s_cbranch_scc0 L_nox")
        A(f"s_mov_b32 m0, {LDS_RED}")
        A(f"global_load_lds_dwordx4 {L16}, {sXIN}")
        self.set_exec(0xFFFFFFFF, 0x0000FFFF)
        A(f"global_load_lds_dwordx4 {L16}, {sXIN} offset:1024")
        A("s_mov_b64 exec, -1")
        A("L_nox:")
        A("s_branch L_wdone")
        A("L_w1:")
        A(f"v_and_b32 {X(5)}, 3, {row8}"); A(f"v_lshlrev_b32 {X(5)}, 3, {X(5)}"); A(f"v_lshrrev_b32 {X(6)}, 2, {row8}"); A(f"v_add_u32 {X(5)}, {X(5)}, {X(6)}")
        A(f"s_lshl_b32 s68, {sGI}, 9"); A(f"s_lshl_b32 s69, {sWAVE}, 7"); A("s_add_u32 s68, s68, s69"); A(f"v_add_u32 {X(5)}, s68, {X(5)}")
        A(f"v_mul_u32_u24 {off}, 896, {X(5)}"); A(f"v_lshl_add_u32 {off}, {c}, 4, {off}"); A("s_lshl_b32 s68, s62, 7"); A(f"v_add_u32 {off}, s68, {off}")
        A(f"v_lshrrev_b32 {X(12)}, 5, {LANE}"); A(f"s_and_b32 s68, {sWAVE}, 1"); A("s_lshl_b32 s68, s68, 1"); A(f"s_add_u32 s68, s68, {sS4}"); A(f"v_add_u32 {X(12)}, s68, {X(12)}")
        A(f"v_bfe_u32 {TMP}, {LANE}, 4, 1"); A(f"v_mul_u32_u24 {X(10)}, 896, {TMP}"); A(f"v_lshl_add_u32 {X(10)}, {X(12)}, 5, {X(10)}")
        A(f"v_and_b32 {TMP}, 15, {LANE}"); A(f"v_lshl_add_u32 {X(10)}, {TMP}, 1, {X(10)}")
        A(f"global_load_ushort {CS}, {X(10)}, {sXIN}")
        A("s_mov_b32 s63, 16"); A("s_mov_b32 s66, 0"); A(f"s_mov_b32 s67, {sM0B}")
        A("s_mov_b32 s64, s44"); A("s_mov_b32 s65, s45"); A("s_mov_b32 s78, s44"); A("s_mov_b32 s79, s45")
        A("s_branch L_wdone")
        A("L_w2:")
        A(f"s_mul_i32 s68, {sWAVE}, 112"); A(f"v_add_u32 {X(5)}, s68, {row8}"); A(f"v_mul_u32_u24 {off}, 3584, {X(5)}")
        A(f"v_and_b32 {X(6)}, 3, {c}"); A(f"v_lshl_add_u32 {off}, {X(6)}, 4, {off}")
        A(f"s_mul_i32 s68, {sGI}, 448"); A("s_lshl_b32 s69, s62, 6"); A("s_add_u32 s68, s68, s69"); A(f"v_add_u32 {off}, s68, {off}")
        A("s_mov_b32 s63, 14"); A(f"s_mov_b32 s66, {8*3584}"); A(f"s_mul_i32 s67, {sWAVE}, 14336")
        A("s_mov_b32 s64, s48"); A("s_mov_b32 s65, s49"); A("s_mov_b32 s78, s50"); A("s_mov_b32 s79, s51")
        A("s_branch L_wdone")
        A("L_w3:")
        A(f"s_mul_i32 s68, {sGI}, 224"); A(f"s_mul_i32 s69, {sWAVE}, 56"); A("s_add_u32 s68, s68, s69"); A(f"v_add_u32 {X(5)}, s68, {row8}")
        A(f"v_mul_u32_u24 {off}, 896, {X(5)}"); A(f"v_lshl_add_u32 {off}, {c}, 4, {off}"); A("s_lshl_b32 s68, s62, 7"); A(f"v_add_u32 {off}, s68, {off}")
        A("s_mov_b32 s63, 7"); A(f"s_mov_b32 s66, {8*896}"); A(f"s_mul_i32 s67, {sWAVE}, 7168")
        A("s_mov_b32 s64, s52"); A("s_mov_b32 s65, s53"); A("s_mov_b32 s78, s52"); A("s_mov_b32 s79, s53")
        A("L_wdone:")
        A(f"v_cmp_le_u32 vcc, 4, {c}")
        A(f"v_mov_b32 {X(0)}, s64"); A(f"v_mov_b32 {X(5)}, s78"); A(f"v_cndmask_b32 {X(0)}, {X(0)}, {X(5)}, vcc")
        A(f"v_mov_b32 {X(1)}, s65"); A(f"v_mov_b32 {X(5)}, s79"); A(f"v_cndmask_b32 {X(1)}, {X(1)}, {X(5)}, vcc")
        A(f"v_add_co_u32 {X(0)}, vcc, {X(0)}, {off}"); A(f"v_addc_co_u32 {X(1)}, vcc, 0, {X(1)}, vcc")
        A("s_mov_b32 s68, s67"); A("s_mov_b32 s69, 0")
        if "now" in self.o.exp: A("s_mov_b32 s63, 0")
        if "nogu" in self.o.exp:
            A(f"s_cmp_eq_u32 {sROLE}, {ROLE_GU}"); A("s_cselect_b32 s63, 0, s63")
        A("s_cmp_eq_u32 s63, 0"); A("s_cbranch_scc1 L_wld_done")
        A("L_wld:")
        A("s_mov_b32 m0, s68")
        A("s_add_u32 s68, s68, 1024")
        A(f"global_load_lds_dwordx4 {XR(0,2)}, off{wnt}")
        A("s_add_u32 s69, s69, 1"); A("s_and_b32 s62, s69, 3"); A("s_cmp_eq_u32 s62, 0"); A(f"s_mov_b32 s76, {26*896}"); A(f"s_cselect_b32 s62, s76, {2*896}")
        A(f"s_cmp_eq_u32 {sROLE}, {ROLE_WO}"); A("s_cselect_b32 s62, s62, s66")
        A(f"v_add_co_u32 {X(0)}, vcc, s62, {X(0)}"); A(f"v_addc_co_u32 {X(1)}, vcc, 0, {X(1)}, vcc")
        A("s_cmp_lt_u32 s69, s63"); A("s_cbranch_scc1 L_wld")
        A("L_wld_done:")
        A("s_mov_b32 s48, 0x22222222"); A("s_mov_b32 s49, 0x22222222"); A("s_mov_b32 s50, 0x44444444"); A("s_mov_b32 s51, 0x44444444")
        A("s_mov_b32 s52, 0x88888888"); A("s_mov_b32 s53, 0x88888888")
        A("s_mov_b32 s54, 0x03030303"); A("s_mov_b32 s55, 0x03030303")
        A("s_mov_b32 s56, 0x0c0c0c0c"); A("s_mov_b32 s57, 0x0c0c0c0c"); A("s_mov_b32 s58, 0x30303030"); A("s_mov_b32 s59, 0x30303030")
        A("s_mov_b32 s62, 0xc0c0c0c0"); A("s_mov_b32 s63, 0xc0c0c0c0")
        A(f"s_cmp_eq_u32 {sWAVE}, 3"); A("s_cbranch_scc0 L_noclr")
        for k in range(4): A(f"v_mov_b32 {X(12+k)}, -1")
        A(f"s_lshl_b32 s68, {sJ}, 11"); A(f"v_add_u32 {X(8)}, s68, {L16}")
        A(f"global_store_dwordx4 {X(8)}, {XR(12,4)}, {sG} sc1"); A(f"global_store_dwordx4 {X(8)}, {XR(12,4)}, {sG} offset:1024 sc1")
        A(f"s_lshl_b32 s68, s2, 12"); A(f"v_add_u32 {X(9)}, s68, {L16}")
        for k in range(4): A(f"global_store_dwordx4 {X(9)}, {XR(12,4)}, {sC} offset:{k*1024} sc1")
        A("L_noclr:")

    def prefetch_gu(self):
        A = self.A; o = self.o
        nd, nn = o.pfdn, o.pfnone
        f = " nt" if o.gupf == 2 else ""
        A(f"s_mul_i32 s78, {sSIG}, {nd}")
        A(f"s_mul_i32 s69, {sSIG}, {nn}"); A(f"s_add_u32 s69, s69, {28*nd}")
        A(f"s_cmp_eq_u32 {sROLE}, {ROLE_NONE}"); A("s_cselect_b32 s78, s69, s78")
        A(f"v_lshrrev_b32 {X(11)}, 5, {LANE}"); A(f"v_mul_u32_u24 {X(11)}, 3584, {X(11)}"); A(f"v_and_b32 {X(12)}, 31, {LANE}"); A(f"v_lshl_add_u32 {X(11)}, {X(12)}, 4, {X(11)}")
        A(f"s_mul_i32 s68, s78, 3584"); A(f"s_mul_i32 s69, {sGI}, 448"); A("s_add_u32 s68, s68, s69"); A(f"v_add_u32 {X(11)}, s68, {X(11)}")
        self.set_exec(0x0FFFFFFF, 0x0FFFFFFF)
        d = [128]
        def rows(k0, k1):
            for (lo, hi) in (("s48", "s49"), ("s50", "s51")):
                A(f"s_mov_b32 s72, {lo}"); A(f"s_mov_b32 s73, {hi}"); A(f"s_mov_b32 s74, {448*3584}"); A("s_mov_b32 s75, 0x00020000")
                for k in range(k0, k1):
                    A(f"s_mov_b32 s69, {k*7168}")
                    A(f"buffer_load_dwordx4 a[{d[0]}:{d[0]+3}], {X(11)}, s[72:75], s69 offen{f}"); d[0] += 4
        rows(0, nd // 2)
        A(f"s_cmp_eq_u32 {sROLE}, {ROLE_NONE}"); A("s_cbranch_scc0 L_pfgu_d")
        rows(nd // 2, nn // 2)
        A("L_pfgu_d:")
        assert d[0] <= 256
        A("s_mov_b64 exec, -1")
        A("s_mov_b64 s[72:73], s[58:59]"); A("s_mov_b64 s[74:75], s[58:59]")

    def prefetch_wq(self):
        A = self.A
        A(f"s_lshl_b32 s68, {sSIG}, 17"); A(f"s_lshl_b32 s69, {sGI}, 10"); A("s_add_u32 s68, s68, s69"); A(f"v_add_u32 {X(11)}, s68, {L16}")
        for k in range(16):
            A(f"global_load_dwordx4 a[{192+4*k}:{195+4*k}], {X(11)}, s[42:43]")
            if k != 15: A(f"v_add_u32 {X(11)}, 8192, {X(11)}")

    def kpos(self, p, win):
        A = self.A; o = self.o
        if not o.gupf:
            self.ktile(p, win); return
        l1 = A.label("KG"); l2 = A.label("KD")
        ob0 = self.ob
        A(f"s_cmp_eq_u32 {sADV}, 1"); A(f"s_cbranch_scc1 {l1}")
        self.ktile(p, win)
        ob1 = self.ob
        A(f"s_branch {l2}"); A(f"{l1}:")
        self.ob = ob0
        if p + o.gudelay <= 7: self.ktile(p + o.gudelay, win)
        A(f"{l2}:")
        self.ob = max(ob1, self.ob)

    def prefetch_weights(self):
        A = self.A
        f = {0: "", 1: "", 2: " nt"}[self.o.prefetch]
        u = "s78"
        A(f"s_lshl_b32 {u}, {sJ}, 2"); A(f"s_add_u32 {u}, {u}, {sWAVE}")
        d = [192]
        def ld(addr, base, off=0):
            A(f"global_load_dwordx4 a[{d[0]}:{d[0]+3}], {addr}, {base}" + (f" offset:{off}" if off else "") + f); d[0] += 4
        A(f"s_cmp_lt_u32 {u}, 112"); A("s_cbranch_scc0 L_pf1")
        A(f"s_lshl_b32 s68, {u}, 15"); A(f"s_lshl_b32 s69, {sGI}, 10"); A("s_add_u32 s68, s68, s69"); A(f"v_add_u32 {X(10)}, s68, {L16}")
        for k in range(4):
            ld(X(10), "s[42:43]")
            if k != 3: A(f"v_add_u32 {X(10)}, 8192, {X(10)}")
        A(f"v_lshrrev_b32 {X(11)}, 5, {LANE}"); A(f"v_mul_u32_u24 {X(11)}, 3584, {X(11)}"); A(f"v_and_b32 {X(12)}, 31, {LANE}"); A(f"v_lshl_add_u32 {X(11)}, {X(12)}, 4, {X(11)}")
        A(f"s_mul_i32 s68, {u}, {4*3584}"); A(f"s_mul_i32 s69, {sGI}, 448"); A("s_add_u32 s68, s68, s69"); A(f"v_add_u32 {X(11)}, s68, {X(11)}")
        A(f"v_add_u32 {X(12)}, 7168, {X(11)}")
        self.set_exec(0x0FFFFFFF, 0x0FFFFFFF)
        for base in ("s[48:49]", "s[50:51]"):
            ld(X(11), base); ld(X(12), base)
        A("s_mov_b64 exec, -1")
        A("L_pf1:")
        d[0] = 224
        A(f"s_mul_i32 s68, {sGI}, 458752"); A(f"s_mul_i32 s69, {u}, 3584"); A("s_add_u32 s68, s68, s69"); A(f"v_add_u32 {X(10)}, s68, {L16}")
        for k in range(3): ld(X(10), "s[44:45]", k * 1024)
        self.set_exec(0xFFFFFFFF, 0)
        ld(X(10), "s[44:45]", 3072)
        A("s_mov_b64 exec, -1")
        A(f"s_mul_i32 s68, {sGI}, 200704"); A(f"s_mul_i32 s69, {u}, 1568"); A("s_add_u32 s68, s68, s69"); A(f"v_add_u32 {X(10)}, s68, {L16}")
        ld(X(10), "s[52:53]")
        self.set_exec(0xFFFFFFFF, 0x3)
        ld(X(10), "s[52:53]", 1024)
        A("s_mov_b64 exec, -1")

    def tr_reads(self):
        A = self.A
        a = X(8); r, c, g4 = X(10), X(9), TMP
        A(f"v_and_b32 {c}, 15, {LANE}"); A(f"v_lshrrev_b32 {r}, 2, {c}"); A(f"v_and_b32 {c}, 3, {c}")
        A(f"v_lshrrev_b32 {a}, 4, {LANE}"); A(f"v_lshlrev_b32 {a}, 3, {a}"); A(f"v_add_u32 {a}, {a}, {r}")
        A(f"v_lshlrev_b32 {a}, 7, {a}")
        A(f"s_cmp_eq_u32 {sROLE}, {ROLE_WO}"); A("s_cbranch_scc1 L_tr_wo")
        A(f"s_cmp_eq_u32 {sROLE}, {ROLE_GU}"); A("s_cbranch_scc1 L_tr_gu")
        A(f"s_cmp_eq_u32 {sROLE}, {ROLE_DN}"); A("s_cbranch_scc1 L_tr_dn")
        A(f"v_lshl_add_u32 {a}, {c}, 3, {a}"); A(f"s_lshl_b32 s68, {sWAVE}, 5"); A(f"v_add_u32 {a}, s68, {a}")
        A("s_branch L_tr_n")
        A("L_tr_gu:")
        A(f"v_and_b32 {r}, 1, {c}"); A(f"v_lshl_add_u32 {a}, {r}, 3, {a}"); A(f"v_lshrrev_b32 {r}, 1, {c}"); A(f"v_lshl_add_u32 {a}, {r}, 6, {a}")
        A(f"s_lshl_b32 s68, {sWAVE}, 4"); A(f"v_add_u32 {a}, s68, {a}")
        A("L_tr_n:")
        for t in range(14):
            A(f"ds_read_b64_tr_b16 {WR(4*t,2)}, {a} offset:{t*4096}")
            A(f"ds_read_b64_tr_b16 {WR(4*t+2,2)}, {a} offset:{t*4096+512}")
            if t % 4 == 3: A("s_waitcnt lgkmcnt(0)")
        A("s_branch L_tr_d")
        A("L_tr_dn:")
        A(f"v_lshl_add_u32 {a}, {c}, 3, {a}"); A(f"s_and_b32 s68, {sWAVE}, 1"); A("s_lshl_b32 s68, s68, 6"); A(f"v_add_u32 {a}, s68, {a}")
        for t in range(7):
            for u in range(2):
                k = 4 * (2 * t + u)
                A(f"ds_read_b64_tr_b16 {WR(k,2)}, {a} offset:{t*4096+u*32}")
                A(f"ds_read_b64_tr_b16 {WR(k+2,2)}, {a} offset:{t*4096+u*32+512}")
            if t % 2 == 1: A("s_waitcnt lgkmcnt(0)")
        A("s_branch L_tr_d")
        A("L_tr_wo:")
        A(f"v_lshl_add_u32 {a}, {c}, 3, {a}"); A(f"v_add_u32 {a}, {sM0B}, {a}")
        for tt in range(4):
            for nt in range(4):
                k = 4 * (4 * tt + nt)
                A(f"ds_read_b64_tr_b16 {WR(k,2)}, {a} offset:{tt*4096+nt*32}")
                A(f"ds_read_b64_tr_b16 {WR(k+2,2)}, {a} offset:{tt*4096+nt*32+512}")
            A("s_waitcnt lgkmcnt(0)")
        A("L_tr_d:")
        A("s_waitcnt lgkmcnt(0)")
        A(f"s_add_u32 {sTAG}, {sTAG}, {hex(TAGC)}")
    def colsum(self):
        A = self.A
        for k in range(4): A(f"v_mov_b32 {X(4+k)}, 0x3f803f80")
        for t in range(14):
            A(f"v_mfma_f32_16x16x32_bf16 {XR(0,4)}, {XR(4,4)}, {WR(4*t,4)}, {'0' if t == 0 else XR(0,4)}")
        A(f"v_mov_b32 {CS}, {X(0)}")

    def ln_scalars(self, s1, s2, scale):
        ops = [f"v_mul_f32 {s1}, {f32(1/448)}, {s1}", f"v_mul_f32 {s2}, {f32(1/448)}, {s2}",
               f"v_fma_f32 {s2}, -{s1}, {s1}, {s2}", f"v_max_f32 {s2}, 0, {s2}", f"v_add_f32 {s2}, {f32(1e-5)}, {s2}", f"v_rsq_f32 {s2}, {s2}"]
        if scale != 1.0: ops.append(f"v_mul_f32 {s2}, {f32(scale)}, {s2}")
        return ops
    def ln_finish(self, mu, rs):
        A = self.A
        A(f"v_permlane16_swap_b32 {X(0)}, {X(1)}")
        A(f"v_fma_f32 {X(4)}, -{mu}, {CS}, {X(0)}")
        A(f"v_mul_f32 {X(4)}, {X(4)}, {rs}")

    def stage_ln(self, rx, rst, layer, scale, lab, sleep=0, pre=0):
        A = self.A
        LX = LDS_RED; LS = LDS_OP
        xa, sa = X(8), X(9)
        self.ln_addr(xa); A(f"v_add_u32 {xa}, {LX}, {xa}")
        A(f"v_bfe_u32 {sa}, {LANE}, 4, 1"); A(f"v_lshlrev_b32 {sa}, 8, {sa}"); A(f"v_lshrrev_b32 {TMP}, 5, {LANE}"); A(f"v_lshl_add_u32 {sa}, {TMP}, 7, {sa}")
        A(f"v_and_b32 {TMP}, 15, {LANE}"); A(f"v_lshl_add_u32 {sa}, {TMP}, 3, {sa}")
        A(f"s_cmp_eq_u32 {sWAVE}, 1"); A(f"s_cbranch_scc0 {lab}_b")
        self.gbase(SA, rx, layer); self.gbase(SB, rst, layer)
        sets = [(TR(60, 4), XR(16, 4), TR(58, 2), [T(60), T(61), T(62), T(63), X(16), X(17), X(18), X(19), T(58), T(59)]),
                (WR(56, 4), WR(60, 4), XR(14, 2), [W(56), W(57), W(58), W(59), W(60), W(61), W(62), W(63), X(14), X(15)])]
        NS = self.o.lnsets
        for k in range(NS):
            for r in sets[k][3][4:]: A(f"v_mov_b32 {r}, 0")
        A(f"v_add_u32 {X(10)}, {LX}, {L16}")
        A(f"v_add_u32 {X(12)}, {LS}, {sa}")
        for _ in range(pre // 120): A("s_sleep 120")
        if pre % 120: A(f"s_sleep {pre % 120}")
        def issue(k):
            A(f"global_load_dwordx4 {sets[k][0]}, {L16}, {SA} sc1")
            self.set_exec(0xFFFFFFFF, 0x0000FFFF)
            A(f"global_load_dwordx4 {sets[k][1]}, {L16}, {SA} offset:1024 sc1")
            self.set_exec(0xFFFFFFFF, 0x0FFF0FFF)
            A(f"global_load_dwordx2 {sets[k][2]}, {sa}, {SB} sc1")
            A("s_mov_b64 exec, -1")
        for k in range(NS - 1): issue(k)
        A(f"{lab}:")
        for k in range(NS):
            issue((k + NS - 1) % NS)
            A(f"s_waitcnt vmcnt({3*(NS-1)})")
            for s in self.maxops(X(13), sets[k][3]): A(s)
            A(f"v_cmp_eq_u32 vcc, -1, {X(13)}")
            A(f"s_cbranch_vccz {lab}_ok{k}")
        A(f"s_cmp_eq_u32 {sBUD}, 0"); A(f"s_cbranch_scc1 {lab}_ok0"); A(f"s_sub_u32 {sBUD}, {sBUD}, 1")
        if sleep: A(f"s_sleep {sleep}")
        A(f"s_branch {lab}")
        for k in reversed(range(NS)):
            A(f"{lab}_ok{k}:")
            A(f"ds_write_b128 {X(10)}, {sets[k][0]}")
            A(f"ds_write_b64 {X(12)}, {sets[k][2]}")
            self.set_exec(0xFFFFFFFF, 0x0000FFFF)
            A(f"ds_write_b128 {X(10)}, {sets[k][1]} offset:1024")
            A("s_mov_b64 exec, -1")
            if k != 0: A(f"s_branch {lab}_w")
        A(f"{lab}_w:")
        A("s_waitcnt lgkmcnt(0)")
        A(f"{lab}_b:")
        A("s_barrier")
        D = XR(0, 4); s1, s2, t1, t2 = X(5), X(6), X(10), X(11)
        A(f"v_add_u32 {sa}, {LS}, {sa}")
        A(f"ds_read_b64 {TR(56,2)}, {sa}")
        for t in range(14): A(f"ds_read_b128 {TR(4*t,4)}, {xa} offset:{t*64}")
        red = [f"v_add_f32_dpp {s1}, {T(56)}, {T(56)} row_ror:8 {DPP}", f"v_add_f32_dpp {s2}, {T(57)}, {T(57)} row_ror:8 {DPP}"]
        for sh in (4, 2, 1):
            red += [f"v_add_f32_dpp {s1}, {s1}, {s1} row_ror:{sh} {DPP}", f"v_add_f32_dpp {s2}, {s2}, {s2} row_ror:{sh} {DPP}"]
        red += [f"v_mov_b32 {t1}, {s1}", f"v_mov_b32 {t2}, {s2}", f"v_permlane32_swap_b32 {s1}, {t1}", f"v_permlane32_swap_b32 {s2}, {t2}",
                f"v_add_f32 {s1}, {s1}, {t1}", f"v_add_f32 {s2}, {s2}, {t2}"]
        red += self.ln_scalars(s1, s2, scale)
        for t in range(14):
            if t in (0, 4, 8): A(f"s_waitcnt lgkmcnt({max(13 - t - 3, 0)})")
            if t == 12: A("s_waitcnt lgkmcnt(0)")
            A(f"v_mfma_f32_16x16x32_bf16 {D}, {TR(4*t,4)}, {WR(4*t,4)}, {'0' if t == 0 else D}")
            n = 2 if t % 2 == 0 else 1
            while n and red: A(red.pop(0)); n -= 1
        for s in red: A(s)
        self.fst(4)
        self.ln_finish(s1, s2)

    def ld_setup(self):
        A = self.A
        vK, vV = X(18), X(19)
        A(f"v_and_b32 {X(8)}, 15, {LANE}"); A(f"v_lshrrev_b32 {X(9)}, 4, {LANE}")
        A(f"v_and_b32 {vK}, 3, {LANE}"); A(f"v_lshlrev_b32 {vK}, 4, {vK}"); A(f"v_lshl_add_u32 {vK}, {X(9)}, 6, {vK}")
        A(f"v_bfe_u32 {TMP}, {LANE}, 2, 2"); A(f"v_lshl_add_u32 {vK}, {TMP}, 11, {vK}")
        A(f"v_lshlrev_b32 {vV}, 11, {X(9)}"); A(f"v_lshl_add_u32 {vV}, {X(8)}, 4, {vV}")
    def throttle(self, win):
        st = self.o.wstep
        if self.ob + 1 > win:
            self.A(f"s_waitcnt vmcnt({win - st})"); self.ob = win - st
        self.ob += 1
    def ktile(self, tau, win):
        A = self.A; f = " nt" if self.o.nt else ""
        A(f"s_add_u32 s68, {sTILE}, {tau*262144}")
        for t in range(8):
            n = tau * 8 + t
            self.throttle(win)
            A(f"buffer_load_dwordx4 a[{4*n}:{4*n+3}], {X(19) if 'kv' in self.o.exp else X(18)}, s[8:11], s68 offen offset:{(t//2)*512 + (t%2)*256}{f}")
    def vtile(self, tau, win, va=None):
        A = self.A; f = " nt" if self.o.nt else ""
        va = va or X(19)
        A(f"s_add_u32 s68, {sTILE}, {tau*262144}")
        for t in range(8):
            n = tau * 8 + t
            imm = (t // 2) * 512 + (t % 2) * 256
            self.throttle(win)
            if n < 2 * NLDS:
                A(f"s_add_u32 m0, {sM0B}, {n*1024 - imm}")
                A(f"buffer_load_dwordx4 {va}, s[12:15], s68 offen offset:{imm}{f} lds")
            else:
                m = n - 2 * NLDS
                A(f"buffer_load_dwordx4 {VRR(4*m,4)}, {va}, s[12:15], s68 offen offset:{imm}{f}")
    def arrive(self):
        A = self.A
        A("s_getreg_b32 s68, hwreg(HW_REG_XCC_ID, 0, 4)"); A("s_and_b32 s68, s68, 7"); A("s_mul_i32 s68, s68, 6")
        A("s_lshl_b64 s[78:79], 1, s68"); A("s_or_b32 s79, s79, 0x01000000")
        A(f"v_mov_b32 {X(10)}, s78"); A(f"v_mov_b32 {X(11)}, s79")
        A(f"s_lshl_b32 s69, {sGI}, 5"); A(f"v_mov_b32 {X(9)}, s69")
        A("s_mov_b64 exec, 1")
        A(f"global_atomic_add_x2 {X(9)}, {XR(10,2)}, {sDBG} sc1")
        A("s_mov_b64 exec, -1")
    def early_q(self):
        A = self.A
        self.ln_addr(X(8)); A(f"v_add_u32 {X(8)}, {LDS_RED}, {X(8)}")
        for k in range(8): A(f"v_mov_b32 {T(56+k)}, 0")
        A(f"v_add_u32 {X(9)}, {LDS_RED}, {L16}")
        self.set_exec(0xFFFFFFFF, 0x00FFFFFF)
        A(f"ds_read_b128 {TR(56,4)}, {X(9)}"); A(f"ds_read_b128 {TR(60,4)}, {X(9)} offset:896")
        A("s_mov_b64 exec, -1")
        for t in range(12): A(f"ds_read_b128 {TR(4*t,4)}, {X(8)} offset:{t*64}")
        A("s_waitcnt lgkmcnt(8)")
        for t in range(12, 14): A(f"ds_read_b128 {TR(4*t,4)}, {X(8)} offset:{t*64}")
        self.colsum()
        A("s_waitcnt lgkmcnt(0)")
        s1a, s2a, s1b, s2b = X(12), X(13), X(14), X(15)
        for (base, s1, s2) in ((56, s1a, s2a), (60, s1b, s2b)):
            A(f"v_mov_b32 {s1}, 0"); A(f"v_mov_b32 {s2}, 0")
            for k in range(4):
                A(f"v_lshlrev_b32 {X(8)}, 16, {T(base+k)}"); A(f"v_and_b32 {X(9)}, 0xffff0000, {T(base+k)}")
                A(f"v_add_f32 {s1}, {s1}, {X(8)}"); A(f"v_fmac_f32 {s2}, {X(8)}, {X(8)}")
                A(f"v_add_f32 {s1}, {s1}, {X(9)}"); A(f"v_fmac_f32 {s2}, {X(9)}, {X(9)}")
        for sh in (8, 4, 2, 1):
            for r in (s1a, s2a, s1b, s2b): A(f"v_add_f32_dpp {r}, {r}, {r} row_ror:{sh} {DPP}")
        for swap in ("v_permlane16_swap_b32", "v_permlane32_swap_b32"):
            for r in (s1a, s2a, s1b, s2b):
                A(f"v_mov_b32 {X(8)}, {r}"); A(f"{swap} {r}, {X(8)}"); A(f"v_add_f32 {r}, {r}, {X(8)}")
        A(f"v_cndmask_b32 {s1a}, {s1a}, {s1b}, {sSEL}"); A(f"v_cndmask_b32 {s2a}, {s2a}, {s2b}, {sSEL}")
        for s in self.ln_scalars(s1a, s2a, QSCALE): A(s)
    def early_q2(self):
        A = self.A
        s1a, s2a = X(12), X(13)
        D = XR(0, 4)
        for t in range(14):
            A(f"v_mfma_f32_16x16x32_bf16 {D}, {TR(4*t,4)}, {WR(4*t,4)}, {'0' if t == 0 else D}")
        self.ln_finish(s1a, s2a)
        self.pack_pair(X(4), X(4), X(6))
        A(f"v_mov_b32 {X(5)}, {sTAG}")
        A(f"v_bfe_u32 {X(7)}, {LANE}, 4, 1"); A(f"v_lshlrev_b32 {X(7)}, 11, {X(7)}"); A(f"v_and_b32 {X(8)}, 15, {LANE}"); A(f"v_lshl_add_u32 {X(7)}, {X(8)}, 2, {X(7)}")
        A(f"s_lshl_b32 s68, {sSIG}, 6"); A(f"v_add_u32 {X(7)}, s68, {X(7)}")
        A(f"s_lshl_b32 s68, {sGI}, 12"); A(f"s_add_u32 s68, s68, {QTOFF}"); A(f"s_add_u32 s70, s20, s68"); A("s_addc_u32 s71, s21, 0")
        self.set_exec(0x55555555, 0)
        A(f"global_store_dwordx2 {X(7)}, {XR(4,2)}, {SA} sc1")
        A("s_mov_b64 exec, -1")

    def stream(self):
        A = self.A; win = self.o.win
        k0 = self.o.k0
        self.ob = 0
        self.kpos(k0, 64)
        A("s_waitcnt vmcnt(8) lgkmcnt(0)")
        self.stamp(1)
        A("s_barrier")
        A(f"s_cmp_eq_u32 {sWAVE}, 3"); A("s_cbranch_scc0 L_noarr")
        self.arrive()
        A("L_noarr:")
        self.ob = 0
        self.kpos(k0 + 1, 64)
        self.tr_reads()
        A("s_barrier")
        self.kpos(k0 + 2, 64)
        A(f"s_cmp_eq_u32 {sROLE}, {ROLE_GU}"); A("s_cbranch_scc0 L_nocs")
        self.colsum()
        A("L_nocs:")
        A(f"s_cmp_eq_u32 {sROLE}, {ROLE_WQ}"); A("s_cbranch_scc0 L_noeq")
        self.early_q()
        A("L_noeq:")
        nx = k0 + 3
        if self.o.esplit:
            self.kpos(nx, 64); nx += 1
        A(f"s_cmp_eq_u32 {sROLE}, {ROLE_WQ}"); A("s_cbranch_scc0 L_noeq2")
        self.early_q2()
        A("L_noeq2:")
        self.stamp(2)
        self.ob = 8 * (nx - k0) + 2
        tp = nx
        for tau in range(tp, 8): self.kpos(tau, win)
        A(f"s_lshl_b32 s68, {sGI}, 12"); A(f"s_add_u32 s68, s68, {QTOFF}"); A(f"s_add_u32 s70, s20, s68"); A("s_addc_u32 s71, s21, 0")
        A(f"s_lshl_b32 s68, {sB}, 11"); A(f"s_lshl_b32 s78, {sHL}, 10"); A("s_add_u32 s68, s68, s78"); A(f"v_add_u32 {X(14)}, s68, {L16}")
        A(f"global_load_dwordx4 {XR(10,4)}, {X(14)}, {SA} sc1")
        for tau in range(self.o.vdist): self.vtile(tau, 64)
        self.stamp(5)
        self.dstamp(4)

    def bar_check_finish(self):
        A = self.A
        A(f"s_cmp_eq_u32 {sLAYER}, 0"); A("s_cbranch_scc0 L_gb_done")
        A("s_mov_b64 exec, 0xff")
        A("L_gb:")
        A(f"v_lshrrev_b32 {TMP}, 24, {WBAR1}"); A(f"v_cmp_ne_u32 vcc, 32, {TMP}")
        A("s_cbranch_vccz L_gb_d")
        A(f"s_cmp_eq_u32 {sBUD}, 0"); A("s_cbranch_scc1 L_gb_d"); A(f"s_sub_u32 {sBUD}, {sBUD}, 1"); A("s_sleep 4")
        A(f"v_and_b32 {TMP}, 7, {LANE}"); A(f"v_lshlrev_b32 {TMP}, 5, {TMP}")
        A(f"global_load_dwordx2 {WBAR}, {TMP}, {sDBG} sc1"); A("s_waitcnt vmcnt(0)")
        A("s_branch L_gb")
        A("L_gb_d:")
        A("s_mov_b64 exec, -1")
        A("s_getreg_b32 s68, hwreg(HW_REG_XCC_ID, 0, 4)"); A("s_and_b32 s68, s68, 7"); A("s_mul_i32 s68, s68, 6")
        A("s_lshl_b64 s[78:79], 32, s68"); A("s_or_b32 s79, s79, 0x20000000")
        A(f"v_readlane_b32 s68, {WBAR0}, {sGI}"); A(f"v_readlane_b32 s69, {WBAR1}, {sGI}")
        A("s_cmp_eq_u64 s[68:69], s[78:79]"); A(f"s_cselect_b32 {sMODE}, 1, 0")
        if self.o.slow: A(f"s_mov_b32 {sMODE}, 0")
        A("L_gb_done:")

    def att_setup(self):
        A = self.A
        mk = [X(16 + k) for k in range(4)]
        A(f"v_and_b32 {TMP}, 1, {LANE}"); A(f"v_lshlrev_b32 {TMP}, 4, {TMP}"); A(f"v_mov_b32 {X(9)}, 0xffff"); A(f"v_lshlrev_b32 {X(9)}, {TMP}, {X(9)}")
        for k, pr in enumerate((sMA, "s[56:57]", "s[58:59]", "s[62:63]")):
            A(f"v_cndmask_b32 {mk[k]}, 0, {X(9)}, {pr}")
        A(f"v_lshrrev_b32 {X(8)}, 4, {LANE}"); A(f"v_lshlrev_b32 {X(8)}, 11, {X(8)}"); A(f"v_and_b32 {TMP}, 15, {LANE}"); A(f"v_lshl_add_u32 {X(8)}, {TMP}, 4, {X(8)}")
        for k in range(16): A(f"v_mov_b32 {T(16+k)}, 0")

    def get_q(self):
        A = self.A
        self.att_setup()
        qa = T(62)
        A(f"v_lshrrev_b32 {qa}, 4, {LANE}"); A(f"v_lshlrev_b32 {qa}, 6, {qa}"); A(f"v_and_b32 {TMP}, 3, {LANE}"); A(f"v_lshl_add_u32 {qa}, {TMP}, 4, {qa}")
        A(f"v_add_u32 {qa}, {LDS_QL}, {qa}")
        A(f"s_cmp_eq_u32 {sLAYER}, 0"); A("s_cbranch_scc0 L_q1")
        A(f"s_waitcnt vmcnt({8*self.o.vdist})")
        A("L_q0:")
        A(f"v_xor_b32 {X(15)}, {sTAG}, {X(11)}"); A(f"v_xor_b32 {X(9)}, {sTAG}, {X(13)}"); A(f"v_or_b32 {X(15)}, {X(15)}, {X(9)}")
        A(f"v_cmp_ne_u32 vcc, 0, {X(15)}")
        A("s_cbranch_vccz L_q0_d")
        A(f"s_cmp_eq_u32 {sBUD}, 0"); A("s_cbranch_scc1 L_q0_d"); A(f"s_sub_u32 {sBUD}, {sBUD}, 1")
        A(f"global_load_dwordx4 {XR(10,4)}, {X(14)}, {SA} sc1"); A("s_waitcnt vmcnt(0)")
        A("s_branch L_q0")
        A("L_q0_d:")
        A(f"v_mov_b32 {X(11)}, {X(12)}")
        A(f"v_lshlrev_b32 {X(9)}, 3, {LANE}"); A(f"v_add_u32 {X(9)}, {LDS_QL}, {X(9)}")
        A(f"ds_write_b64 {X(9)}, {XR(10,2)}")
        self.stamp(4)
        A("s_waitcnt lgkmcnt(0)")
        A("s_branch L_qlds")
        A("L_q1:")
        A(f"s_cmp_eq_u32 {sWAVE}, 0"); A("s_cbranch_scc0 L_q1b")
        self.gbase(SA, R_Q, 1)
        A(f"s_lshl_b32 s68, {sB}, 10"); A(f"s_lshl_b32 s78, {sHL}, 9"); A("s_add_u32 s68, s68, s78"); A(f"v_add_u32 {X(9)}, s68, {L16}")
        A(f"v_add_u32 {X(14)}, {LDS_QL}, {L16}")
        for _ in range(self.o.qpre // 120): A("s_sleep 120")
        if self.o.qpre % 120: A(f"s_sleep {self.o.qpre % 120}")
        self.set_exec(0xFFFFFFFF, 0)
        NS = self.o.qsets
        qs = [(TR(0, 4), [T(0), T(1), T(2), T(3)]), (TR(4, 4), [T(4), T(5), T(6), T(7)])]
        for k in range(NS - 1): A(f"global_load_dwordx4 {qs[k][0]}, {X(9)}, {SA} sc1")
        A("L_q1p:")
        for k in range(NS):
            A(f"global_load_dwordx4 {qs[(k + NS - 1) % NS][0]}, {X(9)}, {SA} sc1")
            A(f"s_waitcnt vmcnt({NS-1})")
            for s in self.maxops(X(15), qs[k][1]): A(s)
            A(f"v_cmp_eq_u32 vcc, -1, {X(15)}")
            A(f"s_cbranch_vccz L_q1_ok{k}")
        A(f"s_cmp_eq_u32 {sBUD}, 0"); A("s_cbranch_scc1 L_q1_ok0"); A(f"s_sub_u32 {sBUD}, {sBUD}, 1")
        if self.o.qsleep: A(f"s_sleep {self.o.qsleep}")
        A("s_branch L_q1p")
        for k in reversed(range(NS)):
            A(f"L_q1_ok{k}:")
            A(f"ds_write_b128 {X(14)}, {qs[k][0]}")
            if k != 0: A("s_branch L_q1_w")
        A("L_q1_w:")
        A("s_mov_b64 exec, -1")
        A("s_waitcnt lgkmcnt(0)")
        A("L_q1b:")
        A("s_barrier")
        A("s_waitcnt vmcnt(0)")
        A("L_qlds:")
        self.set_exec(0x00FF00FF, 0x00FF00FF)
        for t in range(2): A(f"ds_read_b128 {TR(16+4*t,4)}, {qa} offset:{t*256}")
        self.set_exec(0xFF00FF00, 0xFF00FF00)
        for t in range(2): A(f"ds_read_b128 {TR(24+4*t,4)}, {qa} offset:{t*256}")
        A("s_mov_b64 exec, -1")
        A(f"v_add_u32 {X(13)}, {sM0B}, {L16}")
        A(f"s_waitcnt vmcnt({8*self.o.vdist})")

    def attention(self):
        A = self.A
        mk = [X(16 + k) for k in range(4)]
        A("s_waitcnt lgkmcnt(0)")
        self.fst(0, "att")
        m, m2 = X(14), X(15)
        va = X(13)
        Dq = lambda P: 40 + 4 * (P % 4)
        M1, M2, M3 = "s[48:49]", "s[50:51]", "s[52:53]"
        S = lambda P: T(P)
        QL = [TR(16, 4), TR(20, 4)]; QH = [TR(24, 4), TR(28, 4)]
        def c1(P): return f"v_cndmask_b32 {S(P)}, {T(Dq(P))}, {T(Dq(P)+1)}, {M1}"
        def c2(P): return f"v_cndmask_b32 {S(P)}, {S(P)}, {T(Dq(P)+2)}, {M2}"
        def c3(P): return f"v_cndmask_b32 {S(P)}, {S(P)}, {T(Dq(P)+3)}, {M3}"
        def d1(P): return f"v_add_f32_dpp {S(P)}, {S(P)}, {S(P)} quad_perm:[1,0,3,2] {DPP}"
        def d2(P): return f"v_add_f32_dpp {S(P)}, {S(P)}, {S(P)} quad_perm:[2,3,0,1] {DPP}"
        ok = lambda P: 0 <= P < 16
        for P in range(16 + 4):
            D = TR(Dq(P), 4); G = 2 * P
            if ok(P): A(f"v_mfma_f32_16x16x32_bf16 {D}, a[{8*G}:{8*G+3}], {QL[0]}, 0")
            if ok(P - 2): A(c1(P - 2))
            if ok(P - 3): A(d1(P - 3))
            if ok(P): A(f"v_mfma_f32_16x16x32_bf16 {D}, a[{8*G+4}:{8*G+7}], {QL[1]}, {D}")
            if ok(P - 2): A(c2(P - 2))
            if ok(P): A(f"v_mfma_f32_16x16x32_bf16 {D}, a[{8*G+8}:{8*G+11}], {QH[0]}, {D}")
            if ok(P - 2): A(c3(P - 2))
            if ok(P - 3): A(d2(P - 3))
            if ok(P): A(f"v_mfma_f32_16x16x32_bf16 {D}, a[{8*G+12}:{8*G+15}], {QH[1]}, {D}")
            g4 = P - 4
            if ok(g4) and g4 % 2 == 1:
                if g4 == 1: A(f"v_max_f32 {m}, {S(0)}, {S(1)}")
                else: A(f"v_max3_f32 {m}, {m}, {S(g4-1)}, {S(g4)}")
        self.stamp(7)
        self.fst(1, "att")
        l = X(15)
        acc = [[XR(0, 4), XR(4, 4)], [TR(16, 4), TR(20, 4)]]
        Bs = [TR(32, 4), TR(36, 4)]; Bb = [32, 36]
        stg = [24, 40, 48, 56]
        VD = self.o.vdist
        vV = X(8)
        CHK_AT = 4 - VD if VD <= 4 else 0
        CHK_TILE = CHK_AT + VD
        def younger(tile, at_tile):
            last_issued = min(at_tile + VD, 7)
            n = 8 * (last_issued - tile)
            if tile <= CHK_TILE and at_tile >= CHK_AT: n += 1
            return n
        def tile_issue(tau):
            t2 = tau + VD
            if t2 > 7: return
            lab = A.label("VI")
            A(f"s_cmp_eq_u32 {sLAYER}, 0"); A(f"s_cbranch_scc0 {lab}")
            self.ob = 0
            self.vtile(t2, 64, vV)
            if tau == CHK_AT:
                A(f"v_and_b32 {TMP}, 7, {LANE}"); A(f"v_lshlrev_b32 {TMP}, 5, {TMP}")
                A("s_mov_b64 exec, 0xff")
                A(f"global_load_dwordx2 {WBAR}, {TMP}, {sDBG} sc1")
                A("s_mov_b64 exec, -1")
            A(f"{lab}:")
        DIST = 3
        lds_fifo = []
        def lds_issue(q, at_tile):
            if q % 4 == 0: A(f"s_waitcnt vmcnt({younger(q // 4, at_tile)})")
            b = stg[q % 4]
            A(f"ds_read_b128 {TR(b,4)}, {va} offset:{q*2048}"); A(f"ds_read_b128 {TR(b+4,4)}, {va} offset:{q*2048+1024}")
            lds_fifo.append(q)
        def pre(P):
            s = S(P); bb = Bb[P % 2]; pk = X(12) if P % 2 == 0 else X(9)
            return [f"v_sub_f32 {s}, {s}, {m}", f"v_exp_f32 {s}, {s}"], [f"v_cvt_pk_bf16_f32 {pk}, {s}, {s}", (f"v_add_f32 {l}, {l}, {s}" if P else f"v_mov_b32 {l}, {s}")] + [f"v_and_b32 {T(bb+k)}, {mk[k]}, {pk}" for k in range(4)]
        A(f"v_max_f32_dpp {m}, {m}, {m} row_ror:8 {DPP}")
        tile_issue(0)
        A(f"v_mov_b32 {m2}, {m}")
        for q in range(DIST): lds_issue(q, 0)
        A(f"v_permlane16_swap_b32 {m}, {m2}"); A(f"v_max_f32 {m}, {m}, {m2}")
        A(f"v_mov_b32 {m2}, {m}"); A(f"v_permlane32_swap_b32 {m}, {m2}"); A(f"v_max_f32 {m}, {m}, {m2}")
        a, b_ = pre(0)
        for s in a + b_: A(s)
        a, _ = pre(1)
        for s in a: A(s)
        def src(q):
            if q < NLDS:
                b = stg[q % 4]; return TR(b, 4), TR(b + 4, 4)
            mm = (q - NLDS) * 8; return VRR(mm, 4), VRR(mm + 4, 4)
        def before_group(q):
            tau = q // 4
            if q % 4 == 0 and q > 0: tile_issue(tau)
            if q + DIST < NLDS: lds_issue(q + DIST, tau)
            if q < NLDS:
                after = len(lds_fifo) - 1 - lds_fifo.index(q)
                A(f"s_waitcnt lgkmcnt({2 * after})")
            else:
                if q >= 28: A(f"s_waitcnt vmcnt({(31 - q) * 2})")
                elif q == NLDS or q % 4 == 0: A(f"s_waitcnt vmcnt({younger(tau, tau)})")
            if q == 24:
                self.bar_check_finish()
                A(f"v_lshrrev_b32 {X(8)}, 4, {LANE}"); A(f"v_lshlrev_b32 {X(8)}, 7, {X(8)}"); A(f"v_and_b32 {TMP}, 15, {LANE}"); A(f"v_lshl_add_u32 {X(8)}, {TMP}, 4, {X(8)}")
                A(f"s_lshl_b32 s68, {sWAVE}, 10"); A(f"s_add_u32 s68, s68, {LDS_OP}"); A(f"v_add_u32 {X(8)}, s68, {X(8)}")
                A(f"s_lshl_b32 s68, {sWAVE}, 3"); A(f"s_add_u32 s68, s68, {LDS_MLP}"); A(f"v_mov_b32 {X(10)}, s68")
        for P in range(16):
            B = Bs[P % 2]
            nb = pre(P + 1)[1] if P + 1 < 16 else []
            na = pre(P + 2)[0] if P + 2 < 16 else []
            if 2 * P == 18 or (2 * P == NLDS + 1 - 2): pass
            if 2 * P >= NLDS and 2 * P - 2 < NLDS: self.fst(2, "att")
            qe, qo = 2 * P, 2 * P + 1
            before_group(qe)
            a0, a1 = src(qe)
            A(f"v_mfma_f32_16x16x32_bf16 {acc[0][0]}, {a0}, {B}, {acc[0][0] if P else '0'}")
            for s_ in nb[:2]: A(s_)
            A(f"v_mfma_f32_16x16x32_bf16 {acc[0][1]}, {a1}, {B}, {acc[0][1] if P else '0'}")
            for s_ in nb[2:4]: A(s_)
            before_group(qo)
            a0, a1 = src(qo)
            A(f"v_mfma_f32_16x16x32_bf16 {acc[1][0]}, {a0}, {B}, {acc[1][0] if P else '0'}")
            for s_ in nb[4:6]: A(s_)
            A(f"v_mfma_f32_16x16x32_bf16 {acc[1][1]}, {a1}, {B}, {acc[1][1] if P else '0'}")
            for s_ in na: A(s_)
        self.fst(3, "att")
        self.stamp(8)
        self.dstamp(5, layer=0); self.dstamp(7, layer=1)
        l2 = X(9)
        A(f"v_add_f32_dpp {l}, {l}, {l} row_ror:8 {DPP}")
        A(f"v_mov_b32 {l2}, {l}"); A(f"v_permlane16_swap_b32 {l}, {l2}"); A(f"v_add_f32 {l}, {l}, {l2}")
        A(f"v_mov_b32 {l2}, {l}"); A(f"v_permlane32_swap_b32 {l}, {l2}"); A(f"v_add_f32 {l}, {l}, {l2}")
        for k in range(8): A(f"v_add_f32_dpp {X(k)}, {T(16+k)}, {X(k)} row_ror:8 {DPP}")
        self.set_exec(0x00FF00FF, 0x00FF00FF)
        A(f"ds_write_b128 {X(8)}, {XR(0,4)}"); A(f"ds_write_b128 {X(8)}, {XR(4,4)} offset:512")
        A("s_mov_b64 exec, 1")
        A(f"ds_write_b64 {X(10)}, {XR(14,2)}")
        A("s_mov_b64 exec, -1")
        A("s_waitcnt lgkmcnt(0)")
        A("s_barrier")
        self.fst(4, "att")
        self.stamp(9)

    def combine_publish(self):
        A = self.A
        A(f"v_add_u32 {X(8)}, {LDS_OP}, {L16}")
        for w in range(4): A(f"ds_read_b128 {TR(4*w,4)}, {X(8)} offset:{w*1024}")
        A(f"v_mov_b32 {X(9)}, {LDS_MLP}")
        A(f"ds_read_b128 {TR(16,4)}, {X(9)}"); A(f"ds_read_b128 {TR(20,4)}, {X(9)} offset:16")
        self.gbase(SA, R_O); self.gbase(SB, R_ML)
        a = X(10)
        A(f"v_lshrrev_b32 {a}, 3, {LANE}"); A(f"v_lshlrev_b32 {a}, 10, {a}")
        A(f"v_bfe_u32 {X(11)}, {LANE}, 1, 2"); A(f"v_lshl_add_u32 {a}, {X(11)}, 8, {a}")
        A(f"v_and_b32 {X(11)}, 1, {LANE}"); A(f"v_lshl_add_u32 {a}, {X(11)}, 3, {a}")
        A(f"s_lshl_b32 s68, {sB}, 3"); A(f"s_add_u32 s68, s68, {sSP}"); A("s_lshl_b32 s68, s68, 4"); A(f"s_lshl_b32 s78, {sHL}, 13"); A("s_add_u32 s68, s68, s78")
        A(f"v_add_u32 {a}, s68, {a}")
        A(f"s_lshl_b32 s68, {sHL}, 7"); A(f"s_lshl_b32 s78, {sB}, 6"); A("s_add_u32 s68, s68, s78"); A(f"s_lshl_b32 s78, {sSP}, 3"); A("s_add_u32 s68, s68, s78")
        A(f"v_mov_b32 {X(11)}, s68")
        M = T(24); f = [T(25 + w) for w in range(4)]; Lr = T(29)
        ms = [T(16), T(18), T(20), T(22)]; ls = [T(17), T(19), T(21), T(23)]
        A("s_waitcnt lgkmcnt(0)")
        A(f"v_max3_f32 {M}, {ms[0]}, {ms[1]}, {ms[2]}"); A(f"v_max_f32 {M}, {M}, {ms[3]}")
        for w in range(4): A(f"v_sub_f32 {f[w]}, {ms[w]}, {M}")
        for w in range(4): A(f"v_exp_f32 {f[w]}, {f[w]}")
        for r in range(4): A(f"v_mul_f32 {T(32+r)}, {f[0]}, {T(r)}")
        for w in range(1, 4):
            for r in range(4): A(f"v_fmac_f32 {T(32+r)}, {f[w]}, {T(4*w+r)}")
        A(f"v_cvt_pk_bf16_f32 {T(36)}, {T(32)}, {T(33)}"); A(f"v_cvt_pk_bf16_f32 {T(37)}, {T(34)}, {T(35)}")
        self.pub(f"global_store_dwordx2 {a}, {TR(36,2)}, {SA}")
        A(f"v_mul_f32 {T(39)}, {f[0]}, {ls[0]}")
        for w in range(1, 4): A(f"v_fmac_f32 {T(39)}, {f[w]}, {ls[w]}")
        A(f"v_mov_b32 {T(38)}, {M}")
        A("s_mov_b64 exec, 1")
        self.pub(f"global_store_dwordx2 {X(11)}, {TR(38,2)}, {SB}")
        if self.o.b1gate:
            A(f"s_cmp_eq_u32 {sLAYER}, 0"); A("s_cbranch_scc0 L_nob1")
            A(f"s_lshl_b32 s68, {sGI}, 5"); A("s_add_u32 s68, s68, 8"); A(f"v_mov_b32 {X(12)}, s68"); A(f"v_mov_b32 {X(13)}, 1")
            A(f"global_atomic_add {X(12)}, {X(13)}, {sDBG} sc1")
            A("L_nob1:")
        A("s_mov_b64 exec, -1")

    def stage_wo(self):
        A = self.A
        self.gbase(SA, R_O); self.gbase(SC_, R_ML)
        A(f"s_lshl_b32 s68, {sWAVE}, 12"); A("s_add_u32 s70, s70, s68"); A("s_addc_u32 s71, s71, 0")
        a = X(16)
        A(f"v_lshrrev_b32 {a}, 5, {LANE}"); A(f"v_lshlrev_b32 {a}, 6, {a}")
        A(f"v_bfe_u32 {TMP}, {LANE}, 4, 1"); A(f"v_lshl_add_u32 {a}, {TMP}, 5, {a}")
        A(f"v_and_b32 {TMP}, 3, {LANE}"); A(f"v_lshl_add_u32 {a}, {TMP}, 3, {a}")
        A(f"s_lshr_b32 s68, {sWAVE}, 1"); A("s_lshl_b32 s68, s68, 7"); A(f"v_add_u32 {a}, s68, {a}")
        wa, ra = X(17), X(18)
        A(f"v_bfe_u32 {wa}, {LANE}, 4, 1"); A(f"v_lshlrev_b32 {wa}, 7, {wa}"); A(f"v_lshrrev_b32 {TMP}, 5, {LANE}"); A(f"v_lshl_add_u32 {wa}, {TMP}, 6, {wa}")
        A(f"v_and_b32 {TMP}, 15, {LANE}"); A(f"v_lshl_add_u32 {wa}, {TMP}, 2, {wa}")
        A(f"s_lshl_b32 s68, {sWAVE}, 9"); A(f"s_add_u32 s68, s68, {LDS_RED}"); A(f"v_add_u32 {wa}, s68, {wa}")
        A(f"v_lshrrev_b32 {ra}, 5, {LANE}"); A(f"v_lshlrev_b32 {ra}, 7, {ra}"); A(f"v_and_b32 {TMP}, 31, {LANE}"); A(f"v_lshl_add_u32 {ra}, {TMP}, 2, {ra}")
        A(f"s_and_b32 s68, {sWAVE}, 1"); A("s_lshl_b32 s68, s68, 8"); A(f"s_add_u32 s68, s68, {LDS_RED}"); A(f"v_add_u32 {ra}, s68, {ra}")
        A(f"s_cmp_ge_u32 {sWAVE}, 2"); A("s_cbranch_scc0 L_wo_nors")
        self.gbase(SD, R_X2, 0)
        A(f"s_cmp_eq_u32 {sLAYER}, 0"); A("s_cselect_b32 s64, s4, s64"); A("s_cselect_b32 s65, s5, s65")
        self.rs_setup()
        A(f"v_mov_b32 {X(13)}, {CS}")
        A(f"s_cmp_eq_u32 {sLAYER}, 0"); A("s_cbranch_scc1 L_wo_nors")
        A(f"global_load_ushort {X(13)}, {X(10)}, {SD} sc1")
        A("L_wo_nors:")
        self.cbase(SB, 0, consumer=False)
        self.p_store_addr(X(9))
        mv, lv = T(16), T(17)
        D = [TR(20 + 4 * nt, 4) for nt in range(4)]
        chk, M, t1, e, w = T(36), T(37), T(38), T(39), T(40)
        A(f"v_mov_b32 {chk}, 0")
        self.fst(0, "wo")
        if self.o.fine == "wo": A("s_mov_b32 s99, 0")
        if self.o.gate:
            self.set_exec(0x000F000F, 0x000F000F)
            A("L_wog:")
            A(f"global_load_dwordx2 {TR(16,2)}, {a}, {SC_} sc1"); A("s_waitcnt vmcnt(0)")
            A(f"v_max_u32 {chk}, {mv}, {lv}")
            self.poll_tail(chk, "L_wog", "L_wog_d", sleep=self.o.gatesleep)
            A("L_wog_d:")
        if self.o.wopre:
            A(f"s_cmp_eq_u32 {sWAVE}, 0"); A("s_cbranch_scc1 L_wo"); A(f"s_sleep {self.o.wopre}")
        A("L_wo:")
        if self.o.fine == "wo": A("s_add_u32 s99, s99, 1")
        self.fst(1, "wo")
        self.set_exec(0x000F000F, 0x000F000F)
        A(f"global_load_dwordx2 {TR(16,2)}, {a}, {SC_} sc1")
        A("s_mov_b64 exec, -1")
        for tt in range(4):
            A(f"global_load_dwordx4 {TR(4*tt,4)}, {L16}, {SA} offset:{tt*1024} sc1")
        A("s_waitcnt vmcnt(4)")
        self.set_exec(0x000F000F, 0x000F000F)
        A(f"v_max_u32 {chk}, {mv}, {lv}")
        A("s_mov_b64 exec, -1")
        A("s_waitcnt vmcnt(0)")
        self.fst(2, "wo")
        for s in self.maxops(t1, self.chk_regs(T, 0, 4) + [chk]): A(s)
        self.poll_tail(t1, "L_wo", "L_wo_d")
        A("L_wo_d:")
        ops = [f"v_mov_b32_dpp {t1}, {mv} quad_perm:[1,0,3,2] {DPP}", f"v_max_f32 {M}, {mv}, {t1}",
               f"v_mov_b32_dpp {t1}, {M} quad_perm:[2,3,0,1] {DPP}", f"v_max_f32 {M}, {M}, {t1}",
               f"v_mov_b32 {t1}, {M}", f"v_permlane16_swap_b32 {M}, {t1}", f"v_max_f32 {M}, {M}, {t1}",
               f"v_sub_f32 {e}, {mv}, {M}", f"v_exp_f32 {e}, {e}", f"v_mul_f32 {M}, {e}, {lv}",
               f"v_mov_b32_dpp {t1}, {M} quad_perm:[1,0,3,2] {DPP}", f"v_add_f32 {M}, {M}, {t1}",
               f"v_mov_b32_dpp {t1}, {M} quad_perm:[2,3,0,1] {DPP}", f"v_add_f32 {M}, {M}, {t1}",
               f"v_mov_b32 {t1}, {M}", f"v_permlane16_swap_b32 {M}, {t1}", f"v_add_f32 {M}, {M}, {t1}",
               f"v_rcp_f32 {M}, {M}", f"v_mul_f32 {w}, {e}, {M}"]
        for tt in range(4):
            for nt in range(4):
                A(f"v_mfma_f32_16x16x32_bf16 {D[nt]}, {TR(4*tt,4)}, {WR(4*(4*tt+nt),4)}, {'0' if tt == 0 else D[nt]}")
                if ops: A(ops.pop(0))
        for s in ops: A(s)
        acc = [T(41 + nt) for nt in range(4)]
        for r in range(4):
            for nt in range(4):
                op = "v_mul_f32_dpp" if r == 0 else "v_fmac_f32_dpp"
                A(f"{op} {acc[nt]}, {w}, {T(20+4*nt+r)} row_newbcast:{r} {DPP}")
        A(f"v_permlane16_swap_b32 {acc[0]}, {acc[1]}"); A(f"v_permlane16_swap_b32 {acc[2]}, {acc[3]}")
        A(f"v_add_f32 {acc[0]}, {acc[0]}, {acc[1]}"); A(f"v_add_f32 {acc[2]}, {acc[2]}, {acc[3]}")
        self.fst(3, "wo")
        A(f"ds_write_b32 {wa}, {acc[0]}"); A(f"ds_write_b32 {wa}, {acc[2]} offset:256")
        A("s_waitcnt lgkmcnt(0)")
        A("s_barrier")
        self.fst(4, "wo")
        A(f"s_cmp_ge_u32 {sWAVE}, 2"); A("s_cbranch_scc1 L_wo_rs")
        for ww in range(4): A(f"ds_read_b32 {T(ww)}, {ra} offset:{ww*512}")
        A("s_waitcnt lgkmcnt(2)")
        A(f"v_add_f32 {T(0)}, {T(0)}, {T(1)}")
        A("s_waitcnt lgkmcnt(0)")
        A(f"v_add_f32 {T(2)}, {T(2)}, {T(3)}"); A(f"v_add_f32 {T(0)}, {T(0)}, {T(2)}")
        self.p_publish(SB, X(9), T(0), 4)
        self.fst(5, "wo")
        self.stamp(11)
        A("s_branch L_next")
        A("L_wo_rs:")

    def p_addr(self, dst):
        A = self.A; sh = 10 if self.o.playout == 0 else 13
        A(f"v_lshrrev_b32 {dst}, 5, {LANE}"); A(f"v_lshlrev_b32 {dst}, {sh}, {dst}"); A(f"v_and_b32 {TMP}, 31, {LANE}"); A(f"v_lshl_add_u32 {dst}, {TMP}, 2, {dst}")
        A(f"s_and_b32 s68, {sWAVE}, 1"); A(f"s_lshl_b32 s68, s68, {sh+1}"); A(f"v_add_u32 {dst}, s68, {dst}")

    def rs_setup(self):
        A = self.A
        pa, xa, sa = X(8), X(10), X(11)
        A(f"v_lshrrev_b32 {X(12)}, 5, {LANE}"); A(f"s_and_b32 s68, {sWAVE}, 1"); A("s_lshl_b32 s68, s68, 1"); A(f"s_add_u32 s68, s68, {sS4}"); A(f"v_add_u32 {X(12)}, s68, {X(12)}")
        self.p_addr(pa)
        A(f"v_bfe_u32 {TMP}, {LANE}, 4, 1"); A(f"v_mul_u32_u24 {xa}, 896, {TMP}"); A(f"v_lshlrev_b32 {sa}, 8, {TMP}")
        A(f"v_lshl_add_u32 {xa}, {X(12)}, 5, {xa}"); A(f"v_lshl_add_u32 {sa}, {X(12)}, 3, {sa}")
        A(f"v_and_b32 {TMP}, 15, {LANE}"); A(f"v_lshl_add_u32 {xa}, {TMP}, 1, {xa}")
    def stage_rs(self):
        A = self.A
        pa, xa, sa = X(8), X(10), X(11)
        NS = self.o.rsets
        def issue(k):
            for g in range(8): A(f"global_load_dword {T(8*k+g)}, {pa}, {SA} offset:{self.p_poll_off(g)} sc1")
        for k in range(NS - 1): issue(k)
        A("L_rs:")
        for k in range(NS):
            issue((k + NS - 1) % NS)
            A(f"s_waitcnt vmcnt({8*(NS-1)})")
            for s in self.maxops(X(4), [T(8*k+g) for g in range(8)]): A(s)
            A(f"v_cmp_eq_u32 vcc, -1, {X(4)}")
            A(f"s_cbranch_vccz L_rs_ok{k}")
        A(f"s_cmp_eq_u32 {sBUD}, 0"); A("s_cbranch_scc1 L_rs_ok0"); A(f"s_sub_u32 {sBUD}, {sBUD}, 1")
        if self.o.rssleep: A(f"s_sleep {self.o.rssleep}")
        A("s_branch L_rs")
        for k in range(NS):
            A(f"L_rs_ok{k}:")
            b_ = 8 * k
            A(f"v_add_f32 {X(0)}, {T(b_)}, {T(b_+1)}"); A(f"v_add_f32 {X(1)}, {T(b_+2)}, {T(b_+3)}"); A(f"v_add_f32 {X(2)}, {T(b_+4)}, {T(b_+5)}"); A(f"v_add_f32 {X(3)}, {T(b_+6)}, {T(b_+7)}")
            if k != NS - 1: A("s_branch L_rs_d")
        A("L_rs_d:")
        A(f"v_cmp_eq_u32 vcc, 0xffff, {X(13)}")
        A("s_cbranch_vccz L_rsr_d")
        A("L_rsr:")
        A(f"global_load_ushort {X(13)}, {xa}, {SD} sc1"); A("s_waitcnt vmcnt(0)")
        A(f"v_cmp_eq_u32 vcc, 0xffff, {X(13)}")
        A("s_cbranch_vccz L_rsr_d")
        A(f"s_cmp_eq_u32 {sBUD}, 0"); A("s_cbranch_scc1 L_rsr_d"); A(f"s_sub_u32 {sBUD}, {sBUD}, 1")
        A("s_branch L_rsr")
        A("L_rsr_d:")
        A(f"v_add_f32 {X(0)}, {X(0)}, {X(1)}"); A(f"v_add_f32 {X(2)}, {X(2)}, {X(3)}"); A(f"v_lshlrev_b32 {X(6)}, 16, {X(13)}"); A(f"v_add_f32 {X(0)}, {X(0)}, {X(2)}")
        if self.o.round2:
            A(f"v_cvt_pk_bf16_f32 {X(0)}, {X(0)}, {X(0)}"); A(f"v_and_b32 {X(0)}, 0xffff0000, {X(0)}")
        A(f"v_add_f32 {X(0)}, {X(6)}, {X(0)}")
        if self.o.perturb:
            lab = A.label("PT")
            A("s_cmp_eq_u32 s78, 1"); A(f"s_cbranch_scc0 {lab}"); A(f"s_cmp_eq_u32 {sSIG}, 2"); A(f"s_cbranch_scc0 {lab}")
            A("s_mov_b64 exec, 1"); A(f"v_add_f32 {X(0)}, {f32(self.o.perturb)}, {X(0)}"); A("s_mov_b64 exec, -1")
            A(f"{lab}:")
        A(f"v_mov_b32_dpp {X(2)}, {X(0)} quad_perm:[1,0,3,2] {DPP}")
        A(f"v_cvt_pk_bf16_f32 {X(3)}, {X(0)}, {X(0)}")
        A(f"v_cvt_pk_bf16_f32 {X(1)}, {X(0)}, {X(2)}")
        A("s_cmp_eq_u32 s78, 1"); A("s_cbranch_scc1 L_final")
        self.set_exec(0x55555555, 0x55555555)
        self.pub(f"global_store_dword {xa}, {X(1)}, {SB}")
        A("s_mov_b64 exec, -1")
        A(f"v_and_b32 {X(2)}, 0xffff0000, {X(3)}")
        A(f"v_mul_f32 {X(3)}, {X(2)}, {X(2)}")
        for sh in (1, 2, 4, 8):
            for r in (X(2), X(3)): A(f"v_add_f32_dpp {r}, {r}, {r} row_shr:{sh} {DPP}")
        self.set_exec(0x80008000, 0x80008000)
        self.pub(f"global_store_dwordx2 {sa}, {XR(2,2)}, {SC_}")
        A("s_mov_b64 exec, -1")
        self.stamp(12)
        A("s_waitcnt vmcnt(0)")

    def stage_gu(self):
        A = self.A
        self.gbase(SC_, R_H)
        A(f"v_bfe_u32 {X(7)}, {LANE}, 4, 1"); A(f"v_mul_u32_u24 {X(7)}, 448, {X(7)}"); A(f"v_and_b32 {TMP}, 15, {LANE}"); A(f"v_lshl_add_u32 {X(7)}, {TMP}, 1, {X(7)}")
        A(f"s_lshl_b32 s68, {sSIG}, 4"); A(f"v_add_u32 {X(7)}, s68, {X(7)}")
        self.stage_ln(R_X1, R_ST1, None, 1.0, "L_gu", sleep=self.o.lnsleep, pre=self.o.gupre)
        z = X(4)
        A(f"v_cvt_pk_bf16_f32 {z}, {z}, {z}"); A(f"v_and_b32 {z}, 0xffff0000, {z}")
        A(f"v_mov_b32_dpp {X(5)}, {z} row_ror:8 {DPP}")
        A(f"v_max_f32 {z}, 0, {z}"); A(f"v_mul_f32 {z}, {z}, {X(5)}")
        self.pack_pair(X(5), z, X(6))
        self.set_exec(0x00550055, 0)
        self.pub(f"global_store_dword {X(7)}, {X(5)}, {SC_}")
        A("s_mov_b64 exec, -1")
        self.fst(5)
        self.stamp(13)
        A("s_waitcnt vmcnt(0)")

    def dn_fetch(self):
        A = self.A
        A(f"s_cmp_eq_u32 {sWAVE}, 1"); A("s_cbranch_scc0 L_dn_b")
        self.gbase(SA, R_H)
        A(f"v_add_u32 {X(10)}, {LDS_RED}, {L16}")
        if self.o.dnpre: A(f"s_sleep {self.o.dnpre}")
        self.set_exec(0xFFFFFFFF, 0x00FFFFFF)
        NS = self.o.lnsets
        base = [56, 60]
        for k in range(NS - 1): A(f"global_load_dwordx4 {TR(base[k],4)}, {L16}, {SA} sc1")
        A("L_dn:")
        for k in range(NS):
            A(f"global_load_dwordx4 {TR(base[(k + NS - 1) % NS],4)}, {L16}, {SA} sc1")
            A(f"s_waitcnt vmcnt({NS-1})")
            for s in self.maxops(X(11), [T(base[k] + i) for i in range(4)]): A(s)
            A(f"v_cmp_eq_u32 vcc, -1, {X(11)}")
            A(f"s_cbranch_vccz L_dn_ok{k}")
        A(f"s_cmp_eq_u32 {sBUD}, 0"); A("s_cbranch_scc1 L_dn_ok0"); A(f"s_sub_u32 {sBUD}, {sBUD}, 1")
        A("s_branch L_dn")
        for k in reversed(range(NS)):
            A(f"L_dn_ok{k}:")
            A(f"ds_write_b128 {X(10)}, {TR(base[k],4)}")
            if k != 0: A("s_branch L_dn_w")
        A("L_dn_w:")
        A("s_mov_b64 exec, -1")
        A("s_waitcnt lgkmcnt(0)")
        A("L_dn_b:")
        A("s_barrier")
    def stage_dn(self):
        A = self.A
        a = X(8)
        A(f"v_and_b32 {a}, 1, {LANE}"); A(f"v_mul_u32_u24 {a}, 448, {a}"); A(f"v_lshrrev_b32 {TMP}, 4, {LANE}"); A(f"v_lshl_add_u32 {a}, {TMP}, 4, {a}")
        A(f"v_add_u32 {a}, {LDS_RED}, {a}")
        self.cbase(SB, 1, consumer=False)
        self.p_store_addr(X(9))
        self.dn_fetch()
        A(f"s_cmp_ge_u32 {sWAVE}, 2"); A("s_cbranch_scc0 L_dn_nors")
        self.gbase(SD, R_X1)
        self.rs_setup()
        A(f"global_load_ushort {X(13)}, {X(10)}, {SD} sc1")
        A("s_branch L_dn_rs")
        A("L_dn_nors:")
        D = [XR(0, 4), XR(4, 4)]
        for t in range(7): A(f"ds_read_b128 {TR(4*t,4)}, {a} offset:{t*64}")
        for t in range(7):
            if t in (0, 3, 5): A(f"s_waitcnt lgkmcnt({ {0: 4, 3: 2, 5: 0}[t] })")
            for u in range(2):
                A(f"v_mfma_f32_16x16x32_bf16 {D[u]}, {TR(4*t,4)}, {WR(4*(2*t+u),4)}, {'0' if t == 0 else D[u]}")
        A(f"v_permlane16_swap_b32 {X(0)}, {X(1)}"); A(f"v_permlane16_swap_b32 {X(4)}, {X(5)}")
        A(f"v_permlane32_swap_b32 {X(0)}, {X(4)}")
        self.p_publish(SB, X(9), X(0), 0)
        self.stamp(14)
        A("s_waitcnt vmcnt(0)")

    def stage_q2(self):
        A = self.A
        self.gbase(SC_, R_Q, 1)
        A(f"v_bfe_u32 {X(7)}, {LANE}, 4, 1"); A(f"v_lshlrev_b32 {X(7)}, 10, {X(7)}"); A(f"v_and_b32 {TMP}, 15, {LANE}"); A(f"v_lshl_add_u32 {X(7)}, {TMP}, 1, {X(7)}")
        A(f"s_lshl_b32 s68, {sSIG}, 5"); A(f"v_add_u32 {X(7)}, s68, {X(7)}")
        self.stage_ln(R_X2, R_ST2, 0, QSCALE, "L_qx", sleep=self.o.lnsleep, pre=self.o.wqpre)
        self.pack_pair(X(5), X(4), X(6))
        self.set_exec(0x55555555, 0)
        self.pub(f"global_store_dword {X(7)}, {X(5)}, {SC_}")
        A("s_mov_b64 exec, -1")
        self.stamp(15)
        A("s_waitcnt vmcnt(0)")

    def finish(self):
        A = self.A
        if not self.o.prof: return
        A("s_lshl_b32 s68, s2, 2"); A(f"s_add_u32 s68, s68, {sWAVE}"); A("s_lshl_b32 s68, s68, 7"); A(f"v_mov_b32 {X(0)}, s68")
        A("s_mov_b64 exec, 1")
        for k in range(20):
            A(f"v_mov_b32 {X(1)}, s{80+k}"); A(f"global_store_dword {X(0)}, {X(1)}, {sWS} offset:{4*k}")
        for k in range(9):
            A(f"v_mov_b32 {X(1)}, s{36+k}"); A(f"global_store_dword {X(0)}, {X(1)}, {sWS} offset:{80+4*k}")
        A(f"v_mov_b32 {X(1)}, {sMODE}"); A(f"global_store_dword {X(0)}, {X(1)}, {sWS} offset:116")
        A(f"v_mov_b32 {X(1)}, {sBUD}"); A(f"global_store_dword {X(0)}, {X(1)}, {sWS} offset:120")

    def build(self):
        A = self.A; o = self.o
        self.prologue()
        if o.prof:
            for k in range(9): A(f"s_mov_b32 s{36+k}, 0")
        self.stream()
        A("L_layer:")
        self.get_q()
        self.stamp(6)
        self.attention()
        A(f"s_cmp_eq_u32 {sWAVE}, 0"); A("s_cbranch_scc0 L_nocomb")
        self.combine_publish()
        self.stamp(10)
        A("L_nocomb:")
        A(f"s_cmp_eq_u32 {sROLE}, {ROLE_GU}"); A("s_cbranch_scc1 L_gu_s")
        A(f"s_cmp_eq_u32 {sROLE}, {ROLE_DN}"); A("s_cbranch_scc1 L_dn_s")
        A(f"s_cmp_eq_u32 {sROLE}, {ROLE_WQ}"); A("s_cbranch_scc1 L_wq_s")
        A(f"s_cmp_eq_u32 {sROLE}, {ROLE_WO}"); A("s_cbranch_scc0 L_next")
        self.stage_wo()
        self.cbase(SA, 0); self.gbase(SB, R_X1); self.gbase(SC_, R_ST1); A("s_mov_b32 s78, 0")
        if o.b1gate:
            A(f"s_cmp_eq_u32 {sLAYER}, 0"); A("s_cbranch_scc0 L_rs1pre")
            A(f"v_and_b32 {X(14)}, 7, {LANE}"); A(f"v_lshlrev_b32 {X(14)}, 5, {X(14)}"); A(f"v_add_u32 {X(14)}, 8, {X(14)}")
            A("s_mov_b64 exec, 0xff")
            A(f"global_load_dword {X(15)}, {X(14)}, {sDBG} sc1"); A("s_waitcnt vmcnt(0)")
            A(f"v_cmp_ne_u32 vcc, 32, {X(15)}")
            A("s_cbranch_vccz L_b1_first")
            A("L_b1:")
            A(f"s_cmp_eq_u32 {sBUD}, 0"); A("s_cbranch_scc1 L_b1_d"); A(f"s_sub_u32 {sBUD}, {sBUD}, 1")
            if o.b1sleep: A(f"s_sleep {o.b1sleep}")
            A(f"global_load_dword {X(15)}, {X(14)}, {sDBG} sc1"); A("s_waitcnt vmcnt(0)")
            A(f"v_cmp_ne_u32 vcc, 32, {X(15)}")
            A("s_cbranch_vccnz L_b1")
            A("L_b1_d:")
            A(f"s_sleep {o.b1post}")
            A("L_b1_first:")
            A("s_mov_b64 exec, -1")
            A("s_branch L_rs_entry")
            A("L_rs1pre:")
        if o.rspre1: A(f"s_sleep {o.rspre1}")
        A("L_rs_entry:")
        self.stage_rs()
        self.dstamp(6, layer=0)
        A("s_branch L_next")
        A("L_gu_s:")
        self.stage_gu()
        A("s_branch L_next")
        A("L_dn_s:")
        self.stage_dn()
        A("s_branch L_next")
        A("L_dn_rs:")
        self.cbase(SA, 1); self.gbase(SB, R_X2); self.gbase(SC_, R_ST2); A(f"s_mov_b32 s78, {sLAYER}")
        if o.rspre2: A(f"s_sleep {o.rspre2}")
        A("s_branch L_rs_entry")
        A("L_wq_s:")
        A(f"s_cmp_eq_u32 {sLAYER}, 1"); A("s_cbranch_scc1 L_fin")
        self.stage_q2()
        A("L_next:")
        A(f"s_cmp_eq_u32 {sLAYER}, 1"); A("s_cbranch_scc1 L_fin")
        A(f"s_mov_b32 {sLAYER}, 1")
        A("s_branch L_layer")
        A("L_final:")
        A(f"s_cmp_eq_u32 {sGI}, 0"); A("s_cbranch_scc0 L_fin")
        self.set_exec(0x55555555, 0x55555555)
        A(f"global_store_dword {X(10)}, {X(1)}, {sOUT}")
        A(f"s_cmp_eq_u32 {sSIG}, 2"); A("s_cbranch_scc0 L_noep")
        A("s_mov_b64 exec, 1")
        A(f"v_mov_b32 {X(2)}, {EOFF}"); A(f"v_mov_b32 {X(3)}, {sTAG}")
        A(f"global_store_dword {X(2)}, {X(3)}, {sWS}")
        A("L_noep:")
        A("s_mov_b64 exec, -1")
        A("L_fin:")
        self.dstamp(10)
        self.stamp(16)
        self.finish()
        A("L_end:")
        A("s_endpgm")
        for t in self.tail_code: A(t)
        lines, n = hazard.fix(A.L, verbose=o.verbose)
        A.L = lines
        return A

def main():
    ap = argparse.ArgumentParser()
    ap.add_argument("-o", default="k3.s")
    ap.add_argument("--prof", action="store_true")
    ap.add_argument("--slow", action="store_true")
    ap.add_argument("--nt", type=int, default=1)
    ap.add_argument("--wnt", type=int, default=1)
    ap.add_argument("--win", type=int, default=12)
    ap.add_argument("--winv", type=int, default=60)
    ap.add_argument("--budget", type=int, default=200000)
    ap.add_argument("--gate", type=int, default=0)
    ap.add_argument("--gatesleep", type=int, default=1)
    ap.add_argument("--qsleep", type=int, default=1)
    ap.add_argument("--trypoll", type=int, default=6)
    ap.add_argument("--k0", type=int, default=1)
    ap.add_argument("--prefetch", type=int, default=0)
    ap.add_argument("--rsets", type=int, default=1)
    ap.add_argument("--lnsleep", type=int, default=0)
    ap.add_argument("--playout", type=int, default=0)
    ap.add_argument("--ncopies", type=int, default=8)
    ap.add_argument("--rspre1", type=int, default=10)
    ap.add_argument("--rspre2", type=int, default=12)
    ap.add_argument("--rssleep", type=int, default=0)
    ap.add_argument("--wopre", type=int, default=0)
    ap.add_argument("--gupre", type=int, default=0)
    ap.add_argument("--wqpre", type=int, default=0)
    ap.add_argument("--dnpre", type=int, default=0)
    ap.add_argument("--qpre", type=int, default=0)
    ap.add_argument("--lnsets", type=int, default=2)
    ap.add_argument("--gupf", type=int, default=1)
    ap.add_argument("--gudelay", type=int, default=3)
    ap.add_argument("--wqpf", type=int, default=0)
    ap.add_argument("--b1gate", type=int, default=0)
    ap.add_argument("--b1sleep", type=int, default=2)
    ap.add_argument("--b1post", type=int, default=8)
    ap.add_argument("--pfdn", type=int, default=8)
    ap.add_argument("--pfnone", type=int, default=20)
    ap.add_argument("--wstep", type=int, default=4)
    ap.add_argument("--esplit", type=int, default=1)
    ap.add_argument("--qsets", type=int, default=2)
    ap.add_argument("--pf4", type=int, default=1)
    ap.add_argument("--exp", default="")
    ap.add_argument("--perturb", type=float, default=0.0)
    ap.add_argument("--vdist", type=int, default=3)
    ap.add_argument("--fullcheck", type=int, default=0)
    ap.add_argument("--round2", type=int, default=0)
    ap.add_argument("--stamps", default=None)
    ap.add_argument("--verbose", action="store_true")
    ap.add_argument("--dbgstamps", action="store_true")
    ap.add_argument("--fine", default="")
    o = ap.parse_args()
    g = Gen(o); A = g.build(); A.write(o.o)
    print("wrote", o.o, len(A.L), "lines")
main()
```

```python
import sys, argparse, struct
from asmlib import Asm, NAME
import hazard

GOFF = 0x100000; LSTRIDE = 0x8000
R_Q = 0x0000; R_ML = 0x0800; R_X1 = 0x0A00; R_ST1 = 0x1100; R_H = 0x1300; R_X2 = 0x1800; R_ST2 = 0x1F00; R_O = 0x4000
COFF = GOFF + 0x80000
EOFF = 0x0F0000
QTOFF = 0x0F8000
TAGC = 0x9E3779B9
NLDS = 19
VW = NLDS * 2048
LDS_OP = 4 * VW; LDS_MLP = LDS_OP + 4096; LDS_QL = LDS_MLP + 64; LDS_FLAG = LDS_QL + 512; LDS_RED = LDS_FLAG + 64
assert LDS_RED + 2048 <= 163840
LOG2E = 1.4426950408889634
QSCALE = LOG2E / 16.0
ROLE_WQ, ROLE_WO, ROLE_GU, ROLE_DN, ROLE_NONE = 0, 1, 2, 3, 4

def f32(x): return "0x%08x" % struct.unpack("<I", struct.pack("<f", x))[0]
def X(n): assert 0 <= n < 20; return f"v{4+n}"
def T(n): assert 0 <= n < 64; return f"v{24+n}"
def W(n): assert 0 <= n < 64; return f"v{88+n}"
def VR(n): assert 0 <= n < 104; return f"v{152+n}"
def rng(f, a, n):
    s = f(a); k = int(s[1:]); assert n == 1 or k % 2 == 0, (s, n); return f"{s[0]}[{k}:{k+n-1}]"
def XR(a, n): return rng(X, a, n)
def TR(a, n): return rng(T, a, n)
def WR(a, n): return rng(W, a, n)
def VRR(a, n): return rng(VR, a, n)
LANE = "v0"; CS = "v1"; L16 = "v2"; TMP = "v3"
sM0B = "s3"
sXIN = "s[4:5]"
sOUT = "s[16:17]"; sDBG = "s[18:19]"; sWS = "s[20:21]"; sG = "s[22:23]"; sC = "s[24:25]"
sWAVE = "s26"; sGI = "s27"; sJ = "s28"; sHL = "s29"; sB = "s30"; sSP = "s31"
sMODE = "s32"; sBUD = "s33"; sLAYER = "s34"; sTILE = "s35"
sADV = "s101"; sTAG = "s46"; sROLE = "s6"; sSIG = "s7"; sS4 = "s47"
sSEL = "s[60:61]"
sMA = "s[54:55]"
SA = "s[70:71]"; SB = "s[72:73]"; SC_ = "s[74:75]"; SD = "s[64:65]"
WBAR = "v[14:15]"; WBAR0 = "v14"; WBAR1 = "v15"
DPP = "row_mask:0xf bank_mask:0xf"

class Gen:
    def __init__(self, opt):
        self.o = opt; self.A = Asm(); self.ob = 0; self.tail_code = []
    def stamp(self, k):
        if not self.o.prof: return
        if self.o.stamps is not None and k not in [int(x) for x in self.o.stamps.split(",")]: return
        A = self.A
        A("s_memrealtime s[76:77]"); A("s_waitcnt lgkmcnt(0)")
        if 6 <= k <= 14:
            A(f"s_cmp_eq_u32 {sLAYER}, 0"); A(f"s_cselect_b32 s{80+k}, s76, s{80+k}"); A(f"s_cselect_b32 s{30+k}, s{30+k}, s76")
        else:
            A(f"s_mov_b32 s{80+k}, s76")
    def dstamp(self, word, neg=False, layer=None):
        if not self.o.dbgstamps: return
        A = self.A
        lab = A.label("DS")
        A("s_cmp_eq_u32 s2, 176"); A(f"s_cbranch_scc0 {lab}"); A(f"s_cmp_eq_u32 {sWAVE}, 0"); A(f"s_cbranch_scc0 {lab}")
        if layer is not None:
            A(f"s_cmp_eq_u32 {sLAYER}, {layer}"); A(f"s_cbranch_scc0 {lab}")
        A("s_memrealtime s[76:77]"); A("s_waitcnt lgkmcnt(0)")
        A(f"v_mov_b32 v86, s76"); A(f"v_mov_b32 v87, {4*word}")
        A("s_mov_b64 s[78:79], exec"); A("s_mov_b64 exec, 1")
        A(f"global_store_dword v87, v86, {sDBG}")
        A("s_mov_b64 exec, s[78:79]")
        A(f"{lab}:")
    def fst(self, k, which="ln"):
        if self.o.fine != which: return
        A = self.A
        A("s_memtime s[76:77]"); A("s_waitcnt lgkmcnt(0)"); A(f"s_mov_b32 s{90+k}, s76")
    def gbase(self, dst, off, layer=None):
        A = self.A; d = int(dst[2:dst.index(":")])
        if layer is None:
            A(f"s_mul_i32 s68, {sLAYER}, {LSTRIDE}"); A(f"s_add_u32 s68, s68, {off}")
            A(f"s_add_u32 s{d}, s22, s68")
        else:
            A(f"s_add_u32 s{d}, s22, {off + layer*LSTRIDE}")
        A(f"s_addc_u32 s{d+1}, s23, 0")
    def cbase(self, dst, kind, consumer=True):
        A = self.A; d = int(dst[2:dst.index(":")]); L = self.o.playout
        A(f"s_lshl_b32 s68, {sLAYER}, 19"); A(f"s_lshl_b32 s69, {sS4}, {10 if L == 0 else 13}"); A("s_add_u32 s68, s68, s69")
        if consumer:
            sh = {0: 15, 1: 7, 2: 10}[L]; extra = {0: 0, 1: 4096, 2: 0}[L]
        else:
            sh = {0: 7, 1: 10, 2: 7}[L]; extra = {0: 0, 1: 0, 2: 4096}[L]
        if consumer and self.o.ncopies < 8: A(f"s_and_b32 s69, {sGI}, {self.o.ncopies - 1}"); A(f"s_lshl_b32 s69, s69, {sh}")
        else: A(f"s_lshl_b32 s69, {sGI}, {sh}")
        A("s_add_u32 s68, s68, s69"); A(f"s_add_u32 s68, s68, {kind*0x40000 + extra}")
        A(f"s_add_u32 s{d}, s24, s68"); A(f"s_addc_u32 s{d+1}, s25, 0")
    def p_store_addr(self, dst):
        self.p_addr(dst)
    def p_publish(self, base, vaddr, val, t4):
        A = self.A; d = int(base[2:base.index(":")]); N = self.o.ncopies
        for c in range(N):
            A(f"global_store_dword {vaddr}, {val}, {base} sc1")
            if c != N - 1: A(f"s_add_u32 s{d}, s{d}, 0x8000"); A(f"s_addc_u32 s{d+1}, s{d+1}, 0")
    def p_poll_off(self, g):
        return {0: g * 128, 1: g * 1024 - 4096, 2: g * 128}[self.o.playout]
    def maxops(self, dst, regs, first=True):
        out = []; regs = list(regs)
        if first:
            if len(regs) >= 3: out.append(f"v_max3_u32 {dst}, {regs[0]}, {regs[1]}, {regs[2]}"); regs = regs[3:]
            elif len(regs) == 2: out.append(f"v_max_u32 {dst}, {regs[0]}, {regs[1]}"); regs = []
            else: out.append(f"v_mov_b32 {dst}, {regs[0]}"); regs = []
        while len(regs) >= 2:
            out.append(f"v_max3_u32 {dst}, {dst}, {regs[0]}, {regs[1]}"); regs = regs[2:]
        if regs: out.append(f"v_max_u32 {dst}, {dst}, {regs[0]}")
        return out
    def chk_regs(self, f, base, nload):
        if self.o.fullcheck: return [f(base + k) for k in range(4 * nload)]
        return [f(base + 4 * k) for k in range(nload)]
    def poll_tail(self, chk, loop, done, sleep=0):
        A = self.A
        A(f"v_cmp_eq_u32 vcc, -1, {chk}")
        A(f"s_cbranch_vccz {done}")
        A(f"s_cmp_eq_u32 {sBUD}, 0"); A(f"s_cbranch_scc1 {done}")
        A(f"s_sub_u32 {sBUD}, {sBUD}, 1")
        if sleep: A(f"s_sleep {sleep}")
        A(f"s_branch {loop}")
    def gate(self, base, vaddr, off, dst, lab):
        if not self.o.gate: return
        A = self.A
        A(f"{lab}:")
        A(f"global_load_dword {dst}, {vaddr}, {base} offset:{off} sc1"); A("s_waitcnt vmcnt(0)")
        self.poll_tail(dst, lab, lab + "_d", sleep=self.o.gatesleep)
        A(f"{lab}_d:")
    def pub(self, instr):
        A = self.A
        l1 = A.label("PUBS"); l2 = A.label("PUBD")
        A(f"s_cmp_eq_u32 {sMODE}, 1"); A(f"s_cbranch_scc0 {l1}")
        A(instr); A(f"{l2}:")
        self.tail_code += [f"{l1}:", instr + " sc1", f"s_branch {l2}"]
    def set_exec(self, lo, hi):
        A = self.A
        if lo == 0xFFFFFFFF and hi == 0xFFFFFFFF: A("s_mov_b64 exec, -1"); return
        A(f"s_mov_b32 exec_lo, {hex(lo)}"); A(f"s_mov_b32 exec_hi, {hex(hi)}")
    def ln_addr(self, dst):
        A = self.A
        A(f"v_and_b32 {dst}, 1, {LANE}"); A(f"v_mul_u32_u24 {dst}, 896, {dst}")
        A(f"v_lshrrev_b32 {TMP}, 4, {LANE}"); A(f"v_lshl_add_u32 {dst}, {TMP}, 4, {dst}")
    def xst_addr(self, dst):
        A = self.A
        A(f"v_bfe_u32 {TMP}, {LANE}, 4, 1"); A(f"v_mul_u32_u24 {dst}, 896, {TMP}")
        A(f"v_and_b32 {TMP}, 15, {LANE}"); A(f"v_lshl_add_u32 {dst}, {TMP}, 1, {dst}")
        A(f"s_lshl_b32 s68, {sSIG}, 5"); A(f"v_add_u32 {dst}, s68, {dst}")
    def pack_pair(self, dst, val, tmp):
        A = self.A
        A(f"v_mov_b32_dpp {tmp}, {val} quad_perm:[1,0,3,2] {DPP}")
        A(f"v_cvt_pk_bf16_f32 {dst}, {val}, {tmp}")

    def prologue(self):
        A = self.A; o = self.o
        wnt = " nt" if o.wnt else ""
        A(f"""
        s_cmp_ge_u32 s2, 256
        s_cbranch_scc1 L_end
        {"s_memrealtime s[100:101]" if o.dbgstamps else ""}
        s_load_dwordx2 s[8:9], s[0:1], 8
        s_load_dwordx16 s[36:51], s[0:1], 0
        s_load_dwordx8 s[52:59], s[0:1], 64
        v_lshrrev_b32 v1, 6, v0
        v_and_b32 v0, 63, v0
        s_and_b32 {sGI}, s2, 7
        v_readfirstlane_b32 {sWAVE}, v1
        s_lshr_b32 {sJ}, s2, 3
        s_lshr_b32 s68, {sJ}, 3
        s_and_b32 {sSP}, {sJ}, 7
        s_and_b32 {sHL}, s68, 1
        s_lshr_b32 {sB}, s68, 1
        s_lshl_b32 s68, {sGI}, 1
        s_add_u32 s68, s68, {sHL}
        s_lshl_b32 s69, {sB}, 4
        s_add_u32 s68, s68, s69
        s_lshl_b32 {sTILE}, s68, 21
        s_lshl_b32 s68, {sSP}, 15
        s_add_u32 {sTILE}, {sTILE}, s68
        s_lshl_b32 s68, {sWAVE}, 13
        s_add_u32 {sTILE}, {sTILE}, s68
        s_mov_b32 s10, 0x4000000
        s_mov_b32 s11, 0x00020000
        """)
        vK = X(18)
        A(f"v_lshrrev_b32 {X(9)}, 4, {LANE}")
        A(f"v_and_b32 {vK}, 3, {LANE}"); A(f"v_lshlrev_b32 {vK}, 4, {vK}"); A(f"v_lshl_add_u32 {vK}, {X(9)}, 6, {vK}")
        A(f"v_bfe_u32 {TMP}, {LANE}, 2, 2"); A(f"v_lshl_add_u32 {vK}, {TMP}, 11, {vK}")
        A("s_waitcnt lgkmcnt(0)")
        self.ob = 0
        self.ktile(0, 64)
        A(f"""
        s_mov_b32 {sBUD}, {o.budget}
        s_mov_b32 {sLAYER}, 0
        s_mov_b32 {sMODE}, 0
        s_mov_b32 s60, 0xffff0000
        s_mov_b32 s61, 0xffff0000
        v_lshlrev_b32 {L16}, 4, {LANE}
        v_mov_b32 {CS}, 0
        s_mul_i32 {sM0B}, {sWAVE}, {VW}
        """)
        A(f"v_and_b32 {X(8)}, 15, {LANE}"); A(f"v_lshlrev_b32 {X(19)}, 11, {X(9)}"); A(f"v_lshl_add_u32 {X(19)}, {X(8)}, 4, {X(19)}")
        A(f"s_mov_b32 {sROLE}, {ROLE_WQ}"); A(f"s_mov_b32 s62, {sJ}")
        for (lim, role) in ((8, ROLE_WO), (15, ROLE_GU), (22, ROLE_DN), (29, ROLE_NONE)):
            A(f"s_cmp_ge_u32 {sJ}, {lim}"); A(f"s_cselect_b32 {sROLE}, {role}, {sROLE}"); A(f"s_sub_u32 s68, {sJ}, {lim}")
            A(f"s_cmp_ge_u32 {sJ}, {lim}"); A("s_cselect_b32 s62, s68, s62")
        A(f"s_lshl_b32 {sSIG}, s62, 2"); A(f"s_add_u32 {sSIG}, {sSIG}, {sWAVE}")
        self.stamp(0)
        if o.prof:
            for k in range(1, 20): A(f"s_mov_b32 s{80+k}, 0")
        A(f"""
        s_load_dword {sTAG}, s[58:59], {EOFF}
        s_sub_u32 {sS4}, {sSIG}, {sWAVE}
        s_mov_b32 s12, s40
        s_mov_b32 s13, s41
        s_mov_b32 s14, 0x4000000
        s_mov_b32 s15, 0x00020000
        s_mov_b32 s4, s36
        s_mov_b32 s5, s37
        s_mov_b32 s16, s54
        s_mov_b32 s17, s55
        s_mov_b32 s18, s56
        s_mov_b32 s19, s57
        s_mov_b32 s20, s58
        s_mov_b32 s21, s59
        s_lshl_b32 s68, {sGI}, 16
        s_add_u32 s68, s68, {GOFF}
        s_add_u32 s22, s58, s68
        s_addc_u32 s23, s59, 0
        s_add_u32 s24, s58, {COFF}
        s_addc_u32 s25, s59, 0
        s_mov_b64 s[70:71], s[58:59]
        s_mov_b64 s[72:73], s[58:59]
        s_mov_b64 s[74:75], s[58:59]
        """)
        if o.dbgstamps:
            A("s_cmp_eq_u32 s2, 176"); A("s_cbranch_scc0 L_ds0"); A(f"s_cmp_eq_u32 {sWAVE}, 0"); A("s_cbranch_scc0 L_ds0")
            A("v_mov_b32 v86, s100"); A("v_mov_b32 v87, 8"); A("s_mov_b64 exec, 1")
            A(f"global_store_dword v87, v86, {sDBG}"); A("s_mov_b64 exec, -1")
            A("L_ds0:")
            self.dstamp(3)
        if o.prefetch: self.prefetch_weights()
        if o.gupf:
            assert o.k0 == 1
            A(f"s_cmp_ge_u32 {sROLE}, {ROLE_DN}"); A("s_cbranch_scc0 L_nogupf")
            self.prefetch_gu()
            A("L_nogupf:")
            A(f"s_cmp_eq_u32 {sROLE}, {ROLE_GU}"); A(f"s_cselect_b32 {sADV}, 1, 0")
            if o.wqpf:
                A(f"s_cmp_eq_u32 {sROLE}, {ROLE_WQ}"); A(f"s_cselect_b32 {sADV}, 1, {sADV}")
                A(f"s_cmp_eq_u32 {sROLE}, {ROLE_GU}"); A("s_cbranch_scc0 L_nowqpf")
                self.prefetch_wq()
                A("L_nowqpf:")
            if o.wopf:
                A(f"s_cmp_eq_u32 {sROLE}, {ROLE_WO}"); A(f"s_cselect_b32 {sADV}, 1, {sADV}")
                A(f"s_cmp_eq_u32 {sROLE}, {ROLE_GU}"); A("s_cbranch_scc0 L_nowopf")
                A(f"s_mul_i32 s68, {sGI}, 458752"); A(f"s_mul_i32 s69, {sSIG}, {o.wopf*1024}"); A("s_add_u32 s68, s68, s69"); A(f"v_add_u32 {X(11)}, s68, {L16}")
                for k in range(o.wopf):
                    A(f"global_load_dwordx4 a[{192+4*k}:{195+4*k}], {X(11)}, s[44:45]" + (f" offset:{(k%4)*1024}" if k % 4 else ""))
                    if k % 4 == 3: A(f"v_add_u32 {X(11)}, 4096, {X(11)}")
                A("L_nowopf:")
            A(f"s_cmp_eq_u32 {sADV}, 1"); A("s_cbranch_scc0 L_nogu12")
            for tau in range(1, 1 + o.gudelay): self.ktile(tau, 64)
            A("s_waitcnt vmcnt(24)")
            A("L_nogu12:")
        for tau in range(1, o.k0): self.ktile(tau, 64)
        if 8 * o.k0 + (14 if o.prefetch else 0) > 16: A("s_waitcnt vmcnt(16)")
        row8, c, off = X(2), X(3), X(4)
        A(f"v_lshrrev_b32 {row8}, 3, {LANE}"); A(f"v_and_b32 {c}, 7, {LANE}")
        A(f"s_cmp_eq_u32 {sROLE}, {ROLE_WO}"); A("s_cbranch_scc1 L_w1")
        A(f"s_cmp_eq_u32 {sROLE}, {ROLE_GU}"); A("s_cbranch_scc1 L_w2")
        A(f"s_cmp_eq_u32 {sROLE}, {ROLE_DN}"); A("s_cbranch_scc1 L_w3")
        A(f"s_cmp_eq_u32 {sROLE}, {ROLE_WQ}"); A("s_cbranch_scc1 L_w0")
        A(f"v_mov_b32 {off}, 0"); A("s_mov_b32 s63, 0"); A("s_mov_b32 s66, 0"); A("s_mov_b32 s67, 0")
        A("s_mov_b32 s64, s42"); A("s_mov_b32 s65, s43"); A("s_mov_b32 s78, s42"); A("s_mov_b32 s79, s43")
        A("s_branch L_wdone")
        A("L_w0:")
        A(f"s_mul_i32 s68, {sWAVE}, 112"); A(f"v_add_u32 {X(5)}, s68, {row8}"); A(f"v_lshlrev_b32 {off}, 13, {X(5)}")
        A(f"v_lshl_add_u32 {off}, {c}, 4, {off}"); A(f"s_lshl_b32 s68, {sGI}, 10"); A("s_lshl_b32 s69, s62, 7"); A("s_add_u32 s68, s68, s69"); A(f"v_add_u32 {off}, s68, {off}")
        A("s_mov_b32 s63, 14"); A(f"s_mov_b32 s66, {8*8192}"); A(f"s_mul_i32 s67, {sWAVE}, 14336")
        A("s_mov_b32 s64, s42"); A("s_mov_b32 s65, s43"); A("s_mov_b32 s78, s42"); A("s_mov_b32 s79, s43")
        A(f"s_cmp_eq_u32 {sWAVE}, 0"); A("s_cbranch_scc0 L_nox")
        A(f"s_mov_b32 m0, {LDS_RED}")
        A(f"global_load_lds_dwordx4 {L16}, {sXIN}")
        self.set_exec(0xFFFFFFFF, 0x0000FFFF)
        A(f"global_load_lds_dwordx4 {L16}, {sXIN} offset:1024")
        A("s_mov_b64 exec, -1")
        A("L_nox:")
        A("s_branch L_wdone")
        A("L_w1:")
        A(f"v_and_b32 {X(5)}, 3, {row8}"); A(f"v_lshlrev_b32 {X(5)}, 3, {X(5)}"); A(f"v_lshrrev_b32 {X(6)}, 2, {row8}"); A(f"v_add_u32 {X(5)}, {X(5)}, {X(6)}")
        A(f"s_lshl_b32 s68, {sGI}, 9"); A(f"s_lshl_b32 s69, {sWAVE}, 7"); A("s_add_u32 s68, s68, s69"); A(f"v_add_u32 {X(5)}, s68, {X(5)}")
        A(f"v_mul_u32_u24 {off}, 896, {X(5)}"); A(f"v_lshl_add_u32 {off}, {c}, 4, {off}"); A("s_lshl_b32 s68, s62, 7"); A(f"v_add_u32 {off}, s68, {off}")
        A(f"v_lshrrev_b32 {X(12)}, 5, {LANE}"); A(f"s_and_b32 s68, {sWAVE}, 1"); A("s_lshl_b32 s68, s68, 1"); A(f"s_add_u32 s68, s68, {sS4}"); A(f"v_add_u32 {X(12)}, s68, {X(12)}")
        A(f"v_bfe_u32 {TMP}, {LANE}, 4, 1"); A(f"v_mul_u32_u24 {X(10)}, 896, {TMP}"); A(f"v_lshl_add_u32 {X(10)}, {X(12)}, 5, {X(10)}")
        A(f"v_and_b32 {TMP}, 15, {LANE}"); A(f"v_lshl_add_u32 {X(10)}, {TMP}, 1, {X(10)}")
        A(f"global_load_ushort {CS}, {X(10)}, {sXIN}")
        A("s_mov_b32 s63, 16"); A("s_mov_b32 s66, 0"); A(f"s_mov_b32 s67, {sM0B}")
        A("s_mov_b32 s64, s44"); A("s_mov_b32 s65, s45"); A("s_mov_b32 s78, s44"); A("s_mov_b32 s79, s45")
        A("s_branch L_wdone")
        A("L_w2:")
        A(f"s_mul_i32 s68, {sWAVE}, 112"); A(f"v_add_u32 {X(5)}, s68, {row8}"); A(f"v_mul_u32_u24 {off}, 3584, {X(5)}")
        A(f"v_and_b32 {X(6)}, 3, {c}"); A(f"v_lshl_add_u32 {off}, {X(6)}, 4, {off}")
        A(f"s_mul_i32 s68, {sGI}, 448"); A("s_lshl_b32 s69, s62, 6"); A("s_add_u32 s68, s68, s69"); A(f"v_add_u32 {off}, s68, {off}")
        A("s_mov_b32 s63, 14"); A(f"s_mov_b32 s66, {8*3584}"); A(f"s_mul_i32 s67, {sWAVE}, 14336")
        A("s_mov_b32 s64, s48"); A("s_mov_b32 s65, s49"); A("s_mov_b32 s78, s50"); A("s_mov_b32 s79, s51")
        A("s_branch L_wdone")
        A("L_w3:")
        A(f"s_mul_i32 s68, {sGI}, 224"); A(f"s_mul_i32 s69, {sWAVE}, 56"); A("s_add_u32 s68, s68, s69"); A(f"v_add_u32 {X(5)}, s68, {row8}")
        A(f"v_mul_u32_u24 {off}, 896, {X(5)}"); A(f"v_lshl_add_u32 {off}, {c}, 4, {off}"); A("s_lshl_b32 s68, s62, 7"); A(f"v_add_u32 {off}, s68, {off}")
        A("s_mov_b32 s63, 7"); A(f"s_mov_b32 s66, {8*896}"); A(f"s_mul_i32 s67, {sWAVE}, 7168")
        A("s_mov_b32 s64, s52"); A("s_mov_b32 s65, s53"); A("s_mov_b32 s78, s52"); A("s_mov_b32 s79, s53")
        A("L_wdone:")
        A(f"v_cmp_le_u32 vcc, 4, {c}")
        A(f"v_mov_b32 {X(0)}, s64"); A(f"v_mov_b32 {X(5)}, s78"); A(f"v_cndmask_b32 {X(0)}, {X(0)}, {X(5)}, vcc")
        A(f"v_mov_b32 {X(1)}, s65"); A(f"v_mov_b32 {X(5)}, s79"); A(f"v_cndmask_b32 {X(1)}, {X(1)}, {X(5)}, vcc")
        A(f"v_add_co_u32 {X(0)}, vcc, {X(0)}, {off}"); A(f"v_addc_co_u32 {X(1)}, vcc, 0, {X(1)}, vcc")
        A("s_mov_b32 s68, s67"); A("s_mov_b32 s69, 0")
        if "now" in self.o.exp: A("s_mov_b32 s63, 0")
        if "nogu" in self.o.exp:
            A(f"s_cmp_eq_u32 {sROLE}, {ROLE_GU}"); A("s_cselect_b32 s63, 0, s63")
        A("s_cmp_eq_u32 s63, 0"); A("s_cbranch_scc1 L_wld_done")
        A("L_wld:")
        A("s_mov_b32 m0, s68")
        A("s_add_u32 s68, s68, 1024")
        A(f"global_load_lds_dwordx4 {XR(0,2)}, off{wnt}")
        A("s_add_u32 s69, s69, 1"); A("s_and_b32 s62, s69, 3"); A("s_cmp_eq_u32 s62, 0"); A(f"s_mov_b32 s76, {26*896}"); A(f"s_cselect_b32 s62, s76, {2*896}")
        A(f"s_cmp_eq_u32 {sROLE}, {ROLE_WO}"); A("s_cselect_b32 s62, s62, s66")
        A(f"v_add_co_u32 {X(0)}, vcc, s62, {X(0)}"); A(f"v_addc_co_u32 {X(1)}, vcc, 0, {X(1)}, vcc")
        A("s_cmp_lt_u32 s69, s63"); A("s_cbranch_scc1 L_wld")
        A("L_wld_done:")
        A("s_mov_b32 s48, 0x22222222"); A("s_mov_b32 s49, 0x22222222"); A("s_mov_b32 s50, 0x44444444"); A("s_mov_b32 s51, 0x44444444")
        A("s_mov_b32 s52, 0x88888888"); A("s_mov_b32 s53, 0x88888888")
        A("s_mov_b32 s54, 0x03030303"); A("s_mov_b32 s55, 0x03030303")
        A("s_mov_b32 s56, 0x0c0c0c0c"); A("s_mov_b32 s57, 0x0c0c0c0c"); A("s_mov_b32 s58, 0x30303030"); A("s_mov_b32 s59, 0x30303030")
        A("s_mov_b32 s62, 0xc0c0c0c0"); A("s_mov_b32 s63, 0xc0c0c0c0")
        A(f"s_cmp_eq_u32 {sWAVE}, 3"); A("s_cbranch_scc0 L_noclr")
        for k in range(4): A(f"v_mov_b32 {X(12+k)}, -1")
        A(f"s_lshl_b32 s68, {sJ}, 11"); A(f"v_add_u32 {X(8)}, s68, {L16}")
        A(f"global_store_dwordx4 {X(8)}, {XR(12,4)}, {sG} sc1"); A(f"global_store_dwordx4 {X(8)}, {XR(12,4)}, {sG} offset:1024 sc1")
        A(f"s_lshl_b32 s68, s2, 12"); A(f"v_add_u32 {X(9)}, s68, {L16}")
        for k in range(4): A(f"global_store_dwordx4 {X(9)}, {XR(12,4)}, {sC} offset:{k*1024} sc1")
        A("L_noclr:")

    def prefetch_gu(self):
        A = self.A; o = self.o
        nd, nn = o.pfdn, o.pfnone
        f = " nt" if o.gupf == 2 else ""
        A(f"s_mul_i32 s78, {sSIG}, {nd}")
        A(f"s_mul_i32 s69, {sSIG}, {nn}"); A(f"s_add_u32 s69, s69, {28*nd}")
        A(f"s_cmp_eq_u32 {sROLE}, {ROLE_NONE}"); A("s_cselect_b32 s78, s69, s78")
        A(f"v_lshrrev_b32 {X(11)}, 5, {LANE}"); A(f"v_mul_u32_u24 {X(11)}, 3584, {X(11)}"); A(f"v_and_b32 {X(12)}, 31, {LANE}"); A(f"v_lshl_add_u32 {X(11)}, {X(12)}, 4, {X(11)}")
        A(f"s_mul_i32 s68, s78, 3584"); A(f"s_mul_i32 s69, {sGI}, 448"); A("s_add_u32 s68, s68, s69"); A(f"v_add_u32 {X(11)}, s68, {X(11)}")
        self.set_exec(0x0FFFFFFF, 0x0FFFFFFF)
        d = [128]
        def rows(k0, k1):
            for (lo, hi) in (("s48", "s49"), ("s50", "s51")):
                A(f"s_mov_b32 s72, {lo}"); A(f"s_mov_b32 s73, {hi}"); A(f"s_mov_b32 s74, {448*3584}"); A("s_mov_b32 s75, 0x00020000")
                for k in range(k0, k1):
                    A(f"s_mov_b32 s69, {k*7168}")
                    A(f"buffer_load_dwordx4 a[{d[0]}:{d[0]+3}], {X(11)}, s[72:75], s69 offen{f}"); d[0] += 4
        rows(0, nd // 2)
        A(f"s_cmp_eq_u32 {sROLE}, {ROLE_NONE}"); A("s_cbranch_scc0 L_pfgu_d")
        rows(nd // 2, nn // 2)
        A("L_pfgu_d:")
        assert d[0] <= 256
        A("s_mov_b64 exec, -1")
        A("s_mov_b64 s[72:73], s[58:59]"); A("s_mov_b64 s[74:75], s[58:59]")

    def prefetch_wq(self):
        A = self.A
        A(f"s_lshl_b32 s68, {sSIG}, 17"); A(f"s_lshl_b32 s69, {sGI}, 10"); A("s_add_u32 s68, s68, s69"); A(f"v_add_u32 {X(11)}, s68, {L16}")
        for k in range(16):
            A(f"global_load_dwordx4 a[{192+4*k}:{195+4*k}], {X(11)}, s[42:43]")
            if k != 15: A(f"v_add_u32 {X(11)}, 8192, {X(11)}")

    def kpos(self, p, win):
        A = self.A; o = self.o
        if not o.gupf:
            self.ktile(p, win); return
        l1 = A.label("KG"); l2 = A.label("KD")
        ob0 = self.ob
        A(f"s_cmp_eq_u32 {sADV}, 1"); A(f"s_cbranch_scc1 {l1}")
        self.ktile(p, win)
        ob1 = self.ob
        A(f"s_branch {l2}"); A(f"{l1}:")
        self.ob = ob0
        if p + o.gudelay <= 7: self.ktile(p + o.gudelay, win)
        A(f"{l2}:")
        self.ob = max(ob1, self.ob)

    def prefetch_weights(self):
        A = self.A
        f = {0: "", 1: "", 2: " nt"}[self.o.prefetch]
        u = "s78"
        A(f"s_lshl_b32 {u}, {sJ}, 2"); A(f"s_add_u32 {u}, {u}, {sWAVE}")
        d = [192]
        def ld(addr, base, off=0):
            A(f"global_load_dwordx4 a[{d[0]}:{d[0]+3}], {addr}, {base}" + (f" offset:{off}" if off else "") + f); d[0] += 4
        A(f"s_cmp_lt_u32 {u}, 112"); A("s_cbranch_scc0 L_pf1")
        A(f"s_lshl_b32 s68, {u}, 15"); A(f"s_lshl_b32 s69, {sGI}, 10"); A("s_add_u32 s68, s68, s69"); A(f"v_add_u32 {X(10)}, s68, {L16}")
        for k in range(4):
            ld(X(10), "s[42:43]")
            if k != 3: A(f"v_add_u32 {X(10)}, 8192, {X(10)}")
        A(f"v_lshrrev_b32 {X(11)}, 5, {LANE}"); A(f"v_mul_u32_u24 {X(11)}, 3584, {X(11)}"); A(f"v_and_b32 {X(12)}, 31, {LANE}"); A(f"v_lshl_add_u32 {X(11)}, {X(12)}, 4, {X(11)}")
        A(f"s_mul_i32 s68, {u}, {4*3584}"); A(f"s_mul_i32 s69, {sGI}, 448"); A("s_add_u32 s68, s68, s69"); A(f"v_add_u32 {X(11)}, s68, {X(11)}")
        A(f"v_add_u32 {X(12)}, 7168, {X(11)}")
        self.set_exec(0x0FFFFFFF, 0x0FFFFFFF)
        for base in ("s[48:49]", "s[50:51]"):
            ld(X(11), base); ld(X(12), base)
        A("s_mov_b64 exec, -1")
        A("L_pf1:")
        d[0] = 224
        A(f"s_mul_i32 s68, {sGI}, 458752"); A(f"s_mul_i32 s69, {u}, 3584"); A("s_add_u32 s68, s68, s69"); A(f"v_add_u32 {X(10)}, s68, {L16}")
        for k in range(3): ld(X(10), "s[44:45]", k * 1024)
        self.set_exec(0xFFFFFFFF, 0)
        ld(X(10), "s[44:45]", 3072)
        A("s_mov_b64 exec, -1")
        A(f"s_mul_i32 s68, {sGI}, 200704"); A(f"s_mul_i32 s69, {u}, 1568"); A("s_add_u32 s68, s68, s69"); A(f"v_add_u32 {X(10)}, s68, {L16}")
        ld(X(10), "s[52:53]")
        self.set_exec(0xFFFFFFFF, 0x3)
        ld(X(10), "s[52:53]", 1024)
        A("s_mov_b64 exec, -1")

    def tr_reads(self):
        A = self.A
        a = X(8); r, c, g4 = X(10), X(9), TMP
        A(f"v_and_b32 {c}, 15, {LANE}"); A(f"v_lshrrev_b32 {r}, 2, {c}"); A(f"v_and_b32 {c}, 3, {c}")
        A(f"v_lshrrev_b32 {a}, 4, {LANE}"); A(f"v_lshlrev_b32 {a}, 3, {a}"); A(f"v_add_u32 {a}, {a}, {r}")
        A(f"v_lshlrev_b32 {a}, 7, {a}")
        A(f"s_cmp_eq_u32 {sROLE}, {ROLE_WO}"); A("s_cbranch_scc1 L_tr_wo")
        A(f"s_cmp_eq_u32 {sROLE}, {ROLE_GU}"); A("s_cbranch_scc1 L_tr_gu")
        A(f"s_cmp_eq_u32 {sROLE}, {ROLE_DN}"); A("s_cbranch_scc1 L_tr_dn")
        A(f"v_lshl_add_u32 {a}, {c}, 3, {a}"); A(f"s_lshl_b32 s68, {sWAVE}, 5"); A(f"v_add_u32 {a}, s68, {a}")
        A("s_branch L_tr_n")
        A("L_tr_gu:")
        A(f"v_and_b32 {r}, 1, {c}"); A(f"v_lshl_add_u32 {a}, {r}, 3, {a}"); A(f"v_lshrrev_b32 {r}, 1, {c}"); A(f"v_lshl_add_u32 {a}, {r}, 6, {a}")
        A(f"s_lshl_b32 s68, {sWAVE}, 4"); A(f"v_add_u32 {a}, s68, {a}")
        A("L_tr_n:")
        for t in range(14):
            A(f"ds_read_b64_tr_b16 {WR(4*t,2)}, {a} offset:{t*4096}")
            A(f"ds_read_b64_tr_b16 {WR(4*t+2,2)}, {a} offset:{t*4096+512}")
            if t % 4 == 3: A("s_waitcnt lgkmcnt(0)")
        A("s_branch L_tr_d")
        A("L_tr_dn:")
        A(f"v_lshl_add_u32 {a}, {c}, 3, {a}"); A(f"s_and_b32 s68, {sWAVE}, 1"); A("s_lshl_b32 s68, s68, 6"); A(f"v_add_u32 {a}, s68, {a}")
        for t in range(7):
            for u in range(2):
                k = 4 * (2 * t + u)
                A(f"ds_read_b64_tr_b16 {WR(k,2)}, {a} offset:{t*4096+u*32}")
                A(f"ds_read_b64_tr_b16 {WR(k+2,2)}, {a} offset:{t*4096+u*32+512}")
            if t % 2 == 1: A("s_waitcnt lgkmcnt(0)")
        A("s_branch L_tr_d")
        A("L_tr_wo:")
        A(f"v_lshl_add_u32 {a}, {c}, 3, {a}"); A(f"v_add_u32 {a}, {sM0B}, {a}")
        for tt in range(4):
            for nt in range(4):
                k = 4 * (4 * tt + nt)
                A(f"ds_read_b64_tr_b16 {WR(k,2)}, {a} offset:{tt*4096+nt*32}")
                A(f"ds_read_b64_tr_b16 {WR(k+2,2)}, {a} offset:{tt*4096+nt*32+512}")
            A("s_waitcnt lgkmcnt(0)")
        A("L_tr_d:")
        A("s_waitcnt lgkmcnt(0)")
        A(f"s_add_u32 {sTAG}, {sTAG}, {hex(TAGC)}")
    def colsum(self):
        A = self.A
        for k in range(4): A(f"v_mov_b32 {X(4+k)}, 0x3f803f80")
        for t in range(14):
            A(f"v_mfma_f32_16x16x32_bf16 {XR(0,4)}, {XR(4,4)}, {WR(4*t,4)}, {'0' if t == 0 else XR(0,4)}")
        A(f"v_mov_b32 {CS}, {X(0)}")

    def ln_scalars(self, s1, s2, scale):
        ops = [f"v_mul_f32 {s1}, {f32(1/448)}, {s1}", f"v_mul_f32 {s2}, {f32(1/448)}, {s2}",
               f"v_fma_f32 {s2}, -{s1}, {s1}, {s2}", f"v_max_f32 {s2}, 0, {s2}", f"v_add_f32 {s2}, {f32(1e-5)}, {s2}", f"v_rsq_f32 {s2}, {s2}"]
        if scale != 1.0: ops.append(f"v_mul_f32 {s2}, {f32(scale)}, {s2}")
        return ops
    def ln_finish(self, mu, rs):
        A = self.A
        A(f"v_permlane16_swap_b32 {X(0)}, {X(1)}")
        A(f"v_fma_f32 {X(4)}, -{mu}, {CS}, {X(0)}")
        A(f"v_mul_f32 {X(4)}, {X(4)}, {rs}")

    def stage_ln(self, rx, rst, layer, scale, lab, sleep=0, pre=0):
        A = self.A
        LX = LDS_RED; LS = LDS_OP
        xa, sa = X(8), X(9)
        self.ln_addr(xa); A(f"v_add_u32 {xa}, {LX}, {xa}")
        A(f"v_bfe_u32 {sa}, {LANE}, 4, 1"); A(f"v_lshlrev_b32 {sa}, 8, {sa}"); A(f"v_lshrrev_b32 {TMP}, 5, {LANE}"); A(f"v_lshl_add_u32 {sa}, {TMP}, 7, {sa}")
        A(f"v_and_b32 {TMP}, 15, {LANE}"); A(f"v_lshl_add_u32 {sa}, {TMP}, 3, {sa}")
        A(f"s_cmp_eq_u32 {sWAVE}, 1"); A(f"s_cbranch_scc0 {lab}_b")
        self.gbase(SA, rx, layer); self.gbase(SB, rst, layer)
        sets = [(TR(60, 4), XR(16, 4), TR(58, 2), [T(60), T(61), T(62), T(63), X(16), X(17), X(18), X(19), T(58), T(59)]),
                (WR(56, 4), WR(60, 4), XR(14, 2), [W(56), W(57), W(58), W(59), W(60), W(61), W(62), W(63), X(14), X(15)])]
        NS = self.o.lnsets
        for k in range(NS):
            for r in sets[k][3][4:]: A(f"v_mov_b32 {r}, 0")
        A(f"v_add_u32 {X(10)}, {LX}, {L16}")
        A(f"v_add_u32 {X(12)}, {LS}, {sa}")
        for _ in range(pre // 120): A("s_sleep 120")
        if pre % 120: A(f"s_sleep {pre % 120}")
        def issue(k):
            A(f"global_load_dwordx4 {sets[k][0]}, {L16}, {SA} sc1")
            self.set_exec(0xFFFFFFFF, 0x0000FFFF)
            A(f"global_load_dwordx4 {sets[k][1]}, {L16}, {SA} offset:1024 sc1")
            self.set_exec(0xFFFFFFFF, 0x0FFF0FFF)
            A(f"global_load_dwordx2 {sets[k][2]}, {sa}, {SB} sc1")
            A("s_mov_b64 exec, -1")
        for k in range(NS - 1): issue(k)
        A(f"{lab}:")
        for k in range(NS):
            issue((k + NS - 1) % NS)
            A(f"s_waitcnt vmcnt({3*(NS-1)})")
            for s in self.maxops(X(13), sets[k][3]): A(s)
            A(f"v_cmp_eq_u32 vcc, -1, {X(13)}")
            A(f"s_cbranch_vccz {lab}_ok{k}")
        A(f"s_cmp_eq_u32 {sBUD}, 0"); A(f"s_cbranch_scc1 {lab}_ok0"); A(f"s_sub_u32 {sBUD}, {sBUD}, 1")
        if sleep: A(f"s_sleep {sleep}")
        A(f"s_branch {lab}")
        for k in reversed(range(NS)):
            A(f"{lab}_ok{k}:")
            A(f"ds_write_b128 {X(10)}, {sets[k][0]}")
            A(f"ds_write_b64 {X(12)}, {sets[k][2]}")
            self.set_exec(0xFFFFFFFF, 0x0000FFFF)
            A(f"ds_write_b128 {X(10)}, {sets[k][1]} offset:1024")
            A("s_mov_b64 exec, -1")
            if k != 0: A(f"s_branch {lab}_w")
        A(f"{lab}_w:")
        A("s_waitcnt lgkmcnt(0)")
        A(f"{lab}_b:")
        A("s_barrier")
        D = XR(0, 4); s1, s2, t1, t2 = X(5), X(6), X(10), X(11)
        A(f"v_add_u32 {sa}, {LS}, {sa}")
        A(f"ds_read_b64 {TR(56,2)}, {sa}")
        for t in range(14): A(f"ds_read_b128 {TR(4*t,4)}, {xa} offset:{t*64}")
        red = [f"v_add_f32_dpp {s1}, {T(56)}, {T(56)} row_ror:8 {DPP}", f"v_add_f32_dpp {s2}, {T(57)}, {T(57)} row_ror:8 {DPP}"]
        for sh in (4, 2, 1):
            red += [f"v_add_f32_dpp {s1}, {s1}, {s1} row_ror:{sh} {DPP}", f"v_add_f32_dpp {s2}, {s2}, {s2} row_ror:{sh} {DPP}"]
        red += [f"v_mov_b32 {t1}, {s1}", f"v_mov_b32 {t2}, {s2}", f"v_permlane32_swap_b32 {s1}, {t1}", f"v_permlane32_swap_b32 {s2}, {t2}",
                f"v_add_f32 {s1}, {s1}, {t1}", f"v_add_f32 {s2}, {s2}, {t2}"]
        red += self.ln_scalars(s1, s2, scale)
        for t in range(14):
            if t in (0, 4, 8): A(f"s_waitcnt lgkmcnt({max(13 - t - 3, 0)})")
            if t == 12: A("s_waitcnt lgkmcnt(0)")
            A(f"v_mfma_f32_16x16x32_bf16 {D}, {TR(4*t,4)}, {WR(4*t,4)}, {'0' if t == 0 else D}")
            n = 2 if t % 2 == 0 else 1
            while n and red: A(red.pop(0)); n -= 1
        for s in red: A(s)
        self.fst(4)
        self.ln_finish(s1, s2)

    def ld_setup(self):
        A = self.A
        vK, vV = X(18), X(19)
        A(f"v_and_b32 {X(8)}, 15, {LANE}"); A(f"v_lshrrev_b32 {X(9)}, 4, {LANE}")
        A(f"v_and_b32 {vK}, 3, {LANE}"); A(f"v_lshlrev_b32 {vK}, 4, {vK}"); A(f"v_lshl_add_u32 {vK}, {X(9)}, 6, {vK}")
        A(f"v_bfe_u32 {TMP}, {LANE}, 2, 2"); A(f"v_lshl_add_u32 {vK}, {TMP}, 11, {vK}")
        A(f"v_lshlrev_b32 {vV}, 11, {X(9)}"); A(f"v_lshl_add_u32 {vV}, {X(8)}, 4, {vV}")
    def throttle(self, win):
        st = self.o.wstep
        if self.ob + 1 > win:
            self.A(f"s_waitcnt vmcnt({win - st})"); self.ob = win - st
        self.ob += 1
    def ktile(self, tau, win):
        A = self.A; f = " nt" if self.o.nt else ""
        A(f"s_add_u32 s68, {sTILE}, {tau*262144}")
        for t in range(8):
            n = tau * 8 + t
            self.throttle(win)
            A(f"buffer_load_dwordx4 a[{4*n}:{4*n+3}], {X(19) if 'kv' in self.o.exp else X(18)}, s[8:11], s68 offen offset:{(t//2)*512 + (t%2)*256}{f}")
    def vtile(self, tau, win, va=None):
        A = self.A; f = " nt" if self.o.nt else ""
        va = va or X(19)
        A(f"s_add_u32 s68, {sTILE}, {tau*262144}")
        for t in range(8):
            n = tau * 8 + t
            imm = (t // 2) * 512 + (t % 2) * 256
            self.throttle(win)
            if n < 2 * NLDS:
                A(f"s_add_u32 m0, {sM0B}, {n*1024 - imm}")
                A(f"buffer_load_dwordx4 {va}, s[12:15], s68 offen offset:{imm}{f} lds")
            else:
                m = n - 2 * NLDS
                A(f"buffer_load_dwordx4 {VRR(4*m,4)}, {va}, s[12:15], s68 offen offset:{imm}{f}")
    def arrive(self):
        A = self.A
        A("s_getreg_b32 s68, hwreg(HW_REG_XCC_ID, 0, 4)"); A("s_and_b32 s68, s68, 7"); A("s_mul_i32 s68, s68, 6")
        A("s_lshl_b64 s[78:79], 1, s68"); A("s_or_b32 s79, s79, 0x01000000")
        A(f"v_mov_b32 {X(10)}, s78"); A(f"v_mov_b32 {X(11)}, s79")
        A(f"s_lshl_b32 s69, {sGI}, 5"); A(f"v_mov_b32 {X(9)}, s69")
        A("s_mov_b64 exec, 1")
        A(f"global_atomic_add_x2 {X(9)}, {XR(10,2)}, {sDBG} sc1")
        A("s_mov_b64 exec, -1")
    def early_q(self):
        A = self.A
        self.ln_addr(X(8)); A(f"v_add_u32 {X(8)}, {LDS_RED}, {X(8)}")
        for k in range(8): A(f"v_mov_b32 {T(56+k)}, 0")
        A(f"v_add_u32 {X(9)}, {LDS_RED}, {L16}")
        self.set_exec(0xFFFFFFFF, 0x00FFFFFF)
        A(f"ds_read_b128 {TR(56,4)}, {X(9)}"); A(f"ds_read_b128 {TR(60,4)}, {X(9)} offset:896")
        A("s_mov_b64 exec, -1")
        for t in range(12): A(f"ds_read_b128 {TR(4*t,4)}, {X(8)} offset:{t*64}")
        A("s_waitcnt lgkmcnt(8)")
        for t in range(12, 14): A(f"ds_read_b128 {TR(4*t,4)}, {X(8)} offset:{t*64}")
        self.colsum()
        A("s_waitcnt lgkmcnt(0)")
        s1a, s2a, s1b, s2b = X(12), X(13), X(14), X(15)
        for (base, s1, s2) in ((56, s1a, s2a), (60, s1b, s2b)):
            A(f"v_mov_b32 {s1}, 0"); A(f"v_mov_b32 {s2}, 0")
            for k in range(4):
                A(f"v_lshlrev_b32 {X(8)}, 16, {T(base+k)}"); A(f"v_and_b32 {X(9)}, 0xffff0000, {T(base+k)}")
                A(f"v_add_f32 {s1}, {s1}, {X(8)}"); A(f"v_fmac_f32 {s2}, {X(8)}, {X(8)}")
                A(f"v_add_f32 {s1}, {s1}, {X(9)}"); A(f"v_fmac_f32 {s2}, {X(9)}, {X(9)}")
        for sh in (8, 4, 2, 1):
            for r in (s1a, s2a, s1b, s2b): A(f"v_add_f32_dpp {r}, {r}, {r} row_ror:{sh} {DPP}")
        for swap in ("v_permlane16_swap_b32", "v_permlane32_swap_b32"):
            for r in (s1a, s2a, s1b, s2b):
                A(f"v_mov_b32 {X(8)}, {r}"); A(f"{swap} {r}, {X(8)}"); A(f"v_add_f32 {r}, {r}, {X(8)}")
        A(f"v_cndmask_b32 {s1a}, {s1a}, {s1b}, {sSEL}"); A(f"v_cndmask_b32 {s2a}, {s2a}, {s2b}, {sSEL}")
        for s in self.ln_scalars(s1a, s2a, QSCALE): A(s)
    def early_q2(self):
        A = self.A
        s1a, s2a = X(12), X(13)
        D = XR(0, 4)
        for t in range(14):
            A(f"v_mfma_f32_16x16x32_bf16 {D}, {TR(4*t,4)}, {WR(4*t,4)}, {'0' if t == 0 else D}")
        self.ln_finish(s1a, s2a)
        self.pack_pair(X(4), X(4), X(6))
        A(f"v_mov_b32 {X(5)}, {sTAG}")
        A(f"v_bfe_u32 {X(7)}, {LANE}, 4, 1"); A(f"v_lshlrev_b32 {X(7)}, 11, {X(7)}"); A(f"v_and_b32 {X(8)}, 15, {LANE}"); A(f"v_lshl_add_u32 {X(7)}, {X(8)}, 2, {X(7)}")
        A(f"s_lshl_b32 s68, {sSIG}, 6"); A(f"v_add_u32 {X(7)}, s68, {X(7)}")
        A(f"s_lshl_b32 s68, {sGI}, 12"); A(f"s_add_u32 s68, s68, {QTOFF}"); A(f"s_add_u32 s70, s20, s68"); A("s_addc_u32 s71, s21, 0")
        self.set_exec(0x55555555, 0)
        A(f"global_store_dwordx2 {X(7)}, {XR(4,2)}, {SA} sc1")
        A("s_mov_b64 exec, -1")

    def stream(self):
        A = self.A; win = self.o.win
        k0 = self.o.k0
        self.ob = 0
        self.kpos(k0, 64)
        A("s_waitcnt vmcnt(8) lgkmcnt(0)")
        self.stamp(1)
        A("s_barrier")
        A(f"s_cmp_eq_u32 {sWAVE}, 3"); A("s_cbranch_scc0 L_noarr")
        self.arrive()
        A("L_noarr:")
        self.ob = 0
        self.kpos(k0 + 1, 64)
        self.tr_reads()
        A("s_barrier")
        self.kpos(k0 + 2, 64)
        A(f"s_cmp_eq_u32 {sROLE}, {ROLE_GU}"); A("s_cbranch_scc0 L_nocs")
        self.colsum()
        A("L_nocs:")
        A(f"s_cmp_eq_u32 {sROLE}, {ROLE_WQ}"); A("s_cbranch_scc0 L_noeq")
        self.early_q()
        A("L_noeq:")
        nx = k0 + 3
        if self.o.esplit:
            self.kpos(nx, 64); nx += 1
        A(f"s_cmp_eq_u32 {sROLE}, {ROLE_WQ}"); A("s_cbranch_scc0 L_noeq2")
        self.early_q2()
        A("L_noeq2:")
        self.stamp(2)
        self.ob = 8 * (nx - k0) + 2
        tp = nx
        for tau in range(tp, 8): self.kpos(tau, win)
        A(f"s_lshl_b32 s68, {sGI}, 12"); A(f"s_add_u32 s68, s68, {QTOFF}"); A(f"s_add_u32 s70, s20, s68"); A("s_addc_u32 s71, s21, 0")
        A(f"s_lshl_b32 s68, {sB}, 11"); A(f"s_lshl_b32 s78, {sHL}, 10"); A("s_add_u32 s68, s68, s78"); A(f"v_add_u32 {X(14)}, s68, {L16}")
        A(f"global_load_dwordx4 {XR(10,4)}, {X(14)}, {SA} sc1")
        for tau in range(self.o.vdist): self.vtile(tau, 64)
        self.stamp(5)
        self.dstamp(4)

    def bar_check_finish(self):
        A = self.A
        A(f"s_cmp_eq_u32 {sLAYER}, 0"); A("s_cbranch_scc0 L_gb_done")
        A("s_mov_b64 exec, 0xff")
        A("L_gb:")
        A(f"v_lshrrev_b32 {TMP}, 24, {WBAR1}"); A(f"v_cmp_ne_u32 vcc, 32, {TMP}")
        A("s_cbranch_vccz L_gb_d")
        A(f"s_cmp_eq_u32 {sBUD}, 0"); A("s_cbranch_scc1 L_gb_d"); A(f"s_sub_u32 {sBUD}, {sBUD}, 1"); A("s_sleep 4")
        A(f"v_and_b32 {TMP}, 7, {LANE}"); A(f"v_lshlrev_b32 {TMP}, 5, {TMP}")
        A(f"global_load_dwordx2 {WBAR}, {TMP}, {sDBG} sc1"); A("s_waitcnt vmcnt(0)")
        A("s_branch L_gb")
        A("L_gb_d:")
        A("s_mov_b64 exec, -1")
        A("s_getreg_b32 s68, hwreg(HW_REG_XCC_ID, 0, 4)"); A("s_and_b32 s68, s68, 7"); A("s_mul_i32 s68, s68, 6")
        A("s_lshl_b64 s[78:79], 32, s68"); A("s_or_b32 s79, s79, 0x20000000")
        A(f"v_readlane_b32 s68, {WBAR0}, {sGI}"); A(f"v_readlane_b32 s69, {WBAR1}, {sGI}")
        A("s_cmp_eq_u64 s[68:69], s[78:79]"); A(f"s_cselect_b32 {sMODE}, 1, 0")
        if self.o.slow: A(f"s_mov_b32 {sMODE}, 0")
        A("L_gb_done:")

    def att_setup(self):
        A = self.A
        mk = [X(16 + k) for k in range(4)]
        A(f"v_and_b32 {TMP}, 1, {LANE}"); A(f"v_lshlrev_b32 {TMP}, 4, {TMP}"); A(f"v_mov_b32 {X(9)}, 0xffff"); A(f"v_lshlrev_b32 {X(9)}, {TMP}, {X(9)}")
        for k, pr in enumerate((sMA, "s[56:57]", "s[58:59]", "s[62:63]")):
            A(f"v_cndmask_b32 {mk[k]}, 0, {X(9)}, {pr}")
        A(f"v_lshrrev_b32 {X(8)}, 4, {LANE}"); A(f"v_lshlrev_b32 {X(8)}, 11, {X(8)}"); A(f"v_and_b32 {TMP}, 15, {LANE}"); A(f"v_lshl_add_u32 {X(8)}, {TMP}, 4, {X(8)}")
        for k in range(16): A(f"v_mov_b32 {T(16+k)}, 0")

    def get_q(self):
        A = self.A
        self.att_setup()
        qa = T(62)
        A(f"v_lshrrev_b32 {qa}, 4, {LANE}"); A(f"v_lshlrev_b32 {qa}, 6, {qa}"); A(f"v_and_b32 {TMP}, 3, {LANE}"); A(f"v_lshl_add_u32 {qa}, {TMP}, 4, {qa}")
        A(f"v_add_u32 {qa}, {LDS_QL}, {qa}")
        A(f"s_cmp_eq_u32 {sLAYER}, 0"); A("s_cbranch_scc0 L_q1")
        A(f"s_waitcnt vmcnt({8*self.o.vdist})")
        A("L_q0:")
        A(f"v_xor_b32 {X(15)}, {sTAG}, {X(11)}"); A(f"v_xor_b32 {X(9)}, {sTAG}, {X(13)}"); A(f"v_or_b32 {X(15)}, {X(15)}, {X(9)}")
        A(f"v_cmp_ne_u32 vcc, 0, {X(15)}")
        A("s_cbranch_vccz L_q0_d")
        A(f"s_cmp_eq_u32 {sBUD}, 0"); A("s_cbranch_scc1 L_q0_d"); A(f"s_sub_u32 {sBUD}, {sBUD}, 1")
        A(f"global_load_dwordx4 {XR(10,4)}, {X(14)}, {SA} sc1"); A("s_waitcnt vmcnt(0)")
        A("s_branch L_q0")
        A("L_q0_d:")
        A(f"v_mov_b32 {X(11)}, {X(12)}")
        A(f"v_lshlrev_b32 {X(9)}, 3, {LANE}"); A(f"v_add_u32 {X(9)}, {LDS_QL}, {X(9)}")
        A(f"ds_write_b64 {X(9)}, {XR(10,2)}")
        self.stamp(4)
        A("s_waitcnt lgkmcnt(0)")
        A("s_branch L_qlds")
        A("L_q1:")
        A(f"s_cmp_eq_u32 {sWAVE}, 0"); A("s_cbranch_scc0 L_q1b")
        self.gbase(SA, R_Q, 1)
        A(f"s_lshl_b32 s68, {sB}, 10"); A(f"s_lshl_b32 s78, {sHL}, 9"); A("s_add_u32 s68, s68, s78"); A(f"v_add_u32 {X(9)}, s68, {L16}")
        A(f"v_add_u32 {X(14)}, {LDS_QL}, {L16}")
        for _ in range(self.o.qpre // 120): A("s_sleep 120")
        if self.o.qpre % 120: A(f"s_sleep {self.o.qpre % 120}")
        self.set_exec(0xFFFFFFFF, 0)
        NS = self.o.qsets
        qs = [(TR(32, 4), [T(32), T(33), T(34), T(35)]), (TR(36, 4), [T(36), T(37), T(38), T(39)])]
        for k in range(NS - 1): A(f"global_load_dwordx4 {qs[k][0]}, {X(9)}, {SA} sc1")
        A("L_q1p:")
        for k in range(NS):
            A(f"global_load_dwordx4 {qs[(k + NS - 1) % NS][0]}, {X(9)}, {SA} sc1")
            A(f"s_waitcnt vmcnt({NS-1})")
            for s in self.maxops(X(15), qs[k][1]): A(s)
            A(f"v_cmp_eq_u32 vcc, -1, {X(15)}")
            A(f"s_cbranch_vccz L_q1_ok{k}")
        A(f"s_cmp_eq_u32 {sBUD}, 0"); A("s_cbranch_scc1 L_q1_ok0"); A(f"s_sub_u32 {sBUD}, {sBUD}, 1")
        if self.o.qsleep: A(f"s_sleep {self.o.qsleep}")
        A("s_branch L_q1p")
        for k in reversed(range(NS)):
            A(f"L_q1_ok{k}:")
            A(f"ds_write_b128 {X(14)}, {qs[k][0]}")
            if k != 0: A("s_branch L_q1_w")
        A("L_q1_w:")
        A("s_mov_b64 exec, -1")
        A("s_waitcnt lgkmcnt(0)")
        A("L_q1b:")
        A("s_barrier")
        A("L_qlds:")
        self.set_exec(0x00FF00FF, 0x00FF00FF)
        for t in range(2): A(f"ds_read_b128 {TR(16+4*t,4)}, {qa} offset:{t*256}")
        self.set_exec(0xFF00FF00, 0xFF00FF00)
        for t in range(2): A(f"ds_read_b128 {TR(24+4*t,4)}, {qa} offset:{t*256}")
        A("s_mov_b64 exec, -1")
        A(f"v_add_u32 {X(13)}, {sM0B}, {L16}")
        A(f"s_waitcnt vmcnt({8*self.o.vdist})")

    def attention(self):
        A = self.A
        mk = [X(16 + k) for k in range(4)]
        A("s_waitcnt lgkmcnt(0)")
        self.fst(0, "att")
        m, m2 = X(14), X(15)
        va = X(13)
        Dq = lambda P: 40 + 4 * (P % 4)
        M1, M2, M3 = "s[48:49]", "s[50:51]", "s[52:53]"
        S = lambda P: T(P)
        QL = [TR(16, 4), TR(20, 4)]; QH = [TR(24, 4), TR(28, 4)]
        def c1(P): return f"v_cndmask_b32 {S(P)}, {T(Dq(P))}, {T(Dq(P)+1)}, {M1}"
        def c2(P): return f"v_cndmask_b32 {S(P)}, {S(P)}, {T(Dq(P)+2)}, {M2}"
        def c3(P): return f"v_cndmask_b32 {S(P)}, {S(P)}, {T(Dq(P)+3)}, {M3}"
        def d1(P): return f"v_add_f32_dpp {S(P)}, {S(P)}, {S(P)} quad_perm:[1,0,3,2] {DPP}"
        def d2(P): return f"v_add_f32_dpp {S(P)}, {S(P)}, {S(P)} quad_perm:[2,3,0,1] {DPP}"
        ok = lambda P: 0 <= P < 16
        for P in range(16 + 4):
            D = TR(Dq(P), 4); G = 2 * P
            if ok(P): A(f"v_mfma_f32_16x16x32_bf16 {D}, a[{8*G}:{8*G+3}], {QL[0]}, 0")
            if ok(P - 2): A(c1(P - 2))
            if ok(P - 3): A(d1(P - 3))
            if ok(P): A(f"v_mfma_f32_16x16x32_bf16 {D}, a[{8*G+4}:{8*G+7}], {QL[1]}, {D}")
            if ok(P - 2): A(c2(P - 2))
            if ok(P): A(f"v_mfma_f32_16x16x32_bf16 {D}, a[{8*G+8}:{8*G+11}], {QH[0]}, {D}")
            if ok(P - 2): A(c3(P - 2))
            if ok(P - 3): A(d2(P - 3))
            if ok(P): A(f"v_mfma_f32_16x16x32_bf16 {D}, a[{8*G+12}:{8*G+15}], {QH[1]}, {D}")
            g4 = P - 4
            if ok(g4) and g4 % 2 == 1:
                if g4 == 1: A(f"v_max_f32 {m}, {S(0)}, {S(1)}")
                else: A(f"v_max3_f32 {m}, {m}, {S(g4-1)}, {S(g4)}")
        self.stamp(7)
        self.fst(1, "att")
        l = X(15)
        acc = [[XR(0, 4), XR(4, 4)], [TR(16, 4), TR(20, 4)]]
        Bs = [TR(32, 4), TR(36, 4)]; Bb = [32, 36]
        stg = [24, 40, 48, 56]
        VD = self.o.vdist
        vV = X(8)
        CHK_AT = 4 - VD if VD <= 4 else 0
        CHK_TILE = CHK_AT + VD
        def younger(tile, at_tile):
            last_issued = min(at_tile + VD, 7)
            n = 8 * (last_issued - tile)
            if tile <= CHK_TILE and at_tile >= CHK_AT: n += 1
            return n
        def tile_issue(tau):
            t2 = tau + VD
            if t2 > 7: return
            lab = A.label("VI")
            if tau == 0:
                l0 = A.label("VJ")
                A(f"s_cmp_eq_u32 {sLAYER}, 0"); A(f"s_cbranch_scc1 {l0}")
                A("s_waitcnt vmcnt(0)"); A(f"s_branch {lab}")
                A(f"{l0}:")
            else:
                A(f"s_cmp_eq_u32 {sLAYER}, 0"); A(f"s_cbranch_scc0 {lab}")
            self.ob = 0
            self.vtile(t2, 64, vV)
            if tau == CHK_AT:
                A(f"v_and_b32 {TMP}, 7, {LANE}"); A(f"v_lshlrev_b32 {TMP}, 5, {TMP}")
                A("s_mov_b64 exec, 0xff")
                A(f"global_load_dwordx2 {WBAR}, {TMP}, {sDBG} sc1")
                A("s_mov_b64 exec, -1")
            A(f"{lab}:")
        DIST = 3
        lds_fifo = []
        def lds_issue(q, at_tile):
            if q % 4 == 0: A(f"s_waitcnt vmcnt({younger(q // 4, at_tile)})")
            b = stg[q % 4]
            A(f"ds_read_b128 {TR(b,4)}, {va} offset:{q*2048}"); A(f"ds_read_b128 {TR(b+4,4)}, {va} offset:{q*2048+1024}")
            lds_fifo.append(q)
        def pre(P):
            s = S(P); bb = Bb[P % 2]; pk = X(12) if P % 2 == 0 else X(9)
            return [f"v_sub_f32 {s}, {s}, {m}", f"v_exp_f32 {s}, {s}"], [f"v_cvt_pk_bf16_f32 {pk}, {s}, {s}", (f"v_add_f32 {l}, {l}, {s}" if P else f"v_mov_b32 {l}, {s}")] + [f"v_and_b32 {T(bb+k)}, {mk[k]}, {pk}" for k in range(4)]
        A(f"v_max_f32_dpp {m}, {m}, {m} row_ror:8 {DPP}")
        tile_issue(0)
        A(f"v_mov_b32 {m2}, {m}")
        for q in range(DIST): lds_issue(q, 0)
        A(f"v_permlane16_swap_b32 {m}, {m2}"); A(f"v_max_f32 {m}, {m}, {m2}")
        A(f"v_mov_b32 {m2}, {m}"); A(f"v_permlane32_swap_b32 {m}, {m2}"); A(f"v_max_f32 {m}, {m}, {m2}")
        a, b_ = pre(0)
        for s in a + b_: A(s)
        a, _ = pre(1)
        for s in a: A(s)
        def src(q):
            if q < NLDS:
                b = stg[q % 4]; return TR(b, 4), TR(b + 4, 4)
            mm = (q - NLDS) * 8; return VRR(mm, 4), VRR(mm + 4, 4)
        def before_group(q):
            tau = q // 4
            if q % 4 == 0 and q > 0: tile_issue(tau)
            if q + DIST < NLDS: lds_issue(q + DIST, tau)
            if q < NLDS:
                after = len(lds_fifo) - 1 - lds_fifo.index(q)
                A(f"s_waitcnt lgkmcnt({2 * after})")
            else:
                if q >= 28: A(f"s_waitcnt vmcnt({(31 - q) * 2})")
                elif q == NLDS or q % 4 == 0: A(f"s_waitcnt vmcnt({younger(tau, tau)})")
            if q == 24:
                self.bar_check_finish()
                A(f"v_lshrrev_b32 {X(8)}, 4, {LANE}"); A(f"v_lshlrev_b32 {X(8)}, 7, {X(8)}"); A(f"v_and_b32 {TMP}, 15, {LANE}"); A(f"v_lshl_add_u32 {X(8)}, {TMP}, 4, {X(8)}")
                A(f"s_lshl_b32 s68, {sWAVE}, 10"); A(f"s_add_u32 s68, s68, {LDS_OP}"); A(f"v_add_u32 {X(8)}, s68, {X(8)}")
                A(f"s_lshl_b32 s68, {sWAVE}, 3"); A(f"s_add_u32 s68, s68, {LDS_MLP}"); A(f"v_mov_b32 {X(10)}, s68")
        for P in range(16):
            B = Bs[P % 2]
            nb = pre(P + 1)[1] if P + 1 < 16 else []
            na = pre(P + 2)[0] if P + 2 < 16 else []
            if 2 * P == 18 or (2 * P == NLDS + 1 - 2): pass
            if 2 * P >= NLDS and 2 * P - 2 < NLDS: self.fst(2, "att")
            qe, qo = 2 * P, 2 * P + 1
            before_group(qe)
            a0, a1 = src(qe)
            A(f"v_mfma_f32_16x16x32_bf16 {acc[0][0]}, {a0}, {B}, {acc[0][0] if P else '0'}")
            for s_ in nb[:2]: A(s_)
            A(f"v_mfma_f32_16x16x32_bf16 {acc[0][1]}, {a1}, {B}, {acc[0][1] if P else '0'}")
            for s_ in nb[2:4]: A(s_)
            before_group(qo)
            a0, a1 = src(qo)
            A(f"v_mfma_f32_16x16x32_bf16 {acc[1][0]}, {a0}, {B}, {acc[1][0] if P else '0'}")
            for s_ in nb[4:6]: A(s_)
            A(f"v_mfma_f32_16x16x32_bf16 {acc[1][1]}, {a1}, {B}, {acc[1][1] if P else '0'}")
            for s_ in na: A(s_)
        self.fst(3, "att")
        self.stamp(8)
        self.dstamp(5, layer=0); self.dstamp(7, layer=1)
        l2 = X(9)
        A(f"v_add_f32_dpp {l}, {l}, {l} row_ror:8 {DPP}")
        A(f"v_mov_b32 {l2}, {l}"); A(f"v_permlane16_swap_b32 {l}, {l2}"); A(f"v_add_f32 {l}, {l}, {l2}")
        A(f"v_mov_b32 {l2}, {l}"); A(f"v_permlane32_swap_b32 {l}, {l2}"); A(f"v_add_f32 {l}, {l}, {l2}")
        for k in range(8): A(f"v_add_f32_dpp {X(k)}, {T(16+k)}, {X(k)} row_ror:8 {DPP}")
        self.set_exec(0x00FF00FF, 0x00FF00FF)
        A(f"ds_write_b128 {X(8)}, {XR(0,4)}"); A(f"ds_write_b128 {X(8)}, {XR(4,4)} offset:512")
        A("s_mov_b64 exec, 1")
        A(f"ds_write_b64 {X(10)}, {XR(14,2)}")
        A("s_mov_b64 exec, -1")
        A("s_waitcnt lgkmcnt(0)")
        A("s_barrier")
        self.fst(4, "att")
        self.stamp(9)

    def combine_publish(self):
        A = self.A
        A(f"v_add_u32 {X(8)}, {LDS_OP}, {L16}")
        for w in range(4): A(f"ds_read_b128 {TR(4*w,4)}, {X(8)} offset:{w*1024}")
        A(f"v_mov_b32 {X(9)}, {LDS_MLP}")
        A(f"ds_read_b128 {TR(16,4)}, {X(9)}"); A(f"ds_read_b128 {TR(20,4)}, {X(9)} offset:16")
        self.gbase(SA, R_O); self.gbase(SB, R_ML)
        a = X(10)
        A(f"v_lshrrev_b32 {a}, 3, {LANE}"); A(f"v_lshlrev_b32 {a}, 10, {a}")
        A(f"v_bfe_u32 {X(11)}, {LANE}, 1, 2"); A(f"v_lshl_add_u32 {a}, {X(11)}, 8, {a}")
        A(f"v_and_b32 {X(11)}, 1, {LANE}"); A(f"v_lshl_add_u32 {a}, {X(11)}, 3, {a}")
        A(f"s_lshl_b32 s68, {sB}, 3"); A(f"s_add_u32 s68, s68, {sSP}"); A("s_lshl_b32 s68, s68, 4"); A(f"s_lshl_b32 s78, {sHL}, 13"); A("s_add_u32 s68, s68, s78")
        A(f"v_add_u32 {a}, s68, {a}")
        A(f"s_lshl_b32 s68, {sHL}, 7"); A(f"s_lshl_b32 s78, {sB}, 6"); A("s_add_u32 s68, s68, s78"); A(f"s_lshl_b32 s78, {sSP}, 3"); A("s_add_u32 s68, s68, s78")
        A(f"v_mov_b32 {X(11)}, s68")
        M = T(24); f = [T(25 + w) for w in range(4)]; Lr = T(29)
        ms = [T(16), T(18), T(20), T(22)]; ls = [T(17), T(19), T(21), T(23)]
        A("s_waitcnt lgkmcnt(0)")
        A(f"v_max3_f32 {M}, {ms[0]}, {ms[1]}, {ms[2]}"); A(f"v_max_f32 {M}, {M}, {ms[3]}")
        for w in range(4): A(f"v_sub_f32 {f[w]}, {ms[w]}, {M}")
        for w in range(4): A(f"v_exp_f32 {f[w]}, {f[w]}")
        for r in range(4): A(f"v_mul_f32 {T(32+r)}, {f[0]}, {T(r)}")
        for w in range(1, 4):
            for r in range(4): A(f"v_fmac_f32 {T(32+r)}, {f[w]}, {T(4*w+r)}")
        A(f"v_cvt_pk_bf16_f32 {T(36)}, {T(32)}, {T(33)}"); A(f"v_cvt_pk_bf16_f32 {T(37)}, {T(34)}, {T(35)}")
        self.pub(f"global_store_dwordx2 {a}, {TR(36,2)}, {SA}")
        A(f"v_mul_f32 {T(39)}, {f[0]}, {ls[0]}")
        for w in range(1, 4): A(f"v_fmac_f32 {T(39)}, {f[w]}, {ls[w]}")
        A(f"v_mov_b32 {T(38)}, {M}")
        A("s_mov_b64 exec, 1")
        self.pub(f"global_store_dwordx2 {X(11)}, {TR(38,2)}, {SB}")
        if self.o.b1gate:
            A(f"s_cmp_eq_u32 {sLAYER}, 0"); A("s_cbranch_scc0 L_nob1")
            A(f"s_lshl_b32 s68, {sGI}, 5"); A("s_add_u32 s68, s68, 8"); A(f"v_mov_b32 {X(12)}, s68"); A(f"v_mov_b32 {X(13)}, 1")
            A(f"global_atomic_add {X(12)}, {X(13)}, {sDBG} sc1")
            A("L_nob1:")
        A("s_mov_b64 exec, -1")

    def stage_wo(self):
        A = self.A
        self.gbase(SA, R_O); self.gbase(SC_, R_ML)
        A(f"s_lshl_b32 s68, {sWAVE}, 12"); A("s_add_u32 s70, s70, s68"); A("s_addc_u32 s71, s71, 0")
        a = X(16)
        A(f"v_lshrrev_b32 {a}, 5, {LANE}"); A(f"v_lshlrev_b32 {a}, 6, {a}")
        A(f"v_bfe_u32 {TMP}, {LANE}, 4, 1"); A(f"v_lshl_add_u32 {a}, {TMP}, 5, {a}")
        A(f"v_and_b32 {TMP}, 3, {LANE}"); A(f"v_lshl_add_u32 {a}, {TMP}, 3, {a}")
        A(f"s_lshr_b32 s68, {sWAVE}, 1"); A("s_lshl_b32 s68, s68, 7"); A(f"v_add_u32 {a}, s68, {a}")
        wa, ra = X(17), X(18)
        A(f"v_bfe_u32 {wa}, {LANE}, 4, 1"); A(f"v_lshlrev_b32 {wa}, 7, {wa}"); A(f"v_lshrrev_b32 {TMP}, 5, {LANE}"); A(f"v_lshl_add_u32 {wa}, {TMP}, 6, {wa}")
        A(f"v_and_b32 {TMP}, 15, {LANE}"); A(f"v_lshl_add_u32 {wa}, {TMP}, 2, {wa}")
        A(f"s_lshl_b32 s68, {sWAVE}, 9"); A(f"s_add_u32 s68, s68, {LDS_RED}"); A(f"v_add_u32 {wa}, s68, {wa}")
        A(f"v_lshrrev_b32 {ra}, 5, {LANE}"); A(f"v_lshlrev_b32 {ra}, 7, {ra}"); A(f"v_and_b32 {TMP}, 31, {LANE}"); A(f"v_lshl_add_u32 {ra}, {TMP}, 2, {ra}")
        A(f"s_and_b32 s68, {sWAVE}, 1"); A("s_lshl_b32 s68, s68, 8"); A(f"s_add_u32 s68, s68, {LDS_RED}"); A(f"v_add_u32 {ra}, s68, {ra}")
        A(f"s_cmp_ge_u32 {sWAVE}, 2"); A("s_cbranch_scc0 L_wo_nors")
        self.gbase(SD, R_X2, 0)
        A(f"s_cmp_eq_u32 {sLAYER}, 0"); A("s_cselect_b32 s64, s4, s64"); A("s_cselect_b32 s65, s5, s65")
        self.rs_setup()
        A(f"v_mov_b32 {X(13)}, {CS}")
        A(f"s_cmp_eq_u32 {sLAYER}, 0"); A("s_cbranch_scc1 L_wo_nors")
        A(f"global_load_ushort {X(13)}, {X(10)}, {SD} sc1")
        A("L_wo_nors:")
        self.cbase(SB, 0, consumer=False)
        self.p_store_addr(X(9))
        mv, lv = T(16), T(17)
        D = [TR(20 + 4 * nt, 4) for nt in range(4)]
        chk, M, t1, e, w = T(36), T(37), T(38), T(39), T(40)
        A(f"v_mov_b32 {chk}, 0")
        self.fst(0, "wo")
        if self.o.fine == "wo": A("s_mov_b32 s99, 0")
        if self.o.gate:
            self.set_exec(0x000F000F, 0x000F000F)
            A("L_wog:")
            A(f"global_load_dwordx2 {TR(16,2)}, {a}, {SC_} sc1"); A("s_waitcnt vmcnt(0)")
            A(f"v_max_u32 {chk}, {mv}, {lv}")
            self.poll_tail(chk, "L_wog", "L_wog_d", sleep=self.o.gatesleep)
            A("L_wog_d:")
        if self.o.wopre:
            A(f"s_cmp_eq_u32 {sWAVE}, 0"); A("s_cbranch_scc1 L_wo"); A(f"s_sleep {self.o.wopre}")
        A("L_wo:")
        if self.o.fine == "wo": A("s_add_u32 s99, s99, 1")
        self.fst(1, "wo")
        self.set_exec(0x000F000F, 0x000F000F)
        A(f"global_load_dwordx2 {TR(16,2)}, {a}, {SC_} sc1")
        A("s_mov_b64 exec, -1")
        for tt in range(4):
            A(f"global_load_dwordx4 {TR(4*tt,4)}, {L16}, {SA} offset:{tt*1024} sc1")
        A("s_waitcnt vmcnt(4)")
        self.set_exec(0x000F000F, 0x000F000F)
        A(f"v_max_u32 {chk}, {mv}, {lv}")
        A("s_mov_b64 exec, -1")
        A("s_waitcnt vmcnt(0)")
        self.fst(2, "wo")
        for s in self.maxops(t1, self.chk_regs(T, 0, 4) + [chk]): A(s)
        self.poll_tail(t1, "L_wo", "L_wo_d")
        A("L_wo_d:")
        ops = [f"v_mov_b32_dpp {t1}, {mv} quad_perm:[1,0,3,2] {DPP}", f"v_max_f32 {M}, {mv}, {t1}",
               f"v_mov_b32_dpp {t1}, {M} quad_perm:[2,3,0,1] {DPP}", f"v_max_f32 {M}, {M}, {t1}",
               f"v_mov_b32 {t1}, {M}", f"v_permlane16_swap_b32 {M}, {t1}", f"v_max_f32 {M}, {M}, {t1}",
               f"v_sub_f32 {e}, {mv}, {M}", f"v_exp_f32 {e}, {e}", f"v_mul_f32 {M}, {e}, {lv}",
               f"v_mov_b32_dpp {t1}, {M} quad_perm:[1,0,3,2] {DPP}", f"v_add_f32 {M}, {M}, {t1}",
               f"v_mov_b32_dpp {t1}, {M} quad_perm:[2,3,0,1] {DPP}", f"v_add_f32 {M}, {M}, {t1}",
               f"v_mov_b32 {t1}, {M}", f"v_permlane16_swap_b32 {M}, {t1}", f"v_add_f32 {M}, {M}, {t1}",
               f"v_rcp_f32 {M}, {M}", f"v_mul_f32 {w}, {e}, {M}"]
        for tt in range(4):
            for nt in range(4):
                A(f"v_mfma_f32_16x16x32_bf16 {D[nt]}, {TR(4*tt,4)}, {WR(4*(4*tt+nt),4)}, {'0' if tt == 0 else D[nt]}")
                if ops: A(ops.pop(0))
        for s in ops: A(s)
        acc = [T(41 + nt) for nt in range(4)]
        for r in range(4):
            for nt in range(4):
                op = "v_mul_f32_dpp" if r == 0 else "v_fmac_f32_dpp"
                A(f"{op} {acc[nt]}, {w}, {T(20+4*nt+r)} row_newbcast:{r} {DPP}")
        A(f"v_permlane16_swap_b32 {acc[0]}, {acc[1]}"); A(f"v_permlane16_swap_b32 {acc[2]}, {acc[3]}")
        A(f"v_add_f32 {acc[0]}, {acc[0]}, {acc[1]}"); A(f"v_add_f32 {acc[2]}, {acc[2]}, {acc[3]}")
        self.fst(3, "wo")
        A(f"ds_write_b32 {wa}, {acc[0]}"); A(f"ds_write_b32 {wa}, {acc[2]} offset:256")
        A("s_waitcnt lgkmcnt(0)")
        A("s_barrier")
        self.fst(4, "wo")
        A(f"s_cmp_ge_u32 {sWAVE}, 2"); A("s_cbranch_scc1 L_wo_rs")
        for ww in range(4): A(f"ds_read_b32 {T(ww)}, {ra} offset:{ww*512}")
        A("s_waitcnt lgkmcnt(2)")
        A(f"v_add_f32 {T(0)}, {T(0)}, {T(1)}")
        A("s_waitcnt lgkmcnt(0)")
        A(f"v_add_f32 {T(2)}, {T(2)}, {T(3)}"); A(f"v_add_f32 {T(0)}, {T(0)}, {T(2)}")
        self.p_publish(SB, X(9), T(0), 4)
        self.fst(5, "wo")
        self.stamp(11)
        A("s_branch L_next")
        A("L_wo_rs:")

    def p_addr(self, dst):
        A = self.A; sh = 10 if self.o.playout == 0 else 13
        A(f"v_lshrrev_b32 {dst}, 5, {LANE}"); A(f"v_lshlrev_b32 {dst}, {sh}, {dst}"); A(f"v_and_b32 {TMP}, 31, {LANE}"); A(f"v_lshl_add_u32 {dst}, {TMP}, 2, {dst}")
        A(f"s_and_b32 s68, {sWAVE}, 1"); A(f"s_lshl_b32 s68, s68, {sh+1}"); A(f"v_add_u32 {dst}, s68, {dst}")

    def rs_setup(self):
        A = self.A
        pa, xa, sa = X(8), X(10), X(11)
        A(f"v_lshrrev_b32 {X(12)}, 5, {LANE}"); A(f"s_and_b32 s68, {sWAVE}, 1"); A("s_lshl_b32 s68, s68, 1"); A(f"s_add_u32 s68, s68, {sS4}"); A(f"v_add_u32 {X(12)}, s68, {X(12)}")
        self.p_addr(pa)
        A(f"v_bfe_u32 {TMP}, {LANE}, 4, 1"); A(f"v_mul_u32_u24 {xa}, 896, {TMP}"); A(f"v_lshlrev_b32 {sa}, 8, {TMP}")
        A(f"v_lshl_add_u32 {xa}, {X(12)}, 5, {xa}"); A(f"v_lshl_add_u32 {sa}, {X(12)}, 3, {sa}")
        A(f"v_and_b32 {TMP}, 15, {LANE}"); A(f"v_lshl_add_u32 {xa}, {TMP}, 1, {xa}")
    def stage_rs(self):
        A = self.A
        pa, xa, sa = X(8), X(10), X(11)
        NS = self.o.rsets
        def issue(k):
            for g in range(8): A(f"global_load_dword {T(8*k+g)}, {pa}, {SA} offset:{self.p_poll_off(g)} sc1")
        for k in range(NS - 1): issue(k)
        A("L_rs:")
        for k in range(NS):
            issue((k + NS - 1) % NS)
            A(f"s_waitcnt vmcnt({8*(NS-1)})")
            for s in self.maxops(X(4), [T(8*k+g) for g in range(8)]): A(s)
            A(f"v_cmp_eq_u32 vcc, -1, {X(4)}")
            A(f"s_cbranch_vccz L_rs_ok{k}")
        A(f"s_cmp_eq_u32 {sBUD}, 0"); A("s_cbranch_scc1 L_rs_ok0"); A(f"s_sub_u32 {sBUD}, {sBUD}, 1")
        if self.o.rssleep: A(f"s_sleep {self.o.rssleep}")
        A("s_branch L_rs")
        for k in range(NS):
            A(f"L_rs_ok{k}:")
            b_ = 8 * k
            A(f"v_add_f32 {X(0)}, {T(b_)}, {T(b_+1)}"); A(f"v_add_f32 {X(1)}, {T(b_+2)}, {T(b_+3)}"); A(f"v_add_f32 {X(2)}, {T(b_+4)}, {T(b_+5)}"); A(f"v_add_f32 {X(3)}, {T(b_+6)}, {T(b_+7)}")
            if k != NS - 1: A("s_branch L_rs_d")
        A("L_rs_d:")
        A(f"v_cmp_eq_u32 vcc, 0xffff, {X(13)}")
        A("s_cbranch_vccz L_rsr_d")
        A("L_rsr:")
        A(f"global_load_ushort {X(13)}, {xa}, {SD} sc1"); A("s_waitcnt vmcnt(0)")
        A(f"v_cmp_eq_u32 vcc, 0xffff, {X(13)}")
        A("s_cbranch_vccz L_rsr_d")
        A(f"s_cmp_eq_u32 {sBUD}, 0"); A("s_cbranch_scc1 L_rsr_d"); A(f"s_sub_u32 {sBUD}, {sBUD}, 1")
        A("s_branch L_rsr")
        A("L_rsr_d:")
        A(f"v_add_f32 {X(0)}, {X(0)}, {X(1)}"); A(f"v_add_f32 {X(2)}, {X(2)}, {X(3)}"); A(f"v_lshlrev_b32 {X(6)}, 16, {X(13)}"); A(f"v_add_f32 {X(0)}, {X(0)}, {X(2)}")
        if self.o.round2:
            A(f"v_cvt_pk_bf16_f32 {X(0)}, {X(0)}, {X(0)}"); A(f"v_and_b32 {X(0)}, 0xffff0000, {X(0)}")
        A(f"v_add_f32 {X(0)}, {X(6)}, {X(0)}")
        if self.o.perturb:
            lab = A.label("PT")
            A("s_cmp_eq_u32 s78, 1"); A(f"s_cbranch_scc0 {lab}"); A(f"s_cmp_eq_u32 {sSIG}, 2"); A(f"s_cbranch_scc0 {lab}")
            A("s_mov_b64 exec, 1"); A(f"v_add_f32 {X(0)}, {f32(self.o.perturb)}, {X(0)}"); A("s_mov_b64 exec, -1")
            A(f"{lab}:")
        A(f"v_mov_b32_dpp {X(2)}, {X(0)} quad_perm:[1,0,3,2] {DPP}")
        A(f"v_cvt_pk_bf16_f32 {X(3)}, {X(0)}, {X(0)}")
        A(f"v_cvt_pk_bf16_f32 {X(1)}, {X(0)}, {X(2)}")
        A("s_cmp_eq_u32 s78, 1"); A("s_cbranch_scc1 L_final")
        self.set_exec(0x55555555, 0x55555555)
        self.pub(f"global_store_dword {xa}, {X(1)}, {SB}")
        A("s_mov_b64 exec, -1")
        A(f"v_and_b32 {X(2)}, 0xffff0000, {X(3)}")
        A(f"v_mul_f32 {X(3)}, {X(2)}, {X(2)}")
        for sh in (1, 2, 4, 8):
            for r in (X(2), X(3)): A(f"v_add_f32_dpp {r}, {r}, {r} row_shr:{sh} {DPP}")
        self.set_exec(0x80008000, 0x80008000)
        self.pub(f"global_store_dwordx2 {sa}, {XR(2,2)}, {SC_}")
        A("s_mov_b64 exec, -1")
        self.stamp(12)
        A("s_waitcnt vmcnt(0)")

    def stage_gu(self):
        A = self.A
        self.gbase(SC_, R_H)
        A(f"v_bfe_u32 {X(7)}, {LANE}, 4, 1"); A(f"v_mul_u32_u24 {X(7)}, 448, {X(7)}"); A(f"v_and_b32 {TMP}, 15, {LANE}"); A(f"v_lshl_add_u32 {X(7)}, {TMP}, 1, {X(7)}")
        A(f"s_lshl_b32 s68, {sSIG}, 4"); A(f"v_add_u32 {X(7)}, s68, {X(7)}")
        self.stage_ln(R_X1, R_ST1, None, 1.0, "L_gu", sleep=self.o.lnsleep, pre=self.o.gupre)
        z = X(4)
        A(f"v_cvt_pk_bf16_f32 {z}, {z}, {z}"); A(f"v_and_b32 {z}, 0xffff0000, {z}")
        A(f"v_mov_b32_dpp {X(5)}, {z} row_ror:8 {DPP}")
        A(f"v_max_f32 {z}, 0, {z}"); A(f"v_mul_f32 {z}, {z}, {X(5)}")
        self.pack_pair(X(5), z, X(6))
        self.set_exec(0x00550055, 0)
        self.pub(f"global_store_dword {X(7)}, {X(5)}, {SC_}")
        A("s_mov_b64 exec, -1")
        self.fst(5)
        self.stamp(13)
        A("s_waitcnt vmcnt(0)")

    def dn_fetch(self):
        A = self.A
        A(f"s_cmp_eq_u32 {sWAVE}, 1"); A("s_cbranch_scc0 L_dn_b")
        self.gbase(SA, R_H)
        A(f"v_add_u32 {X(10)}, {LDS_RED}, {L16}")
        if self.o.dnpre: A(f"s_sleep {self.o.dnpre}")
        self.set_exec(0xFFFFFFFF, 0x00FFFFFF)
        NS = self.o.lnsets
        base = [56, 60]
        for k in range(NS - 1): A(f"global_load_dwordx4 {TR(base[k],4)}, {L16}, {SA} sc1")
        A("L_dn:")
        for k in range(NS):
            A(f"global_load_dwordx4 {TR(base[(k + NS - 1) % NS],4)}, {L16}, {SA} sc1")
            A(f"s_waitcnt vmcnt({NS-1})")
            for s in self.maxops(X(11), [T(base[k] + i) for i in range(4)]): A(s)
            A(f"v_cmp_eq_u32 vcc, -1, {X(11)}")
            A(f"s_cbranch_vccz L_dn_ok{k}")
        A(f"s_cmp_eq_u32 {sBUD}, 0"); A("s_cbranch_scc1 L_dn_ok0"); A(f"s_sub_u32 {sBUD}, {sBUD}, 1")
        A("s_branch L_dn")
        for k in reversed(range(NS)):
            A(f"L_dn_ok{k}:")
            A(f"ds_write_b128 {X(10)}, {TR(base[k],4)}")
            if k != 0: A("s_branch L_dn_w")
        A("L_dn_w:")
        A("s_mov_b64 exec, -1")
        A("s_waitcnt lgkmcnt(0)")
        A("L_dn_b:")
        A("s_barrier")
    def stage_dn(self):
        A = self.A
        a = X(8)
        A(f"v_and_b32 {a}, 1, {LANE}"); A(f"v_mul_u32_u24 {a}, 448, {a}"); A(f"v_lshrrev_b32 {TMP}, 4, {LANE}"); A(f"v_lshl_add_u32 {a}, {TMP}, 4, {a}")
        A(f"v_add_u32 {a}, {LDS_RED}, {a}")
        self.cbase(SB, 1, consumer=False)
        self.p_store_addr(X(9))
        self.dn_fetch()
        A(f"s_cmp_ge_u32 {sWAVE}, 2"); A("s_cbranch_scc0 L_dn_nors")
        self.gbase(SD, R_X1)
        self.rs_setup()
        A(f"global_load_ushort {X(13)}, {X(10)}, {SD} sc1")
        A("s_branch L_dn_rs")
        A("L_dn_nors:")
        D = [XR(0, 4), XR(4, 4)]
        for t in range(7): A(f"ds_read_b128 {TR(4*t,4)}, {a} offset:{t*64}")
        for t in range(7):
            if t in (0, 3, 5): A(f"s_waitcnt lgkmcnt({ {0: 4, 3: 2, 5: 0}[t] })")
            for u in range(2):
                A(f"v_mfma_f32_16x16x32_bf16 {D[u]}, {TR(4*t,4)}, {WR(4*(2*t+u),4)}, {'0' if t == 0 else D[u]}")
        A(f"v_permlane16_swap_b32 {X(0)}, {X(1)}"); A(f"v_permlane16_swap_b32 {X(4)}, {X(5)}")
        A(f"v_permlane32_swap_b32 {X(0)}, {X(4)}")
        A(f"s_cmp_eq_u32 {sLAYER}, 1"); A("s_cbranch_scc1 L_dn_last")
        self.p_publish(SB, X(9), X(0), 0)
        A("s_branch L_dn_pd")
        A("L_dn_last:")
        A(f"global_store_dword {X(9)}, {X(0)}, {SB} sc1")
        A("L_dn_pd:")
        self.stamp(14)
        A("s_waitcnt vmcnt(0)")

    def stage_q2(self):
        A = self.A
        self.gbase(SC_, R_Q, 1)
        A(f"v_bfe_u32 {X(7)}, {LANE}, 4, 1"); A(f"v_lshlrev_b32 {X(7)}, 10, {X(7)}"); A(f"v_and_b32 {TMP}, 15, {LANE}"); A(f"v_lshl_add_u32 {X(7)}, {TMP}, 1, {X(7)}")
        A(f"s_lshl_b32 s68, {sSIG}, 5"); A(f"v_add_u32 {X(7)}, s68, {X(7)}")
        self.stage_ln(R_X2, R_ST2, 0, QSCALE, "L_qx", sleep=self.o.lnsleep, pre=self.o.wqpre)
        self.pack_pair(X(5), X(4), X(6))
        self.set_exec(0x55555555, 0)
        self.pub(f"global_store_dword {X(7)}, {X(5)}, {SC_}")
        A("s_mov_b64 exec, -1")
        self.stamp(15)
        A("s_waitcnt vmcnt(0)")

    def finish(self):
        A = self.A
        if not self.o.prof: return
        A("s_lshl_b32 s68, s2, 2"); A(f"s_add_u32 s68, s68, {sWAVE}"); A("s_lshl_b32 s68, s68, 7"); A(f"v_mov_b32 {X(0)}, s68")
        A("s_mov_b64 exec, 1")
        for k in range(20):
            A(f"v_mov_b32 {X(1)}, s{80+k}"); A(f"global_store_dword {X(0)}, {X(1)}, {sWS} offset:{4*k}")
        for k in range(9):
            A(f"v_mov_b32 {X(1)}, s{36+k}"); A(f"global_store_dword {X(0)}, {X(1)}, {sWS} offset:{80+4*k}")
        A(f"v_mov_b32 {X(1)}, {sMODE}"); A(f"global_store_dword {X(0)}, {X(1)}, {sWS} offset:116")
        A(f"v_mov_b32 {X(1)}, {sBUD}"); A(f"global_store_dword {X(0)}, {X(1)}, {sWS} offset:120")

    def build(self):
        A = self.A; o = self.o
        self.prologue()
        if o.prof:
            for k in range(9): A(f"s_mov_b32 s{36+k}, 0")
        self.stream()
        A("L_layer:")
        self.get_q()
        self.stamp(6)
        self.attention()
        A(f"s_cmp_eq_u32 {sWAVE}, 0"); A("s_cbranch_scc0 L_nocomb")
        self.combine_publish()
        self.stamp(10)
        A("L_nocomb:")
        A(f"s_cmp_eq_u32 {sROLE}, {ROLE_GU}"); A("s_cbranch_scc1 L_gu_s")
        A(f"s_cmp_eq_u32 {sROLE}, {ROLE_DN}"); A("s_cbranch_scc1 L_dn_s")
        A(f"s_cmp_eq_u32 {sROLE}, {ROLE_WQ}"); A("s_cbranch_scc1 L_wq_s")
        A(f"s_cmp_eq_u32 {sROLE}, {ROLE_WO}"); A("s_cbranch_scc0 L_next")
        self.stage_wo()
        self.cbase(SA, 0); self.gbase(SB, R_X1); self.gbase(SC_, R_ST1); A("s_mov_b32 s78, 0")
        if o.b1gate:
            A(f"s_cmp_eq_u32 {sLAYER}, 0"); A("s_cbranch_scc0 L_rs1pre")
            A(f"v_and_b32 {X(14)}, 7, {LANE}"); A(f"v_lshlrev_b32 {X(14)}, 5, {X(14)}"); A(f"v_add_u32 {X(14)}, 8, {X(14)}")
            A("s_mov_b64 exec, 0xff")
            A(f"global_load_dword {X(15)}, {X(14)}, {sDBG} sc1"); A("s_waitcnt vmcnt(0)")
            A(f"v_cmp_ne_u32 vcc, 32, {X(15)}")
            A("s_cbranch_vccz L_b1_first")
            A("L_b1:")
            A(f"s_cmp_eq_u32 {sBUD}, 0"); A("s_cbranch_scc1 L_b1_d"); A(f"s_sub_u32 {sBUD}, {sBUD}, 1")
            if o.b1sleep: A(f"s_sleep {o.b1sleep}")
            A(f"global_load_dword {X(15)}, {X(14)}, {sDBG} sc1"); A("s_waitcnt vmcnt(0)")
            A(f"v_cmp_ne_u32 vcc, 32, {X(15)}")
            A("s_cbranch_vccnz L_b1")
            A("L_b1_d:")
            A(f"s_sleep {o.b1post}")
            A("L_b1_first:")
            A("s_mov_b64 exec, -1")
            A("s_branch L_rs_entry")
            A("L_rs1pre:")
        if o.rspre1: A(f"s_sleep {o.rspre1}")
        A("L_rs_entry:")
        self.stage_rs()
        self.dstamp(6, layer=0)
        A("s_branch L_next")
        A("L_gu_s:")
        self.stage_gu()
        A("s_branch L_next")
        A("L_dn_s:")
        self.stage_dn()
        A("s_branch L_next")
        A("L_dn_rs:")
        A(f"s_lshl_b32 s68, {sLAYER}, 3"); A(f"s_and_b32 s68, s68, 8"); A(f"s_mul_i32 s68, s68, {sGI}"); A("s_cmp_lg_u32 s68, 0"); A("s_cbranch_scc1 L_fin_w")
        self.cbase(SA, 1); self.gbase(SB, R_X2); self.gbase(SC_, R_ST2); A(f"s_mov_b32 s78, {sLAYER}")
        A(f"s_cmp_eq_u32 {sLAYER}, 1"); A("s_cbranch_scc1 L_rs2b")
        if o.rspre2: A(f"s_sleep {o.rspre2}")
        A("s_branch L_rs_entry")
        A("L_rs2b:")
        if o.rspre3: A(f"s_sleep {o.rspre3}")
        A("s_branch L_rs_entry")
        A("L_wq_s:")
        A(f"s_cmp_eq_u32 {sLAYER}, 1"); A("s_cbranch_scc1 L_fin")
        self.stage_q2()
        A("L_next:")
        A(f"s_cmp_eq_u32 {sLAYER}, 1"); A("s_cbranch_scc1 L_fin")
        A(f"s_mov_b32 {sLAYER}, 1")
        A("s_branch L_layer")
        A("L_final:")
        A(f"s_cmp_eq_u32 {sGI}, 0"); A("s_cbranch_scc0 L_fin")
        self.set_exec(0x55555555, 0x55555555)
        A(f"global_store_dword {X(10)}, {X(1)}, {sOUT}")
        A(f"s_cmp_eq_u32 {sSIG}, 2"); A("s_cbranch_scc0 L_noep")
        A("s_mov_b64 exec, 1")
        A(f"v_mov_b32 {X(2)}, {EOFF}"); A(f"v_mov_b32 {X(3)}, {sTAG}")
        A(f"global_store_dword {X(2)}, {X(3)}, {sWS}")
        A("L_noep:")
        A("s_mov_b64 exec, -1")
        A("L_fin_w:")
        A("L_fin:")
        self.dstamp(10)
        self.stamp(16)
        self.finish()
        A("L_end:")
        A("s_endpgm")
        for t in self.tail_code: A(t)
        lines, n = hazard.fix(A.L, verbose=o.verbose)
        A.L = lines
        return A

def main():
    ap = argparse.ArgumentParser()
    ap.add_argument("-o", default="k3.s")
    ap.add_argument("--prof", action="store_true")
    ap.add_argument("--slow", action="store_true")
    ap.add_argument("--nt", type=int, default=1)
    ap.add_argument("--wnt", type=int, default=1)
    ap.add_argument("--win", type=int, default=12)
    ap.add_argument("--winv", type=int, default=60)
    ap.add_argument("--budget", type=int, default=200000)
    ap.add_argument("--gate", type=int, default=0)
    ap.add_argument("--gatesleep", type=int, default=1)
    ap.add_argument("--qsleep", type=int, default=1)
    ap.add_argument("--trypoll", type=int, default=6)
    ap.add_argument("--k0", type=int, default=1)
    ap.add_argument("--prefetch", type=int, default=0)
    ap.add_argument("--rsets", type=int, default=1)
    ap.add_argument("--lnsleep", type=int, default=0)
    ap.add_argument("--playout", type=int, default=0)
    ap.add_argument("--ncopies", type=int, default=8)
    ap.add_argument("--rspre1", type=int, default=10)
    ap.add_argument("--rspre2", type=int, default=12)
    ap.add_argument("--rssleep", type=int, default=0)
    ap.add_argument("--rspre3", type=int, default=11)
    ap.add_argument("--wopre", type=int, default=0)
    ap.add_argument("--gupre", type=int, default=0)
    ap.add_argument("--wqpre", type=int, default=0)
    ap.add_argument("--dnpre", type=int, default=0)
    ap.add_argument("--qpre", type=int, default=0)
    ap.add_argument("--lnsets", type=int, default=2)
    ap.add_argument("--gupf", type=int, default=1)
    ap.add_argument("--gudelay", type=int, default=3)
    ap.add_argument("--wqpf", type=int, default=0)
    ap.add_argument("--wopf", type=int, default=0)
    ap.add_argument("--b1gate", type=int, default=0)
    ap.add_argument("--b1sleep", type=int, default=2)
    ap.add_argument("--b1post", type=int, default=8)
    ap.add_argument("--pfdn", type=int, default=8)
    ap.add_argument("--pfnone", type=int, default=20)
    ap.add_argument("--wstep", type=int, default=4)
    ap.add_argument("--esplit", type=int, default=1)
    ap.add_argument("--qsets", type=int, default=2)
    ap.add_argument("--pf4", type=int, default=1)
    ap.add_argument("--exp", default="")
    ap.add_argument("--perturb", type=float, default=0.0)
    ap.add_argument("--vdist", type=int, default=3)
    ap.add_argument("--fullcheck", type=int, default=0)
    ap.add_argument("--round2", type=int, default=0)
    ap.add_argument("--stamps", default=None)
    ap.add_argument("--verbose", action="store_true")
    ap.add_argument("--dbgstamps", action="store_true")
    ap.add_argument("--fine", default="")
    o = ap.parse_args()
    g = Gen(o); A = g.build(); A.write(o.o)
    print("wrote", o.o, len(A.L), "lines")
main()
```

```python
import sys, argparse, struct
from asmlib import Asm, NAME
import hazard

GOFF = 0x100000; LSTRIDE = 0x8000
R_Q = 0x0000; R_ML = 0x0800; R_X1 = 0x0A00; R_ST1 = 0x1100; R_H = 0x1300; R_X2 = 0x1800; R_ST2 = 0x1F00; R_O = 0x4000
COFF = GOFF + 0x80000
EOFF = 0x0F0000
QTOFF = 0x0F8000
TAGC = 0x9E3779B9
NLDS = 19
VW = NLDS * 2048
LDS_OP = 4 * VW; LDS_MLP = LDS_OP + 4096; LDS_QL = LDS_MLP + 64; LDS_FLAG = LDS_QL + 512; LDS_RED = LDS_FLAG + 64
assert LDS_RED + 2048 <= 163840
LOG2E = 1.4426950408889634
QSCALE = LOG2E / 16.0
ROLE_WQ, ROLE_WO, ROLE_GU, ROLE_DN, ROLE_NONE = 0, 1, 2, 3, 4

def f32(x): return "0x%08x" % struct.unpack("<I", struct.pack("<f", x))[0]
def X(n): assert 0 <= n < 20; return f"v{4+n}"
def T(n): assert 0 <= n < 64; return f"v{24+n}"
def W(n): assert 0 <= n < 64; return f"v{88+n}"
def VR(n): assert 0 <= n < 104; return f"v{152+n}"
def rng(f, a, n):
    s = f(a); k = int(s[1:]); assert n == 1 or k % 2 == 0, (s, n); return f"{s[0]}[{k}:{k+n-1}]"
def XR(a, n): return rng(X, a, n)
def TR(a, n): return rng(T, a, n)
def WR(a, n): return rng(W, a, n)
def VRR(a, n): return rng(VR, a, n)
LANE = "v0"; CS = "v1"; L16 = "v2"; TMP = "v3"
sM0B = "s3"
sXIN = "s[4:5]"
sOUT = "s[16:17]"; sDBG = "s[18:19]"; sWS = "s[20:21]"; sG = "s[22:23]"; sC = "s[24:25]"
sWAVE = "s26"; sGI = "s27"; sJ = "s28"; sHL = "s29"; sB = "s30"; sSP = "s31"
sMODE = "s32"; sBUD = "s33"; sLAYER = "s34"; sTILE = "s35"
sADV = "s101"; sTAG = "s46"; sROLE = "s6"; sSIG = "s7"; sS4 = "s47"
sSEL = "s[60:61]"
sMA = "s[54:55]"
SA = "s[70:71]"; SB = "s[72:73]"; SC_ = "s[74:75]"; SD = "s[64:65]"
WBAR = "v[14:15]"; WBAR0 = "v14"; WBAR1 = "v15"
DPP = "row_mask:0xf bank_mask:0xf"

HDR = """; Persistent fused kernel: 2 x (LN -> MHA over the KV cache -> Wo -> residual -> LN -> ReGLU FFN -> residual).
; One workgroup per CU (256 x 4 waves, 512 registers per lane, all 160 KiB of LDS). The KV cache is read from HBM once and stays
; start of every launch (counter in d_debug), each word validates itself; layer-0 q uses {data, tag} granules with a tag derived from
; an epoch word so that it can be told from an earlier launch's hand-off. Group-local hand-offs use plain stores only when all
; workgroups of the group report the same XCC id in this launch, otherwise write-through stores (correct for any placement).
; All spin loops are bounded."""

class Gen:
    def __init__(self, opt):
        self.o = opt; self.A = Asm(); self.ob = 0; self.tail_code = []
    def stamp(self, k):
        if not self.o.prof: return
        if self.o.stamps is not None and k not in [int(x) for x in self.o.stamps.split(",")]: return
        A = self.A
        A("s_memrealtime s[76:77]"); A("s_waitcnt lgkmcnt(0)")
        if 6 <= k <= 14:
            A(f"s_cmp_eq_u32 {sLAYER}, 0"); A(f"s_cselect_b32 s{80+k}, s76, s{80+k}"); A(f"s_cselect_b32 s{30+k}, s{30+k}, s76")
        else:
            A(f"s_mov_b32 s{80+k}, s76")
    def dstamp(self, word, neg=False, layer=None):
        if not self.o.dbgstamps: return
        A = self.A
        lab = A.label("DS")
        A("s_cmp_eq_u32 s2, 176"); A(f"s_cbranch_scc0 {lab}"); A(f"s_cmp_eq_u32 {sWAVE}, 0"); A(f"s_cbranch_scc0 {lab}")
        if layer is not None:
            A(f"s_cmp_eq_u32 {sLAYER}, {layer}"); A(f"s_cbranch_scc0 {lab}")
        A("s_memrealtime s[76:77]"); A("s_waitcnt lgkmcnt(0)")
        A(f"v_mov_b32 v86, s76"); A(f"v_mov_b32 v87, {4*word}")
        A("s_mov_b64 s[78:79], exec"); A("s_mov_b64 exec, 1")
        A(f"global_store_dword v87, v86, {sDBG}")
        A("s_mov_b64 exec, s[78:79]")
        A(f"{lab}:")
    def fst(self, k, which="ln"):
        if self.o.fine != which: return
        A = self.A
        A("s_memtime s[76:77]"); A("s_waitcnt lgkmcnt(0)"); A(f"s_mov_b32 s{90+k}, s76")
    def gbase(self, dst, off, layer=None):
        A = self.A; d = int(dst[2:dst.index(":")])
        if layer is None:
            A(f"s_mul_i32 s68, {sLAYER}, {LSTRIDE}"); A(f"s_add_u32 s68, s68, {off}")
            A(f"s_add_u32 s{d}, s22, s68")
        else:
            A(f"s_add_u32 s{d}, s22, {off + layer*LSTRIDE}")
        A(f"s_addc_u32 s{d+1}, s23, 0")
    def cbase(self, dst, kind, consumer=True):
        A = self.A; d = int(dst[2:dst.index(":")]); L = self.o.playout
        A(f"s_lshl_b32 s68, {sLAYER}, 19"); A(f"s_lshl_b32 s69, {sS4}, {10 if L == 0 else 13}"); A("s_add_u32 s68, s68, s69")
        if consumer:
            sh = {0: 15, 1: 7, 2: 10}[L]; extra = {0: 0, 1: 4096, 2: 0}[L]
        else:
            sh = {0: 7, 1: 10, 2: 7}[L]; extra = {0: 0, 1: 0, 2: 4096}[L]
        if consumer and self.o.ncopies < 8: A(f"s_and_b32 s69, {sGI}, {self.o.ncopies - 1}"); A(f"s_lshl_b32 s69, s69, {sh}")
        else: A(f"s_lshl_b32 s69, {sGI}, {sh}")
        A("s_add_u32 s68, s68, s69"); A(f"s_add_u32 s68, s68, {kind*0x40000 + extra}")
        A(f"s_add_u32 s{d}, s24, s68"); A(f"s_addc_u32 s{d+1}, s25, 0")
    def p_store_addr(self, dst):
        self.p_addr(dst)
    def p_publish(self, base, vaddr, val, t4):
        A = self.A; d = int(base[2:base.index(":")]); N = self.o.ncopies
        for c in range(N):
            A(f"global_store_dword {vaddr}, {val}, {base} sc1")
            if c != N - 1: A(f"s_add_u32 s{d}, s{d}, 0x8000"); A(f"s_addc_u32 s{d+1}, s{d+1}, 0")
    def p_poll_off(self, g):
        return {0: g * 128, 1: g * 1024 - 4096, 2: g * 128}[self.o.playout]
    def maxops(self, dst, regs, first=True):
        out = []; regs = list(regs)
        if first:
            if len(regs) >= 3: out.append(f"v_max3_u32 {dst}, {regs[0]}, {regs[1]}, {regs[2]}"); regs = regs[3:]
            elif len(regs) == 2: out.append(f"v_max_u32 {dst}, {regs[0]}, {regs[1]}"); regs = []
            else: out.append(f"v_mov_b32 {dst}, {regs[0]}"); regs = []
        while len(regs) >= 2:
            out.append(f"v_max3_u32 {dst}, {dst}, {regs[0]}, {regs[1]}"); regs = regs[2:]
        if regs: out.append(f"v_max_u32 {dst}, {dst}, {regs[0]}")
        return out
    def chk_regs(self, f, base, nload):
        if self.o.fullcheck: return [f(base + k) for k in range(4 * nload)]
        return [f(base + 4 * k) for k in range(nload)]
    def poll_tail(self, chk, loop, done, sleep=0):
        A = self.A
        A(f"v_cmp_eq_u32 vcc, -1, {chk}")
        A(f"s_cbranch_vccz {done}")
        A(f"s_cmp_eq_u32 {sBUD}, 0"); A(f"s_cbranch_scc1 {done}")
        A(f"s_sub_u32 {sBUD}, {sBUD}, 1")
        if sleep: A(f"s_sleep {sleep}")
        A(f"s_branch {loop}")
    def gate(self, base, vaddr, off, dst, lab):
        if not self.o.gate: return
        A = self.A
        A(f"{lab}:")
        A(f"global_load_dword {dst}, {vaddr}, {base} offset:{off} sc1"); A("s_waitcnt vmcnt(0)")
        self.poll_tail(dst, lab, lab + "_d", sleep=self.o.gatesleep)
        A(f"{lab}_d:")
    def pub(self, instr):
        A = self.A
        l1 = A.label("PUBS"); l2 = A.label("PUBD")
        A(f"s_cmp_eq_u32 {sMODE}, 1"); A(f"s_cbranch_scc0 {l1}")
        A(instr); A(f"{l2}:")
        self.tail_code += [f"{l1}:", instr + " sc1", f"s_branch {l2}"]
    def set_exec(self, lo, hi):
        A = self.A
        if lo == 0xFFFFFFFF and hi == 0xFFFFFFFF: A("s_mov_b64 exec, -1"); return
        A(f"s_mov_b32 exec_lo, {hex(lo)}"); A(f"s_mov_b32 exec_hi, {hex(hi)}")
    def ln_addr(self, dst):
        A = self.A
        A(f"v_and_b32 {dst}, 1, {LANE}"); A(f"v_mul_u32_u24 {dst}, 896, {dst}")
        A(f"v_lshrrev_b32 {TMP}, 4, {LANE}"); A(f"v_lshl_add_u32 {dst}, {TMP}, 4, {dst}")
    def xst_addr(self, dst):
        A = self.A
        A(f"v_bfe_u32 {TMP}, {LANE}, 4, 1"); A(f"v_mul_u32_u24 {dst}, 896, {TMP}")
        A(f"v_and_b32 {TMP}, 15, {LANE}"); A(f"v_lshl_add_u32 {dst}, {TMP}, 1, {dst}")
        A(f"s_lshl_b32 s68, {sSIG}, 5"); A(f"v_add_u32 {dst}, s68, {dst}")
    def pack_pair(self, dst, val, tmp):
        A = self.A
        A(f"v_mov_b32_dpp {tmp}, {val} quad_perm:[1,0,3,2] {DPP}")
        A(f"v_cvt_pk_bf16_f32 {dst}, {val}, {tmp}")

    def prologue(self):
        A = self.A; o = self.o
        wnt = " nt" if o.wnt else ""
        A(f"""
        s_cmp_ge_u32 s2, 256
        s_cbranch_scc1 L_end
        {"s_memrealtime s[100:101]" if o.dbgstamps else ""}
        s_load_dwordx2 s[8:9], s[0:1], 8
        s_load_dwordx16 s[36:51], s[0:1], 0
        s_load_dwordx8 s[52:59], s[0:1], 64
        v_lshrrev_b32 v1, 6, v0
        v_and_b32 v0, 63, v0
        s_and_b32 {sGI}, s2, 7
        v_readfirstlane_b32 {sWAVE}, v1
        s_lshr_b32 {sJ}, s2, 3
        s_lshr_b32 s68, {sJ}, 3
        s_and_b32 {sSP}, {sJ}, 7
        s_and_b32 {sHL}, s68, 1
        s_lshr_b32 {sB}, s68, 1
        s_lshl_b32 s68, {sGI}, 1
        s_add_u32 s68, s68, {sHL}
        s_lshl_b32 s69, {sB}, 4
        s_add_u32 s68, s68, s69
        s_lshl_b32 {sTILE}, s68, 21
        s_lshl_b32 s68, {sSP}, 15
        s_add_u32 {sTILE}, {sTILE}, s68
        s_lshl_b32 s68, {sWAVE}, 13
        s_add_u32 {sTILE}, {sTILE}, s68
        s_mov_b32 s10, 0x4000000
        s_mov_b32 s11, 0x00020000
        """)
        vK = X(18)
        A(f"v_lshrrev_b32 {X(9)}, 4, {LANE}")
        A(f"v_and_b32 {vK}, 3, {LANE}"); A(f"v_lshlrev_b32 {vK}, 4, {vK}"); A(f"v_lshl_add_u32 {vK}, {X(9)}, 6, {vK}")
        A(f"v_bfe_u32 {TMP}, {LANE}, 2, 2"); A(f"v_lshl_add_u32 {vK}, {TMP}, 11, {vK}")
        A("s_waitcnt lgkmcnt(0)")
        self.ob = 0
        self.ktile(0, 64)
        A(f"""
        s_mov_b32 {sBUD}, {o.budget}
        s_mov_b32 {sLAYER}, 0
        s_mov_b32 {sMODE}, 0
        s_mov_b32 s60, 0xffff0000
        s_mov_b32 s61, 0xffff0000
        v_lshlrev_b32 {L16}, 4, {LANE}
        v_mov_b32 {CS}, 0
        s_mul_i32 {sM0B}, {sWAVE}, {VW}
        """)
        if o.codepf:
            A("s_getpc_b64 s[70:71]")
            A("L_pc:")
            A(f"s_sub_u32 s70, s70, L_pc-{NAME}_kernel"); A("s_subb_u32 s71, s71, 0")
            A(f"s_cmp_eq_u32 {sWAVE}, 1"); A("s_cbranch_scc0 L_nocpf")
            A(f"s_lshl_b32 s68, {sJ}, 10"); A(f"s_cmp_lt_u32 s68, L_codeend-{NAME}_kernel"); A("s_cbranch_scc0 L_nocpf")
            A(f"v_add_u32 {X(10)}, s68, {L16}")
            A(f"global_load_dwordx4 a[252:255], {X(10)}, s[70:71]")
            A("L_nocpf:")
        A(f"v_and_b32 {X(8)}, 15, {LANE}"); A(f"v_lshlrev_b32 {X(19)}, 11, {X(9)}"); A(f"v_lshl_add_u32 {X(19)}, {X(8)}, 4, {X(19)}")
        A(f"s_mov_b32 {sROLE}, {ROLE_WQ}"); A(f"s_mov_b32 s62, {sJ}")
        for (lim, role) in ((8, ROLE_WO), (15, ROLE_GU), (22, ROLE_DN), (29, ROLE_NONE)):
            A(f"s_cmp_ge_u32 {sJ}, {lim}"); A(f"s_cselect_b32 {sROLE}, {role}, {sROLE}"); A(f"s_sub_u32 s68, {sJ}, {lim}")
            A(f"s_cmp_ge_u32 {sJ}, {lim}"); A("s_cselect_b32 s62, s68, s62")
        A(f"s_lshl_b32 {sSIG}, s62, 2"); A(f"s_add_u32 {sSIG}, {sSIG}, {sWAVE}")
        self.stamp(0)
        if o.prof:
            for k in range(1, 20): A(f"s_mov_b32 s{80+k}, 0")
        A(f"""
        s_load_dword {sTAG}, s[58:59], {EOFF}
        s_sub_u32 {sS4}, {sSIG}, {sWAVE}
        s_mov_b32 s12, s40
        s_mov_b32 s13, s41
        s_mov_b32 s14, 0x4000000
        s_mov_b32 s15, 0x00020000
        s_mov_b32 s4, s36
        s_mov_b32 s5, s37
        s_mov_b32 s16, s54
        s_mov_b32 s17, s55
        s_mov_b32 s18, s56
        s_mov_b32 s19, s57
        s_mov_b32 s20, s58
        s_mov_b32 s21, s59
        s_lshl_b32 s68, {sGI}, 16
        s_add_u32 s68, s68, {GOFF}
        s_add_u32 s22, s58, s68
        s_addc_u32 s23, s59, 0
        s_add_u32 s24, s58, {COFF}
        s_addc_u32 s25, s59, 0
        s_mov_b64 s[70:71], s[58:59]
        s_mov_b64 s[72:73], s[58:59]
        s_mov_b64 s[74:75], s[58:59]
        """)
        if o.dbgstamps:
            A("s_cmp_eq_u32 s2, 176"); A("s_cbranch_scc0 L_ds0"); A(f"s_cmp_eq_u32 {sWAVE}, 0"); A("s_cbranch_scc0 L_ds0")
            A("v_mov_b32 v86, s100"); A("v_mov_b32 v87, 8"); A("s_mov_b64 exec, 1")
            A(f"global_store_dword v87, v86, {sDBG}"); A("s_mov_b64 exec, -1")
            A("L_ds0:")
            self.dstamp(3)
        if o.prefetch: self.prefetch_weights()
        if o.gupf:
            assert o.k0 == 1
            A(f"s_cmp_ge_u32 {sROLE}, {ROLE_DN}"); A("s_cbranch_scc0 L_nogupf")
            self.prefetch_gu()
            A("L_nogupf:")
            A(f"s_cmp_eq_u32 {sROLE}, {ROLE_GU}"); A(f"s_cselect_b32 {sADV}, 1, 0")
            if o.wqpf:
                A(f"s_cmp_eq_u32 {sROLE}, {ROLE_WQ}"); A(f"s_cselect_b32 {sADV}, 1, {sADV}")
                A(f"s_cmp_eq_u32 {sROLE}, {ROLE_GU}"); A("s_cbranch_scc0 L_nowqpf")
                self.prefetch_wq()
                A("L_nowqpf:")
            if o.wopf:
                A(f"s_cmp_eq_u32 {sROLE}, {ROLE_WO}"); A(f"s_cselect_b32 {sADV}, 1, {sADV}")
                A(f"s_cmp_eq_u32 {sROLE}, {ROLE_GU}"); A("s_cbranch_scc0 L_nowopf")
                A(f"s_mul_i32 s68, {sGI}, 458752"); A(f"s_mul_i32 s69, {sSIG}, {o.wopf*1024}"); A("s_add_u32 s68, s68, s69"); A(f"v_add_u32 {X(11)}, s68, {L16}")
                for k in range(o.wopf):
                    A(f"global_load_dwordx4 a[{192+4*k}:{195+4*k}], {X(11)}, s[44:45]" + (f" offset:{(k%4)*1024}" if k % 4 else ""))
                    if k % 4 == 3: A(f"v_add_u32 {X(11)}, 4096, {X(11)}")
                A("L_nowopf:")
            A(f"s_cmp_eq_u32 {sADV}, 1"); A("s_cbranch_scc0 L_nogu12")
            for tau in range(1, 1 + o.gudelay): self.ktile(tau, 64)
            A("s_waitcnt vmcnt(24)")
            A("L_nogu12:")
        for tau in range(1, o.k0): self.ktile(tau, 64)
        if 8 * o.k0 + (14 if o.prefetch else 0) > 16: A("s_waitcnt vmcnt(16)")
        row8, c, off = X(2), X(3), X(4)
        A(f"v_lshrrev_b32 {row8}, 3, {LANE}"); A(f"v_and_b32 {c}, 7, {LANE}")
        A(f"s_cmp_eq_u32 {sROLE}, {ROLE_WO}"); A("s_cbranch_scc1 L_w1")
        A(f"s_cmp_eq_u32 {sROLE}, {ROLE_GU}"); A("s_cbranch_scc1 L_w2")
        A(f"s_cmp_eq_u32 {sROLE}, {ROLE_DN}"); A("s_cbranch_scc1 L_w3")
        A(f"s_cmp_eq_u32 {sROLE}, {ROLE_WQ}"); A("s_cbranch_scc1 L_w0")
        A(f"v_mov_b32 {off}, 0"); A("s_mov_b32 s63, 0"); A("s_mov_b32 s66, 0"); A("s_mov_b32 s67, 0")
        A("s_mov_b32 s64, s42"); A("s_mov_b32 s65, s43"); A("s_mov_b32 s78, s42"); A("s_mov_b32 s79, s43")
        A("s_branch L_wdone")
        A("L_w0:")
        A(f"s_mul_i32 s68, {sWAVE}, 112"); A(f"v_add_u32 {X(5)}, s68, {row8}"); A(f"v_lshlrev_b32 {off}, 13, {X(5)}")
        A(f"v_lshl_add_u32 {off}, {c}, 4, {off}"); A(f"s_lshl_b32 s68, {sGI}, 10"); A("s_lshl_b32 s69, s62, 7"); A("s_add_u32 s68, s68, s69"); A(f"v_add_u32 {off}, s68, {off}")
        A("s_mov_b32 s63, 14"); A(f"s_mov_b32 s66, {8*8192}"); A(f"s_mul_i32 s67, {sWAVE}, 14336")
        A("s_mov_b32 s64, s42"); A("s_mov_b32 s65, s43"); A("s_mov_b32 s78, s42"); A("s_mov_b32 s79, s43")
        A(f"s_cmp_eq_u32 {sWAVE}, 0"); A("s_cbranch_scc0 L_nox")
        A(f"s_mov_b32 m0, {LDS_RED}")
        A(f"global_load_lds_dwordx4 {L16}, {sXIN}")
        self.set_exec(0xFFFFFFFF, 0x0000FFFF)
        A(f"global_load_lds_dwordx4 {L16}, {sXIN} offset:1024")
        A("s_mov_b64 exec, -1")
        A("L_nox:")
        A("s_branch L_wdone")
        A("L_w1:")
        A(f"v_and_b32 {X(5)}, 3, {row8}"); A(f"v_lshlrev_b32 {X(5)}, 3, {X(5)}"); A(f"v_lshrrev_b32 {X(6)}, 2, {row8}"); A(f"v_add_u32 {X(5)}, {X(5)}, {X(6)}")
        A(f"s_lshl_b32 s68, {sGI}, 9"); A(f"s_lshl_b32 s69, {sWAVE}, 7"); A("s_add_u32 s68, s68, s69"); A(f"v_add_u32 {X(5)}, s68, {X(5)}")
        A(f"v_mul_u32_u24 {off}, 896, {X(5)}"); A(f"v_lshl_add_u32 {off}, {c}, 4, {off}"); A("s_lshl_b32 s68, s62, 7"); A(f"v_add_u32 {off}, s68, {off}")
        A(f"v_lshrrev_b32 {X(12)}, 5, {LANE}"); A(f"s_and_b32 s68, {sWAVE}, 1"); A("s_lshl_b32 s68, s68, 1"); A(f"s_add_u32 s68, s68, {sS4}"); A(f"v_add_u32 {X(12)}, s68, {X(12)}")
        A(f"v_bfe_u32 {TMP}, {LANE}, 4, 1"); A(f"v_mul_u32_u24 {X(10)}, 896, {TMP}"); A(f"v_lshl_add_u32 {X(10)}, {X(12)}, 5, {X(10)}")
        A(f"v_and_b32 {TMP}, 15, {LANE}"); A(f"v_lshl_add_u32 {X(10)}, {TMP}, 1, {X(10)}")
        A(f"global_load_ushort {CS}, {X(10)}, {sXIN}")
        A("s_mov_b32 s63, 16"); A("s_mov_b32 s66, 0"); A(f"s_mov_b32 s67, {sM0B}")
        A("s_mov_b32 s64, s44"); A("s_mov_b32 s65, s45"); A("s_mov_b32 s78, s44"); A("s_mov_b32 s79, s45")
        A("s_branch L_wdone")
        A("L_w2:")
        A(f"s_mul_i32 s68, {sWAVE}, 112"); A(f"v_add_u32 {X(5)}, s68, {row8}"); A(f"v_mul_u32_u24 {off}, 3584, {X(5)}")
        A(f"v_and_b32 {X(6)}, 3, {c}"); A(f"v_lshl_add_u32 {off}, {X(6)}, 4, {off}")
        A(f"s_mul_i32 s68, {sGI}, 448"); A("s_lshl_b32 s69, s62, 6"); A("s_add_u32 s68, s68, s69"); A(f"v_add_u32 {off}, s68, {off}")
        A("s_mov_b32 s63, 14"); A(f"s_mov_b32 s66, {8*3584}"); A(f"s_mul_i32 s67, {sWAVE}, 14336")
        A("s_mov_b32 s64, s48"); A("s_mov_b32 s65, s49"); A("s_mov_b32 s78, s50"); A("s_mov_b32 s79, s51")
        A("s_branch L_wdone")
        A("L_w3:")
        A(f"s_mul_i32 s68, {sGI}, 224"); A(f"s_mul_i32 s69, {sWAVE}, 56"); A("s_add_u32 s68, s68, s69"); A(f"v_add_u32 {X(5)}, s68, {row8}")
        A(f"v_mul_u32_u24 {off}, 896, {X(5)}"); A(f"v_lshl_add_u32 {off}, {c}, 4, {off}"); A("s_lshl_b32 s68, s62, 7"); A(f"v_add_u32 {off}, s68, {off}")
        A("s_mov_b32 s63, 7"); A(f"s_mov_b32 s66, {8*896}"); A(f"s_mul_i32 s67, {sWAVE}, 7168")
        A("s_mov_b32 s64, s52"); A("s_mov_b32 s65, s53"); A("s_mov_b32 s78, s52"); A("s_mov_b32 s79, s53")
        A("L_wdone:")
        A(f"v_cmp_le_u32 vcc, 4, {c}")
        A(f"v_mov_b32 {X(0)}, s64"); A(f"v_mov_b32 {X(5)}, s78"); A(f"v_cndmask_b32 {X(0)}, {X(0)}, {X(5)}, vcc")
        A(f"v_mov_b32 {X(1)}, s65"); A(f"v_mov_b32 {X(5)}, s79"); A(f"v_cndmask_b32 {X(1)}, {X(1)}, {X(5)}, vcc")
        A(f"v_add_co_u32 {X(0)}, vcc, {X(0)}, {off}"); A(f"v_addc_co_u32 {X(1)}, vcc, 0, {X(1)}, vcc")
        A("s_mov_b32 s68, s67"); A("s_mov_b32 s69, 0")
        if "now" in self.o.exp: A("s_mov_b32 s63, 0")
        if "nogu" in self.o.exp:
            A(f"s_cmp_eq_u32 {sROLE}, {ROLE_GU}"); A("s_cselect_b32 s63, 0, s63")
        A("s_cmp_eq_u32 s63, 0"); A("s_cbranch_scc1 L_wld_done")
        A("L_wld:")
        A("s_mov_b32 m0, s68")
        A("s_add_u32 s68, s68, 1024")
        A(f"global_load_lds_dwordx4 {XR(0,2)}, off{wnt}")
        A("s_add_u32 s69, s69, 1"); A("s_and_b32 s62, s69, 3"); A("s_cmp_eq_u32 s62, 0"); A(f"s_mov_b32 s76, {26*896}"); A(f"s_cselect_b32 s62, s76, {2*896}")
        A(f"s_cmp_eq_u32 {sROLE}, {ROLE_WO}"); A("s_cselect_b32 s62, s62, s66")
        A(f"v_add_co_u32 {X(0)}, vcc, s62, {X(0)}"); A(f"v_addc_co_u32 {X(1)}, vcc, 0, {X(1)}, vcc")
        A("s_cmp_lt_u32 s69, s63"); A("s_cbranch_scc1 L_wld")
        A("L_wld_done:")
        A("s_mov_b32 s48, 0x22222222"); A("s_mov_b32 s49, 0x22222222"); A("s_mov_b32 s50, 0x44444444"); A("s_mov_b32 s51, 0x44444444")
        A("s_mov_b32 s52, 0x88888888"); A("s_mov_b32 s53, 0x88888888")
        A("s_mov_b32 s54, 0x03030303"); A("s_mov_b32 s55, 0x03030303")
        A("s_mov_b32 s56, 0x0c0c0c0c"); A("s_mov_b32 s57, 0x0c0c0c0c"); A("s_mov_b32 s58, 0x30303030"); A("s_mov_b32 s59, 0x30303030")
        A("s_mov_b32 s62, 0xc0c0c0c0"); A("s_mov_b32 s63, 0xc0c0c0c0")
        A(f"s_cmp_eq_u32 {sWAVE}, 3"); A("s_cbranch_scc0 L_noclr")
        for k in range(4): A(f"v_mov_b32 {X(12+k)}, -1")
        A(f"s_lshl_b32 s68, {sJ}, 11"); A(f"v_add_u32 {X(8)}, s68, {L16}")
        A(f"global_store_dwordx4 {X(8)}, {XR(12,4)}, {sG} sc1"); A(f"global_store_dwordx4 {X(8)}, {XR(12,4)}, {sG} offset:1024 sc1")
        A(f"s_lshl_b32 s68, s2, 12"); A(f"v_add_u32 {X(9)}, s68, {L16}")
        for k in range(4): A(f"global_store_dwordx4 {X(9)}, {XR(12,4)}, {sC} offset:{k*1024} sc1")
        A("L_noclr:")

    def prefetch_gu(self):
        A = self.A; o = self.o
        nd, nn = o.pfdn, o.pfnone
        f = " nt" if o.gupf == 2 else ""
        A(f"s_mul_i32 s78, {sSIG}, {nd}")
        A(f"s_mul_i32 s69, {sSIG}, {nn}"); A(f"s_add_u32 s69, s69, {28*nd}")
        A(f"s_cmp_eq_u32 {sROLE}, {ROLE_NONE}"); A("s_cselect_b32 s78, s69, s78")
        A(f"v_lshrrev_b32 {X(11)}, 5, {LANE}"); A(f"v_mul_u32_u24 {X(11)}, 3584, {X(11)}"); A(f"v_and_b32 {X(12)}, 31, {LANE}"); A(f"v_lshl_add_u32 {X(11)}, {X(12)}, 4, {X(11)}")
        A(f"s_mul_i32 s68, s78, 3584"); A(f"s_mul_i32 s69, {sGI}, 448"); A("s_add_u32 s68, s68, s69"); A(f"v_add_u32 {X(11)}, s68, {X(11)}")
        self.set_exec(0x0FFFFFFF, 0x0FFFFFFF)
        d = [128]
        def rows(k0, k1):
            for (lo, hi) in (("s48", "s49"), ("s50", "s51")):
                A(f"s_mov_b32 s72, {lo}"); A(f"s_mov_b32 s73, {hi}"); A(f"s_mov_b32 s74, {448*3584}"); A("s_mov_b32 s75, 0x00020000")
                for k in range(k0, k1):
                    A(f"s_mov_b32 s69, {k*7168}")
                    A(f"buffer_load_dwordx4 a[{d[0]}:{d[0]+3}], {X(11)}, s[72:75], s69 offen{f}"); d[0] += 4
        rows(0, nd // 2)
        A(f"s_cmp_eq_u32 {sROLE}, {ROLE_NONE}"); A("s_cbranch_scc0 L_pfgu_d")
        rows(nd // 2, nn // 2)
        A("L_pfgu_d:")
        assert d[0] <= 256
        A("s_mov_b64 exec, -1")
        A("s_mov_b64 s[72:73], s[58:59]"); A("s_mov_b64 s[74:75], s[58:59]")

    def prefetch_wq(self):
        A = self.A
        A(f"s_lshl_b32 s68, {sSIG}, 17"); A(f"s_lshl_b32 s69, {sGI}, 10"); A("s_add_u32 s68, s68, s69"); A(f"v_add_u32 {X(11)}, s68, {L16}")
        for k in range(16):
            A(f"global_load_dwordx4 a[{192+4*k}:{195+4*k}], {X(11)}, s[42:43]")
            if k != 15: A(f"v_add_u32 {X(11)}, 8192, {X(11)}")

    def kpos(self, p, win):
        A = self.A; o = self.o
        if not o.gupf:
            self.ktile(p, win); return
        l1 = A.label("KG"); l2 = A.label("KD")
        ob0 = self.ob
        A(f"s_cmp_eq_u32 {sADV}, 1"); A(f"s_cbranch_scc1 {l1}")
        self.ktile(p, win)
        ob1 = self.ob
        A(f"s_branch {l2}"); A(f"{l1}:")
        self.ob = ob0
        if p + o.gudelay <= 7: self.ktile(p + o.gudelay, win)
        A(f"{l2}:")
        self.ob = max(ob1, self.ob)

    def prefetch_weights(self):
        A = self.A
        f = {0: "", 1: "", 2: " nt"}[self.o.prefetch]
        u = "s78"
        A(f"s_lshl_b32 {u}, {sJ}, 2"); A(f"s_add_u32 {u}, {u}, {sWAVE}")
        d = [192]
        def ld(addr, base, off=0):
            A(f"global_load_dwordx4 a[{d[0]}:{d[0]+3}], {addr}, {base}" + (f" offset:{off}" if off else "") + f); d[0] += 4
        A(f"s_cmp_lt_u32 {u}, 112"); A("s_cbranch_scc0 L_pf1")
        A(f"s_lshl_b32 s68, {u}, 15"); A(f"s_lshl_b32 s69, {sGI}, 10"); A("s_add_u32 s68, s68, s69"); A(f"v_add_u32 {X(10)}, s68, {L16}")
        for k in range(4):
            ld(X(10), "s[42:43]")
            if k != 3: A(f"v_add_u32 {X(10)}, 8192, {X(10)}")
        A(f"v_lshrrev_b32 {X(11)}, 5, {LANE}"); A(f"v_mul_u32_u24 {X(11)}, 3584, {X(11)}"); A(f"v_and_b32 {X(12)}, 31, {LANE}"); A(f"v_lshl_add_u32 {X(11)}, {X(12)}, 4, {X(11)}")
        A(f"s_mul_i32 s68, {u}, {4*3584}"); A(f"s_mul_i32 s69, {sGI}, 448"); A("s_add_u32 s68, s68, s69"); A(f"v_add_u32 {X(11)}, s68, {X(11)}")
        A(f"v_add_u32 {X(12)}, 7168, {X(11)}")
        self.set_exec(0x0FFFFFFF, 0x0FFFFFFF)
        for base in ("s[48:49]", "s[50:51]"):
            ld(X(11), base); ld(X(12), base)
        A("s_mov_b64 exec, -1")
        A("L_pf1:")
        d[0] = 224
        A(f"s_mul_i32 s68, {sGI}, 458752"); A(f"s_mul_i32 s69, {u}, 3584"); A("s_add_u32 s68, s68, s69"); A(f"v_add_u32 {X(10)}, s68, {L16}")
        for k in range(3): ld(X(10), "s[44:45]", k * 1024)
        self.set_exec(0xFFFFFFFF, 0)
        ld(X(10), "s[44:45]", 3072)
        A("s_mov_b64 exec, -1")
        A(f"s_mul_i32 s68, {sGI}, 200704"); A(f"s_mul_i32 s69, {u}, 1568"); A("s_add_u32 s68, s68, s69"); A(f"v_add_u32 {X(10)}, s68, {L16}")
        ld(X(10), "s[52:53]")
        self.set_exec(0xFFFFFFFF, 0x3)
        ld(X(10), "s[52:53]", 1024)
        A("s_mov_b64 exec, -1")

    def tr_reads(self):
        A = self.A
        a = X(8); r, c, g4 = X(10), X(9), TMP
        A(f"v_and_b32 {c}, 15, {LANE}"); A(f"v_lshrrev_b32 {r}, 2, {c}"); A(f"v_and_b32 {c}, 3, {c}")
        A(f"v_lshrrev_b32 {a}, 4, {LANE}"); A(f"v_lshlrev_b32 {a}, 3, {a}"); A(f"v_add_u32 {a}, {a}, {r}")
        A(f"v_lshlrev_b32 {a}, 7, {a}")
        A(f"s_cmp_eq_u32 {sROLE}, {ROLE_WO}"); A("s_cbranch_scc1 L_tr_wo")
        A(f"s_cmp_eq_u32 {sROLE}, {ROLE_GU}"); A("s_cbranch_scc1 L_tr_gu")
        A(f"s_cmp_eq_u32 {sROLE}, {ROLE_DN}"); A("s_cbranch_scc1 L_tr_dn")
        A(f"v_lshl_add_u32 {a}, {c}, 3, {a}"); A(f"s_lshl_b32 s68, {sWAVE}, 5"); A(f"v_add_u32 {a}, s68, {a}")
        A("s_branch L_tr_n")
        A("L_tr_gu:")
        A(f"v_and_b32 {r}, 1, {c}"); A(f"v_lshl_add_u32 {a}, {r}, 3, {a}"); A(f"v_lshrrev_b32 {r}, 1, {c}"); A(f"v_lshl_add_u32 {a}, {r}, 6, {a}")
        A(f"s_lshl_b32 s68, {sWAVE}, 4"); A(f"v_add_u32 {a}, s68, {a}")
        A("L_tr_n:")
        for t in range(14):
            A(f"ds_read_b64_tr_b16 {WR(4*t,2)}, {a} offset:{t*4096}")
            A(f"ds_read_b64_tr_b16 {WR(4*t+2,2)}, {a} offset:{t*4096+512}")
            if t % 4 == 3: A("s_waitcnt lgkmcnt(0)")
        A("s_branch L_tr_d")
        A("L_tr_dn:")
        A(f"v_lshl_add_u32 {a}, {c}, 3, {a}"); A(f"s_and_b32 s68, {sWAVE}, 1"); A("s_lshl_b32 s68, s68, 6"); A(f"v_add_u32 {a}, s68, {a}")
        for t in range(7):
            for u in range(2):
                k = 4 * (2 * t + u)
                A(f"ds_read_b64_tr_b16 {WR(k,2)}, {a} offset:{t*4096+u*32}")
                A(f"ds_read_b64_tr_b16 {WR(k+2,2)}, {a} offset:{t*4096+u*32+512}")
            if t % 2 == 1: A("s_waitcnt lgkmcnt(0)")
        A("s_branch L_tr_d")
        A("L_tr_wo:")
        A(f"v_lshl_add_u32 {a}, {c}, 3, {a}"); A(f"v_add_u32 {a}, {sM0B}, {a}")
        for tt in range(4):
            for nt in range(4):
                k = 4 * (4 * tt + nt)
                A(f"ds_read_b64_tr_b16 {WR(k,2)}, {a} offset:{tt*4096+nt*32}")
                A(f"ds_read_b64_tr_b16 {WR(k+2,2)}, {a} offset:{tt*4096+nt*32+512}")
            A("s_waitcnt lgkmcnt(0)")
        A("L_tr_d:")
        A("s_waitcnt lgkmcnt(0)")
        A(f"s_add_u32 {sTAG}, {sTAG}, {hex(TAGC)}")
    def colsum(self):
        A = self.A
        for k in range(4): A(f"v_mov_b32 {X(4+k)}, 0x3f803f80")
        for t in range(14):
            A(f"v_mfma_f32_16x16x32_bf16 {XR(0,4)}, {XR(4,4)}, {WR(4*t,4)}, {'0' if t == 0 else XR(0,4)}")
        A(f"v_mov_b32 {CS}, {X(0)}")

    def ln_scalars(self, s1, s2, scale):
        ops = [f"v_mul_f32 {s1}, {f32(1/448)}, {s1}", f"v_mul_f32 {s2}, {f32(1/448)}, {s2}",
               f"v_fma_f32 {s2}, -{s1}, {s1}, {s2}", f"v_max_f32 {s2}, 0, {s2}", f"v_add_f32 {s2}, {f32(1e-5)}, {s2}", f"v_rsq_f32 {s2}, {s2}"]
        if scale != 1.0: ops.append(f"v_mul_f32 {s2}, {f32(scale)}, {s2}")
        return ops
    def ln_finish(self, mu, rs):
        A = self.A
        A(f"v_permlane16_swap_b32 {X(0)}, {X(1)}")
        A(f"v_fma_f32 {X(4)}, -{mu}, {CS}, {X(0)}")
        A(f"v_mul_f32 {X(4)}, {X(4)}, {rs}")

    def stage_ln(self, rx, rst, layer, scale, lab, sleep=0, pre=0):
        A = self.A
        LX = LDS_RED; LS = LDS_OP
        xa, sa = X(8), X(9)
        self.ln_addr(xa); A(f"v_add_u32 {xa}, {LX}, {xa}")
        A(f"v_bfe_u32 {sa}, {LANE}, 4, 1"); A(f"v_lshlrev_b32 {sa}, 8, {sa}"); A(f"v_lshrrev_b32 {TMP}, 5, {LANE}"); A(f"v_lshl_add_u32 {sa}, {TMP}, 7, {sa}")
        A(f"v_and_b32 {TMP}, 15, {LANE}"); A(f"v_lshl_add_u32 {sa}, {TMP}, 3, {sa}")
        A(f"s_cmp_eq_u32 {sWAVE}, 1"); A(f"s_cbranch_scc0 {lab}_b")
        self.gbase(SA, rx, layer); self.gbase(SB, rst, layer)
        sets = [(TR(60, 4), XR(16, 4), TR(58, 2), [T(60), T(61), T(62), T(63), X(16), X(17), X(18), X(19), T(58), T(59)]),
                (WR(56, 4), WR(60, 4), XR(14, 2), [W(56), W(57), W(58), W(59), W(60), W(61), W(62), W(63), X(14), X(15)])]
        NS = self.o.lnsets
        for k in range(NS):
            for r in sets[k][3][4:]: A(f"v_mov_b32 {r}, 0")
        A(f"v_add_u32 {X(10)}, {LX}, {L16}")
        A(f"v_add_u32 {X(12)}, {LS}, {sa}")
        for _ in range(pre // 120): A("s_sleep 120")
        if pre % 120: A(f"s_sleep {pre % 120}")
        def issue(k):
            A(f"global_load_dwordx4 {sets[k][0]}, {L16}, {SA} sc1")
            self.set_exec(0xFFFFFFFF, 0x0000FFFF)
            A(f"global_load_dwordx4 {sets[k][1]}, {L16}, {SA} offset:1024 sc1")
            self.set_exec(0xFFFFFFFF, 0x0FFF0FFF)
            A(f"global_load_dwordx2 {sets[k][2]}, {sa}, {SB} sc1")
            A("s_mov_b64 exec, -1")
        for k in range(NS - 1): issue(k)
        A(f"{lab}:")
        for k in range(NS):
            issue((k + NS - 1) % NS)
            A(f"s_waitcnt vmcnt({3*(NS-1)})")
            for s in self.maxops(X(13), sets[k][3]): A(s)
            A(f"v_cmp_eq_u32 vcc, -1, {X(13)}")
            A(f"s_cbranch_vccz {lab}_ok{k}")
        A(f"s_cmp_eq_u32 {sBUD}, 0"); A(f"s_cbranch_scc1 {lab}_ok0"); A(f"s_sub_u32 {sBUD}, {sBUD}, 1")
        if sleep: A(f"s_sleep {sleep}")
        A(f"s_branch {lab}")
        for k in reversed(range(NS)):
            A(f"{lab}_ok{k}:")
            A(f"ds_write_b128 {X(10)}, {sets[k][0]}")
            A(f"ds_write_b64 {X(12)}, {sets[k][2]}")
            self.set_exec(0xFFFFFFFF, 0x0000FFFF)
            A(f"ds_write_b128 {X(10)}, {sets[k][1]} offset:1024")
            A("s_mov_b64 exec, -1")
            if k != 0: A(f"s_branch {lab}_w")
        A(f"{lab}_w:")
        A("s_waitcnt lgkmcnt(0)")
        A(f"{lab}_b:")
        A("s_barrier")
        D = XR(0, 4); s1, s2, t1, t2 = X(5), X(6), X(10), X(11)
        A(f"v_add_u32 {sa}, {LS}, {sa}")
        A(f"ds_read_b64 {TR(56,2)}, {sa}")
        for t in range(14): A(f"ds_read_b128 {TR(4*t,4)}, {xa} offset:{t*64}")
        red = [f"v_add_f32_dpp {s1}, {T(56)}, {T(56)} row_ror:8 {DPP}", f"v_add_f32_dpp {s2}, {T(57)}, {T(57)} row_ror:8 {DPP}"]
        for sh in (4, 2, 1):
            red += [f"v_add_f32_dpp {s1}, {s1}, {s1} row_ror:{sh} {DPP}", f"v_add_f32_dpp {s2}, {s2}, {s2} row_ror:{sh} {DPP}"]
        red += [f"v_mov_b32 {t1}, {s1}", f"v_mov_b32 {t2}, {s2}", f"v_permlane32_swap_b32 {s1}, {t1}", f"v_permlane32_swap_b32 {s2}, {t2}",
                f"v_add_f32 {s1}, {s1}, {t1}", f"v_add_f32 {s2}, {s2}, {t2}"]
        red += self.ln_scalars(s1, s2, scale)
        for t in range(14):
            if t in (0, 4, 8): A(f"s_waitcnt lgkmcnt({max(13 - t - 3, 0)})")
            if t == 12: A("s_waitcnt lgkmcnt(0)")
            A(f"v_mfma_f32_16x16x32_bf16 {D}, {TR(4*t,4)}, {WR(4*t,4)}, {'0' if t == 0 else D}")
            n = 2 if t % 2 == 0 else 1
            while n and red: A(red.pop(0)); n -= 1
        for s in red: A(s)
        self.fst(4)
        self.ln_finish(s1, s2)

    def ld_setup(self):
        A = self.A
        vK, vV = X(18), X(19)
        A(f"v_and_b32 {X(8)}, 15, {LANE}"); A(f"v_lshrrev_b32 {X(9)}, 4, {LANE}")
        A(f"v_and_b32 {vK}, 3, {LANE}"); A(f"v_lshlrev_b32 {vK}, 4, {vK}"); A(f"v_lshl_add_u32 {vK}, {X(9)}, 6, {vK}")
        A(f"v_bfe_u32 {TMP}, {LANE}, 2, 2"); A(f"v_lshl_add_u32 {vK}, {TMP}, 11, {vK}")
        A(f"v_lshlrev_b32 {vV}, 11, {X(9)}"); A(f"v_lshl_add_u32 {vV}, {X(8)}, 4, {vV}")
    def throttle(self, win):
        st = self.o.wstep
        if self.ob + 1 > win:
            self.A(f"s_waitcnt vmcnt({win - st})"); self.ob = win - st
        self.ob += 1
    def ktile(self, tau, win):
        A = self.A; f = " nt" if self.o.nt else ""
        A(f"s_add_u32 s68, {sTILE}, {tau*262144}")
        for t in range(8):
            n = tau * 8 + t
            self.throttle(win)
            A(f"buffer_load_dwordx4 a[{4*n}:{4*n+3}], {X(19) if 'kv' in self.o.exp else X(18)}, s[8:11], s68 offen offset:{(t//2)*512 + (t%2)*256}{f}")
    def vtile(self, tau, win, va=None):
        A = self.A; f = " nt" if self.o.nt else ""
        va = va or X(19)
        A(f"s_add_u32 s68, {sTILE}, {tau*262144}")
        for t in range(8):
            n = tau * 8 + t
            imm = (t // 2) * 512 + (t % 2) * 256
            self.throttle(win)
            if n < 2 * NLDS:
                A(f"s_add_u32 m0, {sM0B}, {n*1024 - imm}")
                A(f"buffer_load_dwordx4 {va}, s[12:15], s68 offen offset:{imm}{f} lds")
            else:
                m = n - 2 * NLDS
                A(f"buffer_load_dwordx4 {VRR(4*m,4)}, {va}, s[12:15], s68 offen offset:{imm}{f}")
    def arrive(self):
        A = self.A
        A("s_getreg_b32 s68, hwreg(HW_REG_XCC_ID, 0, 4)"); A("s_and_b32 s68, s68, 7"); A("s_mul_i32 s68, s68, 6")
        A("s_lshl_b64 s[78:79], 1, s68"); A("s_or_b32 s79, s79, 0x01000000")
        A(f"v_mov_b32 {X(10)}, s78"); A(f"v_mov_b32 {X(11)}, s79")
        A(f"s_lshl_b32 s69, {sGI}, 5"); A(f"v_mov_b32 {X(9)}, s69")
        A("s_mov_b64 exec, 1")
        A(f"global_atomic_add_x2 {X(9)}, {XR(10,2)}, {sDBG} sc1")
        A("s_mov_b64 exec, -1")
    def early_q(self):
        A = self.A
        self.ln_addr(X(8)); A(f"v_add_u32 {X(8)}, {LDS_RED}, {X(8)}")
        for k in range(8): A(f"v_mov_b32 {T(56+k)}, 0")
        A(f"v_add_u32 {X(9)}, {LDS_RED}, {L16}")
        self.set_exec(0xFFFFFFFF, 0x00FFFFFF)
        A(f"ds_read_b128 {TR(56,4)}, {X(9)}"); A(f"ds_read_b128 {TR(60,4)}, {X(9)} offset:896")
        A("s_mov_b64 exec, -1")
        for t in range(12): A(f"ds_read_b128 {TR(4*t,4)}, {X(8)} offset:{t*64}")
        A("s_waitcnt lgkmcnt(8)")
        for t in range(12, 14): A(f"ds_read_b128 {TR(4*t,4)}, {X(8)} offset:{t*64}")
        self.colsum()
        A("s_waitcnt lgkmcnt(0)")
        s1a, s2a, s1b, s2b = X(12), X(13), X(14), X(15)
        for (base, s1, s2) in ((56, s1a, s2a), (60, s1b, s2b)):
            A(f"v_mov_b32 {s1}, 0"); A(f"v_mov_b32 {s2}, 0")
            for k in range(4):
                A(f"v_lshlrev_b32 {X(8)}, 16, {T(base+k)}"); A(f"v_and_b32 {X(9)}, 0xffff0000, {T(base+k)}")
                A(f"v_add_f32 {s1}, {s1}, {X(8)}"); A(f"v_fmac_f32 {s2}, {X(8)}, {X(8)}")
                A(f"v_add_f32 {s1}, {s1}, {X(9)}"); A(f"v_fmac_f32 {s2}, {X(9)}, {X(9)}")
        for sh in (8, 4, 2, 1):
            for r in (s1a, s2a, s1b, s2b): A(f"v_add_f32_dpp {r}, {r}, {r} row_ror:{sh} {DPP}")
        for swap in ("v_permlane16_swap_b32", "v_permlane32_swap_b32"):
            for r in (s1a, s2a, s1b, s2b):
                A(f"v_mov_b32 {X(8)}, {r}"); A(f"{swap} {r}, {X(8)}"); A(f"v_add_f32 {r}, {r}, {X(8)}")
        A(f"v_cndmask_b32 {s1a}, {s1a}, {s1b}, {sSEL}"); A(f"v_cndmask_b32 {s2a}, {s2a}, {s2b}, {sSEL}")
        for s in self.ln_scalars(s1a, s2a, QSCALE): A(s)
    def early_q2(self):
        A = self.A
        s1a, s2a = X(12), X(13)
        D = XR(0, 4)
        for t in range(14):
            A(f"v_mfma_f32_16x16x32_bf16 {D}, {TR(4*t,4)}, {WR(4*t,4)}, {'0' if t == 0 else D}")
        self.ln_finish(s1a, s2a)
        self.pack_pair(X(4), X(4), X(6))
        A(f"v_mov_b32 {X(5)}, {sTAG}")
        A(f"v_bfe_u32 {X(7)}, {LANE}, 4, 1"); A(f"v_lshlrev_b32 {X(7)}, 11, {X(7)}"); A(f"v_and_b32 {X(8)}, 15, {LANE}"); A(f"v_lshl_add_u32 {X(7)}, {X(8)}, 2, {X(7)}")
        A(f"s_lshl_b32 s68, {sSIG}, 6"); A(f"v_add_u32 {X(7)}, s68, {X(7)}")
        A(f"s_lshl_b32 s68, {sGI}, 12"); A(f"s_add_u32 s68, s68, {QTOFF}"); A(f"s_add_u32 s70, s20, s68"); A("s_addc_u32 s71, s21, 0")
        self.set_exec(0x55555555, 0)
        A(f"global_store_dwordx2 {X(7)}, {XR(4,2)}, {SA} sc1")
        A("s_mov_b64 exec, -1")

    def stream(self):
        A = self.A; win = self.o.win
        k0 = self.o.k0
        self.ob = 0
        self.kpos(k0, 64)
        A("s_waitcnt vmcnt(8) lgkmcnt(0)")
        self.stamp(1)
        A("s_barrier")
        A(f"s_cmp_eq_u32 {sWAVE}, 3"); A("s_cbranch_scc0 L_noarr")
        self.arrive()
        A("L_noarr:")
        self.ob = 0
        self.kpos(k0 + 1, 64)
        self.tr_reads()
        A("s_barrier")
        self.kpos(k0 + 2, 64)
        A(f"s_cmp_eq_u32 {sROLE}, {ROLE_GU}"); A("s_cbranch_scc0 L_nocs")
        self.colsum()
        A("L_nocs:")
        A(f"s_cmp_eq_u32 {sROLE}, {ROLE_WQ}"); A("s_cbranch_scc0 L_noeq")
        self.early_q()
        A("L_noeq:")
        nx = k0 + 3
        if self.o.esplit:
            self.kpos(nx, 64); nx += 1
        A(f"s_cmp_eq_u32 {sROLE}, {ROLE_WQ}"); A("s_cbranch_scc0 L_noeq2")
        self.early_q2()
        A("L_noeq2:")
        self.stamp(2)
        self.ob = 8 * (nx - k0) + 2
        tp = nx
        for tau in range(tp, 8): self.kpos(tau, win)
        A(f"s_lshl_b32 s68, {sGI}, 12"); A(f"s_add_u32 s68, s68, {QTOFF}"); A(f"s_add_u32 s70, s20, s68"); A("s_addc_u32 s71, s21, 0")
        A(f"s_lshl_b32 s68, {sB}, 11"); A(f"s_lshl_b32 s78, {sHL}, 10"); A("s_add_u32 s68, s68, s78"); A(f"v_add_u32 {X(14)}, s68, {L16}")
        A(f"global_load_dwordx4 {XR(10,4)}, {X(14)}, {SA} sc1")
        for tau in range(self.o.vdist): self.vtile(tau, 64)
        self.stamp(5)
        self.dstamp(4)

    def bar_check_finish(self):
        A = self.A
        A(f"s_cmp_eq_u32 {sLAYER}, 0"); A("s_cbranch_scc0 L_gb_done")
        A("s_mov_b64 exec, 0xff")
        A("L_gb:")
        A(f"v_lshrrev_b32 {TMP}, 24, {WBAR1}"); A(f"v_cmp_ne_u32 vcc, 32, {TMP}")
        A("s_cbranch_vccz L_gb_d")
        A(f"s_cmp_eq_u32 {sBUD}, 0"); A("s_cbranch_scc1 L_gb_d"); A(f"s_sub_u32 {sBUD}, {sBUD}, 1"); A("s_sleep 4")
        A(f"v_and_b32 {TMP}, 7, {LANE}"); A(f"v_lshlrev_b32 {TMP}, 5, {TMP}")
        A(f"global_load_dwordx2 {WBAR}, {TMP}, {sDBG} sc1"); A("s_waitcnt vmcnt(0)")
        A("s_branch L_gb")
        A("L_gb_d:")
        A("s_mov_b64 exec, -1")
        A("s_getreg_b32 s68, hwreg(HW_REG_XCC_ID, 0, 4)"); A("s_and_b32 s68, s68, 7"); A("s_mul_i32 s68, s68, 6")
        A("s_lshl_b64 s[78:79], 32, s68"); A("s_or_b32 s79, s79, 0x20000000")
        A(f"v_readlane_b32 s68, {WBAR0}, {sGI}"); A(f"v_readlane_b32 s69, {WBAR1}, {sGI}")
        A("s_cmp_eq_u64 s[68:69], s[78:79]"); A(f"s_cselect_b32 {sMODE}, 1, 0")
        if self.o.slow: A(f"s_mov_b32 {sMODE}, 0")
        A("L_gb_done:")

    def att_setup(self):
        A = self.A
        mk = [X(16 + k) for k in range(4)]
        A(f"v_and_b32 {TMP}, 1, {LANE}"); A(f"v_lshlrev_b32 {TMP}, 4, {TMP}"); A(f"v_mov_b32 {X(9)}, 0xffff"); A(f"v_lshlrev_b32 {X(9)}, {TMP}, {X(9)}")
        for k, pr in enumerate((sMA, "s[56:57]", "s[58:59]", "s[62:63]")):
            A(f"v_cndmask_b32 {mk[k]}, 0, {X(9)}, {pr}")
        A(f"v_lshrrev_b32 {X(8)}, 4, {LANE}"); A(f"v_lshlrev_b32 {X(8)}, 11, {X(8)}"); A(f"v_and_b32 {TMP}, 15, {LANE}"); A(f"v_lshl_add_u32 {X(8)}, {TMP}, 4, {X(8)}")
        for k in range(16): A(f"v_mov_b32 {T(16+k)}, 0")

    def get_q(self):
        A = self.A
        self.att_setup()
        qa = T(62)
        A(f"v_lshrrev_b32 {qa}, 4, {LANE}"); A(f"v_lshlrev_b32 {qa}, 6, {qa}"); A(f"v_and_b32 {TMP}, 3, {LANE}"); A(f"v_lshl_add_u32 {qa}, {TMP}, 4, {qa}")
        A(f"v_add_u32 {qa}, {LDS_QL}, {qa}")
        A(f"s_cmp_eq_u32 {sLAYER}, 0"); A("s_cbranch_scc0 L_q1")
        A(f"s_waitcnt vmcnt({8*self.o.vdist})")
        A("L_q0:")
        A(f"v_xor_b32 {X(15)}, {sTAG}, {X(11)}"); A(f"v_xor_b32 {X(9)}, {sTAG}, {X(13)}"); A(f"v_or_b32 {X(15)}, {X(15)}, {X(9)}")
        A(f"v_cmp_ne_u32 vcc, 0, {X(15)}")
        A("s_cbranch_vccz L_q0_d")
        A(f"s_cmp_eq_u32 {sBUD}, 0"); A("s_cbranch_scc1 L_q0_d"); A(f"s_sub_u32 {sBUD}, {sBUD}, 1")
        A(f"global_load_dwordx4 {XR(10,4)}, {X(14)}, {SA} sc1"); A("s_waitcnt vmcnt(0)")
        A("s_branch L_q0")
        A("L_q0_d:")
        A(f"v_mov_b32 {X(11)}, {X(12)}")
        A(f"v_lshlrev_b32 {X(9)}, 3, {LANE}"); A(f"v_add_u32 {X(9)}, {LDS_QL}, {X(9)}")
        A(f"ds_write_b64 {X(9)}, {XR(10,2)}")
        self.stamp(4)
        A("s_waitcnt lgkmcnt(0)")
        A("s_branch L_qlds")
        A("L_q1:")
        A(f"s_cmp_eq_u32 {sWAVE}, 0"); A("s_cbranch_scc0 L_q1b")
        self.gbase(SA, R_Q, 1)
        A(f"s_lshl_b32 s68, {sB}, 10"); A(f"s_lshl_b32 s78, {sHL}, 9"); A("s_add_u32 s68, s68, s78"); A(f"v_add_u32 {X(9)}, s68, {L16}")
        A(f"v_add_u32 {X(14)}, {LDS_QL}, {L16}")
        for _ in range(self.o.qpre // 120): A("s_sleep 120")
        if self.o.qpre % 120: A(f"s_sleep {self.o.qpre % 120}")
        self.set_exec(0xFFFFFFFF, 0)
        NS = self.o.qsets
        qs = [(TR(32, 4), [T(32), T(33), T(34), T(35)]), (TR(36, 4), [T(36), T(37), T(38), T(39)])]
        for k in range(NS - 1): A(f"global_load_dwordx4 {qs[k][0]}, {X(9)}, {SA} sc1")
        A("L_q1p:")
        for k in range(NS):
            A(f"global_load_dwordx4 {qs[(k + NS - 1) % NS][0]}, {X(9)}, {SA} sc1")
            A(f"s_waitcnt vmcnt({NS-1})")
            for s in self.maxops(X(15), qs[k][1]): A(s)
            A(f"v_cmp_eq_u32 vcc, -1, {X(15)}")
            A(f"s_cbranch_vccz L_q1_ok{k}")
        A(f"s_cmp_eq_u32 {sBUD}, 0"); A("s_cbranch_scc1 L_q1_ok0"); A(f"s_sub_u32 {sBUD}, {sBUD}, 1")
        if self.o.qsleep: A(f"s_sleep {self.o.qsleep}")
        A("s_branch L_q1p")
        for k in reversed(range(NS)):
            A(f"L_q1_ok{k}:")
            A(f"ds_write_b128 {X(14)}, {qs[k][0]}")
            if k != 0: A("s_branch L_q1_w")
        A("L_q1_w:")
        A("s_mov_b64 exec, -1")
        A("s_waitcnt lgkmcnt(0)")
        A("L_q1b:")
        A("s_barrier")
        A("L_qlds:")
        self.set_exec(0x00FF00FF, 0x00FF00FF)
        for t in range(2): A(f"ds_read_b128 {TR(16+4*t,4)}, {qa} offset:{t*256}")
        self.set_exec(0xFF00FF00, 0xFF00FF00)
        for t in range(2): A(f"ds_read_b128 {TR(24+4*t,4)}, {qa} offset:{t*256}")
        A("s_mov_b64 exec, -1")
        A(f"v_add_u32 {X(13)}, {sM0B}, {L16}")
        A(f"s_waitcnt vmcnt({8*self.o.vdist})")

    def attention(self):
        A = self.A
        mk = [X(16 + k) for k in range(4)]
        A("s_waitcnt lgkmcnt(0)")
        self.fst(0, "att")
        m, m2 = X(14), X(15)
        va = X(13)
        Dq = lambda P: 40 + 4 * (P % 4)
        M1, M2, M3 = "s[48:49]", "s[50:51]", "s[52:53]"
        S = lambda P: T(P)
        QL = [TR(16, 4), TR(20, 4)]; QH = [TR(24, 4), TR(28, 4)]
        def c1(P): return f"v_cndmask_b32 {S(P)}, {T(Dq(P))}, {T(Dq(P)+1)}, {M1}"
        def c2(P): return f"v_cndmask_b32 {S(P)}, {S(P)}, {T(Dq(P)+2)}, {M2}"
        def c3(P): return f"v_cndmask_b32 {S(P)}, {S(P)}, {T(Dq(P)+3)}, {M3}"
        def d1(P): return f"v_add_f32_dpp {S(P)}, {S(P)}, {S(P)} quad_perm:[1,0,3,2] {DPP}"
        def d2(P): return f"v_add_f32_dpp {S(P)}, {S(P)}, {S(P)} quad_perm:[2,3,0,1] {DPP}"
        ok = lambda P: 0 <= P < 16
        for P in range(16 + 4):
            D = TR(Dq(P), 4); G = 2 * P
            if ok(P): A(f"v_mfma_f32_16x16x32_bf16 {D}, a[{8*G}:{8*G+3}], {QL[0]}, 0")
            if ok(P - 2): A(c1(P - 2))
            if ok(P - 3): A(d1(P - 3))
            if ok(P): A(f"v_mfma_f32_16x16x32_bf16 {D}, a[{8*G+4}:{8*G+7}], {QL[1]}, {D}")
            if ok(P - 2): A(c2(P - 2))
            if ok(P): A(f"v_mfma_f32_16x16x32_bf16 {D}, a[{8*G+8}:{8*G+11}], {QH[0]}, {D}")
            if ok(P - 2): A(c3(P - 2))
            if ok(P - 3): A(d2(P - 3))
            if ok(P): A(f"v_mfma_f32_16x16x32_bf16 {D}, a[{8*G+12}:{8*G+15}], {QH[1]}, {D}")
            g4 = P - 4
            if ok(g4) and g4 % 2 == 1:
                if g4 == 1: A(f"v_max_f32 {m}, {S(0)}, {S(1)}")
                else: A(f"v_max3_f32 {m}, {m}, {S(g4-1)}, {S(g4)}")
        self.stamp(7)
        self.fst(1, "att")
        l = X(15)
        acc = [[XR(0, 4), XR(4, 4)], [TR(16, 4), TR(20, 4)]]
        Bs = [TR(32, 4), TR(36, 4)]; Bb = [32, 36]
        stg = [24, 40, 48, 56]
        VD = self.o.vdist
        vV = X(8)
        CHK_AT = 4 - VD if VD <= 4 else 0
        CHK_TILE = CHK_AT + VD
        def younger(tile, at_tile):
            last_issued = min(at_tile + VD, 7)
            n = 8 * (last_issued - tile)
            if tile <= CHK_TILE and at_tile >= CHK_AT: n += 1
            return n
        def tile_issue(tau):
            t2 = tau + VD
            if t2 > 7: return
            lab = A.label("VI")
            if tau == 0:
                l0 = A.label("VJ")
                A(f"s_cmp_eq_u32 {sLAYER}, 0"); A(f"s_cbranch_scc1 {l0}")
                A("s_waitcnt vmcnt(0)"); A(f"s_branch {lab}")
                A(f"{l0}:")
            else:
                A(f"s_cmp_eq_u32 {sLAYER}, 0"); A(f"s_cbranch_scc0 {lab}")
            self.ob = 0
            self.vtile(t2, 64, vV)
            if tau == CHK_AT:
                A(f"v_and_b32 {TMP}, 7, {LANE}"); A(f"v_lshlrev_b32 {TMP}, 5, {TMP}")
                A("s_mov_b64 exec, 0xff")
                A(f"global_load_dwordx2 {WBAR}, {TMP}, {sDBG} sc1")
                A("s_mov_b64 exec, -1")
            A(f"{lab}:")
        DIST = 3
        lds_fifo = []
        def lds_issue(q, at_tile):
            if q % 4 == 0: A(f"s_waitcnt vmcnt({younger(q // 4, at_tile)})")
            b = stg[q % 4]
            A(f"ds_read_b128 {TR(b,4)}, {va} offset:{q*2048}"); A(f"ds_read_b128 {TR(b+4,4)}, {va} offset:{q*2048+1024}")
            lds_fifo.append(q)
        def pre(P):
            s = S(P); bb = Bb[P % 2]; pk = X(12) if P % 2 == 0 else X(9)
            return [f"v_sub_f32 {s}, {s}, {m}", f"v_exp_f32 {s}, {s}"], [f"v_cvt_pk_bf16_f32 {pk}, {s}, {s}", (f"v_add_f32 {l}, {l}, {s}" if P else f"v_mov_b32 {l}, {s}")] + [f"v_and_b32 {T(bb+k)}, {mk[k]}, {pk}" for k in range(4)]
        A(f"v_max_f32_dpp {m}, {m}, {m} row_ror:8 {DPP}")
        tile_issue(0)
        A(f"v_mov_b32 {m2}, {m}")
        for q in range(DIST): lds_issue(q, 0)
        A(f"v_permlane16_swap_b32 {m}, {m2}"); A(f"v_max_f32 {m}, {m}, {m2}")
        A(f"v_mov_b32 {m2}, {m}"); A(f"v_permlane32_swap_b32 {m}, {m2}"); A(f"v_max_f32 {m}, {m}, {m2}")
        a, b_ = pre(0)
        for s in a + b_: A(s)
        a, _ = pre(1)
        for s in a: A(s)
        def src(q):
            if q < NLDS:
                b = stg[q % 4]; return TR(b, 4), TR(b + 4, 4)
            mm = (q - NLDS) * 8; return VRR(mm, 4), VRR(mm + 4, 4)
        def before_group(q):
            tau = q // 4
            if q % 4 == 0 and q > 0: tile_issue(tau)
            if q + DIST < NLDS: lds_issue(q + DIST, tau)
            if q < NLDS:
                after = len(lds_fifo) - 1 - lds_fifo.index(q)
                A(f"s_waitcnt lgkmcnt({2 * after})")
            else:
                if q >= 28: A(f"s_waitcnt vmcnt({(31 - q) * 2})")
                elif q == NLDS or q % 4 == 0: A(f"s_waitcnt vmcnt({younger(tau, tau)})")
            if q == 24:
                self.bar_check_finish()
                A(f"v_lshrrev_b32 {X(8)}, 4, {LANE}"); A(f"v_lshlrev_b32 {X(8)}, 7, {X(8)}"); A(f"v_and_b32 {TMP}, 15, {LANE}"); A(f"v_lshl_add_u32 {X(8)}, {TMP}, 4, {X(8)}")
                A(f"s_lshl_b32 s68, {sWAVE}, 10"); A(f"s_add_u32 s68, s68, {LDS_OP}"); A(f"v_add_u32 {X(8)}, s68, {X(8)}")
                A(f"s_lshl_b32 s68, {sWAVE}, 3"); A(f"s_add_u32 s68, s68, {LDS_MLP}"); A(f"v_mov_b32 {X(10)}, s68")
        for P in range(16):
            B = Bs[P % 2]
            nb = pre(P + 1)[1] if P + 1 < 16 else []
            na = pre(P + 2)[0] if P + 2 < 16 else []
            if 2 * P == 18 or (2 * P == NLDS + 1 - 2): pass
            if 2 * P >= NLDS and 2 * P - 2 < NLDS: self.fst(2, "att")
            qe, qo = 2 * P, 2 * P + 1
            before_group(qe)
            a0, a1 = src(qe)
            A(f"v_mfma_f32_16x16x32_bf16 {acc[0][0]}, {a0}, {B}, {acc[0][0] if P else '0'}")
            for s_ in nb[:2]: A(s_)
            A(f"v_mfma_f32_16x16x32_bf16 {acc[0][1]}, {a1}, {B}, {acc[0][1] if P else '0'}")
            for s_ in nb[2:4]: A(s_)
            before_group(qo)
            a0, a1 = src(qo)
            A(f"v_mfma_f32_16x16x32_bf16 {acc[1][0]}, {a0}, {B}, {acc[1][0] if P else '0'}")
            for s_ in nb[4:6]: A(s_)
            A(f"v_mfma_f32_16x16x32_bf16 {acc[1][1]}, {a1}, {B}, {acc[1][1] if P else '0'}")
            for s_ in na: A(s_)
        self.fst(3, "att")
        self.stamp(8)
        self.dstamp(5, layer=0); self.dstamp(7, layer=1)
        l2 = X(9)
        A(f"v_add_f32_dpp {l}, {l}, {l} row_ror:8 {DPP}")
        A(f"v_mov_b32 {l2}, {l}"); A(f"v_permlane16_swap_b32 {l}, {l2}"); A(f"v_add_f32 {l}, {l}, {l2}")
        A(f"v_mov_b32 {l2}, {l}"); A(f"v_permlane32_swap_b32 {l}, {l2}"); A(f"v_add_f32 {l}, {l}, {l2}")
        for k in range(8): A(f"v_add_f32_dpp {X(k)}, {T(16+k)}, {X(k)} row_ror:8 {DPP}")
        self.set_exec(0x00FF00FF, 0x00FF00FF)
        A(f"ds_write_b128 {X(8)}, {XR(0,4)}"); A(f"ds_write_b128 {X(8)}, {XR(4,4)} offset:512")
        A("s_mov_b64 exec, 1")
        A(f"ds_write_b64 {X(10)}, {XR(14,2)}")
        A("s_mov_b64 exec, -1")
        A("s_waitcnt lgkmcnt(0)")
        A("s_barrier")
        self.fst(4, "att")
        self.stamp(9)

    def combine_publish(self):
        A = self.A
        A(f"v_add_u32 {X(8)}, {LDS_OP}, {L16}")
        for w in range(4): A(f"ds_read_b128 {TR(4*w,4)}, {X(8)} offset:{w*1024}")
        A(f"v_mov_b32 {X(9)}, {LDS_MLP}")
        A(f"ds_read_b128 {TR(16,4)}, {X(9)}"); A(f"ds_read_b128 {TR(20,4)}, {X(9)} offset:16")
        self.gbase(SA, R_O); self.gbase(SB, R_ML)
        a = X(10)
        A(f"v_lshrrev_b32 {a}, 3, {LANE}"); A(f"v_lshlrev_b32 {a}, 10, {a}")
        A(f"v_bfe_u32 {X(11)}, {LANE}, 1, 2"); A(f"v_lshl_add_u32 {a}, {X(11)}, 8, {a}")
        A(f"v_and_b32 {X(11)}, 1, {LANE}"); A(f"v_lshl_add_u32 {a}, {X(11)}, 3, {a}")
        A(f"s_lshl_b32 s68, {sB}, 3"); A(f"s_add_u32 s68, s68, {sSP}"); A("s_lshl_b32 s68, s68, 4"); A(f"s_lshl_b32 s78, {sHL}, 13"); A("s_add_u32 s68, s68, s78")
        A(f"v_add_u32 {a}, s68, {a}")
        A(f"s_lshl_b32 s68, {sHL}, 7"); A(f"s_lshl_b32 s78, {sB}, 6"); A("s_add_u32 s68, s68, s78"); A(f"s_lshl_b32 s78, {sSP}, 3"); A("s_add_u32 s68, s68, s78")
        A(f"v_mov_b32 {X(11)}, s68")
        M = T(24); f = [T(25 + w) for w in range(4)]; Lr = T(29)
        ms = [T(16), T(18), T(20), T(22)]; ls = [T(17), T(19), T(21), T(23)]
        A("s_waitcnt lgkmcnt(0)")
        A(f"v_max3_f32 {M}, {ms[0]}, {ms[1]}, {ms[2]}"); A(f"v_max_f32 {M}, {M}, {ms[3]}")
        for w in range(4): A(f"v_sub_f32 {f[w]}, {ms[w]}, {M}")
        for w in range(4): A(f"v_exp_f32 {f[w]}, {f[w]}")
        for r in range(4): A(f"v_mul_f32 {T(32+r)}, {f[0]}, {T(r)}")
        for w in range(1, 4):
            for r in range(4): A(f"v_fmac_f32 {T(32+r)}, {f[w]}, {T(4*w+r)}")
        A(f"v_cvt_pk_bf16_f32 {T(36)}, {T(32)}, {T(33)}"); A(f"v_cvt_pk_bf16_f32 {T(37)}, {T(34)}, {T(35)}")
        self.pub(f"global_store_dwordx2 {a}, {TR(36,2)}, {SA}")
        A(f"v_mul_f32 {T(39)}, {f[0]}, {ls[0]}")
        for w in range(1, 4): A(f"v_fmac_f32 {T(39)}, {f[w]}, {ls[w]}")
        A(f"v_mov_b32 {T(38)}, {M}")
        A("s_mov_b64 exec, 1")
        self.pub(f"global_store_dwordx2 {X(11)}, {TR(38,2)}, {SB}")
        if self.o.b1gate:
            A(f"s_cmp_eq_u32 {sLAYER}, 0"); A("s_cbranch_scc0 L_nob1")
            A(f"s_lshl_b32 s68, {sGI}, 5"); A("s_add_u32 s68, s68, 8"); A(f"v_mov_b32 {X(12)}, s68"); A(f"v_mov_b32 {X(13)}, 1")
            A(f"global_atomic_add {X(12)}, {X(13)}, {sDBG} sc1")
            A("L_nob1:")
        A("s_mov_b64 exec, -1")

    def stage_wo(self):
        A = self.A
        self.gbase(SA, R_O); self.gbase(SC_, R_ML)
        A(f"s_lshl_b32 s68, {sWAVE}, 12"); A("s_add_u32 s70, s70, s68"); A("s_addc_u32 s71, s71, 0")
        a = X(16)
        A(f"v_lshrrev_b32 {a}, 5, {LANE}"); A(f"v_lshlrev_b32 {a}, 6, {a}")
        A(f"v_bfe_u32 {TMP}, {LANE}, 4, 1"); A(f"v_lshl_add_u32 {a}, {TMP}, 5, {a}")
        A(f"v_and_b32 {TMP}, 3, {LANE}"); A(f"v_lshl_add_u32 {a}, {TMP}, 3, {a}")
        A(f"s_lshr_b32 s68, {sWAVE}, 1"); A("s_lshl_b32 s68, s68, 7"); A(f"v_add_u32 {a}, s68, {a}")
        wa, ra = X(17), X(18)
        A(f"v_bfe_u32 {wa}, {LANE}, 4, 1"); A(f"v_lshlrev_b32 {wa}, 7, {wa}"); A(f"v_lshrrev_b32 {TMP}, 5, {LANE}"); A(f"v_lshl_add_u32 {wa}, {TMP}, 6, {wa}")
        A(f"v_and_b32 {TMP}, 15, {LANE}"); A(f"v_lshl_add_u32 {wa}, {TMP}, 2, {wa}")
        A(f"s_lshl_b32 s68, {sWAVE}, 9"); A(f"s_add_u32 s68, s68, {LDS_RED}"); A(f"v_add_u32 {wa}, s68, {wa}")
        A(f"v_lshrrev_b32 {ra}, 5, {LANE}"); A(f"v_lshlrev_b32 {ra}, 7, {ra}"); A(f"v_and_b32 {TMP}, 31, {LANE}"); A(f"v_lshl_add_u32 {ra}, {TMP}, 2, {ra}")
        A(f"s_and_b32 s68, {sWAVE}, 1"); A("s_lshl_b32 s68, s68, 8"); A(f"s_add_u32 s68, s68, {LDS_RED}"); A(f"v_add_u32 {ra}, s68, {ra}")
        A(f"s_cmp_ge_u32 {sWAVE}, 2"); A("s_cbranch_scc0 L_wo_nors")
        self.gbase(SD, R_X2, 0)
        A(f"s_cmp_eq_u32 {sLAYER}, 0"); A("s_cselect_b32 s64, s4, s64"); A("s_cselect_b32 s65, s5, s65")
        self.rs_setup()
        A(f"v_mov_b32 {X(13)}, {CS}")
        A(f"s_cmp_eq_u32 {sLAYER}, 0"); A("s_cbranch_scc1 L_wo_nors")
        A(f"global_load_ushort {X(13)}, {X(10)}, {SD} sc1")
        A("L_wo_nors:")
        self.cbase(SB, 0, consumer=False)
        self.p_store_addr(X(9))
        mv, lv = T(16), T(17)
        D = [TR(20 + 4 * nt, 4) for nt in range(4)]
        chk, M, t1, e, w = T(36), T(37), T(38), T(39), T(40)
        A(f"v_mov_b32 {chk}, 0")
        self.fst(0, "wo")
        if self.o.fine == "wo": A("s_mov_b32 s99, 0")
        if self.o.gate:
            self.set_exec(0x000F000F, 0x000F000F)
            A("L_wog:")
            A(f"global_load_dwordx2 {TR(16,2)}, {a}, {SC_} sc1"); A("s_waitcnt vmcnt(0)")
            A(f"v_max_u32 {chk}, {mv}, {lv}")
            self.poll_tail(chk, "L_wog", "L_wog_d", sleep=self.o.gatesleep)
            A("L_wog_d:")
        if self.o.wopre:
            A(f"s_cmp_eq_u32 {sWAVE}, 0"); A("s_cbranch_scc1 L_wo"); A(f"s_sleep {self.o.wopre}")
        A("L_wo:")
        if self.o.fine == "wo": A("s_add_u32 s99, s99, 1")
        self.fst(1, "wo")
        self.set_exec(0x000F000F, 0x000F000F)
        A(f"global_load_dwordx2 {TR(16,2)}, {a}, {SC_} sc1")
        A("s_mov_b64 exec, -1")
        for tt in range(4):
            A(f"global_load_dwordx4 {TR(4*tt,4)}, {L16}, {SA} offset:{tt*1024} sc1")
        A("s_waitcnt vmcnt(4)")
        self.set_exec(0x000F000F, 0x000F000F)
        A(f"v_max_u32 {chk}, {mv}, {lv}")
        A("s_mov_b64 exec, -1")
        A("s_waitcnt vmcnt(0)")
        self.fst(2, "wo")
        for s in self.maxops(t1, self.chk_regs(T, 0, 4) + [chk]): A(s)
        self.poll_tail(t1, "L_wo", "L_wo_d")
        A("L_wo_d:")
        ops = [f"v_mov_b32_dpp {t1}, {mv} quad_perm:[1,0,3,2] {DPP}", f"v_max_f32 {M}, {mv}, {t1}",
               f"v_mov_b32_dpp {t1}, {M} quad_perm:[2,3,0,1] {DPP}", f"v_max_f32 {M}, {M}, {t1}",
               f"v_mov_b32 {t1}, {M}", f"v_permlane16_swap_b32 {M}, {t1}", f"v_max_f32 {M}, {M}, {t1}",
               f"v_sub_f32 {e}, {mv}, {M}", f"v_exp_f32 {e}, {e}", f"v_mul_f32 {M}, {e}, {lv}",
               f"v_mov_b32_dpp {t1}, {M} quad_perm:[1,0,3,2] {DPP}", f"v_add_f32 {M}, {M}, {t1}",
               f"v_mov_b32_dpp {t1}, {M} quad_perm:[2,3,0,1] {DPP}", f"v_add_f32 {M}, {M}, {t1}",
               f"v_mov_b32 {t1}, {M}", f"v_permlane16_swap_b32 {M}, {t1}", f"v_add_f32 {M}, {M}, {t1}",
               f"v_rcp_f32 {M}, {M}", f"v_mul_f32 {w}, {e}, {M}"]
        for tt in range(4):
            for nt in range(4):
                A(f"v_mfma_f32_16x16x32_bf16 {D[nt]}, {TR(4*tt,4)}, {WR(4*(4*tt+nt),4)}, {'0' if tt == 0 else D[nt]}")
                if ops: A(ops.pop(0))
        for s in ops: A(s)
        acc = [T(41 + nt) for nt in range(4)]
        for r in range(4):
            for nt in range(4):
                op = "v_mul_f32_dpp" if r == 0 else "v_fmac_f32_dpp"
                A(f"{op} {acc[nt]}, {w}, {T(20+4*nt+r)} row_newbcast:{r} {DPP}")
        A(f"v_permlane16_swap_b32 {acc[0]}, {acc[1]}"); A(f"v_permlane16_swap_b32 {acc[2]}, {acc[3]}")
        A(f"v_add_f32 {acc[0]}, {acc[0]}, {acc[1]}"); A(f"v_add_f32 {acc[2]}, {acc[2]}, {acc[3]}")
        self.fst(3, "wo")
        A(f"ds_write_b32 {wa}, {acc[0]}"); A(f"ds_write_b32 {wa}, {acc[2]} offset:256")
        A("s_waitcnt lgkmcnt(0)")
        A("s_barrier")
        self.fst(4, "wo")
        A(f"s_cmp_ge_u32 {sWAVE}, 2"); A("s_cbranch_scc1 L_wo_rs")
        for ww in range(4): A(f"ds_read_b32 {T(ww)}, {ra} offset:{ww*512}")
        A("s_waitcnt lgkmcnt(2)")
        A(f"v_add_f32 {T(0)}, {T(0)}, {T(1)}")
        A("s_waitcnt lgkmcnt(0)")
        A(f"v_add_f32 {T(2)}, {T(2)}, {T(3)}"); A(f"v_add_f32 {T(0)}, {T(0)}, {T(2)}")
        self.p_publish(SB, X(9), T(0), 4)
        self.fst(5, "wo")
        self.stamp(11)
        A("s_branch L_next")
        A("L_wo_rs:")

    def p_addr(self, dst):
        A = self.A; sh = 10 if self.o.playout == 0 else 13
        A(f"v_lshrrev_b32 {dst}, 5, {LANE}"); A(f"v_lshlrev_b32 {dst}, {sh}, {dst}"); A(f"v_and_b32 {TMP}, 31, {LANE}"); A(f"v_lshl_add_u32 {dst}, {TMP}, 2, {dst}")
        A(f"s_and_b32 s68, {sWAVE}, 1"); A(f"s_lshl_b32 s68, s68, {sh+1}"); A(f"v_add_u32 {dst}, s68, {dst}")

    def rs_setup(self):
        A = self.A
        pa, xa, sa = X(8), X(10), X(11)
        A(f"v_lshrrev_b32 {X(12)}, 5, {LANE}"); A(f"s_and_b32 s68, {sWAVE}, 1"); A("s_lshl_b32 s68, s68, 1"); A(f"s_add_u32 s68, s68, {sS4}"); A(f"v_add_u32 {X(12)}, s68, {X(12)}")
        self.p_addr(pa)
        A(f"v_bfe_u32 {TMP}, {LANE}, 4, 1"); A(f"v_mul_u32_u24 {xa}, 896, {TMP}"); A(f"v_lshlrev_b32 {sa}, 8, {TMP}")
        A(f"v_lshl_add_u32 {xa}, {X(12)}, 5, {xa}"); A(f"v_lshl_add_u32 {sa}, {X(12)}, 3, {sa}")
        A(f"v_and_b32 {TMP}, 15, {LANE}"); A(f"v_lshl_add_u32 {xa}, {TMP}, 1, {xa}")
    def stage_rs(self):
        A = self.A
        pa, xa, sa = X(8), X(10), X(11)
        NS = self.o.rsets
        def issue(k):
            for g in range(8): A(f"global_load_dword {T(8*k+g)}, {pa}, {SA} offset:{self.p_poll_off(g)} sc1")
        for k in range(NS - 1): issue(k)
        A("L_rs:")
        for k in range(NS):
            issue((k + NS - 1) % NS)
            A(f"s_waitcnt vmcnt({8*(NS-1)})")
            for s in self.maxops(X(4), [T(8*k+g) for g in range(8)]): A(s)
            A(f"v_cmp_eq_u32 vcc, -1, {X(4)}")
            A(f"s_cbranch_vccz L_rs_ok{k}")
        A(f"s_cmp_eq_u32 {sBUD}, 0"); A("s_cbranch_scc1 L_rs_ok0"); A(f"s_sub_u32 {sBUD}, {sBUD}, 1")
        if self.o.rssleep: A(f"s_sleep {self.o.rssleep}")
        A("s_branch L_rs")
        for k in range(NS):
            A(f"L_rs_ok{k}:")
            b_ = 8 * k
            A(f"v_add_f32 {X(0)}, {T(b_)}, {T(b_+1)}"); A(f"v_add_f32 {X(1)}, {T(b_+2)}, {T(b_+3)}"); A(f"v_add_f32 {X(2)}, {T(b_+4)}, {T(b_+5)}"); A(f"v_add_f32 {X(3)}, {T(b_+6)}, {T(b_+7)}")
            if k != NS - 1: A("s_branch L_rs_d")
        A("L_rs_d:")
        A(f"v_cmp_eq_u32 vcc, 0xffff, {X(13)}")
        A("s_cbranch_vccz L_rsr_d")
        A("L_rsr:")
        A(f"global_load_ushort {X(13)}, {xa}, {SD} sc1"); A("s_waitcnt vmcnt(0)")
        A(f"v_cmp_eq_u32 vcc, 0xffff, {X(13)}")
        A("s_cbranch_vccz L_rsr_d")
        A(f"s_cmp_eq_u32 {sBUD}, 0"); A("s_cbranch_scc1 L_rsr_d"); A(f"s_sub_u32 {sBUD}, {sBUD}, 1")
        A("s_branch L_rsr")
        A("L_rsr_d:")
        A(f"v_add_f32 {X(0)}, {X(0)}, {X(1)}"); A(f"v_add_f32 {X(2)}, {X(2)}, {X(3)}"); A(f"v_lshlrev_b32 {X(6)}, 16, {X(13)}"); A(f"v_add_f32 {X(0)}, {X(0)}, {X(2)}")
        if self.o.round2:
            A(f"v_cvt_pk_bf16_f32 {X(0)}, {X(0)}, {X(0)}"); A(f"v_and_b32 {X(0)}, 0xffff0000, {X(0)}")
        A(f"v_add_f32 {X(0)}, {X(6)}, {X(0)}")
        if self.o.perturb:
            lab = A.label("PT")
            A("s_cmp_eq_u32 s78, 1"); A(f"s_cbranch_scc0 {lab}"); A(f"s_cmp_eq_u32 {sSIG}, 2"); A(f"s_cbranch_scc0 {lab}")
            A("s_mov_b64 exec, 1"); A(f"v_add_f32 {X(0)}, {f32(self.o.perturb)}, {X(0)}"); A("s_mov_b64 exec, -1")
            A(f"{lab}:")
        A(f"v_mov_b32_dpp {X(2)}, {X(0)} quad_perm:[1,0,3,2] {DPP}")
        A(f"v_cvt_pk_bf16_f32 {X(3)}, {X(0)}, {X(0)}")
        A(f"v_cvt_pk_bf16_f32 {X(1)}, {X(0)}, {X(2)}")
        A("s_cmp_eq_u32 s78, 1"); A("s_cbranch_scc1 L_final")
        self.set_exec(0x55555555, 0x55555555)
        self.pub(f"global_store_dword {xa}, {X(1)}, {SB}")
        A("s_mov_b64 exec, -1")
        A(f"v_and_b32 {X(2)}, 0xffff0000, {X(3)}")
        A(f"v_mul_f32 {X(3)}, {X(2)}, {X(2)}")
        for sh in (1, 2, 4, 8):
            for r in (X(2), X(3)): A(f"v_add_f32_dpp {r}, {r}, {r} row_shr:{sh} {DPP}")
        self.set_exec(0x80008000, 0x80008000)
        self.pub(f"global_store_dwordx2 {sa}, {XR(2,2)}, {SC_}")
        A("s_mov_b64 exec, -1")
        self.stamp(12)
        A("s_waitcnt vmcnt(0)")

    def stage_gu(self):
        A = self.A
        self.gbase(SC_, R_H)
        A(f"v_bfe_u32 {X(7)}, {LANE}, 4, 1"); A(f"v_mul_u32_u24 {X(7)}, 448, {X(7)}"); A(f"v_and_b32 {TMP}, 15, {LANE}"); A(f"v_lshl_add_u32 {X(7)}, {TMP}, 1, {X(7)}")
        A(f"s_lshl_b32 s68, {sSIG}, 4"); A(f"v_add_u32 {X(7)}, s68, {X(7)}")
        self.stage_ln(R_X1, R_ST1, None, 1.0, "L_gu", sleep=self.o.lnsleep, pre=self.o.gupre)
        z = X(4)
        A(f"v_cvt_pk_bf16_f32 {z}, {z}, {z}"); A(f"v_and_b32 {z}, 0xffff0000, {z}")
        A(f"v_mov_b32_dpp {X(5)}, {z} row_ror:8 {DPP}")
        A(f"v_max_f32 {z}, 0, {z}"); A(f"v_mul_f32 {z}, {z}, {X(5)}")
        self.pack_pair(X(5), z, X(6))
        self.set_exec(0x00550055, 0)
        self.pub(f"global_store_dword {X(7)}, {X(5)}, {SC_}")
        A("s_mov_b64 exec, -1")
        self.fst(5)
        self.stamp(13)
        A("s_waitcnt vmcnt(0)")

    def dn_fetch(self):
        A = self.A
        A(f"s_cmp_eq_u32 {sWAVE}, 1"); A("s_cbranch_scc0 L_dn_b")
        self.gbase(SA, R_H)
        A(f"v_add_u32 {X(10)}, {LDS_RED}, {L16}")
        if self.o.dnpre: A(f"s_sleep {self.o.dnpre}")
        self.set_exec(0xFFFFFFFF, 0x00FFFFFF)
        NS = self.o.lnsets
        base = [56, 60]
        for k in range(NS - 1): A(f"global_load_dwordx4 {TR(base[k],4)}, {L16}, {SA} sc1")
        A("L_dn:")
        for k in range(NS):
            A(f"global_load_dwordx4 {TR(base[(k + NS - 1) % NS],4)}, {L16}, {SA} sc1")
            A(f"s_waitcnt vmcnt({NS-1})")
            for s in self.maxops(X(11), [T(base[k] + i) for i in range(4)]): A(s)
            A(f"v_cmp_eq_u32 vcc, -1, {X(11)}")
            A(f"s_cbranch_vccz L_dn_ok{k}")
        A(f"s_cmp_eq_u32 {sBUD}, 0"); A("s_cbranch_scc1 L_dn_ok0"); A(f"s_sub_u32 {sBUD}, {sBUD}, 1")
        A("s_branch L_dn")
        for k in reversed(range(NS)):
            A(f"L_dn_ok{k}:")
            A(f"ds_write_b128 {X(10)}, {TR(base[k],4)}")
            if k != 0: A("s_branch L_dn_w")
        A("L_dn_w:")
        A("s_mov_b64 exec, -1")
        A("s_waitcnt lgkmcnt(0)")
        A("L_dn_b:")
        A("s_barrier")
    def stage_dn(self):
        A = self.A
        a = X(8)
        A(f"v_and_b32 {a}, 1, {LANE}"); A(f"v_mul_u32_u24 {a}, 448, {a}"); A(f"v_lshrrev_b32 {TMP}, 4, {LANE}"); A(f"v_lshl_add_u32 {a}, {TMP}, 4, {a}")
        A(f"v_add_u32 {a}, {LDS_RED}, {a}")
        self.cbase(SB, 1, consumer=False)
        self.p_store_addr(X(9))
        self.dn_fetch()
        A(f"s_cmp_ge_u32 {sWAVE}, 2"); A("s_cbranch_scc0 L_dn_nors")
        self.gbase(SD, R_X1)
        self.rs_setup()
        A(f"global_load_ushort {X(13)}, {X(10)}, {SD} sc1")
        A("s_branch L_dn_rs")
        A("L_dn_nors:")
        D = [XR(0, 4), XR(4, 4)]
        for t in range(7): A(f"ds_read_b128 {TR(4*t,4)}, {a} offset:{t*64}")
        for t in range(7):
            if t in (0, 3, 5): A(f"s_waitcnt lgkmcnt({ {0: 4, 3: 2, 5: 0}[t] })")
            for u in range(2):
                A(f"v_mfma_f32_16x16x32_bf16 {D[u]}, {TR(4*t,4)}, {WR(4*(2*t+u),4)}, {'0' if t == 0 else D[u]}")
        A(f"v_permlane16_swap_b32 {X(0)}, {X(1)}"); A(f"v_permlane16_swap_b32 {X(4)}, {X(5)}")
        A(f"v_permlane32_swap_b32 {X(0)}, {X(4)}")
        A(f"s_cmp_eq_u32 {sLAYER}, 1"); A("s_cbranch_scc1 L_dn_last")
        self.p_publish(SB, X(9), X(0), 0)
        A("s_branch L_dn_pd")
        A("L_dn_last:")
        A(f"global_store_dword {X(9)}, {X(0)}, {SB} sc1")
        A("L_dn_pd:")
        self.stamp(14)
        A("s_waitcnt vmcnt(0)")

    def stage_q2(self):
        A = self.A
        self.gbase(SC_, R_Q, 1)
        A(f"v_bfe_u32 {X(7)}, {LANE}, 4, 1"); A(f"v_lshlrev_b32 {X(7)}, 10, {X(7)}"); A(f"v_and_b32 {TMP}, 15, {LANE}"); A(f"v_lshl_add_u32 {X(7)}, {TMP}, 1, {X(7)}")
        A(f"s_lshl_b32 s68, {sSIG}, 5"); A(f"v_add_u32 {X(7)}, s68, {X(7)}")
        self.stage_ln(R_X2, R_ST2, 0, QSCALE, "L_qx", sleep=self.o.lnsleep, pre=self.o.wqpre)
        self.pack_pair(X(5), X(4), X(6))
        self.set_exec(0x55555555, 0)
        self.pub(f"global_store_dword {X(7)}, {X(5)}, {SC_}")
        A("s_mov_b64 exec, -1")
        self.stamp(15)
        A("s_waitcnt vmcnt(0)")

    def finish(self):
        A = self.A
        if not self.o.prof: return
        A("s_lshl_b32 s68, s2, 2"); A(f"s_add_u32 s68, s68, {sWAVE}"); A("s_lshl_b32 s68, s68, 7"); A(f"v_mov_b32 {X(0)}, s68")
        A("s_mov_b64 exec, 1")
        for k in range(20):
            A(f"v_mov_b32 {X(1)}, s{80+k}"); A(f"global_store_dword {X(0)}, {X(1)}, {sWS} offset:{4*k}")
        for k in range(9):
            A(f"v_mov_b32 {X(1)}, s{36+k}"); A(f"global_store_dword {X(0)}, {X(1)}, {sWS} offset:{80+4*k}")
        A(f"v_mov_b32 {X(1)}, {sMODE}"); A(f"global_store_dword {X(0)}, {X(1)}, {sWS} offset:116")
        A(f"v_mov_b32 {X(1)}, {sBUD}"); A(f"global_store_dword {X(0)}, {X(1)}, {sWS} offset:120")

    def build(self):
        A = self.A; o = self.o
        self.prologue()
        if o.prof:
            for k in range(9): A(f"s_mov_b32 s{36+k}, 0")
        self.stream()
        A("L_layer:")
        self.get_q()
        self.stamp(6)
        self.attention()
        A(f"s_cmp_eq_u32 {sWAVE}, 0"); A("s_cbranch_scc0 L_nocomb")
        self.combine_publish()
        self.stamp(10)
        A("L_nocomb:")
        A(f"s_cmp_eq_u32 {sROLE}, {ROLE_GU}"); A("s_cbranch_scc1 L_gu_s")
        A(f"s_cmp_eq_u32 {sROLE}, {ROLE_DN}"); A("s_cbranch_scc1 L_dn_s")
        A(f"s_cmp_eq_u32 {sROLE}, {ROLE_WQ}"); A("s_cbranch_scc1 L_wq_s")
        A(f"s_cmp_eq_u32 {sROLE}, {ROLE_WO}"); A("s_cbranch_scc0 L_next")
        self.stage_wo()
        self.cbase(SA, 0); self.gbase(SB, R_X1); self.gbase(SC_, R_ST1); A("s_mov_b32 s78, 0")
        if o.b1gate:
            A(f"s_cmp_eq_u32 {sLAYER}, 0"); A("s_cbranch_scc0 L_rs1pre")
            A(f"v_and_b32 {X(14)}, 7, {LANE}"); A(f"v_lshlrev_b32 {X(14)}, 5, {X(14)}"); A(f"v_add_u32 {X(14)}, 8, {X(14)}")
            A("s_mov_b64 exec, 0xff")
            A(f"global_load_dword {X(15)}, {X(14)}, {sDBG} sc1"); A("s_waitcnt vmcnt(0)")
            A(f"v_cmp_ne_u32 vcc, 32, {X(15)}")
            A("s_cbranch_vccz L_b1_first")
            A("L_b1:")
            A(f"s_cmp_eq_u32 {sBUD}, 0"); A("s_cbranch_scc1 L_b1_d"); A(f"s_sub_u32 {sBUD}, {sBUD}, 1")
            if o.b1sleep: A(f"s_sleep {o.b1sleep}")
            A(f"global_load_dword {X(15)}, {X(14)}, {sDBG} sc1"); A("s_waitcnt vmcnt(0)")
            A(f"v_cmp_ne_u32 vcc, 32, {X(15)}")
            A("s_cbranch_vccnz L_b1")
            A("L_b1_d:")
            A(f"s_sleep {o.b1post}")
            A("L_b1_first:")
            A("s_mov_b64 exec, -1")
            A("s_branch L_rs_entry")
            A("L_rs1pre:")
        if o.rspre1: A(f"s_sleep {o.rspre1}")
        A("L_rs_entry:")
        self.stage_rs()
        self.dstamp(6, layer=0)
        A("s_branch L_next")
        A("L_gu_s:")
        self.stage_gu()
        A("s_branch L_next")
        A("L_dn_s:")
        self.stage_dn()
        A("s_branch L_next")
        A("L_dn_rs:")
        A(f"s_lshl_b32 s68, {sLAYER}, 3"); A(f"s_and_b32 s68, s68, 8"); A(f"s_mul_i32 s68, s68, {sGI}"); A("s_cmp_lg_u32 s68, 0"); A("s_cbranch_scc1 L_fin_w")
        self.cbase(SA, 1); self.gbase(SB, R_X2); self.gbase(SC_, R_ST2); A(f"s_mov_b32 s78, {sLAYER}")
        A(f"s_cmp_eq_u32 {sLAYER}, 1"); A("s_cbranch_scc1 L_rs2b")
        if o.rspre2: A(f"s_sleep {o.rspre2}")
        A("s_branch L_rs_entry")
        A("L_rs2b:")
        if o.rspre3: A(f"s_sleep {o.rspre3}")
        A("s_branch L_rs_entry")
        A("L_wq_s:")
        A(f"s_cmp_eq_u32 {sLAYER}, 1"); A("s_cbranch_scc1 L_fin")
        self.stage_q2()
        A("L_next:")
        A(f"s_cmp_eq_u32 {sLAYER}, 1"); A("s_cbranch_scc1 L_fin")
        A(f"s_mov_b32 {sLAYER}, 1")
        A("s_branch L_layer")
        A("L_final:")
        A(f"s_cmp_eq_u32 {sGI}, 0"); A("s_cbranch_scc0 L_fin")
        self.set_exec(0x55555555, 0x55555555)
        A(f"global_store_dword {X(10)}, {X(1)}, {sOUT}")
        A(f"s_cmp_eq_u32 {sSIG}, 2"); A("s_cbranch_scc0 L_noep")
        A("s_mov_b64 exec, 1")
        A(f"v_mov_b32 {X(2)}, {EOFF}"); A(f"v_mov_b32 {X(3)}, {sTAG}")
        A(f"global_store_dword {X(2)}, {X(3)}, {sWS}")
        A("L_noep:")
        A("s_mov_b64 exec, -1")
        A("L_fin_w:")
        A("L_fin:")
        self.dstamp(10)
        self.stamp(16)
        self.finish()
        A("L_end:")
        A("s_endpgm")
        for t in self.tail_code: A(t)
        A("L_codeend:")
        if o.codepf:
            for _ in range(256): A("s_nop 0")
        lines, n = hazard.fix(A.L, verbose=o.verbose)
        A.L = lines
        return A

def main():
    ap = argparse.ArgumentParser()
    ap.add_argument("-o", default="k3.s")
    ap.add_argument("--prof", action="store_true")
    ap.add_argument("--slow", action="store_true")
    ap.add_argument("--nt", type=int, default=1)
    ap.add_argument("--wnt", type=int, default=1)
    ap.add_argument("--win", type=int, default=12)
    ap.add_argument("--winv", type=int, default=60)
    ap.add_argument("--budget", type=int, default=200000)
    ap.add_argument("--gate", type=int, default=0)
    ap.add_argument("--gatesleep", type=int, default=1)
    ap.add_argument("--qsleep", type=int, default=1)
    ap.add_argument("--trypoll", type=int, default=6)
    ap.add_argument("--k0", type=int, default=1)
    ap.add_argument("--prefetch", type=int, default=0)
    ap.add_argument("--rsets", type=int, default=1)
    ap.add_argument("--lnsleep", type=int, default=0)
    ap.add_argument("--playout", type=int, default=0)
    ap.add_argument("--ncopies", type=int, default=8)
    ap.add_argument("--rspre1", type=int, default=10)
    ap.add_argument("--rspre2", type=int, default=12)
    ap.add_argument("--rssleep", type=int, default=0)
    ap.add_argument("--rspre3", type=int, default=11)
    ap.add_argument("--wopre", type=int, default=0)
    ap.add_argument("--gupre", type=int, default=0)
    ap.add_argument("--wqpre", type=int, default=0)
    ap.add_argument("--dnpre", type=int, default=0)
    ap.add_argument("--qpre", type=int, default=0)
    ap.add_argument("--lnsets", type=int, default=2)
    ap.add_argument("--gupf", type=int, default=1)
    ap.add_argument("--gudelay", type=int, default=3)
    ap.add_argument("--wqpf", type=int, default=0)
    ap.add_argument("--codepf", type=int, default=0)
    ap.add_argument("--wopf", type=int, default=0)
    ap.add_argument("--b1gate", type=int, default=0)
    ap.add_argument("--b1sleep", type=int, default=2)
    ap.add_argument("--b1post", type=int, default=8)
    ap.add_argument("--pfdn", type=int, default=8)
    ap.add_argument("--pfnone", type=int, default=20)
    ap.add_argument("--wstep", type=int, default=4)
    ap.add_argument("--esplit", type=int, default=1)
    ap.add_argument("--qsets", type=int, default=2)
    ap.add_argument("--pf4", type=int, default=1)
    ap.add_argument("--exp", default="")
    ap.add_argument("--perturb", type=float, default=0.0)
    ap.add_argument("--vdist", type=int, default=3)
    ap.add_argument("--fullcheck", type=int, default=0)
    ap.add_argument("--round2", type=int, default=0)
    ap.add_argument("--stamps", default=None)
    ap.add_argument("--verbose", action="store_true")
    ap.add_argument("--dbgstamps", action="store_true")
    ap.add_argument("--fine", default="")
    o = ap.parse_args()
    g = Gen(o); A = g.build(); A.write(o.o, extra_header=HDR)
    print("wrote", o.o, len(A.L), "lines")
main()
```

```python
import sys, argparse, struct
from asmlib import Asm, NAME
import hazard

GOFF = 0x100000; LSTRIDE = 0x8000
R_Q = 0x0000; R_ML = 0x0800; R_X1 = 0x0A00; R_ST1 = 0x1100; R_H = 0x1300; R_X2 = 0x1800; R_ST2 = 0x1F00; R_O = 0x4000
COFF = GOFF + 0x80000
EOFF = 0x0F0000
QTOFF = 0x0F8000
TAGC = 0x9E3779B9
NLDS = 19
VW = NLDS * 2048
LDS_OP = 4 * VW; LDS_MLP = LDS_OP + 4096; LDS_QL = LDS_MLP + 64; LDS_FLAG = LDS_QL + 512; LDS_RED = LDS_FLAG + 64
assert LDS_RED + 2048 <= 163840
LOG2E = 1.4426950408889634
QSCALE = LOG2E / 16.0
ROLE_WQ, ROLE_WO, ROLE_GU, ROLE_DN, ROLE_NONE = 0, 1, 2, 3, 4

def f32(x): return "0x%08x" % struct.unpack("<I", struct.pack("<f", x))[0]
def X(n): assert 0 <= n < 20; return f"v{4+n}"
def T(n): assert 0 <= n < 64; return f"v{24+n}"
def W(n): assert 0 <= n < 64; return f"v{88+n}"
def VR(n): assert 0 <= n < 104; return f"v{152+n}"
def rng(f, a, n):
    s = f(a); k = int(s[1:]); assert n == 1 or k % 2 == 0, (s, n); return f"{s[0]}[{k}:{k+n-1}]"
def XR(a, n): return rng(X, a, n)
def TR(a, n): return rng(T, a, n)
def WR(a, n): return rng(W, a, n)
def VRR(a, n): return rng(VR, a, n)
LANE = "v0"; CS = "v1"; L16 = "v2"; TMP = "v3"
sM0B = "s3"
sXIN = "s[4:5]"
sOUT = "s[16:17]"; sDBG = "s[18:19]"; sWS = "s[20:21]"; sG = "s[22:23]"; sC = "s[24:25]"
sWAVE = "s26"; sGI = "s27"; sJ = "s28"; sHL = "s29"; sB = "s30"; sSP = "s31"
sMODE = "s32"; sBUD = "s33"; sLAYER = "s34"; sTILE = "s35"
sADV = "s101"; sTAG = "s46"; sROLE = "s6"; sSIG = "s7"; sS4 = "s47"
sSEL = "s[60:61]"
sMA = "s[54:55]"
SA = "s[70:71]"; SB = "s[72:73]"; SC_ = "s[74:75]"; SD = "s[64:65]"
WBAR = "v[14:15]"; WBAR0 = "v14"; WBAR1 = "v15"
DPP = "row_mask:0xf bank_mask:0xf"

HDR = """; Persistent fused kernel: 2 x (LN -> MHA over the KV cache -> Wo -> residual -> LN -> ReGLU FFN -> residual).
; One workgroup per CU (256 x 4 waves, 512 registers per lane, all 160 KiB of LDS). The KV cache is read from HBM once and stays
; start of every launch (counter in d_debug), each word validates itself; layer-0 q uses {data, tag} granules with a tag derived from
; an epoch word so that it can be told from an earlier launch's hand-off. Group-local hand-offs use plain stores only when all
; workgroups of the group report the same XCC id in this launch, otherwise write-through stores (correct for any placement).
; All spin loops are bounded."""

class Gen:
    def __init__(self, opt):
        self.o = opt; self.A = Asm(); self.ob = 0; self.tail_code = []
    def stamp(self, k):
        if not self.o.prof: return
        if self.o.stamps is not None and k not in [int(x) for x in self.o.stamps.split(",")]: return
        A = self.A
        A("s_memrealtime s[76:77]"); A("s_waitcnt lgkmcnt(0)")
        if 6 <= k <= 14:
            A(f"s_cmp_eq_u32 {sLAYER}, 0"); A(f"s_cselect_b32 s{80+k}, s76, s{80+k}"); A(f"s_cselect_b32 s{30+k}, s{30+k}, s76")
        else:
            A(f"s_mov_b32 s{80+k}, s76")
    def dstamp(self, word, neg=False, layer=None):
        if not self.o.dbgstamps: return
        A = self.A
        lab = A.label("DS")
        A("s_cmp_eq_u32 s2, 176"); A(f"s_cbranch_scc0 {lab}"); A(f"s_cmp_eq_u32 {sWAVE}, 0"); A(f"s_cbranch_scc0 {lab}")
        if layer is not None:
            A(f"s_cmp_eq_u32 {sLAYER}, {layer}"); A(f"s_cbranch_scc0 {lab}")
        A("s_memrealtime s[76:77]"); A("s_waitcnt lgkmcnt(0)")
        A(f"v_mov_b32 v86, s76"); A(f"v_mov_b32 v87, {4*word}")
        A("s_mov_b64 s[78:79], exec"); A("s_mov_b64 exec, 1")
        A(f"global_store_dword v87, v86, {sDBG}")
        A("s_mov_b64 exec, s[78:79]")
        A(f"{lab}:")
    def fst(self, k, which="ln"):
        if self.o.fine != which: return
        A = self.A
        A("s_memtime s[76:77]"); A("s_waitcnt lgkmcnt(0)"); A(f"s_mov_b32 s{90+k}, s76")
    def gbase(self, dst, off, layer=None):
        A = self.A; d = int(dst[2:dst.index(":")])
        if layer is None:
            A(f"s_mul_i32 s68, {sLAYER}, {LSTRIDE}"); A(f"s_add_u32 s68, s68, {off}")
            A(f"s_add_u32 s{d}, s22, s68")
        else:
            A(f"s_add_u32 s{d}, s22, {off + layer*LSTRIDE}")
        A(f"s_addc_u32 s{d+1}, s23, 0")
    def cbase(self, dst, kind, consumer=True):
        A = self.A; d = int(dst[2:dst.index(":")]); L = self.o.playout
        A(f"s_lshl_b32 s68, {sLAYER}, 19"); A(f"s_lshl_b32 s69, {sS4}, {10 if L == 0 else 13}"); A("s_add_u32 s68, s68, s69")
        if consumer:
            sh = {0: 15, 1: 7, 2: 10}[L]; extra = {0: 0, 1: 4096, 2: 0}[L]
        else:
            sh = {0: 7, 1: 10, 2: 7}[L]; extra = {0: 0, 1: 0, 2: 4096}[L]
        if consumer and self.o.ncopies < 8: A(f"s_and_b32 s69, {sGI}, {self.o.ncopies - 1}"); A(f"s_lshl_b32 s69, s69, {sh}")
        else: A(f"s_lshl_b32 s69, {sGI}, {sh}")
        A("s_add_u32 s68, s68, s69"); A(f"s_add_u32 s68, s68, {kind*0x40000 + extra}")
        A(f"s_add_u32 s{d}, s24, s68"); A(f"s_addc_u32 s{d+1}, s25, 0")
    def p_store_addr(self, dst):
        self.p_addr(dst)
    def p_publish(self, base, vaddr, val, t4):
        A = self.A; d = int(base[2:base.index(":")]); N = self.o.ncopies
        for c in range(N):
            A(f"global_store_dword {vaddr}, {val}, {base} sc1")
            if c != N - 1: A(f"s_add_u32 s{d}, s{d}, 0x8000"); A(f"s_addc_u32 s{d+1}, s{d+1}, 0")
    def p_poll_off(self, g):
        return {0: g * 128, 1: g * 1024 - 4096, 2: g * 128}[self.o.playout]
    def maxops(self, dst, regs, first=True):
        out = []; regs = list(regs)
        if first:
            if len(regs) >= 3: out.append(f"v_max3_u32 {dst}, {regs[0]}, {regs[1]}, {regs[2]}"); regs = regs[3:]
            elif len(regs) == 2: out.append(f"v_max_u32 {dst}, {regs[0]}, {regs[1]}"); regs = []
            else: out.append(f"v_mov_b32 {dst}, {regs[0]}"); regs = []
        while len(regs) >= 2:
            out.append(f"v_max3_u32 {dst}, {dst}, {regs[0]}, {regs[1]}"); regs = regs[2:]
        if regs: out.append(f"v_max_u32 {dst}, {dst}, {regs[0]}")
        return out
    def chk_regs(self, f, base, nload):
        if self.o.fullcheck: return [f(base + k) for k in range(4 * nload)]
        return [f(base + 4 * k) for k in range(nload)]
    def poll_tail(self, chk, loop, done, sleep=0):
        A = self.A
        A(f"v_cmp_eq_u32 vcc, -1, {chk}")
        A(f"s_cbranch_vccz {done}")
        A(f"s_cmp_eq_u32 {sBUD}, 0"); A(f"s_cbranch_scc1 {done}")
        A(f"s_sub_u32 {sBUD}, {sBUD}, 1")
        if sleep: A(f"s_sleep {sleep}")
        A(f"s_branch {loop}")
    def gate(self, base, vaddr, off, dst, lab):
        if not self.o.gate: return
        A = self.A
        A(f"{lab}:")
        A(f"global_load_dword {dst}, {vaddr}, {base} offset:{off} sc1"); A("s_waitcnt vmcnt(0)")
        self.poll_tail(dst, lab, lab + "_d", sleep=self.o.gatesleep)
        A(f"{lab}_d:")
    def pub(self, instr):
        A = self.A
        l1 = A.label("PUBS"); l2 = A.label("PUBD")
        A(f"s_cmp_eq_u32 {sMODE}, 1"); A(f"s_cbranch_scc0 {l1}")
        A(instr); A(f"{l2}:")
        self.tail_code += [f"{l1}:", instr + " sc1", f"s_branch {l2}"]
    def set_exec(self, lo, hi):
        A = self.A
        if lo == 0xFFFFFFFF and hi == 0xFFFFFFFF: A("s_mov_b64 exec, -1"); return
        A(f"s_mov_b32 exec_lo, {hex(lo)}"); A(f"s_mov_b32 exec_hi, {hex(hi)}")
    def ln_addr(self, dst):
        A = self.A
        A(f"v_and_b32 {dst}, 1, {LANE}"); A(f"v_mul_u32_u24 {dst}, 896, {dst}")
        A(f"v_lshrrev_b32 {TMP}, 4, {LANE}"); A(f"v_lshl_add_u32 {dst}, {TMP}, 4, {dst}")
    def xst_addr(self, dst):
        A = self.A
        A(f"v_bfe_u32 {TMP}, {LANE}, 4, 1"); A(f"v_mul_u32_u24 {dst}, 896, {TMP}")
        A(f"v_and_b32 {TMP}, 15, {LANE}"); A(f"v_lshl_add_u32 {dst}, {TMP}, 1, {dst}")
        A(f"s_lshl_b32 s68, {sSIG}, 5"); A(f"v_add_u32 {dst}, s68, {dst}")
    def pack_pair(self, dst, val, tmp):
        A = self.A
        A(f"v_mov_b32_dpp {tmp}, {val} quad_perm:[1,0,3,2] {DPP}")
        A(f"v_cvt_pk_bf16_f32 {dst}, {val}, {tmp}")

    def prologue(self):
        A = self.A; o = self.o
        wnt = " nt" if o.wnt else ""
        A(f"""
        s_cmp_ge_u32 s2, 256
        s_cbranch_scc1 L_end
        {"s_memrealtime s[100:101]" if o.dbgstamps else ""}
        s_load_dwordx2 s[8:9], s[0:1], 8
        s_load_dwordx16 s[36:51], s[0:1], 0
        s_load_dwordx8 s[52:59], s[0:1], 64
        v_lshrrev_b32 v1, 6, v0
        v_and_b32 v0, 63, v0
        s_and_b32 {sGI}, s2, 7
        v_readfirstlane_b32 {sWAVE}, v1
        s_lshr_b32 {sJ}, s2, 3
        s_lshr_b32 s68, {sJ}, 3
        s_and_b32 {sSP}, {sJ}, 7
        s_and_b32 {sHL}, s68, 1
        s_lshr_b32 {sB}, s68, 1
        s_lshl_b32 s68, {sGI}, 1
        s_add_u32 s68, s68, {sHL}
        s_lshl_b32 s69, {sB}, 4
        s_add_u32 s68, s68, s69
        s_lshl_b32 {sTILE}, s68, 21
        s_lshl_b32 s68, {sSP}, 15
        s_add_u32 {sTILE}, {sTILE}, s68
        s_lshl_b32 s68, {sWAVE}, 13
        s_add_u32 {sTILE}, {sTILE}, s68
        s_mov_b32 s10, 0x4000000
        s_mov_b32 s11, 0x00020000
        """)
        vK = X(18)
        A(f"v_lshrrev_b32 {X(9)}, 4, {LANE}")
        A(f"v_and_b32 {vK}, 3, {LANE}"); A(f"v_lshlrev_b32 {vK}, 4, {vK}"); A(f"v_lshl_add_u32 {vK}, {X(9)}, 6, {vK}")
        A(f"v_bfe_u32 {TMP}, {LANE}, 2, 2"); A(f"v_lshl_add_u32 {vK}, {TMP}, 11, {vK}")
        A("s_waitcnt lgkmcnt(0)")
        self.ob = 0
        self.ktile(0, 64)
        A(f"""
        s_mov_b32 {sBUD}, {o.budget}
        s_mov_b32 {sLAYER}, 0
        s_mov_b32 {sMODE}, 0
        s_mov_b32 s60, 0xffff0000
        s_mov_b32 s61, 0xffff0000
        v_lshlrev_b32 {L16}, 4, {LANE}
        v_mov_b32 {CS}, 0
        s_mul_i32 {sM0B}, {sWAVE}, {VW}
        """)
        A(f"v_and_b32 {X(8)}, 15, {LANE}"); A(f"v_lshlrev_b32 {X(19)}, 11, {X(9)}"); A(f"v_lshl_add_u32 {X(19)}, {X(8)}, 4, {X(19)}")
        A(f"s_mov_b32 {sROLE}, {ROLE_WQ}"); A(f"s_mov_b32 s62, {sJ}")
        for (lim, role) in ((8, ROLE_WO), (15, ROLE_GU), (22, ROLE_DN), (29, ROLE_NONE)):
            A(f"s_cmp_ge_u32 {sJ}, {lim}"); A(f"s_cselect_b32 {sROLE}, {role}, {sROLE}"); A(f"s_sub_u32 s68, {sJ}, {lim}")
            A(f"s_cmp_ge_u32 {sJ}, {lim}"); A("s_cselect_b32 s62, s68, s62")
        A(f"s_lshl_b32 {sSIG}, s62, 2"); A(f"s_add_u32 {sSIG}, {sSIG}, {sWAVE}")
        self.stamp(0)
        if o.prof:
            for k in range(1, 20): A(f"s_mov_b32 s{80+k}, 0")
        A(f"""
        s_load_dword {sTAG}, s[58:59], {EOFF}
        s_sub_u32 {sS4}, {sSIG}, {sWAVE}
        s_mov_b32 s12, s40
        s_mov_b32 s13, s41
        s_mov_b32 s14, 0x4000000
        s_mov_b32 s15, 0x00020000
        s_mov_b32 s4, s36
        s_mov_b32 s5, s37
        s_mov_b32 s16, s54
        s_mov_b32 s17, s55
        s_mov_b32 s18, s56
        s_mov_b32 s19, s57
        s_mov_b32 s20, s58
        s_mov_b32 s21, s59
        s_lshl_b32 s68, {sGI}, 16
        s_add_u32 s68, s68, {GOFF}
        s_add_u32 s22, s58, s68
        s_addc_u32 s23, s59, 0
        s_add_u32 s24, s58, {COFF}
        s_addc_u32 s25, s59, 0
        s_mov_b64 s[70:71], s[58:59]
        s_mov_b64 s[72:73], s[58:59]
        s_mov_b64 s[74:75], s[58:59]
        """)
        if o.dbgstamps:
            A("s_cmp_eq_u32 s2, 176"); A("s_cbranch_scc0 L_ds0"); A(f"s_cmp_eq_u32 {sWAVE}, 0"); A("s_cbranch_scc0 L_ds0")
            A("v_mov_b32 v86, s100"); A("v_mov_b32 v87, 8"); A("s_mov_b64 exec, 1")
            A(f"global_store_dword v87, v86, {sDBG}"); A("s_mov_b64 exec, -1")
            A("L_ds0:")
            self.dstamp(3)
        if o.eclr: self.clears()
        if o.prefetch: self.prefetch_weights()
        if o.gupf:
            assert o.k0 == 1
            A(f"s_cmp_ge_u32 {sROLE}, {ROLE_DN}"); A("s_cbranch_scc0 L_nogupf")
            self.prefetch_gu()
            A("L_nogupf:")
            A(f"s_cmp_eq_u32 {sROLE}, {ROLE_GU}"); A(f"s_cselect_b32 {sADV}, 1, 0")
            if o.wqpf:
                A(f"s_cmp_eq_u32 {sROLE}, {ROLE_WQ}"); A(f"s_cselect_b32 {sADV}, 1, {sADV}")
                A(f"s_cmp_eq_u32 {sROLE}, {ROLE_GU}"); A("s_cbranch_scc0 L_nowqpf")
                self.prefetch_wq()
                A("L_nowqpf:")
            if o.wopf:
                A(f"s_cmp_eq_u32 {sROLE}, {ROLE_WO}"); A(f"s_cselect_b32 {sADV}, 1, {sADV}")
                A(f"s_cmp_eq_u32 {sROLE}, {ROLE_GU}"); A("s_cbranch_scc0 L_nowopf")
                A(f"s_mul_i32 s68, {sGI}, 458752"); A(f"s_mul_i32 s69, {sSIG}, {o.wopf*1024}"); A("s_add_u32 s68, s68, s69"); A(f"v_add_u32 {X(11)}, s68, {L16}")
                for k in range(o.wopf):
                    A(f"global_load_dwordx4 a[{192+4*k}:{195+4*k}], {X(11)}, s[44:45]" + (f" offset:{(k%4)*1024}" if k % 4 else ""))
                    if k % 4 == 3: A(f"v_add_u32 {X(11)}, 4096, {X(11)}")
                A("L_nowopf:")
            A(f"s_cmp_eq_u32 {sADV}, 1"); A("s_cbranch_scc0 L_nogu12")
            for tau in range(1, 1 + o.gudelay): self.ktile(tau, 64)
            A("s_waitcnt vmcnt(24)")
            A("L_nogu12:")
        for tau in range(1, o.k0): self.ktile(tau, 64)
        if 8 * o.k0 + (14 if o.prefetch else 0) > 16: A("s_waitcnt vmcnt(16)")
        row8, c, off = X(2), X(3), X(4)
        A(f"v_lshrrev_b32 {row8}, 3, {LANE}"); A(f"v_and_b32 {c}, 7, {LANE}")
        A(f"s_cmp_eq_u32 {sROLE}, {ROLE_WO}"); A("s_cbranch_scc1 L_w1")
        A(f"s_cmp_eq_u32 {sROLE}, {ROLE_GU}"); A("s_cbranch_scc1 L_w2")
        A(f"s_cmp_eq_u32 {sROLE}, {ROLE_DN}"); A("s_cbranch_scc1 L_w3")
        A(f"s_cmp_eq_u32 {sROLE}, {ROLE_WQ}"); A("s_cbranch_scc1 L_w0")
        A(f"v_mov_b32 {off}, 0"); A("s_mov_b32 s63, 0"); A("s_mov_b32 s66, 0"); A("s_mov_b32 s67, 0")
        A("s_mov_b32 s64, s42"); A("s_mov_b32 s65, s43"); A("s_mov_b32 s78, s42"); A("s_mov_b32 s79, s43")
        A("s_branch L_wdone")
        A("L_w0:")
        A(f"s_mul_i32 s68, {sWAVE}, 112"); A(f"v_add_u32 {X(5)}, s68, {row8}"); A(f"v_lshlrev_b32 {off}, 13, {X(5)}")
        A(f"v_lshl_add_u32 {off}, {c}, 4, {off}"); A(f"s_lshl_b32 s68, {sGI}, 10"); A("s_lshl_b32 s69, s62, 7"); A("s_add_u32 s68, s68, s69"); A(f"v_add_u32 {off}, s68, {off}")
        A("s_mov_b32 s63, 14"); A(f"s_mov_b32 s66, {8*8192}"); A(f"s_mul_i32 s67, {sWAVE}, 14336")
        A("s_mov_b32 s64, s42"); A("s_mov_b32 s65, s43"); A("s_mov_b32 s78, s42"); A("s_mov_b32 s79, s43")
        A(f"s_cmp_eq_u32 {sWAVE}, 0"); A("s_cbranch_scc0 L_nox")
        A(f"s_mov_b32 m0, {LDS_RED}")
        A(f"global_load_lds_dwordx4 {L16}, {sXIN}")
        self.set_exec(0xFFFFFFFF, 0x0000FFFF)
        A(f"global_load_lds_dwordx4 {L16}, {sXIN} offset:1024")
        A("s_mov_b64 exec, -1")
        A("L_nox:")
        A("s_branch L_wdone")
        A("L_w1:")
        A(f"v_and_b32 {X(5)}, 3, {row8}"); A(f"v_lshlrev_b32 {X(5)}, 3, {X(5)}"); A(f"v_lshrrev_b32 {X(6)}, 2, {row8}"); A(f"v_add_u32 {X(5)}, {X(5)}, {X(6)}")
        A(f"s_lshl_b32 s68, {sGI}, 9"); A(f"s_lshl_b32 s69, {sWAVE}, 7"); A("s_add_u32 s68, s68, s69"); A(f"v_add_u32 {X(5)}, s68, {X(5)}")
        A(f"v_mul_u32_u24 {off}, 896, {X(5)}"); A(f"v_lshl_add_u32 {off}, {c}, 4, {off}"); A("s_lshl_b32 s68, s62, 7"); A(f"v_add_u32 {off}, s68, {off}")
        A(f"v_lshrrev_b32 {X(12)}, 5, {LANE}"); A(f"s_and_b32 s68, {sWAVE}, 1"); A("s_lshl_b32 s68, s68, 1"); A(f"s_add_u32 s68, s68, {sS4}"); A(f"v_add_u32 {X(12)}, s68, {X(12)}")
        A(f"v_bfe_u32 {TMP}, {LANE}, 4, 1"); A(f"v_mul_u32_u24 {X(10)}, 896, {TMP}"); A(f"v_lshl_add_u32 {X(10)}, {X(12)}, 5, {X(10)}")
        A(f"v_and_b32 {TMP}, 15, {LANE}"); A(f"v_lshl_add_u32 {X(10)}, {TMP}, 1, {X(10)}")
        A(f"global_load_ushort {CS}, {X(10)}, {sXIN}")
        A("s_mov_b32 s63, 16"); A("s_mov_b32 s66, 0"); A(f"s_mov_b32 s67, {sM0B}")
        A("s_mov_b32 s64, s44"); A("s_mov_b32 s65, s45"); A("s_mov_b32 s78, s44"); A("s_mov_b32 s79, s45")
        A("s_branch L_wdone")
        A("L_w2:")
        A(f"s_mul_i32 s68, {sWAVE}, 112"); A(f"v_add_u32 {X(5)}, s68, {row8}"); A(f"v_mul_u32_u24 {off}, 3584, {X(5)}")
        A(f"v_and_b32 {X(6)}, 3, {c}"); A(f"v_lshl_add_u32 {off}, {X(6)}, 4, {off}")
        A(f"s_mul_i32 s68, {sGI}, 448"); A("s_lshl_b32 s69, s62, 6"); A("s_add_u32 s68, s68, s69"); A(f"v_add_u32 {off}, s68, {off}")
        A("s_mov_b32 s63, 14"); A(f"s_mov_b32 s66, {8*3584}"); A(f"s_mul_i32 s67, {sWAVE}, 14336")
        A("s_mov_b32 s64, s48"); A("s_mov_b32 s65, s49"); A("s_mov_b32 s78, s50"); A("s_mov_b32 s79, s51")
        A("s_branch L_wdone")
        A("L_w3:")
        A(f"s_mul_i32 s68, {sGI}, 224"); A(f"s_mul_i32 s69, {sWAVE}, 56"); A("s_add_u32 s68, s68, s69"); A(f"v_add_u32 {X(5)}, s68, {row8}")
        A(f"v_mul_u32_u24 {off}, 896, {X(5)}"); A(f"v_lshl_add_u32 {off}, {c}, 4, {off}"); A("s_lshl_b32 s68, s62, 7"); A(f"v_add_u32 {off}, s68, {off}")
        A("s_mov_b32 s63, 7"); A(f"s_mov_b32 s66, {8*896}"); A(f"s_mul_i32 s67, {sWAVE}, 7168")
        A("s_mov_b32 s64, s52"); A("s_mov_b32 s65, s53"); A("s_mov_b32 s78, s52"); A("s_mov_b32 s79, s53")
        A("L_wdone:")
        A(f"v_cmp_le_u32 vcc, 4, {c}")
        A(f"v_mov_b32 {X(0)}, s64"); A(f"v_mov_b32 {X(5)}, s78"); A(f"v_cndmask_b32 {X(0)}, {X(0)}, {X(5)}, vcc")
        A(f"v_mov_b32 {X(1)}, s65"); A(f"v_mov_b32 {X(5)}, s79"); A(f"v_cndmask_b32 {X(1)}, {X(1)}, {X(5)}, vcc")
        A(f"v_add_co_u32 {X(0)}, vcc, {X(0)}, {off}"); A(f"v_addc_co_u32 {X(1)}, vcc, 0, {X(1)}, vcc")
        A("s_mov_b32 s68, s67"); A("s_mov_b32 s69, 0")
        if "now" in self.o.exp: A("s_mov_b32 s63, 0")
        if "nogu" in self.o.exp:
            A(f"s_cmp_eq_u32 {sROLE}, {ROLE_GU}"); A("s_cselect_b32 s63, 0, s63")
        A("s_cmp_eq_u32 s63, 0"); A("s_cbranch_scc1 L_wld_done")
        A("L_wld:")
        A("s_mov_b32 m0, s68")
        A("s_add_u32 s68, s68, 1024")
        A(f"global_load_lds_dwordx4 {XR(0,2)}, off{wnt}")
        A("s_add_u32 s69, s69, 1"); A("s_and_b32 s62, s69, 3"); A("s_cmp_eq_u32 s62, 0"); A(f"s_mov_b32 s76, {26*896}"); A(f"s_cselect_b32 s62, s76, {2*896}")
        A(f"s_cmp_eq_u32 {sROLE}, {ROLE_WO}"); A("s_cselect_b32 s62, s62, s66")
        A(f"v_add_co_u32 {X(0)}, vcc, s62, {X(0)}"); A(f"v_addc_co_u32 {X(1)}, vcc, 0, {X(1)}, vcc")
        A("s_cmp_lt_u32 s69, s63"); A("s_cbranch_scc1 L_wld")
        A("L_wld_done:")
        A("s_mov_b32 s48, 0x22222222"); A("s_mov_b32 s49, 0x22222222"); A("s_mov_b32 s50, 0x44444444"); A("s_mov_b32 s51, 0x44444444")
        A("s_mov_b32 s52, 0x88888888"); A("s_mov_b32 s53, 0x88888888")
        A("s_mov_b32 s54, 0x03030303"); A("s_mov_b32 s55, 0x03030303")
        A("s_mov_b32 s56, 0x0c0c0c0c"); A("s_mov_b32 s57, 0x0c0c0c0c"); A("s_mov_b32 s58, 0x30303030"); A("s_mov_b32 s59, 0x30303030")
        A("s_mov_b32 s62, 0xc0c0c0c0"); A("s_mov_b32 s63, 0xc0c0c0c0")
        if not self.o.eclr: self.clears()

    def clears(self):
        A = self.A
        if self.o.eclr == 2:
            for k in range(4): A(f"v_mov_b32 {X(12+k)}, -1")
            A(f"s_lshl_b32 s68, {sJ}, 11"); A(f"s_lshl_b32 s69, {sWAVE}, 9"); A("s_add_u32 s68, s68, s69"); A(f"v_add_u32 {X(8)}, s68, {L16}")
            self.set_exec(0xFFFFFFFF, 0)
            A(f"global_store_dwordx4 {X(8)}, {XR(12,4)}, {sG} sc1")
            A("s_mov_b64 exec, -1")
            A(f"s_lshl_b32 s68, s2, 12"); A(f"s_lshl_b32 s69, {sWAVE}, 10"); A("s_add_u32 s68, s68, s69"); A(f"v_add_u32 {X(9)}, s68, {L16}")
            A(f"global_store_dwordx4 {X(9)}, {XR(12,4)}, {sC} sc1")
            return
        A(f"s_cmp_eq_u32 {sWAVE}, 3"); A("s_cbranch_scc0 L_noclr")
        for k in range(4): A(f"v_mov_b32 {X(12+k)}, -1")
        A(f"s_lshl_b32 s68, {sJ}, 11"); A(f"v_add_u32 {X(8)}, s68, {L16}")
        A(f"global_store_dwordx4 {X(8)}, {XR(12,4)}, {sG} sc1"); A(f"global_store_dwordx4 {X(8)}, {XR(12,4)}, {sG} offset:1024 sc1")
        A(f"s_lshl_b32 s68, s2, 12"); A(f"v_add_u32 {X(9)}, s68, {L16}")
        for k in range(4): A(f"global_store_dwordx4 {X(9)}, {XR(12,4)}, {sC} offset:{k*1024} sc1")
        A("L_noclr:")

    def prefetch_gu(self):
        A = self.A; o = self.o
        nd, nn = o.pfdn, o.pfnone
        f = " nt" if o.gupf == 2 else ""
        A(f"s_mul_i32 s78, {sSIG}, {nd}")
        A(f"s_mul_i32 s69, {sSIG}, {nn}"); A(f"s_add_u32 s69, s69, {28*nd}")
        A(f"s_cmp_eq_u32 {sROLE}, {ROLE_NONE}"); A("s_cselect_b32 s78, s69, s78")
        A(f"v_lshrrev_b32 {X(11)}, 5, {LANE}"); A(f"v_mul_u32_u24 {X(11)}, 3584, {X(11)}"); A(f"v_and_b32 {X(12)}, 31, {LANE}"); A(f"v_lshl_add_u32 {X(11)}, {X(12)}, 4, {X(11)}")
        A(f"s_mul_i32 s68, s78, 3584"); A(f"s_mul_i32 s69, {sGI}, 448"); A("s_add_u32 s68, s68, s69"); A(f"v_add_u32 {X(11)}, s68, {X(11)}")
        self.set_exec(0x0FFFFFFF, 0x0FFFFFFF)
        d = [128]
        def rows(k0, k1):
            for (lo, hi) in (("s48", "s49"), ("s50", "s51")):
                A(f"s_mov_b32 s72, {lo}"); A(f"s_mov_b32 s73, {hi}"); A(f"s_mov_b32 s74, {448*3584}"); A("s_mov_b32 s75, 0x00020000")
                for k in range(k0, k1):
                    A(f"s_mov_b32 s69, {k*7168}")
                    A(f"buffer_load_dwordx4 a[{d[0]}:{d[0]+3}], {X(11)}, s[72:75], s69 offen{f}"); d[0] += 4
        rows(0, nd // 2)
        A(f"s_cmp_eq_u32 {sROLE}, {ROLE_NONE}"); A("s_cbranch_scc0 L_pfgu_d")
        rows(nd // 2, nn // 2)
        A("L_pfgu_d:")
        assert d[0] <= 256
        A("s_mov_b64 exec, -1")
        A("s_mov_b64 s[72:73], s[58:59]"); A("s_mov_b64 s[74:75], s[58:59]")

    def prefetch_wq(self):
        A = self.A
        A(f"s_lshl_b32 s68, {sSIG}, 17"); A(f"s_lshl_b32 s69, {sGI}, 10"); A("s_add_u32 s68, s68, s69"); A(f"v_add_u32 {X(11)}, s68, {L16}")
        for k in range(16):
            A(f"global_load_dwordx4 a[{192+4*k}:{195+4*k}], {X(11)}, s[42:43]")
            if k != 15: A(f"v_add_u32 {X(11)}, 8192, {X(11)}")

    def kpos(self, p, win):
        A = self.A; o = self.o
        if not o.gupf:
            self.ktile(p, win); return
        l1 = A.label("KG"); l2 = A.label("KD")
        ob0 = self.ob
        A(f"s_cmp_eq_u32 {sADV}, 1"); A(f"s_cbranch_scc1 {l1}")
        self.ktile(p, win)
        ob1 = self.ob
        A(f"s_branch {l2}"); A(f"{l1}:")
        self.ob = ob0
        if p + o.gudelay <= 7: self.ktile(p + o.gudelay, win)
        A(f"{l2}:")
        self.ob = max(ob1, self.ob)

    def prefetch_weights(self):
        A = self.A
        f = {0: "", 1: "", 2: " nt"}[self.o.prefetch]
        u = "s78"
        A(f"s_lshl_b32 {u}, {sJ}, 2"); A(f"s_add_u32 {u}, {u}, {sWAVE}")
        d = [192]
        def ld(addr, base, off=0):
            A(f"global_load_dwordx4 a[{d[0]}:{d[0]+3}], {addr}, {base}" + (f" offset:{off}" if off else "") + f); d[0] += 4
        A(f"s_cmp_lt_u32 {u}, 112"); A("s_cbranch_scc0 L_pf1")
        A(f"s_lshl_b32 s68, {u}, 15"); A(f"s_lshl_b32 s69, {sGI}, 10"); A("s_add_u32 s68, s68, s69"); A(f"v_add_u32 {X(10)}, s68, {L16}")
        for k in range(4):
            ld(X(10), "s[42:43]")
            if k != 3: A(f"v_add_u32 {X(10)}, 8192, {X(10)}")
        A(f"v_lshrrev_b32 {X(11)}, 5, {LANE}"); A(f"v_mul_u32_u24 {X(11)}, 3584, {X(11)}"); A(f"v_and_b32 {X(12)}, 31, {LANE}"); A(f"v_lshl_add_u32 {X(11)}, {X(12)}, 4, {X(11)}")
        A(f"s_mul_i32 s68, {u}, {4*3584}"); A(f"s_mul_i32 s69, {sGI}, 448"); A("s_add_u32 s68, s68, s69"); A(f"v_add_u32 {X(11)}, s68, {X(11)}")
        A(f"v_add_u32 {X(12)}, 7168, {X(11)}")
        self.set_exec(0x0FFFFFFF, 0x0FFFFFFF)
        for base in ("s[48:49]", "s[50:51]"):
            ld(X(11), base); ld(X(12), base)
        A("s_mov_b64 exec, -1")
        A("L_pf1:")
        d[0] = 224
        A(f"s_mul_i32 s68, {sGI}, 458752"); A(f"s_mul_i32 s69, {u}, 3584"); A("s_add_u32 s68, s68, s69"); A(f"v_add_u32 {X(10)}, s68, {L16}")
        for k in range(3): ld(X(10), "s[44:45]", k * 1024)
        self.set_exec(0xFFFFFFFF, 0)
        ld(X(10), "s[44:45]", 3072)
        A("s_mov_b64 exec, -1")
        A(f"s_mul_i32 s68, {sGI}, 200704"); A(f"s_mul_i32 s69, {u}, 1568"); A("s_add_u32 s68, s68, s69"); A(f"v_add_u32 {X(10)}, s68, {L16}")
        ld(X(10), "s[52:53]")
        self.set_exec(0xFFFFFFFF, 0x3)
        ld(X(10), "s[52:53]", 1024)
        A("s_mov_b64 exec, -1")

    def tr_reads(self):
        A = self.A
        a = X(8); r, c, g4 = X(10), X(9), TMP
        A(f"v_and_b32 {c}, 15, {LANE}"); A(f"v_lshrrev_b32 {r}, 2, {c}"); A(f"v_and_b32 {c}, 3, {c}")
        A(f"v_lshrrev_b32 {a}, 4, {LANE}"); A(f"v_lshlrev_b32 {a}, 3, {a}"); A(f"v_add_u32 {a}, {a}, {r}")
        A(f"v_lshlrev_b32 {a}, 7, {a}")
        A(f"s_cmp_eq_u32 {sROLE}, {ROLE_WO}"); A("s_cbranch_scc1 L_tr_wo")
        A(f"s_cmp_eq_u32 {sROLE}, {ROLE_GU}"); A("s_cbranch_scc1 L_tr_gu")
        A(f"s_cmp_eq_u32 {sROLE}, {ROLE_DN}"); A("s_cbranch_scc1 L_tr_dn")
        A(f"v_lshl_add_u32 {a}, {c}, 3, {a}"); A(f"s_lshl_b32 s68, {sWAVE}, 5"); A(f"v_add_u32 {a}, s68, {a}")
        A("s_branch L_tr_n")
        A("L_tr_gu:")
        A(f"v_and_b32 {r}, 1, {c}"); A(f"v_lshl_add_u32 {a}, {r}, 3, {a}"); A(f"v_lshrrev_b32 {r}, 1, {c}"); A(f"v_lshl_add_u32 {a}, {r}, 6, {a}")
        A(f"s_lshl_b32 s68, {sWAVE}, 4"); A(f"v_add_u32 {a}, s68, {a}")
        A("L_tr_n:")
        for t in range(14):
            A(f"ds_read_b64_tr_b16 {WR(4*t,2)}, {a} offset:{t*4096}")
            A(f"ds_read_b64_tr_b16 {WR(4*t+2,2)}, {a} offset:{t*4096+512}")
            if t % 4 == 3: A("s_waitcnt lgkmcnt(0)")
        A("s_branch L_tr_d")
        A("L_tr_dn:")
        A(f"v_lshl_add_u32 {a}, {c}, 3, {a}"); A(f"s_and_b32 s68, {sWAVE}, 1"); A("s_lshl_b32 s68, s68, 6"); A(f"v_add_u32 {a}, s68, {a}")
        for t in range(7):
            for u in range(2):
                k = 4 * (2 * t + u)
                A(f"ds_read_b64_tr_b16 {WR(k,2)}, {a} offset:{t*4096+u*32}")
                A(f"ds_read_b64_tr_b16 {WR(k+2,2)}, {a} offset:{t*4096+u*32+512}")
            if t % 2 == 1: A("s_waitcnt lgkmcnt(0)")
        A("s_branch L_tr_d")
        A("L_tr_wo:")
        A(f"v_lshl_add_u32 {a}, {c}, 3, {a}"); A(f"v_add_u32 {a}, {sM0B}, {a}")
        for tt in range(4):
            for nt in range(4):
                k = 4 * (4 * tt + nt)
                A(f"ds_read_b64_tr_b16 {WR(k,2)}, {a} offset:{tt*4096+nt*32}")
                A(f"ds_read_b64_tr_b16 {WR(k+2,2)}, {a} offset:{tt*4096+nt*32+512}")
            A("s_waitcnt lgkmcnt(0)")
        A("L_tr_d:")
        A("s_waitcnt lgkmcnt(0)")
        A(f"s_add_u32 {sTAG}, {sTAG}, {hex(TAGC)}")
    def colsum(self):
        A = self.A
        for k in range(4): A(f"v_mov_b32 {X(4+k)}, 0x3f803f80")
        for t in range(14):
            A(f"v_mfma_f32_16x16x32_bf16 {XR(0,4)}, {XR(4,4)}, {WR(4*t,4)}, {'0' if t == 0 else XR(0,4)}")
        A(f"v_mov_b32 {CS}, {X(0)}")

    def ln_scalars(self, s1, s2, scale):
        ops = [f"v_mul_f32 {s1}, {f32(1/448)}, {s1}", f"v_mul_f32 {s2}, {f32(1/448)}, {s2}",
               f"v_fma_f32 {s2}, -{s1}, {s1}, {s2}", f"v_max_f32 {s2}, 0, {s2}", f"v_add_f32 {s2}, {f32(1e-5)}, {s2}", f"v_rsq_f32 {s2}, {s2}"]
        if scale != 1.0: ops.append(f"v_mul_f32 {s2}, {f32(scale)}, {s2}")
        return ops
    def ln_finish(self, mu, rs):
        A = self.A
        A(f"v_permlane16_swap_b32 {X(0)}, {X(1)}")
        A(f"v_fma_f32 {X(4)}, -{mu}, {CS}, {X(0)}")
        A(f"v_mul_f32 {X(4)}, {X(4)}, {rs}")

    def stage_ln(self, rx, rst, layer, scale, lab, sleep=0, pre=0):
        A = self.A
        LX = LDS_RED; LS = LDS_OP
        xa, sa = X(8), X(9)
        self.ln_addr(xa); A(f"v_add_u32 {xa}, {LX}, {xa}")
        A(f"v_bfe_u32 {sa}, {LANE}, 4, 1"); A(f"v_lshlrev_b32 {sa}, 8, {sa}"); A(f"v_lshrrev_b32 {TMP}, 5, {LANE}"); A(f"v_lshl_add_u32 {sa}, {TMP}, 7, {sa}")
        A(f"v_and_b32 {TMP}, 15, {LANE}"); A(f"v_lshl_add_u32 {sa}, {TMP}, 3, {sa}")
        A(f"s_cmp_eq_u32 {sWAVE}, 1"); A(f"s_cbranch_scc0 {lab}_b")
        self.gbase(SA, rx, layer); self.gbase(SB, rst, layer)
        sets = [(TR(60, 4), XR(16, 4), TR(58, 2), [T(60), T(61), T(62), T(63), X(16), X(17), X(18), X(19), T(58), T(59)]),
                (WR(56, 4), WR(60, 4), XR(14, 2), [W(56), W(57), W(58), W(59), W(60), W(61), W(62), W(63), X(14), X(15)])]
        NS = self.o.lnsets
        for k in range(NS):
            for r in sets[k][3][4:]: A(f"v_mov_b32 {r}, 0")
        A(f"v_add_u32 {X(10)}, {LX}, {L16}")
        A(f"v_add_u32 {X(12)}, {LS}, {sa}")
        for _ in range(pre // 120): A("s_sleep 120")
        if pre % 120: A(f"s_sleep {pre % 120}")
        def issue(k):
            A(f"global_load_dwordx4 {sets[k][0]}, {L16}, {SA} sc1")
            self.set_exec(0xFFFFFFFF, 0x0000FFFF)
            A(f"global_load_dwordx4 {sets[k][1]}, {L16}, {SA} offset:1024 sc1")
            self.set_exec(0xFFFFFFFF, 0x0FFF0FFF)
            A(f"global_load_dwordx2 {sets[k][2]}, {sa}, {SB} sc1")
            A("s_mov_b64 exec, -1")
        for k in range(NS - 1): issue(k)
        A(f"{lab}:")
        for k in range(NS):
            issue((k + NS - 1) % NS)
            A(f"s_waitcnt vmcnt({3*(NS-1)})")
            for s in self.maxops(X(13), sets[k][3]): A(s)
            A(f"v_cmp_eq_u32 vcc, -1, {X(13)}")
            A(f"s_cbranch_vccz {lab}_ok{k}")
        A(f"s_cmp_eq_u32 {sBUD}, 0"); A(f"s_cbranch_scc1 {lab}_ok0"); A(f"s_sub_u32 {sBUD}, {sBUD}, 1")
        if sleep: A(f"s_sleep {sleep}")
        A(f"s_branch {lab}")
        for k in reversed(range(NS)):
            A(f"{lab}_ok{k}:")
            A(f"ds_write_b128 {X(10)}, {sets[k][0]}")
            A(f"ds_write_b64 {X(12)}, {sets[k][2]}")
            self.set_exec(0xFFFFFFFF, 0x0000FFFF)
            A(f"ds_write_b128 {X(10)}, {sets[k][1]} offset:1024")
            A("s_mov_b64 exec, -1")
            if k != 0: A(f"s_branch {lab}_w")
        A(f"{lab}_w:")
        A("s_waitcnt lgkmcnt(0)")
        A(f"{lab}_b:")
        A("s_barrier")
        D = XR(0, 4); s1, s2, t1, t2 = X(5), X(6), X(10), X(11)
        A(f"v_add_u32 {sa}, {LS}, {sa}")
        A(f"ds_read_b64 {TR(56,2)}, {sa}")
        for t in range(14): A(f"ds_read_b128 {TR(4*t,4)}, {xa} offset:{t*64}")
        red = [f"v_add_f32_dpp {s1}, {T(56)}, {T(56)} row_ror:8 {DPP}", f"v_add_f32_dpp {s2}, {T(57)}, {T(57)} row_ror:8 {DPP}"]
        for sh in (4, 2, 1):
            red += [f"v_add_f32_dpp {s1}, {s1}, {s1} row_ror:{sh} {DPP}", f"v_add_f32_dpp {s2}, {s2}, {s2} row_ror:{sh} {DPP}"]
        red += [f"v_mov_b32 {t1}, {s1}", f"v_mov_b32 {t2}, {s2}", f"v_permlane32_swap_b32 {s1}, {t1}", f"v_permlane32_swap_b32 {s2}, {t2}",
                f"v_add_f32 {s1}, {s1}, {t1}", f"v_add_f32 {s2}, {s2}, {t2}"]
        red += self.ln_scalars(s1, s2, scale)
        for t in range(14):
            if t in (0, 4, 8): A(f"s_waitcnt lgkmcnt({max(13 - t - 3, 0)})")
            if t == 12: A("s_waitcnt lgkmcnt(0)")
            A(f"v_mfma_f32_16x16x32_bf16 {D}, {TR(4*t,4)}, {WR(4*t,4)}, {'0' if t == 0 else D}")
            n = 2 if t % 2 == 0 else 1
            while n and red: A(red.pop(0)); n -= 1
        for s in red: A(s)
        self.fst(4)
        self.ln_finish(s1, s2)

    def ld_setup(self):
        A = self.A
        vK, vV = X(18), X(19)
        A(f"v_and_b32 {X(8)}, 15, {LANE}"); A(f"v_lshrrev_b32 {X(9)}, 4, {LANE}")
        A(f"v_and_b32 {vK}, 3, {LANE}"); A(f"v_lshlrev_b32 {vK}, 4, {vK}"); A(f"v_lshl_add_u32 {vK}, {X(9)}, 6, {vK}")
        A(f"v_bfe_u32 {TMP}, {LANE}, 2, 2"); A(f"v_lshl_add_u32 {vK}, {TMP}, 11, {vK}")
        A(f"v_lshlrev_b32 {vV}, 11, {X(9)}"); A(f"v_lshl_add_u32 {vV}, {X(8)}, 4, {vV}")
    def throttle(self, win):
        st = self.o.wstep
        if self.ob + 1 > win:
            self.A(f"s_waitcnt vmcnt({win - st})"); self.ob = win - st
        self.ob += 1
    def ktile(self, tau, win):
        A = self.A; f = " nt" if self.o.nt else ""
        A(f"s_add_u32 s68, {sTILE}, {tau*262144}")
        for t in range(8):
            n = tau * 8 + t
            self.throttle(win)
            A(f"buffer_load_dwordx4 a[{4*n}:{4*n+3}], {X(19) if 'kv' in self.o.exp else X(18)}, s[8:11], s68 offen offset:{(t//2)*512 + (t%2)*256}{f}")
    def vtile(self, tau, win, va=None):
        A = self.A; f = " nt" if self.o.nt else ""
        va = va or X(19)
        A(f"s_add_u32 s68, {sTILE}, {tau*262144}")
        for t in range(8):
            n = tau * 8 + t
            imm = (t // 2) * 512 + (t % 2) * 256
            self.throttle(win)
            if n < 2 * NLDS:
                A(f"s_add_u32 m0, {sM0B}, {n*1024 - imm}")
                A(f"buffer_load_dwordx4 {va}, s[12:15], s68 offen offset:{imm}{f} lds")
            else:
                m = n - 2 * NLDS
                A(f"buffer_load_dwordx4 {VRR(4*m,4)}, {va}, s[12:15], s68 offen offset:{imm}{f}")
    def arrive(self):
        A = self.A
        A("s_getreg_b32 s68, hwreg(HW_REG_XCC_ID, 0, 4)"); A("s_and_b32 s68, s68, 7"); A("s_mul_i32 s68, s68, 6")
        A("s_lshl_b64 s[78:79], 1, s68"); A("s_or_b32 s79, s79, 0x01000000")
        A(f"v_mov_b32 {X(10)}, s78"); A(f"v_mov_b32 {X(11)}, s79")
        A(f"s_lshl_b32 s69, {sGI}, 5"); A(f"v_mov_b32 {X(9)}, s69")
        A("s_mov_b64 exec, 1")
        A(f"global_atomic_add_x2 {X(9)}, {XR(10,2)}, {sDBG} sc1")
        A("s_mov_b64 exec, -1")
    def early_q(self):
        A = self.A
        self.ln_addr(X(8)); A(f"v_add_u32 {X(8)}, {LDS_RED}, {X(8)}")
        for k in range(8): A(f"v_mov_b32 {T(56+k)}, 0")
        A(f"v_add_u32 {X(9)}, {LDS_RED}, {L16}")
        self.set_exec(0xFFFFFFFF, 0x00FFFFFF)
        A(f"ds_read_b128 {TR(56,4)}, {X(9)}"); A(f"ds_read_b128 {TR(60,4)}, {X(9)} offset:896")
        A("s_mov_b64 exec, -1")
        for t in range(12): A(f"ds_read_b128 {TR(4*t,4)}, {X(8)} offset:{t*64}")
        A("s_waitcnt lgkmcnt(8)")
        for t in range(12, 14): A(f"ds_read_b128 {TR(4*t,4)}, {X(8)} offset:{t*64}")
        self.colsum()
        A("s_waitcnt lgkmcnt(0)")
        s1a, s2a, s1b, s2b = X(12), X(13), X(14), X(15)
        for (base, s1, s2) in ((56, s1a, s2a), (60, s1b, s2b)):
            A(f"v_mov_b32 {s1}, 0"); A(f"v_mov_b32 {s2}, 0")
            for k in range(4):
                A(f"v_lshlrev_b32 {X(8)}, 16, {T(base+k)}"); A(f"v_and_b32 {X(9)}, 0xffff0000, {T(base+k)}")
                A(f"v_add_f32 {s1}, {s1}, {X(8)}"); A(f"v_fmac_f32 {s2}, {X(8)}, {X(8)}")
                A(f"v_add_f32 {s1}, {s1}, {X(9)}"); A(f"v_fmac_f32 {s2}, {X(9)}, {X(9)}")
        for sh in (8, 4, 2, 1):
            for r in (s1a, s2a, s1b, s2b): A(f"v_add_f32_dpp {r}, {r}, {r} row_ror:{sh} {DPP}")
        for swap in ("v_permlane16_swap_b32", "v_permlane32_swap_b32"):
            for r in (s1a, s2a, s1b, s2b):
                A(f"v_mov_b32 {X(8)}, {r}"); A(f"{swap} {r}, {X(8)}"); A(f"v_add_f32 {r}, {r}, {X(8)}")
        A(f"v_cndmask_b32 {s1a}, {s1a}, {s1b}, {sSEL}"); A(f"v_cndmask_b32 {s2a}, {s2a}, {s2b}, {sSEL}")
        for s in self.ln_scalars(s1a, s2a, QSCALE): A(s)
    def early_q2(self):
        A = self.A
        s1a, s2a = X(12), X(13)
        D = XR(0, 4)
        for t in range(14):
            A(f"v_mfma_f32_16x16x32_bf16 {D}, {TR(4*t,4)}, {WR(4*t,4)}, {'0' if t == 0 else D}")
        self.ln_finish(s1a, s2a)
        self.pack_pair(X(4), X(4), X(6))
        A(f"v_mov_b32 {X(5)}, {sTAG}")
        A(f"v_bfe_u32 {X(7)}, {LANE}, 4, 1"); A(f"v_lshlrev_b32 {X(7)}, 11, {X(7)}"); A(f"v_and_b32 {X(8)}, 15, {LANE}"); A(f"v_lshl_add_u32 {X(7)}, {X(8)}, 2, {X(7)}")
        A(f"s_lshl_b32 s68, {sSIG}, 6"); A(f"v_add_u32 {X(7)}, s68, {X(7)}")
        A(f"s_lshl_b32 s68, {sGI}, 12"); A(f"s_add_u32 s68, s68, {QTOFF}"); A(f"s_add_u32 s70, s20, s68"); A("s_addc_u32 s71, s21, 0")
        self.set_exec(0x55555555, 0)
        A(f"global_store_dwordx2 {X(7)}, {XR(4,2)}, {SA} sc1")
        A("s_mov_b64 exec, -1")

    def stream(self):
        A = self.A; win = self.o.win
        k0 = self.o.k0
        self.ob = 0
        self.kpos(k0, 64)
        A("s_waitcnt vmcnt(8) lgkmcnt(0)")
        self.stamp(1)
        A("s_barrier")
        A(f"s_cmp_eq_u32 {sWAVE}, 3"); A("s_cbranch_scc0 L_noarr")
        self.arrive()
        A("L_noarr:")
        self.ob = 0
        self.kpos(k0 + 1, 64)
        self.tr_reads()
        A("s_barrier")
        self.kpos(k0 + 2, 64)
        A(f"s_cmp_eq_u32 {sROLE}, {ROLE_GU}"); A("s_cbranch_scc0 L_nocs")
        self.colsum()
        A("L_nocs:")
        A(f"s_cmp_eq_u32 {sROLE}, {ROLE_WQ}"); A("s_cbranch_scc0 L_noeq")
        self.early_q()
        A("L_noeq:")
        nx = k0 + 3
        if self.o.esplit:
            self.kpos(nx, 64); nx += 1
        A(f"s_cmp_eq_u32 {sROLE}, {ROLE_WQ}"); A("s_cbranch_scc0 L_noeq2")
        self.early_q2()
        A("L_noeq2:")
        self.stamp(2)
        self.ob = 8 * (nx - k0) + 2
        tp = nx
        for tau in range(tp, 8): self.kpos(tau, win)
        A(f"s_lshl_b32 s68, {sGI}, 12"); A(f"s_add_u32 s68, s68, {QTOFF}"); A(f"s_add_u32 s70, s20, s68"); A("s_addc_u32 s71, s21, 0")
        A(f"s_lshl_b32 s68, {sB}, 11"); A(f"s_lshl_b32 s78, {sHL}, 10"); A("s_add_u32 s68, s68, s78"); A(f"v_add_u32 {X(14)}, s68, {L16}")
        A(f"global_load_dwordx4 {XR(10,4)}, {X(14)}, {SA} sc1")
        for tau in range(self.o.vdist): self.vtile(tau, 64)
        self.stamp(5)
        self.dstamp(4)

    def bar_check_finish(self):
        A = self.A
        A(f"s_cmp_eq_u32 {sLAYER}, 0"); A("s_cbranch_scc0 L_gb_done")
        A("s_mov_b64 exec, 0xff")
        A("L_gb:")
        A(f"v_lshrrev_b32 {TMP}, 24, {WBAR1}"); A(f"v_cmp_ne_u32 vcc, 32, {TMP}")
        A("s_cbranch_vccz L_gb_d")
        A(f"s_cmp_eq_u32 {sBUD}, 0"); A("s_cbranch_scc1 L_gb_d"); A(f"s_sub_u32 {sBUD}, {sBUD}, 1"); A("s_sleep 4")
        A(f"v_and_b32 {TMP}, 7, {LANE}"); A(f"v_lshlrev_b32 {TMP}, 5, {TMP}")
        A(f"global_load_dwordx2 {WBAR}, {TMP}, {sDBG} sc1"); A("s_waitcnt vmcnt(0)")
        A("s_branch L_gb")
        A("L_gb_d:")
        A("s_mov_b64 exec, -1")
        A("s_getreg_b32 s68, hwreg(HW_REG_XCC_ID, 0, 4)"); A("s_and_b32 s68, s68, 7"); A("s_mul_i32 s68, s68, 6")
        A("s_lshl_b64 s[78:79], 32, s68"); A("s_or_b32 s79, s79, 0x20000000")
        A(f"v_readlane_b32 s68, {WBAR0}, {sGI}"); A(f"v_readlane_b32 s69, {WBAR1}, {sGI}")
        A("s_cmp_eq_u64 s[68:69], s[78:79]"); A(f"s_cselect_b32 {sMODE}, 1, 0")
        if self.o.slow: A(f"s_mov_b32 {sMODE}, 0")
        A("L_gb_done:")

    def att_setup(self):
        A = self.A
        mk = [X(16 + k) for k in range(4)]
        A(f"v_and_b32 {TMP}, 1, {LANE}"); A(f"v_lshlrev_b32 {TMP}, 4, {TMP}"); A(f"v_mov_b32 {X(9)}, 0xffff"); A(f"v_lshlrev_b32 {X(9)}, {TMP}, {X(9)}")
        for k, pr in enumerate((sMA, "s[56:57]", "s[58:59]", "s[62:63]")):
            A(f"v_cndmask_b32 {mk[k]}, 0, {X(9)}, {pr}")
        A(f"v_lshrrev_b32 {X(8)}, 4, {LANE}"); A(f"v_lshlrev_b32 {X(8)}, 11, {X(8)}"); A(f"v_and_b32 {TMP}, 15, {LANE}"); A(f"v_lshl_add_u32 {X(8)}, {TMP}, 4, {X(8)}")
        for k in range(16): A(f"v_mov_b32 {T(16+k)}, 0")

    def get_q(self):
        A = self.A
        self.att_setup()
        qa = T(62)
        A(f"v_lshrrev_b32 {qa}, 4, {LANE}"); A(f"v_lshlrev_b32 {qa}, 6, {qa}"); A(f"v_and_b32 {TMP}, 3, {LANE}"); A(f"v_lshl_add_u32 {qa}, {TMP}, 4, {qa}")
        A(f"v_add_u32 {qa}, {LDS_QL}, {qa}")
        A(f"s_cmp_eq_u32 {sLAYER}, 0"); A("s_cbranch_scc0 L_q1")
        A(f"s_waitcnt vmcnt({8*self.o.vdist})")
        A("L_q0:")
        A(f"v_xor_b32 {X(15)}, {sTAG}, {X(11)}"); A(f"v_xor_b32 {X(9)}, {sTAG}, {X(13)}"); A(f"v_or_b32 {X(15)}, {X(15)}, {X(9)}")
        A(f"v_cmp_ne_u32 vcc, 0, {X(15)}")
        A("s_cbranch_vccz L_q0_d")
        A(f"s_cmp_eq_u32 {sBUD}, 0"); A("s_cbranch_scc1 L_q0_d"); A(f"s_sub_u32 {sBUD}, {sBUD}, 1")
        A(f"global_load_dwordx4 {XR(10,4)}, {X(14)}, {SA} sc1"); A("s_waitcnt vmcnt(0)")
        A("s_branch L_q0")
        A("L_q0_d:")
        A(f"v_mov_b32 {X(11)}, {X(12)}")
        A(f"v_lshlrev_b32 {X(9)}, 3, {LANE}"); A(f"v_add_u32 {X(9)}, {LDS_QL}, {X(9)}")
        A(f"ds_write_b64 {X(9)}, {XR(10,2)}")
        self.stamp(4)
        A("s_waitcnt lgkmcnt(0)")
        A("s_branch L_qlds")
        A("L_q1:")
        A(f"s_cmp_eq_u32 {sWAVE}, 0"); A("s_cbranch_scc0 L_q1b")
        self.gbase(SA, R_Q, 1)
        A(f"s_lshl_b32 s68, {sB}, 10"); A(f"s_lshl_b32 s78, {sHL}, 9"); A("s_add_u32 s68, s68, s78"); A(f"v_add_u32 {X(9)}, s68, {L16}")
        A(f"v_add_u32 {X(14)}, {LDS_QL}, {L16}")
        for _ in range(self.o.qpre // 120): A("s_sleep 120")
        if self.o.qpre % 120: A(f"s_sleep {self.o.qpre % 120}")
        self.set_exec(0xFFFFFFFF, 0)
        NS = self.o.qsets
        qs = [(TR(32, 4), [T(32), T(33), T(34), T(35)]), (TR(36, 4), [T(36), T(37), T(38), T(39)])]
        for k in range(NS - 1): A(f"global_load_dwordx4 {qs[k][0]}, {X(9)}, {SA} sc1")
        A("L_q1p:")
        for k in range(NS):
            A(f"global_load_dwordx4 {qs[(k + NS - 1) % NS][0]}, {X(9)}, {SA} sc1")
            A(f"s_waitcnt vmcnt({NS-1})")
            for s in self.maxops(X(15), qs[k][1]): A(s)
            A(f"v_cmp_eq_u32 vcc, -1, {X(15)}")
            A(f"s_cbranch_vccz L_q1_ok{k}")
        A(f"s_cmp_eq_u32 {sBUD}, 0"); A("s_cbranch_scc1 L_q1_ok0"); A(f"s_sub_u32 {sBUD}, {sBUD}, 1")
        if self.o.qsleep: A(f"s_sleep {self.o.qsleep}")
        A("s_branch L_q1p")
        for k in reversed(range(NS)):
            A(f"L_q1_ok{k}:")
            A(f"ds_write_b128 {X(14)}, {qs[k][0]}")
            if k != 0: A("s_branch L_q1_w")
        A("L_q1_w:")
        A("s_mov_b64 exec, -1")
        A("s_waitcnt lgkmcnt(0)")
        A("L_q1b:")
        A("s_barrier")
        A("L_qlds:")
        self.set_exec(0x00FF00FF, 0x00FF00FF)
        for t in range(2): A(f"ds_read_b128 {TR(16+4*t,4)}, {qa} offset:{t*256}")
        self.set_exec(0xFF00FF00, 0xFF00FF00)
        for t in range(2): A(f"ds_read_b128 {TR(24+4*t,4)}, {qa} offset:{t*256}")
        A("s_mov_b64 exec, -1")
        A(f"v_add_u32 {X(13)}, {sM0B}, {L16}")
        A(f"s_waitcnt vmcnt({8*self.o.vdist})")

    def attention(self):
        A = self.A
        mk = [X(16 + k) for k in range(4)]
        A("s_waitcnt lgkmcnt(0)")
        self.fst(0, "att")
        m, m2 = X(14), X(15)
        va = X(13)
        Dq = lambda P: 40 + 4 * (P % 4)
        M1, M2, M3 = "s[48:49]", "s[50:51]", "s[52:53]"
        S = lambda P: T(P)
        QL = [TR(16, 4), TR(20, 4)]; QH = [TR(24, 4), TR(28, 4)]
        def c1(P): return f"v_cndmask_b32 {S(P)}, {T(Dq(P))}, {T(Dq(P)+1)}, {M1}"
        def c2(P): return f"v_cndmask_b32 {S(P)}, {S(P)}, {T(Dq(P)+2)}, {M2}"
        def c3(P): return f"v_cndmask_b32 {S(P)}, {S(P)}, {T(Dq(P)+3)}, {M3}"
        def d1(P): return f"v_add_f32_dpp {S(P)}, {S(P)}, {S(P)} quad_perm:[1,0,3,2] {DPP}"
        def d2(P): return f"v_add_f32_dpp {S(P)}, {S(P)}, {S(P)} quad_perm:[2,3,0,1] {DPP}"
        ok = lambda P: 0 <= P < 16
        for P in range(16 + 4):
            D = TR(Dq(P), 4); G = 2 * P
            if ok(P): A(f"v_mfma_f32_16x16x32_bf16 {D}, a[{8*G}:{8*G+3}], {QL[0]}, 0")
            if ok(P - 2): A(c1(P - 2))
            if ok(P - 3): A(d1(P - 3))
            if ok(P): A(f"v_mfma_f32_16x16x32_bf16 {D}, a[{8*G+4}:{8*G+7}], {QL[1]}, {D}")
            if ok(P - 2): A(c2(P - 2))
            if ok(P): A(f"v_mfma_f32_16x16x32_bf16 {D}, a[{8*G+8}:{8*G+11}], {QH[0]}, {D}")
            if ok(P - 2): A(c3(P - 2))
            if ok(P - 3): A(d2(P - 3))
            if ok(P): A(f"v_mfma_f32_16x16x32_bf16 {D}, a[{8*G+12}:{8*G+15}], {QH[1]}, {D}")
            g4 = P - 4
            if ok(g4) and g4 % 2 == 1:
                if g4 == 1: A(f"v_max_f32 {m}, {S(0)}, {S(1)}")
                else: A(f"v_max3_f32 {m}, {m}, {S(g4-1)}, {S(g4)}")
        self.stamp(7)
        self.fst(1, "att")
        l = X(15)
        acc = [[XR(0, 4), XR(4, 4)], [TR(16, 4), TR(20, 4)]]
        Bs = [TR(32, 4), TR(36, 4)]; Bb = [32, 36]
        stg = [24, 40, 48, 56]
        VD = self.o.vdist
        vV = X(8)
        CHK_AT = 4 - VD if VD <= 4 else 0
        CHK_TILE = CHK_AT + VD
        def younger(tile, at_tile):
            last_issued = min(at_tile + VD, 7)
            n = 8 * (last_issued - tile)
            if tile <= CHK_TILE and at_tile >= CHK_AT: n += 1
            return n
        def tile_issue(tau):
            t2 = tau + VD
            if t2 > 7: return
            lab = A.label("VI")
            if tau == 0:
                l0 = A.label("VJ")
                A(f"s_cmp_eq_u32 {sLAYER}, 0"); A(f"s_cbranch_scc1 {l0}")
                A("s_waitcnt vmcnt(0)"); A(f"s_branch {lab}")
                A(f"{l0}:")
            else:
                A(f"s_cmp_eq_u32 {sLAYER}, 0"); A(f"s_cbranch_scc0 {lab}")
            self.ob = 0
            self.vtile(t2, 64, vV)
            if tau == CHK_AT:
                A(f"v_and_b32 {TMP}, 7, {LANE}"); A(f"v_lshlrev_b32 {TMP}, 5, {TMP}")
                A("s_mov_b64 exec, 0xff")
                A(f"global_load_dwordx2 {WBAR}, {TMP}, {sDBG} sc1")
                A("s_mov_b64 exec, -1")
            A(f"{lab}:")
        DIST = 3
        lds_fifo = []
        def lds_issue(q, at_tile):
            if q % 4 == 0: A(f"s_waitcnt vmcnt({younger(q // 4, at_tile)})")
            b = stg[q % 4]
            A(f"ds_read_b128 {TR(b,4)}, {va} offset:{q*2048}"); A(f"ds_read_b128 {TR(b+4,4)}, {va} offset:{q*2048+1024}")
            lds_fifo.append(q)
        def pre(P):
            s = S(P); bb = Bb[P % 2]; pk = X(12) if P % 2 == 0 else X(9)
            return [f"v_sub_f32 {s}, {s}, {m}", f"v_exp_f32 {s}, {s}"], [f"v_cvt_pk_bf16_f32 {pk}, {s}, {s}", (f"v_add_f32 {l}, {l}, {s}" if P else f"v_mov_b32 {l}, {s}")] + [f"v_and_b32 {T(bb+k)}, {mk[k]}, {pk}" for k in range(4)]
        A(f"v_max_f32_dpp {m}, {m}, {m} row_ror:8 {DPP}")
        tile_issue(0)
        A(f"v_mov_b32 {m2}, {m}")
        for q in range(DIST): lds_issue(q, 0)
        A(f"v_permlane16_swap_b32 {m}, {m2}"); A(f"v_max_f32 {m}, {m}, {m2}")
        A(f"v_mov_b32 {m2}, {m}"); A(f"v_permlane32_swap_b32 {m}, {m2}"); A(f"v_max_f32 {m}, {m}, {m2}")
        a, b_ = pre(0)
        for s in a + b_: A(s)
        a, _ = pre(1)
        for s in a: A(s)
        def src(q):
            if q < NLDS:
                b = stg[q % 4]; return TR(b, 4), TR(b + 4, 4)
            mm = (q - NLDS) * 8; return VRR(mm, 4), VRR(mm + 4, 4)
        def before_group(q):
            tau = q // 4
            if q % 4 == 0 and q > 0: tile_issue(tau)
            if q + DIST < NLDS: lds_issue(q + DIST, tau)
            if q < NLDS:
                after = len(lds_fifo) - 1 - lds_fifo.index(q)
                A(f"s_waitcnt lgkmcnt({2 * after})")
            else:
                if q >= 28: A(f"s_waitcnt vmcnt({(31 - q) * 2})")
                elif q == NLDS or q % 4 == 0: A(f"s_waitcnt vmcnt({younger(tau, tau)})")
            if q == 24:
                self.bar_check_finish()
                A(f"v_lshrrev_b32 {X(8)}, 4, {LANE}"); A(f"v_lshlrev_b32 {X(8)}, 7, {X(8)}"); A(f"v_and_b32 {TMP}, 15, {LANE}"); A(f"v_lshl_add_u32 {X(8)}, {TMP}, 4, {X(8)}")
                A(f"s_lshl_b32 s68, {sWAVE}, 10"); A(f"s_add_u32 s68, s68, {LDS_OP}"); A(f"v_add_u32 {X(8)}, s68, {X(8)}")
                A(f"s_lshl_b32 s68, {sWAVE}, 3"); A(f"s_add_u32 s68, s68, {LDS_MLP}"); A(f"v_mov_b32 {X(10)}, s68")
        for P in range(16):
            B = Bs[P % 2]
            nb = pre(P + 1)[1] if P + 1 < 16 else []
            na = pre(P + 2)[0] if P + 2 < 16 else []
            if 2 * P == 18 or (2 * P == NLDS + 1 - 2): pass
            if 2 * P >= NLDS and 2 * P - 2 < NLDS: self.fst(2, "att")
            qe, qo = 2 * P, 2 * P + 1
            before_group(qe)
            a0, a1 = src(qe)
            A(f"v_mfma_f32_16x16x32_bf16 {acc[0][0]}, {a0}, {B}, {acc[0][0] if P else '0'}")
            for s_ in nb[:2]: A(s_)
            A(f"v_mfma_f32_16x16x32_bf16 {acc[0][1]}, {a1}, {B}, {acc[0][1] if P else '0'}")
            for s_ in nb[2:4]: A(s_)
            before_group(qo)
            a0, a1 = src(qo)
            A(f"v_mfma_f32_16x16x32_bf16 {acc[1][0]}, {a0}, {B}, {acc[1][0] if P else '0'}")
            for s_ in nb[4:6]: A(s_)
            A(f"v_mfma_f32_16x16x32_bf16 {acc[1][1]}, {a1}, {B}, {acc[1][1] if P else '0'}")
            for s_ in na: A(s_)
        self.fst(3, "att")
        self.stamp(8)
        self.dstamp(5, layer=0); self.dstamp(7, layer=1)
        l2 = X(9)
        A(f"v_add_f32_dpp {l}, {l}, {l} row_ror:8 {DPP}")
        A(f"v_mov_b32 {l2}, {l}"); A(f"v_permlane16_swap_b32 {l}, {l2}"); A(f"v_add_f32 {l}, {l}, {l2}")
        A(f"v_mov_b32 {l2}, {l}"); A(f"v_permlane32_swap_b32 {l}, {l2}"); A(f"v_add_f32 {l}, {l}, {l2}")
        for k in range(8): A(f"v_add_f32_dpp {X(k)}, {T(16+k)}, {X(k)} row_ror:8 {DPP}")
        self.set_exec(0x00FF00FF, 0x00FF00FF)
        A(f"ds_write_b128 {X(8)}, {XR(0,4)}"); A(f"ds_write_b128 {X(8)}, {XR(4,4)} offset:512")
        A("s_mov_b64 exec, 1")
        A(f"ds_write_b64 {X(10)}, {XR(14,2)}")
        A("s_mov_b64 exec, -1")
        A("s_waitcnt lgkmcnt(0)")
        A("s_barrier")
        self.fst(4, "att")
        self.stamp(9)

    def combine_publish(self):
        A = self.A
        A(f"v_add_u32 {X(8)}, {LDS_OP}, {L16}")
        for w in range(4): A(f"ds_read_b128 {TR(4*w,4)}, {X(8)} offset:{w*1024}")
        A(f"v_mov_b32 {X(9)}, {LDS_MLP}")
        A(f"ds_read_b128 {TR(16,4)}, {X(9)}"); A(f"ds_read_b128 {TR(20,4)}, {X(9)} offset:16")
        self.gbase(SA, R_O); self.gbase(SB, R_ML)
        a = X(10)
        A(f"v_lshrrev_b32 {a}, 3, {LANE}"); A(f"v_lshlrev_b32 {a}, 10, {a}")
        A(f"v_bfe_u32 {X(11)}, {LANE}, 1, 2"); A(f"v_lshl_add_u32 {a}, {X(11)}, 8, {a}")
        A(f"v_and_b32 {X(11)}, 1, {LANE}"); A(f"v_lshl_add_u32 {a}, {X(11)}, 3, {a}")
        A(f"s_lshl_b32 s68, {sB}, 3"); A(f"s_add_u32 s68, s68, {sSP}"); A("s_lshl_b32 s68, s68, 4"); A(f"s_lshl_b32 s78, {sHL}, 13"); A("s_add_u32 s68, s68, s78")
        A(f"v_add_u32 {a}, s68, {a}")
        A(f"s_lshl_b32 s68, {sHL}, 7"); A(f"s_lshl_b32 s78, {sB}, 6"); A("s_add_u32 s68, s68, s78"); A(f"s_lshl_b32 s78, {sSP}, 3"); A("s_add_u32 s68, s68, s78")
        A(f"v_mov_b32 {X(11)}, s68")
        M = T(24); f = [T(25 + w) for w in range(4)]; Lr = T(29)
        ms = [T(16), T(18), T(20), T(22)]; ls = [T(17), T(19), T(21), T(23)]
        A("s_waitcnt lgkmcnt(0)")
        A(f"v_max3_f32 {M}, {ms[0]}, {ms[1]}, {ms[2]}"); A(f"v_max_f32 {M}, {M}, {ms[3]}")
        for w in range(4): A(f"v_sub_f32 {f[w]}, {ms[w]}, {M}")
        for w in range(4): A(f"v_exp_f32 {f[w]}, {f[w]}")
        for r in range(4): A(f"v_mul_f32 {T(32+r)}, {f[0]}, {T(r)}")
        for w in range(1, 4):
            for r in range(4): A(f"v_fmac_f32 {T(32+r)}, {f[w]}, {T(4*w+r)}")
        A(f"v_cvt_pk_bf16_f32 {T(36)}, {T(32)}, {T(33)}"); A(f"v_cvt_pk_bf16_f32 {T(37)}, {T(34)}, {T(35)}")
        self.pub(f"global_store_dwordx2 {a}, {TR(36,2)}, {SA}")
        A(f"v_mul_f32 {T(39)}, {f[0]}, {ls[0]}")
        for w in range(1, 4): A(f"v_fmac_f32 {T(39)}, {f[w]}, {ls[w]}")
        A(f"v_mov_b32 {T(38)}, {M}")
        A("s_mov_b64 exec, 1")
        self.pub(f"global_store_dwordx2 {X(11)}, {TR(38,2)}, {SB}")
        if self.o.b1gate:
            A(f"s_cmp_eq_u32 {sLAYER}, 0"); A("s_cbranch_scc0 L_nob1")
            A(f"s_lshl_b32 s68, {sGI}, 5"); A("s_add_u32 s68, s68, 8"); A(f"v_mov_b32 {X(12)}, s68"); A(f"v_mov_b32 {X(13)}, 1")
            A(f"global_atomic_add {X(12)}, {X(13)}, {sDBG} sc1")
            A("L_nob1:")
        A("s_mov_b64 exec, -1")

    def stage_wo(self):
        A = self.A
        self.gbase(SA, R_O); self.gbase(SC_, R_ML)
        A(f"s_lshl_b32 s68, {sWAVE}, 12"); A("s_add_u32 s70, s70, s68"); A("s_addc_u32 s71, s71, 0")
        a = X(16)
        A(f"v_lshrrev_b32 {a}, 5, {LANE}"); A(f"v_lshlrev_b32 {a}, 6, {a}")
        A(f"v_bfe_u32 {TMP}, {LANE}, 4, 1"); A(f"v_lshl_add_u32 {a}, {TMP}, 5, {a}")
        A(f"v_and_b32 {TMP}, 3, {LANE}"); A(f"v_lshl_add_u32 {a}, {TMP}, 3, {a}")
        A(f"s_lshr_b32 s68, {sWAVE}, 1"); A("s_lshl_b32 s68, s68, 7"); A(f"v_add_u32 {a}, s68, {a}")
        wa, ra = X(17), X(18)
        A(f"v_bfe_u32 {wa}, {LANE}, 4, 1"); A(f"v_lshlrev_b32 {wa}, 7, {wa}"); A(f"v_lshrrev_b32 {TMP}, 5, {LANE}"); A(f"v_lshl_add_u32 {wa}, {TMP}, 6, {wa}")
        A(f"v_and_b32 {TMP}, 15, {LANE}"); A(f"v_lshl_add_u32 {wa}, {TMP}, 2, {wa}")
        A(f"s_lshl_b32 s68, {sWAVE}, 9"); A(f"s_add_u32 s68, s68, {LDS_RED}"); A(f"v_add_u32 {wa}, s68, {wa}")
        A(f"v_lshrrev_b32 {ra}, 5, {LANE}"); A(f"v_lshlrev_b32 {ra}, 7, {ra}"); A(f"v_and_b32 {TMP}, 31, {LANE}"); A(f"v_lshl_add_u32 {ra}, {TMP}, 2, {ra}")
        A(f"s_and_b32 s68, {sWAVE}, 1"); A("s_lshl_b32 s68, s68, 8"); A(f"s_add_u32 s68, s68, {LDS_RED}"); A(f"v_add_u32 {ra}, s68, {ra}")
        A(f"s_cmp_ge_u32 {sWAVE}, 2"); A("s_cbranch_scc0 L_wo_nors")
        self.gbase(SD, R_X2, 0)
        A(f"s_cmp_eq_u32 {sLAYER}, 0"); A("s_cselect_b32 s64, s4, s64"); A("s_cselect_b32 s65, s5, s65")
        self.rs_setup()
        A(f"v_mov_b32 {X(13)}, {CS}")
        A(f"s_cmp_eq_u32 {sLAYER}, 0"); A("s_cbranch_scc1 L_wo_nors")
        A(f"global_load_ushort {X(13)}, {X(10)}, {SD} sc1")
        A("L_wo_nors:")
        self.cbase(SB, 0, consumer=False)
        self.p_store_addr(X(9))
        mv, lv = T(16), T(17)
        D = [TR(20 + 4 * nt, 4) for nt in range(4)]
        chk, M, t1, e, w = T(36), T(37), T(38), T(39), T(40)
        A(f"v_mov_b32 {chk}, 0")
        self.fst(0, "wo")
        if self.o.fine == "wo": A("s_mov_b32 s99, 0")
        if self.o.gate:
            self.set_exec(0x000F000F, 0x000F000F)
            A("L_wog:")
            A(f"global_load_dwordx2 {TR(16,2)}, {a}, {SC_} sc1"); A("s_waitcnt vmcnt(0)")
            A(f"v_max_u32 {chk}, {mv}, {lv}")
            self.poll_tail(chk, "L_wog", "L_wog_d", sleep=self.o.gatesleep)
            A("L_wog_d:")
        if self.o.wopre:
            A(f"s_cmp_eq_u32 {sWAVE}, 0"); A("s_cbranch_scc1 L_wo"); A(f"s_sleep {self.o.wopre}")
        A("L_wo:")
        if self.o.fine == "wo": A("s_add_u32 s99, s99, 1")
        self.fst(1, "wo")
        self.set_exec(0x000F000F, 0x000F000F)
        A(f"global_load_dwordx2 {TR(16,2)}, {a}, {SC_} sc1")
        A("s_mov_b64 exec, -1")
        for tt in range(4):
            A(f"global_load_dwordx4 {TR(4*tt,4)}, {L16}, {SA} offset:{tt*1024} sc1")
        A("s_waitcnt vmcnt(4)")
        self.set_exec(0x000F000F, 0x000F000F)
        A(f"v_max_u32 {chk}, {mv}, {lv}")
        A("s_mov_b64 exec, -1")
        A("s_waitcnt vmcnt(0)")
        self.fst(2, "wo")
        for s in self.maxops(t1, self.chk_regs(T, 0, 4) + [chk]): A(s)
        self.poll_tail(t1, "L_wo", "L_wo_d")
        A("L_wo_d:")
        ops = [f"v_mov_b32_dpp {t1}, {mv} quad_perm:[1,0,3,2] {DPP}", f"v_max_f32 {M}, {mv}, {t1}",
               f"v_mov_b32_dpp {t1}, {M} quad_perm:[2,3,0,1] {DPP}", f"v_max_f32 {M}, {M}, {t1}",
               f"v_mov_b32 {t1}, {M}", f"v_permlane16_swap_b32 {M}, {t1}", f"v_max_f32 {M}, {M}, {t1}",
               f"v_sub_f32 {e}, {mv}, {M}", f"v_exp_f32 {e}, {e}", f"v_mul_f32 {M}, {e}, {lv}",
               f"v_mov_b32_dpp {t1}, {M} quad_perm:[1,0,3,2] {DPP}", f"v_add_f32 {M}, {M}, {t1}",
               f"v_mov_b32_dpp {t1}, {M} quad_perm:[2,3,0,1] {DPP}", f"v_add_f32 {M}, {M}, {t1}",
               f"v_mov_b32 {t1}, {M}", f"v_permlane16_swap_b32 {M}, {t1}", f"v_add_f32 {M}, {M}, {t1}",
               f"v_rcp_f32 {M}, {M}", f"v_mul_f32 {w}, {e}, {M}"]
        for tt in range(4):
            for nt in range(4):
                A(f"v_mfma_f32_16x16x32_bf16 {D[nt]}, {TR(4*tt,4)}, {WR(4*(4*tt+nt),4)}, {'0' if tt == 0 else D[nt]}")
                if ops: A(ops.pop(0))
        for s in ops: A(s)
        acc = [T(41 + nt) for nt in range(4)]
        for r in range(4):
            for nt in range(4):
                op = "v_mul_f32_dpp" if r == 0 else "v_fmac_f32_dpp"
                A(f"{op} {acc[nt]}, {w}, {T(20+4*nt+r)} row_newbcast:{r} {DPP}")
        A(f"v_permlane16_swap_b32 {acc[0]}, {acc[1]}"); A(f"v_permlane16_swap_b32 {acc[2]}, {acc[3]}")
        A(f"v_add_f32 {acc[0]}, {acc[0]}, {acc[1]}"); A(f"v_add_f32 {acc[2]}, {acc[2]}, {acc[3]}")
        self.fst(3, "wo")
        A(f"ds_write_b32 {wa}, {acc[0]}"); A(f"ds_write_b32 {wa}, {acc[2]} offset:256")
        A("s_waitcnt lgkmcnt(0)")
        A("s_barrier")
        self.fst(4, "wo")
        A(f"s_cmp_ge_u32 {sWAVE}, 2"); A("s_cbranch_scc1 L_wo_rs")
        for ww in range(4): A(f"ds_read_b32 {T(ww)}, {ra} offset:{ww*512}")
        A("s_waitcnt lgkmcnt(2)")
        A(f"v_add_f32 {T(0)}, {T(0)}, {T(1)}")
        A("s_waitcnt lgkmcnt(0)")
        A(f"v_add_f32 {T(2)}, {T(2)}, {T(3)}"); A(f"v_add_f32 {T(0)}, {T(0)}, {T(2)}")
        self.p_publish(SB, X(9), T(0), 4)
        self.fst(5, "wo")
        self.stamp(11)
        A("s_branch L_next")
        A("L_wo_rs:")

    def p_addr(self, dst):
        A = self.A; sh = 10 if self.o.playout == 0 else 13
        A(f"v_lshrrev_b32 {dst}, 5, {LANE}"); A(f"v_lshlrev_b32 {dst}, {sh}, {dst}"); A(f"v_and_b32 {TMP}, 31, {LANE}"); A(f"v_lshl_add_u32 {dst}, {TMP}, 2, {dst}")
        A(f"s_and_b32 s68, {sWAVE}, 1"); A(f"s_lshl_b32 s68, s68, {sh+1}"); A(f"v_add_u32 {dst}, s68, {dst}")

    def rs_setup(self):
        A = self.A
        pa, xa, sa = X(8), X(10), X(11)
        A(f"v_lshrrev_b32 {X(12)}, 5, {LANE}"); A(f"s_and_b32 s68, {sWAVE}, 1"); A("s_lshl_b32 s68, s68, 1"); A(f"s_add_u32 s68, s68, {sS4}"); A(f"v_add_u32 {X(12)}, s68, {X(12)}")
        self.p_addr(pa)
        A(f"v_bfe_u32 {TMP}, {LANE}, 4, 1"); A(f"v_mul_u32_u24 {xa}, 896, {TMP}"); A(f"v_lshlrev_b32 {sa}, 8, {TMP}")
        A(f"v_lshl_add_u32 {xa}, {X(12)}, 5, {xa}"); A(f"v_lshl_add_u32 {sa}, {X(12)}, 3, {sa}")
        A(f"v_and_b32 {TMP}, 15, {LANE}"); A(f"v_lshl_add_u32 {xa}, {TMP}, 1, {xa}")
    def stage_rs(self):
        A = self.A
        pa, xa, sa = X(8), X(10), X(11)
        NS = self.o.rsets
        def issue(k):
            for g in range(8): A(f"global_load_dword {T(8*k+g)}, {pa}, {SA} offset:{self.p_poll_off(g)} sc1")
        for k in range(NS - 1): issue(k)
        A("L_rs:")
        for k in range(NS):
            issue((k + NS - 1) % NS)
            A(f"s_waitcnt vmcnt({8*(NS-1)})")
            for s in self.maxops(X(4), [T(8*k+g) for g in range(8)]): A(s)
            A(f"v_cmp_eq_u32 vcc, -1, {X(4)}")
            A(f"s_cbranch_vccz L_rs_ok{k}")
        A(f"s_cmp_eq_u32 {sBUD}, 0"); A("s_cbranch_scc1 L_rs_ok0"); A(f"s_sub_u32 {sBUD}, {sBUD}, 1")
        if self.o.rssleep: A(f"s_sleep {self.o.rssleep}")
        A("s_branch L_rs")
        for k in range(NS):
            A(f"L_rs_ok{k}:")
            b_ = 8 * k
            A(f"v_add_f32 {X(0)}, {T(b_)}, {T(b_+1)}"); A(f"v_add_f32 {X(1)}, {T(b_+2)}, {T(b_+3)}"); A(f"v_add_f32 {X(2)}, {T(b_+4)}, {T(b_+5)}"); A(f"v_add_f32 {X(3)}, {T(b_+6)}, {T(b_+7)}")
            if k != NS - 1: A("s_branch L_rs_d")
        A("L_rs_d:")
        A(f"v_cmp_eq_u32 vcc, 0xffff, {X(13)}")
        A("s_cbranch_vccz L_rsr_d")
        A("L_rsr:")
        A(f"global_load_ushort {X(13)}, {xa}, {SD} sc1"); A("s_waitcnt vmcnt(0)")
        A(f"v_cmp_eq_u32 vcc, 0xffff, {X(13)}")
        A("s_cbranch_vccz L_rsr_d")
        A(f"s_cmp_eq_u32 {sBUD}, 0"); A("s_cbranch_scc1 L_rsr_d"); A(f"s_sub_u32 {sBUD}, {sBUD}, 1")
        A("s_branch L_rsr")
        A("L_rsr_d:")
        A(f"v_add_f32 {X(0)}, {X(0)}, {X(1)}"); A(f"v_add_f32 {X(2)}, {X(2)}, {X(3)}"); A(f"v_lshlrev_b32 {X(6)}, 16, {X(13)}"); A(f"v_add_f32 {X(0)}, {X(0)}, {X(2)}")
        if self.o.round2:
            A(f"v_cvt_pk_bf16_f32 {X(0)}, {X(0)}, {X(0)}"); A(f"v_and_b32 {X(0)}, 0xffff0000, {X(0)}")
        A(f"v_add_f32 {X(0)}, {X(6)}, {X(0)}")
        if self.o.perturb:
            lab = A.label("PT")
            A("s_cmp_eq_u32 s78, 1"); A(f"s_cbranch_scc0 {lab}"); A(f"s_cmp_eq_u32 {sSIG}, 2"); A(f"s_cbranch_scc0 {lab}")
            A("s_mov_b64 exec, 1"); A(f"v_add_f32 {X(0)}, {f32(self.o.perturb)}, {X(0)}"); A("s_mov_b64 exec, -1")
            A(f"{lab}:")
        A(f"v_mov_b32_dpp {X(2)}, {X(0)} quad_perm:[1,0,3,2] {DPP}")
        A(f"v_cvt_pk_bf16_f32 {X(3)}, {X(0)}, {X(0)}")
        A(f"v_cvt_pk_bf16_f32 {X(1)}, {X(0)}, {X(2)}")
        A("s_cmp_eq_u32 s78, 1"); A("s_cbranch_scc1 L_final")
        self.set_exec(0x55555555, 0x55555555)
        self.pub(f"global_store_dword {xa}, {X(1)}, {SB}")
        A("s_mov_b64 exec, -1")
        A(f"v_and_b32 {X(2)}, 0xffff0000, {X(3)}")
        A(f"v_mul_f32 {X(3)}, {X(2)}, {X(2)}")
        for sh in (1, 2, 4, 8):
            for r in (X(2), X(3)): A(f"v_add_f32_dpp {r}, {r}, {r} row_shr:{sh} {DPP}")
        self.set_exec(0x80008000, 0x80008000)
        self.pub(f"global_store_dwordx2 {sa}, {XR(2,2)}, {SC_}")
        A("s_mov_b64 exec, -1")
        self.stamp(12)
        A("s_waitcnt vmcnt(0)")

    def stage_gu(self):
        A = self.A
        self.gbase(SC_, R_H)
        A(f"v_bfe_u32 {X(7)}, {LANE}, 4, 1"); A(f"v_mul_u32_u24 {X(7)}, 448, {X(7)}"); A(f"v_and_b32 {TMP}, 15, {LANE}"); A(f"v_lshl_add_u32 {X(7)}, {TMP}, 1, {X(7)}")
        A(f"s_lshl_b32 s68, {sSIG}, 4"); A(f"v_add_u32 {X(7)}, s68, {X(7)}")
        self.stage_ln(R_X1, R_ST1, None, 1.0, "L_gu", sleep=self.o.lnsleep, pre=self.o.gupre)
        z = X(4)
        A(f"v_cvt_pk_bf16_f32 {z}, {z}, {z}"); A(f"v_and_b32 {z}, 0xffff0000, {z}")
        A(f"v_mov_b32_dpp {X(5)}, {z} row_ror:8 {DPP}")
        A(f"v_max_f32 {z}, 0, {z}"); A(f"v_mul_f32 {z}, {z}, {X(5)}")
        self.pack_pair(X(5), z, X(6))
        self.set_exec(0x00550055, 0)
        self.pub(f"global_store_dword {X(7)}, {X(5)}, {SC_}")
        A("s_mov_b64 exec, -1")
        self.fst(5)
        self.stamp(13)
        A("s_waitcnt vmcnt(0)")

    def dn_fetch(self):
        A = self.A
        A(f"s_cmp_eq_u32 {sWAVE}, 1"); A("s_cbranch_scc0 L_dn_b")
        self.gbase(SA, R_H)
        A(f"v_add_u32 {X(10)}, {LDS_RED}, {L16}")
        if self.o.dnpre: A(f"s_sleep {self.o.dnpre}")
        self.set_exec(0xFFFFFFFF, 0x00FFFFFF)
        NS = self.o.lnsets
        base = [56, 60]
        for k in range(NS - 1): A(f"global_load_dwordx4 {TR(base[k],4)}, {L16}, {SA} sc1")
        A("L_dn:")
        for k in range(NS):
            A(f"global_load_dwordx4 {TR(base[(k + NS - 1) % NS],4)}, {L16}, {SA} sc1")
            A(f"s_waitcnt vmcnt({NS-1})")
            for s in self.maxops(X(11), [T(base[k] + i) for i in range(4)]): A(s)
            A(f"v_cmp_eq_u32 vcc, -1, {X(11)}")
            A(f"s_cbranch_vccz L_dn_ok{k}")
        A(f"s_cmp_eq_u32 {sBUD}, 0"); A("s_cbranch_scc1 L_dn_ok0"); A(f"s_sub_u32 {sBUD}, {sBUD}, 1")
        A("s_branch L_dn")
        for k in reversed(range(NS)):
            A(f"L_dn_ok{k}:")
            A(f"ds_write_b128 {X(10)}, {TR(base[k],4)}")
            if k != 0: A("s_branch L_dn_w")
        A("L_dn_w:")
        A("s_mov_b64 exec, -1")
        A("s_waitcnt lgkmcnt(0)")
        A("L_dn_b:")
        A("s_barrier")
    def stage_dn(self):
        A = self.A
        a = X(8)
        A(f"v_and_b32 {a}, 1, {LANE}"); A(f"v_mul_u32_u24 {a}, 448, {a}"); A(f"v_lshrrev_b32 {TMP}, 4, {LANE}"); A(f"v_lshl_add_u32 {a}, {TMP}, 4, {a}")
        A(f"v_add_u32 {a}, {LDS_RED}, {a}")
        self.cbase(SB, 1, consumer=False)
        self.p_store_addr(X(9))
        self.dn_fetch()
        A(f"s_cmp_ge_u32 {sWAVE}, 2"); A("s_cbranch_scc0 L_dn_nors")
        self.gbase(SD, R_X1)
        self.rs_setup()
        A(f"global_load_ushort {X(13)}, {X(10)}, {SD} sc1")
        A("s_branch L_dn_rs")
        A("L_dn_nors:")
        D = [XR(0, 4), XR(4, 4)]
        for t in range(7): A(f"ds_read_b128 {TR(4*t,4)}, {a} offset:{t*64}")
        for t in range(7):
            if t in (0, 3, 5): A(f"s_waitcnt lgkmcnt({ {0: 4, 3: 2, 5: 0}[t] })")
            for u in range(2):
                A(f"v_mfma_f32_16x16x32_bf16 {D[u]}, {TR(4*t,4)}, {WR(4*(2*t+u),4)}, {'0' if t == 0 else D[u]}")
        A(f"v_permlane16_swap_b32 {X(0)}, {X(1)}"); A(f"v_permlane16_swap_b32 {X(4)}, {X(5)}")
        A(f"v_permlane32_swap_b32 {X(0)}, {X(4)}")
        A(f"s_cmp_eq_u32 {sLAYER}, 1"); A("s_cbranch_scc1 L_dn_last")
        self.p_publish(SB, X(9), X(0), 0)
        A("s_branch L_dn_pd")
        A("L_dn_last:")
        A(f"global_store_dword {X(9)}, {X(0)}, {SB} sc1")
        A("L_dn_pd:")
        self.stamp(14)
        A("s_waitcnt vmcnt(0)")

    def stage_q2(self):
        A = self.A
        self.gbase(SC_, R_Q, 1)
        A(f"v_bfe_u32 {X(7)}, {LANE}, 4, 1"); A(f"v_lshlrev_b32 {X(7)}, 10, {X(7)}"); A(f"v_and_b32 {TMP}, 15, {LANE}"); A(f"v_lshl_add_u32 {X(7)}, {TMP}, 1, {X(7)}")
        A(f"s_lshl_b32 s68, {sSIG}, 5"); A(f"v_add_u32 {X(7)}, s68, {X(7)}")
        self.stage_ln(R_X2, R_ST2, 0, QSCALE, "L_qx", sleep=self.o.lnsleep, pre=self.o.wqpre)
        self.pack_pair(X(5), X(4), X(6))
        self.set_exec(0x55555555, 0)
        self.pub(f"global_store_dword {X(7)}, {X(5)}, {SC_}")
        A("s_mov_b64 exec, -1")
        self.stamp(15)
        A("s_waitcnt vmcnt(0)")

    def finish(self):
        A = self.A
        if not self.o.prof: return
        A("s_lshl_b32 s68, s2, 2"); A(f"s_add_u32 s68, s68, {sWAVE}"); A("s_lshl_b32 s68, s68, 7"); A(f"v_mov_b32 {X(0)}, s68")
        A("s_mov_b64 exec, 1")
        for k in range(20):
            A(f"v_mov_b32 {X(1)}, s{80+k}"); A(f"global_store_dword {X(0)}, {X(1)}, {sWS} offset:{4*k}")
        for k in range(9):
            A(f"v_mov_b32 {X(1)}, s{36+k}"); A(f"global_store_dword {X(0)}, {X(1)}, {sWS} offset:{80+4*k}")
        A(f"v_mov_b32 {X(1)}, {sMODE}"); A(f"global_store_dword {X(0)}, {X(1)}, {sWS} offset:116")
        A(f"v_mov_b32 {X(1)}, {sBUD}"); A(f"global_store_dword {X(0)}, {X(1)}, {sWS} offset:120")

    def build(self):
        A = self.A; o = self.o
        self.prologue()
        if o.prof:
            for k in range(9): A(f"s_mov_b32 s{36+k}, 0")
        self.stream()
        A("L_layer:")
        self.get_q()
        self.stamp(6)
        self.attention()
        A(f"s_cmp_eq_u32 {sWAVE}, 0"); A("s_cbranch_scc0 L_nocomb")
        self.combine_publish()
        self.stamp(10)
        A("L_nocomb:")
        A(f"s_cmp_eq_u32 {sROLE}, {ROLE_GU}"); A("s_cbranch_scc1 L_gu_s")
        A(f"s_cmp_eq_u32 {sROLE}, {ROLE_DN}"); A("s_cbranch_scc1 L_dn_s")
        A(f"s_cmp_eq_u32 {sROLE}, {ROLE_WQ}"); A("s_cbranch_scc1 L_wq_s")
        A(f"s_cmp_eq_u32 {sROLE}, {ROLE_WO}"); A("s_cbranch_scc0 L_next")
        self.stage_wo()
        self.cbase(SA, 0); self.gbase(SB, R_X1); self.gbase(SC_, R_ST1); A("s_mov_b32 s78, 0")
        if o.b1gate:
            A(f"s_cmp_eq_u32 {sLAYER}, 0"); A("s_cbranch_scc0 L_rs1pre")
            A(f"v_and_b32 {X(14)}, 7, {LANE}"); A(f"v_lshlrev_b32 {X(14)}, 5, {X(14)}"); A(f"v_add_u32 {X(14)}, 8, {X(14)}")
            A("s_mov_b64 exec, 0xff")
            A(f"global_load_dword {X(15)}, {X(14)}, {sDBG} sc1"); A("s_waitcnt vmcnt(0)")
            A(f"v_cmp_ne_u32 vcc, 32, {X(15)}")
            A("s_cbranch_vccz L_b1_first")
            A("L_b1:")
            A(f"s_cmp_eq_u32 {sBUD}, 0"); A("s_cbranch_scc1 L_b1_d"); A(f"s_sub_u32 {sBUD}, {sBUD}, 1")
            if o.b1sleep: A(f"s_sleep {o.b1sleep}")
            A(f"global_load_dword {X(15)}, {X(14)}, {sDBG} sc1"); A("s_waitcnt vmcnt(0)")
            A(f"v_cmp_ne_u32 vcc, 32, {X(15)}")
            A("s_cbranch_vccnz L_b1")
            A("L_b1_d:")
            A(f"s_sleep {o.b1post}")
            A("L_b1_first:")
            A("s_mov_b64 exec, -1")
            A("s_branch L_rs_entry")
            A("L_rs1pre:")
        if o.rspre1: A(f"s_sleep {o.rspre1}")
        A("L_rs_entry:")
        self.stage_rs()
        self.dstamp(6, layer=0)
        A("s_branch L_next")
        A("L_gu_s:")
        self.stage_gu()
        A("s_branch L_next")
        A("L_dn_s:")
        self.stage_dn()
        A("s_branch L_next")
        A("L_dn_rs:")
        A(f"s_lshl_b32 s68, {sLAYER}, 3"); A(f"s_and_b32 s68, s68, 8"); A(f"s_mul_i32 s68, s68, {sGI}"); A("s_cmp_lg_u32 s68, 0"); A("s_cbranch_scc1 L_fin_w")
        self.cbase(SA, 1); self.gbase(SB, R_X2); self.gbase(SC_, R_ST2); A(f"s_mov_b32 s78, {sLAYER}")
        A(f"s_cmp_eq_u32 {sLAYER}, 1"); A("s_cbranch_scc1 L_rs2b")
        if o.rspre2: A(f"s_sleep {o.rspre2}")
        A("s_branch L_rs_entry")
        A("L_rs2b:")
        if o.rspre3: A(f"s_sleep {o.rspre3}")
        A("s_branch L_rs_entry")
        A("L_wq_s:")
        A(f"s_cmp_eq_u32 {sLAYER}, 1"); A("s_cbranch_scc1 L_fin")
        self.stage_q2()
        A("L_next:")
        A(f"s_cmp_eq_u32 {sLAYER}, 1"); A("s_cbranch_scc1 L_fin")
        A(f"s_mov_b32 {sLAYER}, 1")
        A("s_branch L_layer")
        A("L_final:")
        A(f"s_cmp_eq_u32 {sGI}, 0"); A("s_cbranch_scc0 L_fin")
        self.set_exec(0x55555555, 0x55555555)
        A(f"global_store_dword {X(10)}, {X(1)}, {sOUT}")
        A(f"s_cmp_eq_u32 {sSIG}, 2"); A("s_cbranch_scc0 L_noep")
        A("s_mov_b64 exec, 1")
        A(f"v_mov_b32 {X(2)}, {EOFF}"); A(f"v_mov_b32 {X(3)}, {sTAG}")
        A(f"global_store_dword {X(2)}, {X(3)}, {sWS}")
        A("L_noep:")
        A("s_mov_b64 exec, -1")
        A("L_fin_w:")
        A("L_fin:")
        self.dstamp(10)
        self.stamp(16)
        self.finish()
        A("L_end:")
        A("s_endpgm")
        for t in self.tail_code: A(t)
        lines, n = hazard.fix(A.L, verbose=o.verbose)
        A.L = lines
        return A

def main():
    ap = argparse.ArgumentParser()
    ap.add_argument("-o", default="k3.s")
    ap.add_argument("--prof", action="store_true")
    ap.add_argument("--slow", action="store_true")
    ap.add_argument("--nt", type=int, default=1)
    ap.add_argument("--wnt", type=int, default=1)
    ap.add_argument("--win", type=int, default=12)
    ap.add_argument("--winv", type=int, default=60)
    ap.add_argument("--budget", type=int, default=200000)
    ap.add_argument("--gate", type=int, default=0)
    ap.add_argument("--gatesleep", type=int, default=1)
    ap.add_argument("--qsleep", type=int, default=1)
    ap.add_argument("--trypoll", type=int, default=6)
    ap.add_argument("--k0", type=int, default=1)
    ap.add_argument("--prefetch", type=int, default=0)
    ap.add_argument("--rsets", type=int, default=1)
    ap.add_argument("--lnsleep", type=int, default=0)
    ap.add_argument("--playout", type=int, default=0)
    ap.add_argument("--ncopies", type=int, default=8)
    ap.add_argument("--rspre1", type=int, default=10)
    ap.add_argument("--rspre2", type=int, default=12)
    ap.add_argument("--rssleep", type=int, default=0)
    ap.add_argument("--rspre3", type=int, default=11)
    ap.add_argument("--wopre", type=int, default=0)
    ap.add_argument("--gupre", type=int, default=0)
    ap.add_argument("--wqpre", type=int, default=0)
    ap.add_argument("--dnpre", type=int, default=0)
    ap.add_argument("--qpre", type=int, default=0)
    ap.add_argument("--lnsets", type=int, default=2)
    ap.add_argument("--gupf", type=int, default=1)
    ap.add_argument("--gudelay", type=int, default=3)
    ap.add_argument("--wqpf", type=int, default=0)
    ap.add_argument("--eclr", type=int, default=0)
    ap.add_argument("--wopf", type=int, default=0)
    ap.add_argument("--b1gate", type=int, default=0)
    ap.add_argument("--b1sleep", type=int, default=2)
    ap.add_argument("--b1post", type=int, default=8)
    ap.add_argument("--pfdn", type=int, default=8)
    ap.add_argument("--pfnone", type=int, default=20)
    ap.add_argument("--wstep", type=int, default=4)
    ap.add_argument("--esplit", type=int, default=1)
    ap.add_argument("--qsets", type=int, default=2)
    ap.add_argument("--pf4", type=int, default=1)
    ap.add_argument("--exp", default="")
    ap.add_argument("--perturb", type=float, default=0.0)
    ap.add_argument("--vdist", type=int, default=3)
    ap.add_argument("--fullcheck", type=int, default=1)
    ap.add_argument("--round2", type=int, default=0)
    ap.add_argument("--stamps", default=None)
    ap.add_argument("--verbose", action="store_true")
    ap.add_argument("--dbgstamps", action="store_true")
    ap.add_argument("--fine", default="")
    o = ap.parse_args()
    g = Gen(o); A = g.build(); A.write(o.o, extra_header=HDR)
    print("wrote", o.o, len(A.L), "lines")
main()
```

```python
from asmlib import *
def gen(fn, pat, nwg=256, win=64, nwaves=4, dma=0):
    A = Asm()
    A(f"""
    s_cmp_ge_u32 s2, {nwg}
    s_cbranch_scc1 L_end
    s_memrealtime s[20:21]
    s_load_dwordx4 s[4:7], s[0:1], 8
    s_load_dwordx2 s[28:29], s[0:1], 88
    v_lshrrev_b32 v1, 6, v0
    v_and_b32 v2, 63, v0
    s_nop 0
    v_readfirstlane_b32 s10, v1
    s_lshl_b32 s11, s2, 2
    s_add_u32 s11, s11, s10
    s_cmp_ge_u32 s10, {nwaves}
    s_cbranch_scc1 L_end
    s_and_b32 s34, s2, 7
    s_lshr_b32 s35, s2, 3
    s_lshr_b32 s36, s35, 3
    s_and_b32 s37, s35, 7
    s_lshl_b32 s38, s34, 1
    s_and_b32 s39, s36, 1
    s_add_u32 s38, s38, s39
    s_lshr_b32 s39, s36, 1
    s_lshl_b32 s39, s39, 4
    s_add_u32 s38, s38, s39
    s_lshl_b32 s12, s38, 21
    s_lshl_b32 s33, s37, 15
    s_add_u32 s12, s12, s33
    s_lshl_b32 s33, s10, 13
    s_add_u32 s12, s12, s33
    s_waitcnt lgkmcnt(0)
    s_mov_b32 s16, s4
    s_mov_b32 s17, s5
    s_mov_b32 s18, 0x4000000
    s_mov_b32 s19, 0x00020000
    s_mov_b32 s24, s6
    s_mov_b32 s25, s7
    s_mov_b32 s26, 0x4000000
    s_mov_b32 s27, 0x00020000
    v_and_b32 v4, 15, v2
    v_lshrrev_b32 v5, 4, v2
    """)
    if pat == "plain":
        A("v_lshlrev_b32 v6, 9, v4"); A("v_lshl_add_u32 v6, v5, 4, v6"); imm = lambda t: t * 64
    elif pat == "vS":
        A("v_lshlrev_b32 v6, 11, v5"); A("v_lshl_add_u32 v6, v4, 4, v6"); imm = lambda t: (t // 2) * 512 + (t % 2) * 256
    elif pat == "lin":
        A("v_lshlrev_b32 v6, 4, v2"); imm = lambda t: None
    elif pat == "quad":
        A("v_and_b32 v8, 3, v2"); A("v_lshlrev_b32 v6, 4, v8"); A("v_bfe_u32 v9, v2, 2, 2"); A("v_lshl_add_u32 v6, v9, 9, v6"); A("v_lshl_add_u32 v6, v5, 6, v6")
        imm = lambda t: ((t % 4) // 2) * 2048 + (t % 2) * 256
    elif pat == "plain2":
        A("v_and_b32 v8, 7, v4"); A("v_lshlrev_b32 v6, 9, v8"); A("v_lshrrev_b32 v9, 3, v4"); A("v_lshl_add_u32 v6, v9, 6, v6"); A("v_lshl_add_u32 v6, v5, 4, v6")
        imm = lambda t: (t // 4) * 0 + (t % 4) * 128
    cnt = 0
    for srd, reg in (("s[16:19]", "a"), ("s[24:27]", "v")):
        for T in range(8):
            for t in range(8):
                n = T * 8 + t
                extra = 0
                if pat == "lin": extra = (t // 4) * 4096; im = (t % 4) * 1024
                elif pat == "quad": extra = (t // 4) * 4096; im = imm(t)
                elif pat == "plain2": extra = (t // 4) * 4096; im = imm(t)
                else: im = imm(t)
                if t % 4 == 0: A(f"s_add_u32 s13, s12, {T*262144 + extra}")
                cnt += 1
                if win < 64 and cnt > win - 4 and (cnt - 1) % 4 == 0: A(f"s_waitcnt vmcnt({win-4})")
                usedma = (dma == 1) or (dma == 2 and n % 2 == 0)
                if usedma:
                    A(f"s_mul_i32 s14, s10, 38912"); A(f"s_add_u32 m0, s14, {(cnt % 30)*1024 + 4096 - im if im <= 4096 else 0}"); A("s_nop 0")
                    A(f"buffer_load_dwordx4 v6, {srd}, s13 offen offset:{im} nt lds")
                elif reg == "a": A(f"buffer_load_dwordx4 a[{4*n}:{4*n+3}], v6, {srd}, s13 offen offset:{im} nt")
                else:
                    m = n % 56
                    A(f"buffer_load_dwordx4 v[{16+4*m}:{16+4*m+3}], v6, {srd}, s13 offen offset:{im} nt")
    A("""
    s_waitcnt vmcnt(0)
    s_memrealtime s[22:23]
    s_lshl_b32 s11, s11, 4
    s_add_u32 s28, s28, s11
    s_addc_u32 s29, s29, 0
    s_waitcnt lgkmcnt(0)
    v_mov_b32 v12, s20
    v_mov_b32 v13, s21
    v_mov_b32 v14, s22
    v_mov_b32 v15, s23
    v_mov_b32 v1, 0
    v_cmp_eq_u32 vcc, 0, v2
    s_and_saveexec_b64 s[30:31], vcc
    global_store_dwordx4 v1, v[12:15], s[28:29]
    L_end:
    s_endpgm
    """)
    A.write(fn)

gen("b10_reg_8.s", "vS", nwg=8); gen("b10_dma_8.s", "vS", nwg=8, dma=1); gen("b10_mix_8.s", "vS", nwg=8, dma=2)
gen("b10_reg_256.s", "vS", nwg=256); gen("b10_dma_256.s", "vS", nwg=256, dma=1); gen("b10_mix_256.s", "vS", nwg=256, dma=2)
```
